```python
import torch

def _softmax(x, axis=-1):
    return torch.softmax(x, dim=axis)
def _gelu(x):
    return torch.nn.functional.gelu(x, approximate="tanh")
def _silu(x):
    return torch.nn.functional.silu(x)
def _sigmoid(x):
    return torch.sigmoid(x)
def _layernorm(x, axis=-1, eps=1e-5):
    m = x.mean(dim=axis, keepdim=True)
    v = x.var(dim=axis, keepdim=True, unbiased=False)
    return (x - m) / torch.sqrt(v + eps)
def _scatter_add(tgt, idx, src, axis=0):
    return tgt.clone().index_add_(axis, idx, src)
def _segment_sum(src, seg, n):
    out = torch.zeros((n,) + src.shape[1:], dtype=src.dtype)
    return out.index_add_(0, seg, src)
def _pad(x, pw):
    flat = tuple(v for pair in reversed(pw) for v in pair)
    return torch.nn.functional.pad(x, flat)

kernel_name = 'interleave_layers__linear_attn_block__mha_block__prompt'

def setup_inputs():

    _w = (lambda a: (lambda t: t.to(torch.bfloat16) if t.is_floating_point() else t)(torch.as_tensor(a)))
    def _A_setup():
        B, S, D = 1, 2048, 576
        return {
            "x": _w((lambda *s: torch.randn(*s, dtype=torch.bfloat16) * 0.05)(B, S, D)),
            "wqkv": _w((lambda *s: torch.randn(*s, dtype=torch.bfloat16) * 0.05)(D, 3 * D)),
            "wo": _w((lambda *s: torch.randn(*s, dtype=torch.bfloat16) * 0.05)(D, D)),
        }
    _A_in = _A_setup()

    def _B_setup():
        B, S, D, H = 1, 2048, 576, 32
        return {
            "x": _w((lambda *s: torch.randn(*s, dtype=torch.bfloat16) * 0.05)(B, S, D)),
            "wqkv": _w((lambda *s: torch.randn(*s, dtype=torch.bfloat16) * 0.1)(D, 3 * D)),
            "wo": _w((lambda *s: torch.randn(*s, dtype=torch.bfloat16) * 0.05)(D, D)),
        }
    _B_in = _B_setup()

    return {
        "A_x": _A_in["x"],
        "A_wqkv": _A_in["wqkv"],
        "A_wo": _A_in["wo"],
        "B_x": _B_in["x"],
        "B_wqkv": _B_in["wqkv"],
        "B_wo": _B_in["wo"],
    }

def reference(A_x, A_wqkv, A_wo, B_x, B_wqkv, B_wo):
    def _A_ref(x, wqkv, wo):
        B, S, D = x.shape
        H = 32; Dh = D // H
        qkv = (lambda x, *d: x.permute(*d))((x @ wqkv).reshape(B, S, 3, H, Dh), 2, 0, 3, 1, 4)
        q, k, v = qkv[0], qkv[1], qkv[2]
        phi = lambda t: torch.where(t > 0, t + 1, torch.exp(t)) + 1e-6
        pq, pk = phi(q), phi(k)
        kv = torch.einsum("bhsd,bhse->bhde", pk, v)
        z = torch.einsum("bhsd->bhd", pk)
        num = torch.einsum("bhqd,bhde->bhqe", pq, kv)
        den = torch.einsum("bhqd,bhd->bhq", pq, z)[..., None] + 1e-6
        o = num / den
        return (lambda x, *d: x.permute(*d))(o, 0, 2, 1, 3).reshape(B, S, D) @ wo

    def _B_ref(x, wqkv, wo):
        B, S, D = x.shape
        H = 32
        Dh = D // H
        qkv = (lambda x, *d: x.permute(*d))((x @ wqkv).reshape(B, S, 3, H, Dh), 2, 0, 3, 1, 4)
        q, k, v = qkv[0], qkv[1], qkv[2]
        scores = torch.einsum("bhqd,bhkd->bhqk", q, k) * (Dh ** -0.5)
        p = _softmax(scores, axis=-1)
        o = torch.einsum("bhqk,bhkd->bhqd", p, v)
        return (lambda x, *d: x.permute(*d))(o, 0, 2, 1, 3).reshape(B, S, D) @ wo

    x = A_x
    x = x + _A_ref(_layernorm(x, axis=-1), A_wqkv, A_wo)
    x = x + _B_ref(_layernorm(x, axis=-1), B_wqkv, B_wo)
    x = x + _A_ref(_layernorm(x, axis=-1), A_wqkv, A_wo)
    x = x + _B_ref(_layernorm(x, axis=-1), B_wqkv, B_wo)
    return x
```

```python
import sys, re

NAME = "interleave_layers__linear_attn_block__mha_block__prompt"

XB = 2048 * 576 * 2
X1 = 0x0
X2 = 0x240000
X3 = 0x480000
PQ = 0x6C0000
OB = 0x900000
QPI = 0xB40000
QHEAD = 64 * 1152
KVI = 0xF40000
KVHEAD = 64 * 2432
KVACC = 0x1400000
KVACC_L = 32 * 19 * 32 * 4
WS_SIZE = 0x1500000

LOG2E = 1.4426950408889634
QSCALE = (18.0 ** -0.5) * LOG2E

import struct
def f2u(x):
    return struct.unpack("<I", struct.pack("<f", x))[0]


class Kern:
    def __init__(self, name, vgpr, lds, grid, block):
        self.name = name
        self.vgpr = vgpr
        self.lds = lds
        self.grid = grid
        self.block = block
        self.L = []
        self.uid = 0

    def e(self, s):
        m = re.search(r"offset:(\d+)", s)
        if m:
            o = int(m.group(1))
            if s.startswith("buffer_"):
                assert o <= 4095, s
            elif s.startswith("ds_"):
                assert o <= 65535, s
        self.L.append("    " + s)

    def lab(self, s):
        self.L.append(s + ":")

    def newlab(self, p):
        self.uid += 1
        return "L_%s_%s%d" % (self.name, p, self.uid)

    def srd(self, d, b, off, size):
        if off:
            self.e("s_add_u32 s%d, s%d, 0x%x" % (d, b, off))
            self.e("s_addc_u32 s%d, s%d, 0" % (d + 1, b + 1))
        else:
            self.e("s_mov_b32 s%d, s%d" % (d, b))
            self.e("s_mov_b32 s%d, s%d" % (d + 1, b + 1))
        self.e("s_mov_b32 s%d, 0x%x" % (d + 2, size))
        self.e("s_mov_b32 s%d, 0x00020000" % (d + 3))

    def text(self):
        out = []
        out.append(".globl %s" % self.name)
        out.append(".p2align 8")
        out.append(".type %s,@function" % self.name)
        out.append("%s:" % self.name)
        out += self.L
        return "\n".join(out) + "\n"

    def desc(self):
        v = (self.vgpr + 3) // 4 * 4
        return """.amdhsa_kernel %s
  .amdhsa_next_free_vgpr %d
  .amdhsa_next_free_sgpr 96
  .amdhsa_accum_offset %d
  .amdhsa_group_segment_fixed_size 0
  .amdhsa_kernarg_size 72
  .amdhsa_user_sgpr_count 2
  .amdhsa_user_sgpr_kernarg_segment_ptr 1
  .amdhsa_system_sgpr_workgroup_id_x 1
.end_amdhsa_kernel
""" % (self.name, v, v)


def vr(a, n):
    return "v[%d:%d]" % (a, a + n - 1)


KA_AX, KA_AWQKV, KA_AWO, KA_BX, KA_BWQKV, KA_BWO, KA_OUT, KA_DBG, KA_WS = [8 * i for i in range(9)]


def gen_init():
    k = Kern("init_kernel", 16, 0, (70, 1, 1), (256, 1, 1))
    e = k.e
    e("s_cmp_ge_u32 s2, 70")
    e("s_cbranch_scc1 L_init_end")
    e("s_load_dwordx2 s[4:5], s[0:1], %d" % KA_WS)
    e("s_waitcnt lgkmcnt(0)")
    k.srd(8, 4, 0, WS_SIZE)
    e("s_cmp_ge_u32 s2, 38")
    e("s_cbranch_scc1 L_init_ones")
    e("s_lshl_b32 s3, s2, 12")
    e("v_lshlrev_b32 v1, 4, v0")
    e("v_add_u32 v1, s3, v1")
    e("v_add_u32 v1, 0x%x, v1" % KVACC)
    for i in range(4):
        e("v_mov_b32 v%d, 0" % (4 + i))
    e("buffer_store_dwordx4 v[4:7], v1, s[8:11], 0 offen")
    e("s_endpgm")
    k.lab("L_init_ones")
    e("s_sub_u32 s3, s2, 38")
    e("s_mul_i32 s3, s3, %d" % KVHEAD)
    e("s_add_u32 s3, s3, 0x%x" % (KVI + 1152 + 288))
    e("v_lshrrev_b32 v1, 2, v0")
    e("v_mul_u32_u24 v1, 2432, v1")
    e("v_and_b32 v2, 3, v0")
    e("v_mul_u32_u24 v2, 320, v2")
    e("v_add3_u32 v1, v1, v2, s3")
    for i in range(4):
        e("v_mov_b32 v%d, 0x3f803f80" % (4 + i))
    e("buffer_store_dwordx4 v[4:7], v1, s[8:11], 0 offen")
    k.lab("L_init_end")
    e("s_endpgm")
    return k


A_STRIDE = 1184
B_ROW = 480
B_BUF = 32 * B_ROW + 4 * 128
A_BASE = 2 * B_BUF
QKV_LDS = A_BASE + 64 * A_STRIDE
T_STRIDE = 144


def emit_phi(e, x, t1, t2):
    e("v_min_f32 v%d, 0, v%d" % (t1, x))
    e("v_mul_f32 v%d, s40, v%d" % (t1, t1))
    e("v_exp_f32 v%d, v%d" % (t1, t1))
    e("v_max_f32 v%d, 0, v%d" % (t2, x))
    e("v_add_f32 v%d, s41, v%d" % (t2, t2))
    e("v_add_f32 v%d, v%d, v%d" % (x, t1, t2))


def gen_qkv(name, kind, xsrc, layer):
    k = Kern(name, 232, QKV_LDS, (256, 1, 1), (256, 1, 1))
    e = k.e
    ACC = 16
    FR = [72, 108]
    STG = 144
    VGO = 208
    VLO = 212
    VA = 216
    VB = 217
    XR = 16
    end = "L_%s_end" % name
    e("s_cmp_ge_u32 s2, 256")
    e("s_cbranch_scc1 %s" % end)
    e("s_load_dwordx2 s[4:5], s[0:1], %d" % KA_WS)
    e("s_load_dwordx2 s[6:7], s[0:1], %d" % (KA_AWQKV if kind == 'A' else KA_BWQKV))
    if xsrc is None:
        e("s_load_dwordx2 s[20:21], s[0:1], %d" % KA_AX)
    e("s_and_b32 s30, s2, 7")
    e("s_lshr_b32 s31, s2, 3")
    e("s_mov_b32 s40, 0x%x" % f2u(LOG2E))
    e("s_mov_b32 s41, 0x%x" % f2u(1e-6))
    e("s_mov_b32 s42, 0x3f803f80")
    e("s_waitcnt lgkmcnt(0)")
    if xsrc is None:
        k.srd(8, 20, 0, XB)
    else:
        k.srd(8, 4, xsrc, XB)
    k.srd(12, 6, 0, 576 * 3456)
    k.srd(16, 4, 0, WS_SIZE)
    e("v_lshrrev_b32 v1, 2, v0")
    e("s_lshl_b32 s32, s31, 6")
    e("v_add_u32 v1, s32, v1")
    e("v_mul_u32_u24 v1, 1152, v1")
    e("v_and_b32 v2, 3, v0")
    e("v_lshl_add_u32 v1, v2, 4, v1")
    for i in range(18):
        e("buffer_load_dwordx4 %s, v1, s[8:11], 0 offen offset:%d" % (vr(XR + 4 * i, 4), 64 * i))
    e("s_mul_i32 s33, s30, 144")
    for i in range(4):
        e("v_add_u32 v3, %d, v0" % (256 * i))
        if i == 3:
            e("v_min_u32 v3, 863, v3")
        e("v_mul_u32_u24 v4, 2428, v3")
        e("v_lshrrev_b32 v4, 16, v4")
        e("v_mul_u32_u24 v5, 27, v4")
        e("v_sub_u32 v5, v3, v5")
        e("v_mul_u32_u24 v6, 57, v5")
        e("v_lshrrev_b32 v6, 9, v6")
        e("v_mul_u32_u24 v7, 9, v6")
        e("v_sub_u32 v7, v5, v7")
        if kind == 'A':
            e("v_add_u32 v6, 1, v6")
            e("v_cmp_eq_u32 vcc, 3, v6")
            e("s_nop 1")
            e("v_cndmask_b32 v6, v6, 0, vcc" if False else "v_cndmask_b32_e64 v6, v6, 0, vcc")
        e("v_mul_u32_u24 v6, 1152, v6")
        e("v_mul_u32_u24 v8, 3456, v4")
        e("v_add3_u32 v8, v8, v6, s33")
        e("v_lshl_add_u32 v%d, v7, 4, v8" % (VGO + i))
        e("v_mul_u32_u24 v8, %d, v4" % B_ROW)
        e("v_lshrrev_b32 v9, 3, v4")
        e("v_lshl_add_u32 v8, v9, 7, v8")
        e("v_lshl_add_u32 v%d, v5, 4, v8" % (VLO + i))

    def wload(s):
        e("s_mov_b32 s34, %d" % (s * 32 * 3456))
        for i in range(4):
            e("buffer_load_dwordx4 %s, v%d, s[12:15], s34 offen" % (vr(STG + 16 * (s % 4) + 4 * i, 4), VGO + i))

    def wstore(s):
        buf = (s & 1) * B_BUF
        for i in range(4):
            e("ds_write_b128 v%d, %s offset:%d" % (VLO + i, vr(STG + 16 * (s % 4) + 4 * i, 4), buf))

    for s in range(4):
        wload(s)
    e("v_and_b32 v3, 63, v0")
    e("v_lshrrev_b32 v4, 6, v0")
    e("s_nop 0")
    e("v_readfirstlane_b32 s35, v4")
    e("v_and_b32 v5, 15, v3")
    e("v_lshrrev_b32 v6, 4, v3")
    e("s_lshr_b32 s36, s35, 1")
    e("s_and_b32 s37, s35, 1")
    e("s_lshl_b32 s38, s36, 5")
    e("v_add_u32 v7, s38, v5")
    e("v_mul_u32_u24 v7, %d, v7" % A_STRIDE)
    e("v_lshl_add_u32 v7, v6, 4, v7")
    e("v_add_u32 v%d, %d, v7" % (VA, A_BASE))
    e("v_mul_u32_u24 v7, %d, v6" % (8 * B_ROW + 128))
    e("v_lshrrev_b32 v8, 2, v3")
    e("v_and_b32 v8, 3, v8")
    e("v_mul_u32_u24 v8, %d, v8" % B_ROW)
    e("v_and_b32 v9, 3, v3")
    e("v_lshl_add_u32 v8, v9, 3, v8")
    e("s_mul_i32 s38, s37, 224")
    e("v_add3_u32 v%d, v7, v8, s38" % VB)
    e("s_waitcnt vmcnt(16)")
    e("v_mov_b32 v2, 0")
    e("v_mov_b32 v3, 0")
    e("v_mov_b32 v4, 0")
    e("v_mov_b32 v5, 0")
    for i in range(72):
        e("v_dot2_f32_bf16 v%d, v%d, s42, v%d" % (2 + (i & 1), XR + i, 2 + (i & 1)))
        e("v_dot2_f32_bf16 v%d, v%d, v%d, v%d" % (4 + (i & 1), XR + i, XR + i, 4 + (i & 1)))
    e("s_nop 2")
    e("v_add_f32 v2, v2, v3")
    e("v_add_f32 v4, v4, v5")
    e("s_nop 1")
    e("v_add_f32 v2, v2, v2 quad_perm:[1,0,3,2] row_mask:0xf bank_mask:0xf")
    e("v_add_f32 v4, v4, v4 quad_perm:[1,0,3,2] row_mask:0xf bank_mask:0xf")
    e("s_nop 1")
    e("v_add_f32 v2, v2, v2 quad_perm:[2,3,0,1] row_mask:0xf bank_mask:0xf")
    e("v_add_f32 v4, v4, v4 quad_perm:[2,3,0,1] row_mask:0xf bank_mask:0xf")
    e("v_mul_f32 v2, 0x%x, v2" % f2u(1.0 / 576))
    e("v_mul_f32 v4, 0x%x, v4" % f2u(1.0 / 576))
    e("v_fma_f32 v4, -v2, v2, v4")
    e("v_max_f32 v4, 0, v4")
    e("v_add_f32 v4, 0x%x, v4" % f2u(1e-5))
    e("v_rsq_f32 v4, v4")
    e("s_nop 0")
    e("v_mul_f32 v6, v2, v4")
    e("v_sub_f32 v6, 0, v6")
    e("v_mov_b32 v5, v4")
    e("v_mov_b32 v7, v6")
    e("v_lshrrev_b32 v8, 2, v0")
    e("v_mul_u32_u24 v8, %d, v8" % A_STRIDE)
    e("v_and_b32 v9, 3, v0")
    e("v_lshl_add_u32 v8, v9, 4, v8")
    e("v_add_u32 v8, %d, v8" % A_BASE)
    for i in range(18):
        for q in range(4):
            r = XR + 4 * i + q
            t = 10 + 2 * (q & 1)
            e("v_lshlrev_b32 v%d, 16, v%d" % (t, r))
            e("v_and_b32 v%d, 0xffff0000, v%d" % (t + 1, r))
            e("v_pk_fma_f32 %s, %s, v[4:5], v[6:7]" % (vr(t, 2), vr(t, 2)))
            e("v_cvt_pk_bf16_f32 v%d, v%d, v%d" % (r, t, t + 1))
        e("ds_write_b128 v8, %s offset:%d" % (vr(XR + 4 * i, 4), 64 * i))
    e("s_waitcnt vmcnt(8)")
    wstore(0)
    wstore(1)
    e("s_waitcnt lgkmcnt(0)")
    wload(4)
    wload(5)
    e("s_barrier")

    def fread(s):
        f = FR[s & 1]
        buf = (s & 1) * B_BUF
        for a in range(2):
            e("ds_read_b128 %s, v%d offset:%d" % (vr(f + 4 * a, 4), VA, a * 16 * A_STRIDE + s * 64))
        for tt in range(7):
            for hf in range(2):
                e("ds_read_b64_tr_b16 %s, v%d offset:%d" % (vr(f + 8 + 4 * tt + 2 * hf, 2), VB, buf + hf * 4 * B_ROW + 32 * tt))

    fread(0)
    e("s_cmp_eq_u32 s37, 1")
    lab1 = "L_%s_wc1" % name
    e("s_cbranch_scc1 %s" % lab1)

    def transposed(t):
        if kind == 'A':
            return t >= 9
        return t < 9

    for wc in range(2):
        if wc == 1:
            k.lab(lab1)
        e("s_waitcnt lgkmcnt(0)")
        for s in range(18):
            if s + 1 <= 17:
                fread(s + 1)
            f = FR[s & 1]
            n = 0
            for tt in range(7):
                t = 7 * wc + tt
                for a in range(2):
                    acc = ACC + 4 * (2 * tt + a)
                    c = "0" if s == 0 else vr(acc, 4)
                    xa = vr(f + 4 * a, 4)
                    wb = vr(f + 8 + 4 * tt, 4)
                    if transposed(t):
                        e("v_mfma_f32_16x16x32_bf16 %s, %s, %s, %s" % (vr(acc, 4), wb, xa, c))
                    else:
                        e("v_mfma_f32_16x16x32_bf16 %s, %s, %s, %s" % (vr(acc, 4), xa, wb, c))
                    n += 1
                    if n == 6 and s + 2 <= 17:
                        e("s_waitcnt vmcnt(%d)" % (4 * (min(17, s + 5) - (s + 2))))
                        wstore(s + 2)
            e("s_waitcnt lgkmcnt(0)")
            if s + 6 <= 17:
                wload(s + 6)
            e("s_barrier")
        e("s_nop 7")
        e("s_nop 1")
        e("v_and_b32 v3, 63, v0")
        e("v_and_b32 v5, 15, v3")
        e("v_lshrrev_b32 v6, 4, v3")
        e("s_lshl_b32 s38, s31, 6")
        e("s_lshl_b32 s39, s36, 5")
        e("s_add_u32 s38, s38, s39")
        if kind == 'A':
            epi_A(k, wc, layer, ACC)
        else:
            epi_B(k, wc, ACC)
        e("s_endpgm")
    k.lab(end)
    e("s_endpgm")
    return k


def epi_A(k, wc, layer, ACC):
    e = k.e
    e("v_mul_u32_u24 v7, %d, v5" % T_STRIDE)
    e("v_lshl_add_u32 v7, v6, 3, v7")
    e("s_lshl_b32 s39, s36, 6")
    e("v_add_u32 v7, s39, v7")
    e("v_cmp_gt_u32 s[44:45], 8, v5")
    e("v_add_u32 v8, s38, v5")
    e("v_mul_u32_u24 v8, 1152, v8")
    e("v_lshl_add_u32 v8, v6, 3, v8")
    e("s_mul_i32 s39, s30, 144")
    e("s_add_u32 s39, s39, 0x%x" % PQ)
    e("v_add_u32 v8, s39, v8")
    e("v_cmp_gt_u32 vcc, 2, v6")
    e("v_mov_b32 v9, 0x40000000")
    e("s_nop 0")
    e("v_cndmask_b32 v9, v9, v8, vcc")
    for tt in range(7):
        t = 7 * wc + tt
        for a in range(2):
            acc = ACC + 4 * (2 * tt + a)
            if t < 9:
                if t < 4:
                    for r in range(4):
                        emit_phi(e, acc + r, 10, 11)
                elif t == 4:
                    for r in range(4):
                        e("v_mov_b32 v12, v%d" % (acc + r))
                        emit_phi(e, 12, 10, 11)
                        e("v_cndmask_b32 v%d, v%d, v12, s[44:45]" % (acc + r, acc + r))
                e("v_cvt_pk_bf16_f32 v%d, v%d, v%d" % (acc, acc, acc + 1))
                e("v_cvt_pk_bf16_f32 v%d, v%d, v%d" % (acc + 1, acc + 2, acc + 3))
                e("ds_write_b64 v7, %s offset:%d" % (vr(acc, 2), t * 16 * T_STRIDE + a * 32))
            else:
                for r in range(4):
                    emit_phi(e, acc + r, 10, 11)
                e("v_cvt_pk_bf16_f32 v%d, v%d, v%d" % (acc, acc, acc + 1))
                e("v_cvt_pk_bf16_f32 v%d, v%d, v%d" % (acc + 1, acc + 2, acc + 3))
                base = 9 if t == 13 else 8
                e("s_mov_b32 s39, %d" % (a * 16 * 1152))
                e("buffer_store_dwordx2 %s, v%d, s[16:19], s39 offen offset:%d" % (vr(acc, 2), base, 32 * (t - 9)))
    if wc == 0:
        e("v_lshlrev_b32 v10, 2, v3")
        e("v_and_b32 v10, 127, v10")
        e("v_mov_b32 v11, 0x3f803f80")
        e("ds_write_b32 v10, v11 offset:%d" % (144 * T_STRIDE))
    e("s_waitcnt lgkmcnt(0)")
    e("s_barrier")
    e("v_and_b32 v5, 31, v3")
    e("v_lshrrev_b32 v6, 5, v3")
    e("s_mul_i32 s39, s35, 18")
    e("v_min_u32 v7, 17, v5")
    e("v_add_u32 v7, s39, v7")
    e("v_mul_u32_u24 v7, %d, v7" % T_STRIDE)
    e("v_lshl_add_u32 v7, v6, 4, v7")
    e("v_add_u32 v8, s39, v5")
    e("v_add_u32 v8, 72, v8")
    e("v_cmp_gt_u32 vcc, 18, v5")
    e("v_mov_b32 v9, 144")
    e("s_nop 0")
    e("v_cndmask_b32 v8, v9, v8, vcc")
    e("v_mul_u32_u24 v8, %d, v8" % T_STRIDE)
    e("v_lshl_add_u32 v8, v6, 4, v8")
    for st in range(4):
        e("ds_read_b128 %s, v7 offset:%d" % (vr(72 + 8 * st, 4), 32 * st))
        e("ds_read_b128 %s, v8 offset:%d" % (vr(76 + 8 * st, 4), 32 * st))
    e("s_lshl_b32 s39, s30, 2")
    e("s_add_u32 s39, s39, s35")
    e("s_mul_i32 s39, s39, 2432")
    e("s_add_u32 s39, s39, 0x%x" % (KVACC + layer * KVACC_L))
    e("v_lshlrev_b32 v10, 7, v5")
    e("v_lshl_add_u32 v10, v6, 4, v10")
    e("v_add_u32 v10, s39, v10")
    e("v_mov_b32 v9, 0x40000000")
    e("v_cmp_gt_u32 vcc, 19, v5")
    e("s_nop 1")
    e("v_cndmask_b32 v10, v9, v10, vcc")
    e("v_cmp_eq_u32 vcc, 0, v6")
    e("s_nop 1")
    e("v_cndmask_b32 v11, v9, v10, vcc")
    e("s_waitcnt lgkmcnt(0)")
    for st in range(4):
        c = "0" if st == 0 else vr(112, 16)
        e("v_mfma_f32_32x32x16_bf16 %s, %s, %s, %s" % (vr(112, 16), vr(72 + 8 * st, 4), vr(76 + 8 * st, 4), c))
    e("s_nop 7")
    e("s_nop 7")
    for r in range(10):
        d = (r & 3) + 8 * (r >> 2)
        e("buffer_atomic_add_f32 v%d, v%d, s[16:19], 0 offen offset:%d" % (112 + r, 10 if r < 8 else 11, 4 * d))


def epi_B(k, wc, ACC):
    e = k.e
    e("s_lshl_b32 s39, s31, 1")
    e("s_add_u32 s39, s39, s36")
    e("s_lshl_b32 s43, s30, 2")
    e("s_mul_i32 s44, s43, %d" % QHEAD)
    e("s_mul_i32 s45, s39, 1152")
    e("s_add_u32 s44, s44, s45")
    e("s_add_u32 s44, s44, 0x%x" % QPI)
    e("s_mul_i32 s45, s43, %d" % KVHEAD)
    e("s_mul_i32 s46, s39, 2432")
    e("s_add_u32 s45, s45, s46")
    e("s_add_u32 s45, s45, 0x%x" % KVI)
    e("s_mov_b32 s46, 0x%x" % f2u(QSCALE))
    e("s_mov_b32 s47, %d" % QHEAD)
    e("s_mov_b32 s48, %d" % KVHEAD)
    for tt in range(7):
        t = 7 * wc + tt
        if t < 9:
            for pr in range(2):
                e("v_lshlrev_b32 v7, 2, v6")
                e("v_add_u32 v7, %d, v7" % (16 * t + 2 * pr))
                e("v_cmp_gt_u32 vcc, 72, v7")
                e("v_subrev_u32 v8, 72, v7")
                e("s_nop 0")
                e("v_cndmask_b32 v7, v8, v7, vcc")
                e("v_mul_u32_u24 v8, 57, v7")
                e("v_lshrrev_b32 v8, 10, v8")
                e("v_mul_u32_u24 v9, 18, v8")
                e("v_sub_u32 v7, v7, v9")
                e("v_mul_lo_u32 v9, v8, s47")
                e("v_add_u32 v9, s44, v9")
                e("v_mul_lo_u32 v10, v8, s48")
                e("v_add_u32 v10, s45, v10")
                e("v_cndmask_b32 v9, v10, v9, vcc")
                e("v_mov_b32 v13, 1.0")
                e("v_mov_b32 v14, s46")
                e("v_cndmask_b32 v13, v13, v14, vcc")
                e("v_lshrrev_b32 v10, 3, v7")
                e("v_lshlrev_b32 v10, 9, v10")
                e("v_and_b32 v11, 7, v7")
                e("v_lshl_add_u32 v10, v11, 1, v10")
                e("v_add_u32 v9, v9, v10")
                e("v_cmp_gt_u32 vcc, 16, v7")
                e("v_lshlrev_b32 v10, 4, v5")
                e("v_lshlrev_b32 v11, 2, v5")
                e("v_cndmask_b32 v10, v11, v10, vcc")
                e("v_add_u32 v9, v9, v10")
                e("v_mov_b32 v10, 64")
                e("v_mov_b32 v11, 0x100")
                e("v_cndmask_b32 v10, v10, v11, vcc")
                e("v_add_u32 v10, v9, v10")
                for a in range(2):
                    acc = ACC + 4 * (2 * tt + a) + 2 * pr
                    e("v_mul_f32 v%d, v13, v%d" % (acc, acc))
                    e("v_mul_f32 v%d, v13, v%d" % (acc + 1, acc + 1))
                    e("v_cvt_pk_bf16_f32 v%d, v%d, v%d" % (acc, acc, acc + 1))
                    e("buffer_store_dword v%d, v%d, s[16:19], 0 offen" % (acc, 9 + a))
        else:
            e("v_add_u32 v7, %d, v5" % (16 * (t - 9)))
            e("v_mul_u32_u24 v8, 57, v7")
            e("v_lshrrev_b32 v8, 10, v8")
            e("v_mul_u32_u24 v9, 18, v8")
            e("v_sub_u32 v9, v7, v9")
            e("v_mul_lo_u32 v10, v8, s48")
            e("v_add_u32 v10, s45, v10")
            e("v_lshl_add_u32 v10, v9, 4, v10")
            e("v_and_b32 v11, 1, v6")
            e("v_mul_u32_u24 v11, 320, v11")
            e("v_lshrrev_b32 v12, 1, v6")
            e("v_lshl_add_u32 v11, v12, 3, v11")
            e("v_add_u32 v10, v10, v11")
            if t == 13:
                e("v_cmp_gt_u32 vcc, 72, v7")
                e("v_mov_b32 v11, 0x40000000")
                e("s_nop 0")
                e("v_cndmask_b32 v10, v11, v10, vcc")
            for a in range(2):
                acc = ACC + 4 * (2 * tt + a)
                e("v_cvt_pk_bf16_f32 v%d, v%d, v%d" % (acc, acc, acc + 1))
                e("v_cvt_pk_bf16_f32 v%d, v%d, v%d" % (acc + 1, acc + 2, acc + 3))
                e("buffer_store_dwordx2 %s, v10, s[16:19], 0 offen offset:%d" % (vr(acc, 2), 1152 + 640 * a))


def gen_attn(name):
    k = Kern(name, 128, KVHEAD, (256, 1, 1), (512, 1, 1))
    e = k.e
    SA, SB = 16, 32
    P = 48
    O = 56
    CM = 72
    Q1, Q2 = 88, 92
    K1, K2 = 96, 100
    VVa, VVb = 104, 108
    vK1, vK2, vV = 112, 113, 114
    end = "L_%s_end" % name
    e("s_cmp_ge_u32 s2, 256")
    e("s_cbranch_scc1 %s" % end)
    e("s_load_dwordx2 s[4:5], s[0:1], %d" % KA_WS)
    e("s_and_b32 s30, s2, 7")
    e("s_lshr_b32 s31, s2, 3")
    e("s_and_b32 s32, s31, 3")
    e("s_lshl_b32 s30, s30, 2")
    e("s_add_u32 s30, s30, s32")
    e("s_lshr_b32 s31, s31, 2")
    e("v_lshrrev_b32 v4, 6, v0")
    e("v_and_b32 v3, 63, v0")
    e("v_readfirstlane_b32 s35, v4")
    e("s_mul_i32 s33, s30, %d" % KVHEAD)
    e("s_waitcnt lgkmcnt(0)")
    e("s_add_u32 s8, s4, s33")
    e("s_addc_u32 s9, s5, 0")
    e("s_add_u32 s8, s8, 0x%x" % KVI)
    e("s_addc_u32 s9, s9, 0")
    e("s_mov_b32 s10, %d" % KVHEAD)
    e("s_mov_b32 s11, 0x00020000")
    k.srd(16, 4, 0, WS_SIZE)
    e("v_lshlrev_b32 v%d, 4, v3" % vK1)
    e("s_lshl_b32 s36, s31, 3")
    e("s_add_u32 s36, s36, s35")
    e("s_mul_i32 s37, s36, 1152")
    e("s_mul_i32 s38, s30, %d" % QHEAD)
    e("s_add_u32 s37, s37, s38")
    e("s_add_u32 s37, s37, 0x%x" % QPI)
    e("v_and_b32 v5, 31, v3")
    e("v_lshrrev_b32 v6, 5, v3")
    e("v_lshlrev_b32 v7, 2, v5")
    e("buffer_load_dwordx4 %s, v%d, s[16:19], s37 offen" % (vr(Q1, 4), vK1))
    e("buffer_load_dword v%d, v7, s[16:19], s37 offen offset:1024" % Q2)
    e("s_lshl_b32 s39, s35, 10")
    for i in range(19):
        e("s_mov_b32 m0, s39")
        e("s_nop 0")
        e("buffer_load_dwordx4 v%d, s[8:11], s39 offen lds" % vK1)
        e("s_add_u32 s39, s39, 8192")
    e("v_add_u32 v%d, 1024, v7" % vK2)
    e("v_min_u32 v8, 19, v5")
    e("v_lshlrev_b32 v8, 4, v8")
    e("v_mul_u32_u24 v9, 320, v6")
    e("v_add3_u32 v%d, v8, v9, 0" % vV)
    e("v_add_u32 v%d, 1152, v%d" % (vV, vV))
    for i in range(1, 4):
        e("v_mov_b32 v%d, 0" % (Q2 + i))
        e("v_mov_b32 v%d, 0" % (K2 + i))
    e("v_cmp_eq_u32 vcc, 0, v6")
    e("s_waitcnt vmcnt(19)")
    e("v_cndmask_b32 v%d, 0, v%d, vcc" % (Q2, Q2))
    e("s_mov_b32 s50, 0")

    def seg_wait(c):
        need = -(-((16 * (c + 1) + 1) * 2432) // 1024)
        need = min(need, 152)
        n = (need - 1) // 8 + 1
        return 19 - min(n, 19)

    e("s_waitcnt vmcnt(%d)" % seg_wait(0))
    e("s_barrier")
    e("ds_read_b128 %s, v%d" % (vr(K1, 4), vK1))
    e("ds_read_b32 v%d, v%d" % (K2, vK2))
    e("s_waitcnt lgkmcnt(0)")
    e("v_mfma_f32_32x32x16_bf16 %s, %s, %s, 0" % (vr(SA, 16), vr(K1, 4), vr(Q1, 4)))
    e("v_mfma_f32_32x32x16_bf16 %s, %s, %s, %s" % (vr(SA, 16), vr(K2, 4), vr(Q2, 4), vr(SA, 16)))
    e("s_nop 7")
    e("s_nop 7")
    e("v_max3_f32 v10, v%d, v%d, v%d" % (SA, SA + 1, SA + 2))
    for i in range(3, 15, 2):
        e("v_max3_f32 v10, v10, v%d, v%d" % (SA + i, SA + i + 1))
    e("v_max_f32 v10, v10, v%d" % (SA + 15))
    run = "L_%s_run" % name
    k.lab(run)
    e("v_mov_b32 v11, v10")
    e("s_nop 1")
    e("v_permlane32_swap_b32 v11, v10")
    e("s_nop 1")
    e("v_max_f32 v10, v10, v11")
    e("v_sub_f32 v10, 0, v10")
    for i in range(16):
        e("v_mov_b32 v%d, v10" % (CM + i))
        e("v_mov_b32 v%d, 0" % (O + i))
    e("v_lshlrev_b32 v%d, 4, v3" % vK1)
    e("v_add_u32 v%d, 1024, v7" % vK2)
    e("v_add3_u32 v%d, v8, v9, 0" % vV)
    e("v_add_u32 v%d, 1152, v%d" % (vV, vV))
    e("ds_read_b128 %s, v%d" % (vr(K1, 4), vK1))
    e("ds_read_b32 v%d, v%d" % (K2, vK2))
    e("s_waitcnt lgkmcnt(0)")
    e("v_mfma_f32_32x32x16_bf16 %s, %s, %s, %s" % (vr(SA, 16), vr(K1, 4), vr(Q1, 4), vr(CM, 16)))
    e("v_mfma_f32_32x32x16_bf16 %s, %s, %s, %s" % (vr(SA, 16), vr(K2, 4), vr(Q2, 4), vr(SA, 16)))
    e("ds_read_b128 %s, v%d offset:2432" % (vr(K1, 4), vK1))
    e("ds_read_b32 v%d, v%d offset:2432" % (K2, vK2))
    e("ds_read_b128 %s, v%d" % (vr(VVa, 4), vV))
    e("ds_read_b128 %s, v%d offset:640" % (vr(VVb, 4), vV))
    e("s_nop 7")

    def body(par, Sc, Sn):
        o = 2432 * par
        e("s_waitcnt lgkmcnt(2)")
        e("v_mfma_f32_32x32x16_bf16 %s, %s, %s, %s" % (vr(Sn, 16), vr(K1, 4), vr(Q1, 4), vr(CM, 16)))
        e("v_mfma_f32_32x32x16_bf16 %s, %s, %s, %s" % (vr(Sn, 16), vr(K2, 4), vr(Q2, 4), vr(Sn, 16)))
        e("ds_read_b128 %s, v%d offset:%d" % (vr(K1, 4), vK1, o + 2 * 2432))
        e("ds_read_b32 v%d, v%d offset:%d" % (K2, vK2, o + 2 * 2432))
        for i in range(16):
            e("v_exp_f32 v%d, v%d" % (Sc + i, Sc + i))
            if i & 1 and i >= 3:
                e("v_cvt_pk_bf16_f32 v%d, v%d, v%d" % (P + (i - 3) // 2, Sc + i - 3, Sc + i - 2))
        e("s_nop 0")
        e("v_cvt_pk_bf16_f32 v%d, v%d, v%d" % (P + 7, Sc + 14, Sc + 15))
        e("s_waitcnt lgkmcnt(2)")
        e("s_nop 0")
        e("v_mfma_f32_32x32x16_bf16 %s, %s, %s, %s" % (vr(O, 16), vr(VVa, 4), vr(P, 4), vr(O, 16)))
        e("v_mfma_f32_32x32x16_bf16 %s, %s, %s, %s" % (vr(O, 16), vr(VVb, 4), vr(P + 4, 4), vr(O, 16)))
        e("ds_read_b128 %s, v%d offset:%d" % (vr(VVa, 4), vV, o + 2432))
        e("ds_read_b128 %s, v%d offset:%d" % (vr(VVb, 4), vV, o + 2432 + 640))

    for c in range(4):
        if c > 0:
            sk = k.newlab("sk")
            e("s_cmp_lg_u32 s50, 0")
            e("s_cbranch_scc1 %s" % sk)
            e("s_waitcnt vmcnt(%d)" % seg_wait(c))
            e("s_barrier")
            k.lab(sk)
        lp = k.newlab("lp")
        e("s_mov_b32 s51, 0")
        k.lab(lp)
        body(0, SA, SB)
        body(1, SB, SA)
        e("v_add_u32 v%d, %d, v%d" % (vK1, 2 * 2432, vK1))
        e("v_add_u32 v%d, %d, v%d" % (vK2, 2 * 2432, vK2))
        e("v_add_u32 v%d, %d, v%d" % (vV, 2 * 2432, vV))
        e("s_add_u32 s51, s51, 1")
        e("s_cmp_lt_u32 s51, 8")
        e("s_cbranch_scc1 %s" % lp)
    e("s_waitcnt lgkmcnt(0)")
    e("s_nop 7")
    e("s_nop 7")
    e("v_max3_f32 v10, |v%d|, |v%d|, |v%d|" % (O, O + 1, O + 2))
    for i in range(3, 11, 2):
        e("v_max3_f32 v10, v10, |v%d|, |v%d|" % (O + i, O + i + 1))
    e("v_add_f32 v11, v%d, v%d" % (O, O + 1))
    for i in range(2, 11):
        e("v_add_f32 v11, v11, v%d" % (O + i))
    e("v_mov_b32 v12, 0x%x" % f2u(2.0 ** 100))
    e("v_cmp_nlt_f32 vcc, v10, v12")
    e("v_cmp_u_f32 s[52:53], v11, v11")
    e("s_nop 3")
    e("s_or_b64 vcc, vcc, s[52:53]")
    e("s_cmp_lg_u32 s50, 0")
    fin = "L_%s_fin" % name
    e("s_cbranch_scc1 %s" % fin)
    e("s_cbranch_vccz %s" % fin)
    e("s_mov_b32 s50, 1")
    e("v_lshlrev_b32 v%d, 4, v3" % vK1)
    e("v_add_u32 v%d, 1024, v7" % vK2)
    e("v_mov_b32 v10, 0xff800000")
    e("s_mov_b32 s51, 0")
    fl = "L_%s_fl" % name
    k.lab(fl)
    e("ds_read_b128 %s, v%d" % (vr(K1, 4), vK1))
    e("ds_read_b32 v%d, v%d" % (K2, vK2))
    e("s_waitcnt lgkmcnt(0)")
    e("v_mfma_f32_32x32x16_bf16 %s, %s, %s, 0" % (vr(SA, 16), vr(K1, 4), vr(Q1, 4)))
    e("v_mfma_f32_32x32x16_bf16 %s, %s, %s, %s" % (vr(SA, 16), vr(K2, 4), vr(Q2, 4), vr(SA, 16)))
    e("s_nop 7")
    e("s_nop 7")
    for i in range(0, 16, 2):
        e("v_max3_f32 v10, v10, v%d, v%d" % (SA + i, SA + i + 1))
    e("v_add_u32 v%d, 2432, v%d" % (vK1, vK1))
    e("v_add_u32 v%d, 2432, v%d" % (vK2, vK2))
    e("s_add_u32 s51, s51, 1")
    e("s_cmp_lt_u32 s51, 64")
    e("s_cbranch_scc1 %s" % fl)
    e("s_branch %s" % run)
    k.lab(fin)
    e("v_mov_b32 v10, v%d" % (O + 10))
    e("v_mov_b32 v11, v10")
    e("s_nop 1")
    e("v_permlane32_swap_b32 v10, v11")
    e("s_nop 1")
    e("v_rcp_f32 v10, v10")
    e("s_nop 0")
    for i in range(10):
        e("v_mul_f32 v%d, v10, v%d" % (O + i, O + i))
    for i in range(5):
        e("v_cvt_pk_bf16_f32 v%d, v%d, v%d" % (O + i, O + 2 * i, O + 2 * i + 1))
    e("s_lshl_b32 s37, s36, 5")
    e("v_add_u32 v12, s37, v5")
    e("v_mul_u32_u24 v12, 1152, v12")
    e("v_lshl_add_u32 v12, v6, 3, v12")
    e("s_mul_i32 s37, s30, 36")
    e("s_add_u32 s37, s37, 0x%x" % OB)
    e("v_add_u32 v12, s37, v12")
    e("v_cmp_eq_u32 vcc, 0, v6")
    e("v_mov_b32 v13, 0x40000000")
    e("s_nop 0")
    e("v_cndmask_b32 v13, v13, v12, vcc")
    e("buffer_store_dwordx2 %s, v12, s[16:19], 0 offen" % vr(O, 2))
    e("buffer_store_dwordx2 %s, v12, s[16:19], 0 offen offset:16" % vr(O + 2, 2))
    e("buffer_store_dword v%d, v13, s[16:19], 0 offen offset:32" % (O + 4))
    k.lab(end)
    e("s_endpgm")
    return k


OB_ROW = 160
OB_HALF = 288 * OB_ROW + 36 * 128
OUT_LDS = OB_HALF + 64 * A_STRIDE


def gen_out(name, kind, xsrc, xdst, layer):
    k = Kern(name, 248, OUT_LDS, (256, 1, 1), (256, 1, 1))
    e = k.e
    ACC = 16
    XRES = 36
    BF = 48
    AF = 72
    BS = 144
    VG = 240
    VL = 241
    VB = 242
    VA = 243
    VX = 244
    VX4 = 245
    end = "L_%s_end" % name
    e("s_cmp_ge_u32 s2, 256")
    e("s_cbranch_scc1 %s" % end)
    e("s_load_dwordx2 s[4:5], s[0:1], %d" % KA_WS)
    e("s_load_dwordx2 s[6:7], s[0:1], %d" % (KA_AWO if kind == 'A' else KA_BWO))
    if xsrc is None:
        e("s_load_dwordx2 s[20:21], s[0:1], %d" % KA_AX)
    if xdst is None:
        e("s_load_dwordx2 s[22:23], s[0:1], %d" % KA_OUT)
    e("s_and_b32 s30, s2, 7")
    e("s_lshr_b32 s31, s2, 3")
    e("v_lshrrev_b32 v4, 6, v0")
    e("v_and_b32 v3, 63, v0")
    e("v_readfirstlane_b32 s35, v4")
    e("v_and_b32 v5, 15, v3")
    e("v_lshrrev_b32 v6, 4, v3")
    e("s_waitcnt lgkmcnt(0)")
    if xsrc is None:
        k.srd(8, 20, 0, XB)
    else:
        k.srd(8, 4, xsrc, XB)
    k.srd(12, 6, 0, 576 * 1152)
    if xdst is None:
        k.srd(24, 22, 0, XB)
    else:
        k.srd(24, 4, xdst, XB)
    k.srd(16, 4, (PQ if kind == 'A' else OB), XB)
    k.srd(44, 4, KVACC + layer * KVACC_L, KVACC_L)
    e("v_subrev_u32 v7, 216, v0")
    e("v_cmp_gt_u32 vcc, 216, v0")
    e("s_nop 1")
    e("v_cndmask_b32 v7, v7, v0, vcc")
    e("v_mul_u32_u24 v8, 7282, v7")
    e("v_lshrrev_b32 v8, 16, v8")
    e("v_mul_u32_u24 v9, 9, v8")
    e("v_sub_u32 v9, v7, v9")
    e("s_mul_i32 s33, s30, 144")
    e("v_mul_u32_u24 v10, 1152, v8")
    e("v_lshl_add_u32 v10, v9, 4, v10")
    e("v_add_u32 v%d, s33, v10" % VG)
    e("v_mul_u32_u24 v10, %d, v8" % OB_ROW)
    e("v_lshrrev_b32 v11, 3, v8")
    e("v_lshl_add_u32 v10, v11, 7, v10")
    e("v_lshl_add_u32 v%d, v9, 4, v10" % VL)

    def bload(lo, hi):
        for i in range(lo, hi):
            e("s_mov_b32 s34, %d" % (i * 24 * 1152))
            e("buffer_load_dwordx4 %s, v%d, s[12:15], s34 offen" % (vr(BS + 4 * i, 4), VG))

    def bstore(half):
        for i in range(12):
            e("ds_write_b128 v%d, %s offset:%d" % (VL, vr(BS + 4 * (12 * half + i), 4), i * (24 * OB_ROW + 3 * 128)))

    e("s_lshl_b32 s38, s31, 6")
    e("s_lshl_b32 s39, s35, 4")
    e("s_add_u32 s39, s38, s39")
    e("v_add_u32 v7, s39, v5")
    e("v_mul_u32_u24 v7, 1152, v7")
    e("v_lshl_add_u32 v8, v6, 3, v7")
    e("v_add_u32 v%d, s33, v8" % VX)
    e("v_cmp_gt_u32 vcc, 2, v6")
    e("v_mov_b32 v9, 0x40000000")
    e("s_nop 0")
    e("v_cndmask_b32 v%d, v9, v%d, vcc" % (VX4, VX))
    e("v_mul_u32_u24 v8, %d, v6" % (8 * OB_ROW + 128))
    e("v_lshrrev_b32 v9, 2, v3")
    e("v_and_b32 v9, 3, v9")
    e("v_mul_u32_u24 v9, %d, v9" % OB_ROW)
    e("v_and_b32 v10, 3, v3")
    e("v_lshl_add_u32 v9, v10, 3, v9")
    e("v_add_u32 v%d, v8, v9" % VB)
    if kind == 'B':
        e("v_lshl_add_u32 v8, v6, 4, v7")
        for s in range(18):
            e("buffer_load_dwordx4 %s, v8, s[16:19], 0 offen offset:%d" % (vr(AF + 4 * s, 4), 64 * s))
        bload(0, 24)
        for t in range(5):
            e("buffer_load_dwordx2 %s, v%d, s[8:11], 0 offen offset:%d" % (vr(XRES + 2 * t, 2), VX4 if t == 4 else VX, 32 * t))
        e("s_waitcnt vmcnt(17)")
        bstore(0)
    else:
        bload(0, 12)
        for t in range(5):
            e("buffer_load_dwordx2 %s, v%d, s[8:11], 0 offen offset:%d" % (vr(XRES + 2 * t, 2), VX4 if t == 4 else VX, 32 * t))
        e("s_mul_i32 s40, s35, %d" % (8 * 2432))
        e("v_lshlrev_b32 v8, 7, v5")
        e("v_lshl_add_u32 v8, v6, 5, v8")
        e("v_add_u32 v8, s40, v8")
        e("v_and_b32 v9, 3, v5")
        e("v_min_u32 v9, 2, v9")
        e("v_add_u32 v9, 16, v9")
        e("v_lshlrev_b32 v9, 7, v9")
        e("v_lshl_add_u32 v9, v6, 5, v9")
        e("v_add_u32 v9, s40, v9")
        e("v_add_u32 v10, s38, v5")
        e("v_mul_u32_u24 v10, 1152, v10")
        e("v_lshl_add_u32 v10, v6, 4, v10")
        e("s_mul_i32 s41, s35, 288")
        e("v_add_u32 v10, s41, v10")
        e("v_mul_u32_u24 v11, %d, v5" % A_STRIDE)
        e("v_lshl_add_u32 v12, v6, 3, v11")
        e("v_add_u32 v12, s41, v12")
        e("v_add_u32 v12, %d, v12" % OB_HALF)
        e("v_add_u32 v11, s41, v11")
        e("v_add_u32 v11, %d, v11" % (OB_HALF + 32))
        e("s_mov_b32 s42, 0x%x" % f2u(1e-6))
        KVR = AF
        PQR = AF + 16
        D = AF + 32
        for hh in range(8):
            e("s_mov_b32 s34, %d" % (hh * 2432))
            e("buffer_load_dwordx4 %s, v8, s[44:47], s34 offen" % (vr(KVR, 4)))
            e("buffer_load_dwordx4 %s, v8, s[44:47], s34 offen offset:16" % (vr(KVR + 4, 4)))
            e("buffer_load_dwordx4 %s, v9, s[44:47], s34 offen" % (vr(KVR + 8, 4)))
            e("buffer_load_dwordx4 %s, v9, s[44:47], s34 offen offset:16" % (vr(KVR + 12, 4)))
            for a in range(4):
                e("s_mov_b32 s34, %d" % (a * 16 * 1152))
                e("buffer_load_dwordx4 %s, v10, s[16:19], s34 offen offset:%d" % (vr(PQR + 4 * a, 4), hh * 36))
            e("s_waitcnt vmcnt(0)")
            for i in range(8):
                e("v_cvt_pk_bf16_f32 v%d, v%d, v%d" % (KVR + i, KVR + 2 * i, KVR + 2 * i + 1))
            e("s_nop 1")
            for a in range(4):
                e("v_mfma_f32_16x16x32_bf16 %s, %s, %s, 0" % (vr(D + 8 * a, 4), vr(KVR, 4), vr(PQR + 4 * a, 4)))
                e("v_mfma_f32_16x16x32_bf16 %s, %s, %s, 0" % (vr(D + 8 * a + 4, 4), vr(KVR + 4, 4), vr(PQR + 4 * a, 4)))
            e("s_nop 7")
            e("s_nop 1")
            for a in range(4):
                d = D + 8 * a
                e("v_add_f32 v%d, s42, v%d" % (d + 6, d + 6))
                e("v_rcp_f32 v%d, v%d" % (d + 6, d + 6))
                e("s_nop 0")
                for i in range(6):
                    e("v_mul_f32 v%d, v%d, v%d" % (d + i, d + 6, d + i))
                e("v_cvt_pk_bf16_f32 v%d, v%d, v%d" % (d, d, d + 1))
                e("v_cvt_pk_bf16_f32 v%d, v%d, v%d" % (d + 1, d + 2, d + 3))
                e("v_cvt_pk_bf16_f32 v%d, v%d, v%d" % (d + 2, d + 4, d + 5))
                off = a * 16 * A_STRIDE + hh * 36
                e("ds_write_b32 v12, v%d offset:%d" % (d, off))
                e("ds_write_b32 v12, v%d offset:%d" % (d + 1, off + 4))
                e("ds_write_b32 v11, v%d offset:%d" % (d + 2, off))
        bstore(0)
        bload(12, 24)
        e("s_lshl_b32 s40, s35, 4")
        e("v_add_u32 v8, s40, v5")
        e("v_mul_u32_u24 v8, %d, v8" % A_STRIDE)
        e("v_lshl_add_u32 v8, v6, 4, v8")
        e("v_add_u32 v%d, %d, v8" % (VA, OB_HALF))
    e("s_waitcnt lgkmcnt(0)")
    e("s_barrier")
    if kind == 'A':
        for s in range(18):
            e("ds_read_b128 %s, v%d offset:%d" % (vr(AF + 4 * s, 4), VA, 64 * s))
    for half in range(2):
        if half == 1:
            e("s_barrier")
            e("s_waitcnt vmcnt(%d)" % (5 if kind == 'B' else 0))
            bstore(1)
            e("s_waitcnt lgkmcnt(0)")
            e("s_barrier")
        for ss in range(9):
            s = 9 * half + ss
            for t in range(5):
                for hf in range(2):
                    e("ds_read_b64_tr_b16 %s, v%d offset:%d" % (vr(BF + 4 * t + 2 * hf, 2), VB,
                      ss * (32 * OB_ROW + 4 * 128) + hf * 4 * OB_ROW + 32 * t))
            e("s_waitcnt lgkmcnt(0)")
            for t in range(5):
                c = "0" if s == 0 else vr(ACC + 4 * t, 4)
                e("v_mfma_f32_16x16x32_bf16 %s, %s, %s, %s" % (vr(ACC + 4 * t, 4), vr(BF + 4 * t, 4), vr(AF + 4 * s, 4), c))
    e("s_waitcnt vmcnt(0)")
    e("s_nop 7")
    e("s_nop 1")
    for t in range(5):
        a = ACC + 4 * t
        x = XRES + 2 * t
        e("v_lshlrev_b32 v8, 16, v%d" % x)
        e("v_and_b32 v9, 0xffff0000, v%d" % x)
        e("v_lshlrev_b32 v10, 16, v%d" % (x + 1))
        e("v_and_b32 v11, 0xffff0000, v%d" % (x + 1))
        for r in range(4):
            e("v_add_f32 v%d, v%d, v%d" % (a + r, a + r, 8 + r))
        e("v_cvt_pk_bf16_f32 v%d, v%d, v%d" % (a, a, a + 1))
        e("v_cvt_pk_bf16_f32 v%d, v%d, v%d" % (a + 1, a + 2, a + 3))
        e("buffer_store_dwordx2 %s, v%d, s[24:27], 0 offen offset:%d" % (vr(a, 2), VX4 if t == 4 else VX, 32 * t))
    k.lab(end)
    e("s_endpgm")
    return k


def main():
    ks = [
        gen_init(),
        gen_qkv("qkv_a1_kernel", 'A', None, 0),
        gen_out("out_a1_kernel", 'A', None, X1, 0),
        gen_qkv("qkv_b1_kernel", 'B', X1, 0),
        gen_attn("attn_kernel"),
        gen_out("out_b1_kernel", 'B', X1, X2, 0),
        gen_qkv("qkv_a2_kernel", 'A', X2, 1),
        gen_out("out_a2_kernel", 'A', X2, X3, 1),
        gen_qkv("qkv_b2_kernel", 'B', X3, 1),
        gen_out("out_b2_kernel", 'B', X3, None, 1),
    ]
    byname = {k.name: k for k in ks}
    order = ["init_kernel", "qkv_a1_kernel", "out_a1_kernel", "qkv_b1_kernel", "attn_kernel", "out_b1_kernel",
             "qkv_a2_kernel", "out_a2_kernel", "qkv_b2_kernel", "attn_kernel", "out_b2_kernel"]
    hdr = open("cdna_kernels/%s.s.ref" % NAME).read().split("; Override launch geometry")[0]
    out = hdr
    for n in order:
        k = byname[n]
        out += "; @launch kernel=%s grid=(%d,%d,%d) block=(%d,%d,%d) lds=%d\n" % ((n,) + k.grid + k.block + (k.lds,))
    out += '.amdgcn_target "amdgcn-amd-amdhsa--gfx950"\n.text\n'
    for k in ks:
        out += k.text()
    out += '.section .rodata,"a"\n'
    for k in ks:
        out += ".p2align 6\n" + k.desc()
    open("cdna_kernels/%s.s" % NAME, "w").write(out)


if __name__ == "__main__":
    main()
```

```python
import sys, re

NAME = "interleave_layers__linear_attn_block__mha_block__prompt"

XB = 2048 * 576 * 2
X1 = 0x0
X2 = 0x240000
X3 = 0x480000
PQ = 0x6C0000
OB = 0x900000
QPI = 0xB40000
QHEAD = 64 * 1152
KVI = 0xF40000
KVHEAD = 64 * 2432
KVACC = 0x1400000
KVACC_L = 32 * 19 * 32 * 4
WFA = 0x2000000
WFB = 0x2240000
WF_SZ = 8 * 36 * 8 * 1024
STATS = 0x1440000
WOA = 0x1840000
WOB = 0x1900000
WO_SZ = 8 * 81 * 1024
CS = 0x1480000
CS_MAT = 6 * 8 * 1024
PQF = 0x1A00000
PQF_SZ = 128 * 32 * 768
X0F = 0x1D00000
WS_SIZE = 0x2500000

LOG2E = 1.4426950408889634
QSCALE = (18.0 ** -0.5) * LOG2E

import struct
def f2u(x):
    return struct.unpack("<I", struct.pack("<f", x))[0]


EXP = {}
STAMPS = False
STAMP_WG = 0


class Kern:
    def __init__(self, name, vgpr, lds, grid, block):
        self.name = name
        self.vgpr = vgpr
        self.lds = lds
        self.grid = grid
        self.block = block
        self.L = []
        self.uid = 0

    def e(self, s):
        m = re.search(r"offset:(\d+)", s)
        if m:
            o = int(m.group(1))
            if s.startswith("buffer_"):
                assert o <= 4095, s
            elif s.startswith("ds_"):
                assert o <= 65535, s
        self.L.append("    " + s)

    def lab(self, s):
        self.L.append(s + ":")

    def newlab(self, p):
        self.uid += 1
        return "L_%s_%s%d" % (self.name, p, self.uid)

    def srd(self, d, b, off, size):
        if off:
            self.e("s_add_u32 s%d, s%d, 0x%x" % (d, b, off))
            self.e("s_addc_u32 s%d, s%d, 0" % (d + 1, b + 1))
        else:
            self.e("s_mov_b32 s%d, s%d" % (d, b))
            self.e("s_mov_b32 s%d, s%d" % (d + 1, b + 1))
        self.e("s_mov_b32 s%d, 0x%x" % (d + 2, size))
        self.e("s_mov_b32 s%d, 0x00020000" % (d + 3))

    def stamp(self, i):
        if STAMPS:
            self.e("s_memtime s[%d:%d]" % (64 + 2 * i, 65 + 2 * i))
            self.nst = max(getattr(self, "nst", 0), i + 1)

    def dump(self):
        if STAMPS and getattr(self, "nst", 0):
            l = self.newlab("nd")
            self.e("s_cmp_lg_u32 s2, %d" % STAMP_WG)
            self.e("s_cbranch_scc1 %s" % l)
            self.e("s_load_dwordx2 s[60:61], s[0:1], %d" % KA_DBG)
            self.e("s_waitcnt lgkmcnt(0)")
            self.e("s_mov_b32 s62, 256")
            self.e("s_mov_b32 s63, 0x00020000")
            self.e("v_lshrrev_b32 v1, 6, v0")
            if EXP.get("hiwaves"):
                self.e("v_xor_b32 v1, 4, v1")
            self.e("v_lshlrev_b32 v1, 6, v1")
            for i in range(self.nst):
                self.e("v_mov_b32 v2, s%d" % (64 + 2 * i))
                self.e("buffer_store_dword v2, v1, s[60:63], 0 offen offset:%d" % (4 * i))
            self.lab(l)

    def text(self):
        if getattr(self, "stub", None):
            return (".globl %s\n.p2align 8\n.type %s,@function\n%s:\n" % (self.name, self.name, self.name)
                    + "".join("    %s\n" % x for x in self.stub))
        out = []
        out.append(".globl %s" % self.name)
        out.append(".p2align 8")
        out.append(".type %s,@function" % self.name)
        out.append("%s:" % self.name)
        out += self.L
        return "\n".join(out) + "\n"

    def desc(self):
        v = (self.vgpr + 3) // 4 * 4
        return """.amdhsa_kernel %s
  .amdhsa_next_free_vgpr %d
  .amdhsa_next_free_sgpr 96
  .amdhsa_accum_offset %d
  .amdhsa_group_segment_fixed_size 0
  .amdhsa_kernarg_size 72
  .amdhsa_user_sgpr_count 2
  .amdhsa_user_sgpr_kernarg_segment_ptr 1
  .amdhsa_system_sgpr_workgroup_id_x 1
.end_amdhsa_kernel
""" % (self.name, v, v)


def vr(a, n):
    return "v[%d:%d]" % (a, a + n - 1)


KA_AX, KA_AWQKV, KA_AWO, KA_BX, KA_BWQKV, KA_BWO, KA_OUT, KA_DBG, KA_WS = [8 * i for i in range(9)]


OUTFILE = 'st.s'
PB_ROW = 544
OB_ROW = 160


def gen_prep():
    NQ = 96
    NO = 288
    NU = NQ + NO
    NX = 128
    k = Kern("prep_kernel", 128, 3 * 32 * PB_ROW, (NU + 38 + NX, 1, 1), (256, 1, 1))
    e = k.e
    e("s_cmp_ge_u32 s2, %d" % (NU + 38 + NX))
    e("s_cbranch_scc1 L_prep_end")
    e("s_load_dwordx2 s[4:5], s[0:1], %d" % KA_WS)
    e("s_load_dwordx2 s[20:21], s[0:1], %d" % KA_AWQKV)
    e("s_load_dwordx2 s[22:23], s[0:1], %d" % KA_BWQKV)
    e("s_load_dwordx2 s[24:25], s[0:1], %d" % KA_AWO)
    e("s_load_dwordx2 s[26:27], s[0:1], %d" % KA_BWO)
    e("s_load_dwordx2 s[44:45], s[0:1], %d" % KA_AX)
    e("v_and_b32 v3, 63, v0")
    e("v_lshrrev_b32 v4, 6, v0")
    e("s_nop 0")
    e("v_readfirstlane_b32 s35, v4")
    e("v_lshlrev_b32 v5, 4, v3")
    e("v_lshrrev_b32 v6, 4, v3")
    e("v_lshrrev_b32 v8, 2, v3")
    e("v_and_b32 v8, 3, v8")
    e("v_and_b32 v9, 3, v3")
    e("s_waitcnt lgkmcnt(0)")
    k.srd(16, 4, 0, WS_SIZE)
    e("s_cmp_ge_u32 s2, %d" % NU)
    e("s_cbranch_scc1 L_prep_misc")
    e("s_cmp_ge_u32 s2, %d" % NQ)
    e("s_cbranch_scc1 L_prep_wo")
    e("s_cmp_ge_u32 s2, 48")
    e("s_cselect_b32 s30, 1, 0")
    e("s_mul_i32 s31, s30, 48")
    e("s_sub_u32 s31, s2, s31")
    e("s_mul_i32 s32, s31, 10923")
    e("s_lshr_b32 s32, s32, 16")
    e("s_mul_i32 s33, s32, 6")
    e("s_sub_u32 s33, s31, s33")
    e("s_cmp_eq_u32 s30, 0")
    e("s_cselect_b32 s8, s20, s22")
    e("s_cselect_b32 s9, s21, s23")
    e("s_mov_b32 s10, %d" % (576 * 3456))
    e("s_mov_b32 s11, 0x00020000")
    e("s_cselect_b32 s36, 1, 0")
    e("s_mul_i32 s37, s32, 144")
    e("s_mul_i32 s38, s33, %d" % (96 * 3456))
    e("s_add_u32 s37, s37, s38")
    for i in range(4):
        e("v_add_u32 v10, %d, v0" % (256 * i))
        if i == 3:
            e("v_min_u32 v10, 863, v10")
        e("v_mul_u32_u24 v11, 2428, v10")
        e("v_lshrrev_b32 v11, 16, v11")
        e("v_mul_u32_u24 v12, 27, v11")
        e("v_sub_u32 v12, v10, v12")
        e("v_mul_u32_u24 v13, 57, v12")
        e("v_lshrrev_b32 v13, 9, v13")
        e("v_mul_u32_u24 v14, 9, v13")
        e("v_sub_u32 v14, v12, v14")
        e("v_lshrrev_b32 v2, 1, v13")
        e("v_lshl_add_u32 v12, v2, 1, v12")
        e("v_add_u32 v13, s36, v13")
        e("v_cmp_eq_u32 vcc, 3, v13")
        e("s_nop 1")
        e("v_cndmask_b32_e64 v13, v13, 0, vcc")
        e("v_mul_u32_u24 v13, 1152, v13")
        e("v_mul_u32_u24 v15, 3456, v11")
        e("v_add3_u32 v15, v15, v13, s37")
        e("v_lshl_add_u32 v15, v14, 4, v15")
        for st in range(3):
            e("s_mov_b32 s34, %d" % (st * 32 * 3456))
            e("buffer_load_dwordx4 %s, v15, s[8:11], s34 offen" % vr(32 + 16 * st + 4 * i, 4))
        e("v_mul_u32_u24 v15, %d, v11" % PB_ROW)
        e("v_lshl_add_u32 v%d, v12, 4, v15" % (20 + i))
    for i in range(4):
        e("v_mov_b32 v%d, 0" % (24 + i))
    e("v_min_u32 v10, 159, v0")
    e("v_mul_u32_u24 v11, 13108, v10")
    e("v_lshrrev_b32 v11, 16, v11")
    e("v_mul_u32_u24 v12, 5, v11")
    e("v_sub_u32 v12, v10, v12")
    e("v_cmp_gt_u32 vcc, 2, v12")
    e("v_add_u32 v13, 18, v12")
    e("v_add_u32 v14, 27, v12")
    e("v_cndmask_b32 v12, v14, v13, vcc")
    e("v_mul_u32_u24 v11, %d, v11" % PB_ROW)
    e("v_lshl_add_u32 v11, v12, 4, v11")
    for st in range(3):
        e("ds_write_b128 v11, v[24:27] offset:%d" % (st * 32 * PB_ROW))
    e("v_lshrrev_b32 v7, 1, v6")
    e("v_lshl_add_u32 v7, v7, 3, v8")
    e("v_mul_u32_u24 v7, %d, v7" % PB_ROW)
    e("v_and_b32 v10, 1, v6")
    e("v_lshl_add_u32 v7, v10, 5, v7")
    e("v_lshl_add_u32 v7, v9, 3, v7")
    e("s_lshl_b32 s38, s35, 6")
    e("v_add_u32 v7, s38, v7")
    for i in range(4):
        e("v_mov_b32 v%d, 0x3f803f80" % (24 + i))
    e("s_mul_i32 s38, s32, 36")
    e("s_mul_i32 s39, s33, 6")
    e("s_add_u32 s38, s38, s39")
    e("s_lshl_b32 s38, s38, 3")
    e("s_add_u32 s38, s38, s35")
    e("s_lshl_b32 s38, s38, 10")
    e("s_mul_i32 s39, s30, 0x%x" % (WFB - WFA))
    e("s_add_u32 s38, s38, s39")
    e("s_add_u32 s38, s38, 0x%x" % WFA)
    e("s_lshl_b32 s39, s33, 3")
    e("s_add_u32 s39, s39, s32")
    e("s_lshl_b32 s39, s39, 10")
    e("s_mul_i32 s40, s30, %d" % CS_MAT)
    e("s_add_u32 s39, s39, s40")
    e("s_lshl_b32 s40, s35, 7")
    e("s_add_u32 s39, s39, s40")
    e("s_add_u32 s39, s39, 0x%x" % CS)
    e("v_lshlrev_b32 v10, 2, v3")
    e("v_cmp_gt_u32 vcc, 32, v3")
    e("v_mov_b32 v11, 0x40000000")
    e("s_nop 0")
    e("v_cndmask_b32 v10, v11, v10, vcc")
    e("s_waitcnt vmcnt(0)")
    for st in range(3):
        for i in range(4):
            e("ds_write_b128 v%d, %s offset:%d" % (20 + i, vr(32 + 16 * st + 4 * i, 4), st * 32 * PB_ROW))
    e("s_waitcnt lgkmcnt(0)")
    e("s_barrier")
    for st in range(3):
        for q in range(2):
            for ks in range(2):
                for hf in range(2):
                    e("ds_read_b64_tr_b16 %s, v7 offset:%d" % (vr(32 + 16 * st + 8 * q + 4 * ks + 2 * hf, 2),
                      (32 * st + 16 * ks + 4 * hf) * PB_ROW + 256 * q))
    e("s_waitcnt lgkmcnt(0)")
    for st in range(3):
        for q in range(2):
            for ks in range(2):
                c = "0" if (st == 0 and ks == 0) else vr(80 + 16 * q, 16)
                e("v_mfma_f32_32x32x16_bf16 %s, v[24:27], %s, %s" % (vr(80 + 16 * q, 16), vr(32 + 16 * st + 8 * q + 4 * ks, 4), c))
                e("s_add_u32 s40, s38, %d" % (4096 * q + 8192 * ks + 16384 * st))
                e("buffer_store_dwordx4 %s, v5, s[16:19], s40 offen" % vr(32 + 16 * st + 8 * q + 4 * ks, 4))
    e("s_nop 7")
    e("s_nop 7")
    for q in range(2):
        e("buffer_store_dword v%d, v10, s[16:19], s39 offen offset:%d" % (80 + 16 * q, 512 * q))
    e("s_endpgm")
    k.lab("L_prep_wo")
    e("s_sub_u32 s29, s2, %d" % NQ)
    e("s_cmp_ge_u32 s29, 144")
    e("s_cselect_b32 s30, 1, 0")
    e("s_mul_i32 s31, s30, 144")
    e("s_sub_u32 s31, s29, s31")
    e("s_mul_i32 s32, s31, 3641")
    e("s_lshr_b32 s32, s32, 16")
    e("s_mul_i32 s33, s32, 18")
    e("s_sub_u32 s33, s31, s33")
    e("s_cmp_eq_u32 s30, 0")
    e("s_cselect_b32 s8, s24, s26")
    e("s_cselect_b32 s9, s25, s27")
    e("s_mov_b32 s10, %d" % (576 * 1152))
    e("s_mov_b32 s11, 0x00020000")
    e("s_mul_i32 s37, s32, 144")
    e("s_mul_i32 s38, s33, %d" % (32 * 1152))
    e("s_add_u32 s37, s37, s38")
    for i in range(2):
        e("v_add_u32 v10, %d, v0" % (256 * i))
        if i == 1:
            e("v_min_u32 v10, 287, v10")
        e("v_mul_u32_u24 v11, 7282, v10")
        e("v_lshrrev_b32 v11, 16, v11")
        e("v_mul_u32_u24 v12, 9, v11")
        e("v_sub_u32 v12, v10, v12")
        e("v_mul_u32_u24 v15, 1152, v11")
        e("v_lshl_add_u32 v15, v12, 4, v15")
        e("v_add_u32 v15, s37, v15")
        e("buffer_load_dwordx4 %s, v15, s[8:11], 0 offen" % vr(32 + 4 * i, 4))
        e("v_mul_u32_u24 v15, %d, v11" % OB_ROW)
        e("v_lshrrev_b32 v13, 3, v11")
        e("v_lshl_add_u32 v15, v13, 7, v15")
        e("v_lshl_add_u32 v%d, v12, 4, v15" % (20 + i))
    e("s_waitcnt vmcnt(0)")
    for i in range(2):
        e("ds_write_b128 v%d, %s" % (20 + i, vr(32 + 4 * i, 4)))
    e("v_mul_u32_u24 v7, %d, v6" % (8 * OB_ROW + 128))
    e("v_mul_u32_u24 v10, %d, v8" % OB_ROW)
    e("v_lshl_add_u32 v10, v9, 3, v10")
    e("s_lshl_b32 s38, s35, 5")
    e("v_add3_u32 v7, v7, v10, s38")
    e("s_mul_i32 s38, s32, %d" % (81 * 1024))
    e("s_lshr_b32 s39, s33, 1")
    e("s_mul_i32 s39, s39, 9216")
    e("s_add_u32 s38, s38, s39")
    e("s_mul_i32 s39, s30, 0x%x" % (WOB - WOA))
    e("s_add_u32 s38, s38, s39")
    e("s_add_u32 s38, s38, 0x%x" % WOA)
    e("s_and_b32 s39, s33, 1")
    e("s_lshl_b32 s40, s39, 9")
    e("s_add_u32 s40, s40, s38")
    e("s_add_u32 s40, s40, 8192")
    e("s_lshl_b32 s39, s39, 12")
    e("s_add_u32 s38, s38, s39")
    e("s_lshl_b32 s39, s35, 10")
    e("s_add_u32 s38, s38, s39")
    e("v_and_b32 v10, 15, v3")
    e("v_lshlrev_b32 v11, 4, v10")
    e("v_lshl_add_u32 v11, v6, 7, v11")
    e("v_cmp_gt_u32 vcc, 8, v10")
    e("v_mov_b32 v12, 0x40000000")
    e("s_nop 0")
    e("v_cndmask_b32 v11, v12, v11, vcc")
    e("s_waitcnt lgkmcnt(0)")
    e("s_barrier")
    for q in range(2):
        for hf in range(2):
            e("ds_read_b64_tr_b16 %s, v7 offset:%d" % (vr(32 + 4 * q + 2 * hf, 2), hf * 4 * OB_ROW + 128 * q))
    e("s_waitcnt lgkmcnt(0)")
    e("buffer_store_dwordx4 %s, v5, s[16:19], s38 offen" % vr(32, 4))
    e("s_cmp_lg_u32 s35, 0")
    e("s_cbranch_scc1 L_prep_end")
    e("buffer_store_dwordx4 %s, v11, s[16:19], s40 offen" % vr(36, 4))
    e("s_endpgm")
    k.lab("L_prep_misc")
    e("s_sub_u32 s3, s2, %d" % NU)
    e("s_cmp_ge_u32 s3, 38")
    e("s_cbranch_scc1 L_prep_ones")
    e("s_lshl_b32 s3, s3, 12")
    e("v_lshlrev_b32 v1, 4, v0")
    e("v_add_u32 v1, s3, v1")
    e("v_add_u32 v1, 0x%x, v1" % KVACC)
    for i in range(4):
        e("v_mov_b32 v%d, 0" % (4 + i))
    e("buffer_store_dwordx4 v[4:7], v1, s[16:19], 0 offen")
    e("s_endpgm")
    k.lab("L_prep_ones")
    e("s_sub_u32 s3, s3, 38")
    e("s_mov_b32 s8, s44")
    e("s_mov_b32 s9, s45")
    e("s_mov_b32 s10, %d" % XB)
    e("s_mov_b32 s11, 0x00020000")
    e("s_mul_i32 s7, s3, 18432")
    e("s_lshr_b32 s6, s3, 1")
    e("s_mul_i32 s6, s6, 36864")
    e("s_and_b32 s28, s3, 1")
    e("s_lshl_b32 s28, s28, 8")
    e("s_add_u32 s6, s6, s28")
    e("s_add_u32 s6, s6, 0x%x" % X0F)
    e("s_mov_b32 s42, 0x3f803f80")
    e("v_mov_b32 v1, 0")
    e("v_lshlrev_b32 v2, 2, v0")
    e("ds_write_b32 v2, v1")
    for i in range(5):
        e("v_add_u32 v1, %d, v0" % (256 * i))
        if i == 4:
            e("v_min_u32 v1, 1151, v1")
        e("v_lshlrev_b32 v2, 4, v1")
        e("buffer_load_dwordx4 %s, v2, s[8:11], s7 offen" % vr(32 + 4 * i, 4))
        e("v_mul_u32_u24 v2, 911, v1")
        e("v_lshrrev_b32 v2, 16, v2")
        e("v_mul_u32_u24 v4, 72, v2")
        e("v_sub_u32 v4, v1, v4")
        e("v_lshlrev_b32 v4, 9, v4")
        e("v_lshl_add_u32 v%d, v2, 4, v4" % (20 + i))
        e("v_lshlrev_b32 v%d, 3, v2" % (26 + i))
    e("v_cmp_gt_u32 vcc, 128, v0")
    e("s_waitcnt vmcnt(0) lgkmcnt(0)")
    e("s_barrier")
    for i in range(5):
        e("buffer_store_dwordx4 %s, v%d, s[16:19], s6 offen" % (vr(32 + 4 * i, 4), 20 + i))
        e("v_mov_b32 v8, 0")
        e("v_mov_b32 v9, 0")
        for q in range(4):
            e("v_dot2_f32_bf16 v8, v%d, s42, v8" % (32 + 4 * i + q))
            e("v_dot2_f32_bf16 v9, v%d, v%d, v9" % (32 + 4 * i + q, 32 + 4 * i + q))
        e("s_nop 2")
        if i == 4:
            e("v_cndmask_b32 v8, 0, v8, vcc")
            e("v_cndmask_b32 v9, 0, v9, vcc")
        e("ds_add_f32 v%d, v8" % (26 + i))
        e("ds_add_f32 v%d, v9 offset:4" % (26 + i))
    e("s_waitcnt lgkmcnt(0)")
    e("s_barrier")
    e("v_lshrrev_b32 v1, 4, v0")
    e("v_and_b32 v2, 15, v0")
    e("v_lshlrev_b32 v4, 3, v1")
    e("v_lshl_add_u32 v4, v2, 2, v4")
    e("v_cmp_gt_u32 vcc, 2, v2")
    e("v_mov_b32 v8, 512")
    e("s_nop 0")
    e("v_cndmask_b32 v4, v8, v4, vcc")
    e("ds_read_b32 v8, v4")
    e("s_lshl_b32 s6, s3, 10")
    e("s_add_u32 s6, s6, 0x%x" % STATS)
    e("v_lshlrev_b32 v1, 2, v0")
    e("s_waitcnt lgkmcnt(0)")
    e("buffer_store_dword v8, v1, s[16:19], s6 offen")
    k.lab("L_prep_end")
    e("s_endpgm")
    return k


NB = 4
BSLOT = 16 * 1024
QA_BASE = NB * BSLOT
QCS_BASE = QA_BASE + 72 * 1024
QST_BASE = QCS_BASE + 2048
QPQ_BASE = QST_BASE + 1024
QKV_LDS = QPQ_BASE + 12288
T_STRIDE = 144


def emit_phi(e, x, t1, t2):
    e("v_min_f32 v%d, 0, v%d" % (t1, x))
    e("v_mul_f32 v%d, s40, v%d" % (t1, t1))
    e("v_exp_f32 v%d, v%d" % (t1, t1))
    e("v_max_f32 v%d, 0, v%d" % (t2, x))
    e("v_add_f32 v%d, s41, v%d" % (t2, t2))
    e("v_add_f32 v%d, v%d, v%d" % (x, t1, t2))


def gen_stub(name, body, params):
    k = Kern(name, body.vgpr, body.lds, body.grid, body.block)
    k.stub = ["s_mov_b32 s%d, 0x%x" % (r, v) for r, v in params] + ["s_branch %s" % body.name]
    return k


def gen_qkv(kind):
    name = "L_qkv%s" % kind
    k = Kern(name, 168, QKV_LDS, (256, 1, 1), (512, 1, 1))
    k.nodesc = True
    e = k.e
    ACC = 16
    FR = [48, 72]
    VBT = 100
    VL16 = 101
    VA = 102
    VB = 103
    CSR = 104
    VCS = 107
    VA1 = 108
    STR = 112
    EA = 128
    end = "%s_end" % name
    e("s_cmp_ge_u32 s2, 256")
    e("s_cbranch_scc1 %s" % end)
    e("s_load_dwordx2 s[4:5], s[0:1], %d" % KA_WS)
    k.stamp(0)
    e("s_and_b32 s28, s2, 7")
    e("s_lshr_b32 s29, s2, 3")
    e("s_lshr_b32 s31, s28, 1")
    e("s_lshl_b32 s31, s31, 3")
    e("s_lshr_b32 s32, s29, 2")
    e("s_add_u32 s31, s31, s32")
    e("s_and_b32 s30, s28, 1")
    e("s_lshl_b32 s30, s30, 2")
    e("s_and_b32 s32, s29, 3")
    e("s_add_u32 s30, s30, s32")
    e("v_and_b32 v3, 63, v0")
    e("v_lshrrev_b32 v4, 6, v0")
    e("v_and_b32 v5, 31, v3")
    e("v_readfirstlane_b32 s35, v4")
    e("v_lshrrev_b32 v6, 5, v3")
    e("v_lshlrev_b32 v%d, 4, v3" % VL16)
    e("s_mul_i32 s33, s30, %d" % (18 * BSLOT))
    e("s_lshr_b32 s45, s29, 2")
    e("s_lshl_b32 s45, s45, 1")
    e("s_and_b32 s46, s29, 3")
    e("s_mul_i32 s46, s46, 5")
    e("s_add_u32 s45, s45, s46")
    e("s_cmp_ge_u32 s45, 18")
    e("s_cselect_b32 s46, 18, 0")
    e("s_sub_u32 s45, s45, s46")
    e("s_and_b32 s50, s35, 1")
    e("s_lshl_b32 s50, s50, 10")
    e("s_bfe_u32 s51, s35, 0x10001")
    e("s_mul_i32 s51, s51, 36864")
    e("s_add_u32 s50, s50, s51")
    e("s_mul_i32 s51, s31, 73728")
    e("s_add_u32 s51, s51, s50")
    e("s_lshr_b32 s37, s35, 2")
    e("s_add_u32 s48, s37, s45")
    e("s_cmp_ge_u32 s48, 18")
    e("s_cselect_b32 s49, 18, 0")
    e("s_sub_u32 s48, s48, s49")
    e("s_lshl_b32 s49, s37, 11")
    e("s_add_u32 s50, s50, s49")
    e("s_add_u32 s50, s50, %d" % QA_BASE)
    e("s_lshl_b32 s52, s35, 11")
    e("s_add_u32 s53, s52, s33")
    e("s_mov_b32 s55, 0")
    e("s_waitcnt lgkmcnt(0)")
    k.stamp(2)
    e("s_add_u32 s8, s4, s58")
    e("s_addc_u32 s9, s5, 0")
    e("s_mov_b32 s10, %d" % XB)
    e("s_mov_b32 s11, 0x00020000")
    k.srd(12, 4, WFA if kind == 'A' else WFB, WF_SZ)
    k.srd(16, 4, 0, WS_SIZE)

    def b_ops():
        return [["s_mul_i32 s47, s45, %d" % BSLOT, "s_add_u32 s47, s47, s53",
                 "s_add_u32 m0, s52, s55", "s_nop 0",
                 "buffer_load_dwordx4 v%d, s[12:15], s47 offen lds" % VL16],
                ["s_add_u32 m0, m0, 1024", "s_add_u32 s47, s47, 1024",
                 "buffer_load_dwordx4 v%d, s[12:15], s47 offen lds" % VL16,
                 "s_add_u32 s45, s45, 1", "s_cmp_eq_u32 s45, 18", "s_cselect_b32 s45, 0, s45",
                 "s_add_u32 s55, s55, %d" % BSLOT, "s_and_b32 s55, s55, 0xffff"]]

    def a_ops():
        return [["s_mov_b32 m0, s50", "s_lshl_b32 s34, s48, 11", "s_add_u32 s34, s34, s51",
                 "buffer_load_dwordx4 v%d, s[8:11], s34 offen lds" % VL16,
                 "s_add_u32 s48, s48, 2", "s_cmp_ge_u32 s48, 18", "s_cselect_b32 s49, 18, 0",
                 "s_sub_u32 s48, s48, s49", "s_add_u32 s50, s50, 4096", "s_cmp_gt_u32 s50, s57",
                 "s_cselect_b32 s50, %d, s50" % QCS_BASE]]

    e("s_add_u32 s57, s50, %d" % (8 * 4096))
    for s in range(NB):
        for l in b_ops():
            for x in l:
                e(x)
        if s < 2:
            for x in a_ops()[0]:
                e(x)
    e("s_mul_i32 s54, s37, %d" % (3 * 8192))
    e("s_lshl_b32 s34, s30, 10")
    e("s_add_u32 s54, s54, s34")
    e("s_add_u32 s54, s54, 0x%x" % (CS + (0 if kind == 'A' else CS_MAT)))
    e("v_and_b32 v7, 255, v0")
    e("v_lshlrev_b32 v%d, 2, v7" % VCS)
    for i in range(3):
        e("buffer_load_dword v%d, v%d, s[16:19], s54 offen" % (CSR + i, VCS))
        e("s_add_u32 s54, s54, 8192")
    ns = k.newlab("ns")
    e("s_cmp_lg_u32 s35, 7")
    e("s_cbranch_scc1 %s" % ns)
    e("s_lshl_b32 s34, s31, 12")
    e("s_add_u32 s34, s34, 0x%x" % STATS)
    e("v_lshlrev_b32 v7, 6, v3")
    for i in range(4):
        e("buffer_load_dwordx4 %s, v7, s[16:19], s34 offen offset:%d" % (vr(STR + 4 * i, 4), 16 * i))
    k.lab(ns)
    k.stamp(13)
    e("s_mov_b32 s40, 0x%x" % f2u(LOG2E))
    e("s_mov_b32 s41, 0x%x" % f2u(1e-6))
    e("v_add_u32 v%d, %d, v%d" % (VA, QA_BASE, VL16))
    e("v_add_u32 v%d, %d, v%d" % (VA1, QA_BASE + 36864, VL16))
    e("s_lshl_b32 s34, s35, 10")
    e("v_add_u32 v%d, s34, v%d" % (VB, VL16))
    for i in range(32):
        e("v_mov_b32 v%d, 0" % (ACC + i))
    e("s_lshl_b32 s36, s35, 5")
    if kind == 'A':
        for i in range(4):
            e("v_mov_b32 v%d, 0" % (8 + i))
        e("v_lshrrev_b32 v7, 4, v0")
        e("v_and_b32 v7, 15, v7")
        e("v_mul_u32_u24 v7, 768, v7")
        e("v_and_b32 v12, 15, v3")
        e("v_lshl_add_u32 v7, v12, 4, v7")
        e("v_add_u32 v7, %d, v7" % (QPQ_BASE + 512))
        e("ds_write_b128 v7, v[8:11]")
        epi_A_pre(k, EA)
    else:
        epi_B_pre(k, EA)
    e("s_waitcnt vmcnt(10) lgkmcnt(0)")
    k.stamp(1)
    e("s_barrier")
    k.stamp(3)

    def freads(f):
        ops = []
        for ks in range(2):
            ops.append(["ds_read_b128 %s, v%d offset:%d" % (vr(f + 16 + 4 * ks, 4), VBT, ks * 8192)])
            ops.append(["ds_read_b128 %s, v%d offset:%d" % (vr(f + 4 * ks, 4), VA, ks * 1024)])
            ops.append(["ds_read_b128 %s, v%d offset:%d" % (vr(f + 8 + 4 * ks, 4), VA1, ks * 1024)])
        return ops

    e("v_mov_b32 v%d, v%d" % (VBT, VB))
    for l in freads(FR[0]):
        e(l[0])
    e("s_mov_b32 s56, %d" % BSLOT)

    def stage(p, nwait, with_a, with_b, last=False):
        fc, fn = FR[p], FR[1 - p]
        fill = []
        if not last:
            e("s_waitcnt vmcnt(%d) lgkmcnt(0)" % nwait)
            e("s_barrier")
            e("v_add_u32 v%d, s56, v%d" % (VBT, VB))
            e("v_add_u32 v%d, 2048, v%d" % (VA, VA))
            e("v_add_u32 v%d, 2048, v%d" % (VA1, VA1))
            fill += freads(fn)
            fill.append(["s_add_u32 s56, s56, %d" % BSLOT, "s_and_b32 s56, s56, 0xffff"])
            if with_a:
                fill += a_ops()
            if with_b:
                fill += b_ops()
        else:
            e("s_waitcnt lgkmcnt(0)")
        nfill = -(-len(fill) // 4)
        for ks in range(2):
            for a in range(2):
                acc = ACC + 16 * a
                e("v_mfma_f32_32x32x16_bf16 %s, %s, %s, %s" % (vr(acc, 16), vr(fc + 16 + 4 * ks, 4), vr(fc + 8 * a + 4 * ks, 4), vr(acc, 16)))
                for _ in range(nfill):
                    if fill:
                        for x in fill.pop(0):
                            e(x)

    l1 = k.newlab("p1")
    e("s_mov_b32 s44, 0")
    k.lab(l1)
    stage(0, 6, True, True)
    stage(1, 6, True, True)
    e("s_add_u32 s44, s44, 1")
    e("s_cmp_lt_u32 s44, 4")
    e("s_cbranch_scc1 %s" % l1)
    k.stamp(8)
    l2 = k.newlab("p2")
    e("s_mov_b32 s44, 0")
    k.lab(l2)
    stage(0, 4, False, True)
    stage(1, 4, False, True)
    e("s_add_u32 s44, s44, 1")
    e("s_cmp_lt_u32 s44, 3")
    e("s_cbranch_scc1 %s" % l2)
    k.stamp(9)
    stage(0, 4, False, False)
    stage(1, 2, False, False)
    stage(0, 0, False, False)
    stage(1, 0, False, False, last=True)
    k.stamp(4)
    e("v_add_f32 v%d, v%d, v%d" % (CSR, CSR, CSR + 1))
    e("v_add_f32 v%d, v%d, v%d" % (CSR, CSR, CSR + 2))
    e("s_lshl_b32 s34, s37, 10")
    e("s_add_u32 s34, s34, %d" % QCS_BASE)
    e("v_add_u32 v7, s34, v%d" % VCS)
    e("ds_write_b32 v7, v%d" % CSR)
    ns = k.newlab("ns")
    e("s_cmp_lg_u32 s35, 7")
    e("s_cbranch_scc1 %s" % ns)
    for i in range(1, 8):
        e("v_add_f32 v%d, v%d, v%d" % (STR, STR, STR + 2 * i))
        e("v_add_f32 v%d, v%d, v%d" % (STR + 1, STR + 1, STR + 2 * i + 1))
    e("v_mul_f32 v%d, 0x%x, v%d" % (STR, f2u(1.0 / 576), STR))
    e("v_mul_f32 v%d, 0x%x, v%d" % (STR + 1, f2u(1.0 / 576), STR + 1))
    e("v_fma_f32 v%d, -v%d, v%d, v%d" % (STR + 1, STR, STR, STR + 1))
    e("v_max_f32 v%d, 0, v%d" % (STR + 1, STR + 1))
    e("v_add_f32 v%d, 0x%x, v%d" % (STR + 1, f2u(1e-5), STR + 1))
    e("v_rsq_f32 v%d, v%d" % (STR + 1, STR + 1))
    e("s_nop 0")
    e("v_mul_f32 v%d, v%d, v%d" % (STR, STR, STR + 1))
    e("v_lshlrev_b32 v7, 2, v3")
    e("v_add_u32 v7, %d, v7" % QST_BASE)
    e("ds_write_b32 v7, v%d" % (STR + 1))
    e("ds_write_b32 v7, v%d offset:256" % STR)
    k.lab(ns)
    e("s_waitcnt lgkmcnt(0)")
    e("s_barrier")
    RS = 48
    e("v_lshlrev_b32 v7, 2, v5")
    e("v_add_u32 v7, %d, v7" % QST_BASE)
    for a in range(2):
        e("ds_read_b32 v%d, v7 offset:%d" % (RS + a, a * 128))
        e("ds_read_b32 v%d, v7 offset:%d" % (RS + 2 + a, 256 + a * 128))
    e("s_lshl_b32 s34, s35, 7")
    e("s_add_u32 s34, s34, %d" % QCS_BASE)
    e("v_lshlrev_b32 v8, 4, v6")
    e("v_add_u32 v8, s34, v8")
    for q in range(4):
        e("ds_read_b128 %s, v8 offset:%d" % (vr(56 + 4 * q, 4), 32 * q))
        e("ds_read_b128 %s, v8 offset:%d" % (vr(72 + 4 * q, 4), 1024 + 32 * q))
    e("s_waitcnt lgkmcnt(0)")
    for r in range(16):
        e("v_add_f32 v%d, v%d, v%d" % (56 + r, 56 + r, 72 + r))
    for a in range(2):
        for r in range(16):
            acc = ACC + 16 * a + r
            e("v_mul_f32 v10, v%d, v%d" % (RS + 2 + a, 56 + r))
            e("v_fma_f32 v%d, v%d, v%d, -v10" % (acc, acc, RS + a))
    if kind == 'A':
        epi_A(k, ACC, EA)
    else:
        epi_B(k, ACC, EA)
    k.stamp(5)
    if STAMPS:
        e("s_waitcnt vmcnt(0)")
    k.stamp(6)
    k.dump()
    k.lab(end)
    e("s_endpgm")
    return k


def epi_A_pre(k, EA):
    e = k.e
    lq = k.newlab("pq")
    lj = k.newlab("pj")
    e("s_cmp_ge_u32 s35, 5")
    e("s_cbranch_scc1 %s" % lq)
    e("v_lshl_add_u32 v7, v6, 2, s36")
    e("v_mul_u32_u24 v7, %d, v7" % T_STRIDE)
    e("v_lshl_add_u32 v%d, v5, 1, v7" % EA)
    e("s_branch %s" % lj)
    k.lab(lq)
    e("v_and_b32 v8, 15, v5")
    e("v_lshlrev_b32 v8, 4, v8")
    e("v_lshrrev_b32 v9, 4, v5")
    e("v_mul_u32_u24 v9, 3072, v9")
    e("v_add3_u32 v8, v8, v9, 0")
    e("v_add_u32 v8, %d, v8" % QPQ_BASE)
    e("s_sub_u32 s38, s36, 160")
    e("v_lshl_add_u32 v11, v6, 2, s38")
    for q in range(4):
        for pr in range(2):
            dst = EA + 2 * q + pr
            e("v_add_u32 v12, %d, v11" % (8 * q + 2 * pr))
            e("v_mul_u32_u24 v13, 57, v12")
            e("v_lshrrev_b32 v13, 10, v13")
            e("v_mul_u32_u24 v14, 18, v13")
            e("v_sub_u32 v14, v12, v14")
            e("v_mul_u32_u24 v13, 768, v13")
            e("v_lshrrev_b32 v15, 3, v14")
            e("v_lshl_add_u32 v13, v15, 8, v13")
            e("v_and_b32 v14, 7, v14")
            e("v_lshl_add_u32 v13, v14, 1, v13")
            e("v_cmp_gt_u32 vcc, 72, v12")
            e("v_add_u32 v13, v8, v13")
            e("v_mov_b32 v14, 32768")
            e("v_cndmask_b32 v%d, v14, v13, vcc" % dst)
    k.lab(lj)
    lk = k.newlab("pk")
    lj = k.newlab("pj")
    e("s_cmp_lt_u32 s35, 4")
    e("s_cbranch_scc1 %s" % lk)
    e("v_subrev_u32 v7, 256, v0")
    for i in range(3):
        e("v_add_u32 v8, %d, v7" % (256 * i))
        e("v_lshlrev_b32 v9, 4, v8")
        e("v_add_u32 v%d, %d, v9" % (EA + 10 + i, QPQ_BASE))
        e("v_mul_u32_u24 v9, 1366, v8")
        e("v_lshrrev_b32 v9, 18, v9")
        e("v_mul_u32_u24 v9, %d, v9" % (32 * 768 - 3072))
        e("v_lshl_add_u32 v%d, v8, 4, v9" % (EA + 13 + i))
    e("s_branch %s" % lj)
    k.lab(lk)
    e("s_mul_i32 s38, s35, 18")
    e("v_min_u32 v7, 17, v5")
    e("v_add_u32 v7, s38, v7")
    e("v_mul_u32_u24 v7, %d, v7" % T_STRIDE)
    e("v_lshl_add_u32 v%d, v6, 4, v7" % (EA + 10))
    e("v_add_u32 v8, s38, v5")
    e("v_add_u32 v8, 72, v8")
    e("v_cmp_gt_u32 vcc, 18, v5")
    e("v_mov_b32 v9, 160")
    e("s_nop 0")
    e("v_cndmask_b32 v8, v9, v8, vcc")
    e("v_mul_u32_u24 v8, %d, v8" % T_STRIDE)
    e("v_lshl_add_u32 v%d, v6, 4, v8" % (EA + 11))
    e("v_lshlrev_b32 v10, 2, v5")
    e("v_lshl_add_u32 v10, v6, 9, v10")
    e("v_mov_b32 v9, 0x40000000")
    e("v_cndmask_b32 v%d, v9, v10, vcc" % (EA + 12))
    e("v_cmp_eq_u32 vcc, 0, v6")
    e("s_nop 1")
    e("v_cndmask_b32 v%d, v9, v%d, vcc" % (EA + 13, EA + 12))
    k.lab(lj)


def epi_A(k, ACC, EA):
    e = k.e
    lq = k.newlab("eq")
    lj = k.newlab("ej")
    e("s_cmp_ge_u32 s35, 5")
    e("s_cbranch_scc1 %s" % lq)
    e("v_lshl_add_u32 v13, v6, 2, s36")
    for q in range(4):
        e("v_add_u32 v14, %d, v13" % (8 * q))
        e("v_cmp_gt_u32 vcc, 72, v14")
        for a in range(2):
            acc = ACC + 16 * a + 4 * q
            for r in range(4):
                e("v_mov_b32 v12, v%d" % (acc + r))
                emit_phi(e, 12, 10, 11)
                e("v_cndmask_b32 v%d, v%d, v12, vcc" % (acc + r, acc + r))
            e("v_cvt_pk_bf16_f32 v%d, v%d, v%d" % (acc, acc, acc + 1))
            e("v_cvt_pk_bf16_f32 v%d, v%d, v%d" % (acc + 1, acc + 2, acc + 3))
            o = a * 64 + 8 * q * T_STRIDE
            e("ds_write_b16 v%d, v%d offset:%d" % (EA, acc, o))
            e("ds_write_b16_d16_hi v%d, v%d offset:%d" % (EA, acc, o + T_STRIDE))
            e("ds_write_b16 v%d, v%d offset:%d" % (EA, acc + 1, o + 2 * T_STRIDE))
            e("ds_write_b16_d16_hi v%d, v%d offset:%d" % (EA, acc + 1, o + 3 * T_STRIDE))
    e("v_lshlrev_b32 v10, 2, v5")
    e("v_mov_b32 v11, 0x3f803f80")
    e("ds_write_b32 v10, v11 offset:%d" % (160 * T_STRIDE))
    e("s_branch %s" % lj)
    k.lab(lq)
    for a in range(2):
        for q in range(4):
            acc = ACC + 16 * a + 4 * q
            for r in range(4):
                emit_phi(e, acc + r, 10, 11)
            e("v_cvt_pk_bf16_f32 v%d, v%d, v%d" % (acc, acc, acc + 1))
            e("v_cvt_pk_bf16_f32 v%d, v%d, v%d" % (acc + 1, acc + 2, acc + 3))
            e("ds_write_b32 v%d, v%d offset:%d" % (EA + 2 * q, acc, a * 6144))
            e("ds_write_b32 v%d, v%d offset:%d" % (EA + 2 * q + 1, acc + 1, a * 6144))
    k.lab(lj)
    e("s_waitcnt lgkmcnt(0)")
    e("s_barrier")
    lk = k.newlab("ek")
    lj = k.newlab("ej")
    e("s_cmp_lt_u32 s35, 4")
    e("s_cbranch_scc1 %s" % lk)
    e("s_lshl_b32 s39, s31, 7")
    e("s_lshl_b32 s43, s30, 2")
    e("s_add_u32 s39, s39, s43")
    e("s_mul_i32 s39, s39, 768")
    e("s_add_u32 s39, s39, 0x%x" % PQF)
    for i in range(3):
        e("ds_read_b128 %s, v%d" % (vr(48 + 4 * i, 4), EA + 10 + i))
    e("s_waitcnt lgkmcnt(0)")
    for i in range(3):
        e("buffer_store_dwordx4 %s, v%d, s[16:19], s39 offen" % (vr(48 + 4 * i, 4), EA + 13 + i))
    e("s_branch %s" % lj)
    k.lab(lk)
    for st in range(4):
        e("ds_read_b128 %s, v%d offset:%d" % (vr(48 + 8 * st, 4), EA + 10, 32 * st))
        e("ds_read_b128 %s, v%d offset:%d" % (vr(52 + 8 * st, 4), EA + 11, 32 * st))
    e("s_lshl_b32 s39, s30, 2")
    e("s_add_u32 s39, s39, s35")
    e("s_mul_i32 s39, s39, 2432")
    e("s_add_u32 s39, s39, s59")
    e("s_waitcnt lgkmcnt(0)")
    for st in range(4):
        c = "0" if st == 0 else vr(80, 16)
        e("v_mfma_f32_32x32x16_bf16 %s, %s, %s, %s" % (vr(80, 16), vr(52 + 8 * st, 4), vr(48 + 8 * st, 4), c))
    e("s_nop 7")
    e("s_nop 7")
    for r in range(11):
        ee = (r & 3) + 8 * (r >> 2)
        e("buffer_atomic_add_f32 v%d, v%d, s[16:19], s39 offen offset:%d" % (80 + r, EA + 12 if r < 8 else EA + 13, 128 * ee))
    k.lab(lj)


def epi_B_pre(k, EA):
    e = k.e
    lv = k.newlab("pv")
    lj = k.newlab("pj")
    e("s_mov_b32 s46, 0x%x" % f2u(QSCALE))
    e("s_cmp_ge_u32 s35, 5")
    e("s_cbranch_scc1 %s" % lv)
    e("v_lshl_add_u32 v15, v6, 2, s36")
    for q in range(4):
        for pr in range(2):
            d0 = EA + 3 * (2 * q + pr)
            e("v_add_u32 v7, %d, v15" % (8 * q + 2 * pr))
            e("v_cmp_gt_u32 vcc, 72, v7")
            e("v_subrev_u32 v8, 72, v7")
            e("s_nop 0")
            e("v_cndmask_b32 v12, v8, v7, vcc")
            e("v_mul_u32_u24 v8, 57, v12")
            e("v_lshrrev_b32 v8, 10, v8")
            e("v_mul_u32_u24 v9, 18, v8")
            e("v_sub_u32 v12, v12, v9")
            e("v_mul_u32_u24 v9, 2304, v8")
            e("v_mul_u32_u24 v10, 4864, v8")
            e("v_add_u32 v10, 9216, v10")
            e("v_cndmask_b32 v9, v10, v9, vcc")
            e("v_mov_b32 v13, 1.0")
            e("v_mov_b32 v14, s46")
            e("v_cndmask_b32 v%d, v13, v14, vcc" % (d0 + 2))
            e("v_mov_b32 v13, 2432")
            e("v_mov_b32 v14, 1152")
            e("v_cndmask_b32 v13, v13, v14, vcc")
            e("v_lshrrev_b32 v10, 3, v12")
            e("v_lshlrev_b32 v10, 9, v10")
            e("v_and_b32 v11, 7, v12")
            e("v_lshl_add_u32 v10, v11, 1, v10")
            e("v_add_u32 v9, v9, v10")
            e("v_cmp_gt_u32 vcc, 16, v12")
            e("v_lshlrev_b32 v10, 4, v5")
            e("v_lshlrev_b32 v11, 2, v5")
            e("v_cndmask_b32 v10, v11, v10, vcc")
            e("v_add_u32 v9, v9, v10")
            e("v_cmp_gt_u32 vcc, 144, v7")
            e("v_mov_b32 v11, 32768")
            e("s_nop 0")
            e("v_cndmask_b32 v%d, v11, v9, vcc" % d0)
            e("v_add_u32 v%d, v%d, v13" % (d0 + 1, d0))
    e("s_branch %s" % lj)
    k.lab(lv)
    e("v_lshrrev_b32 v8, 4, v5")
    e("v_mul_u32_u24 v8, 640, v8")
    e("v_bfe_u32 v9, v5, 2, 1")
    e("v_mul_u32_u24 v9, 320, v9")
    e("v_and_b32 v10, 3, v5")
    e("v_bfe_u32 v11, v5, 3, 1")
    e("v_lshl_add_u32 v10, v11, 2, v10")
    e("v_lshl_add_u32 v8, v10, 1, v8")
    e("v_add3_u32 v15, v8, v9, 0")
    e("v_add_u32 v15, %d, v15" % (9216 + 1152))
    e("s_sub_u32 s38, s36, 160")
    e("v_lshl_add_u32 v14, v6, 2, s38")
    for q in range(4):
        for pr in range(2):
            e("v_add_u32 v7, %d, v14" % (8 * q + 2 * pr))
            e("v_mul_u32_u24 v8, 57, v7")
            e("v_lshrrev_b32 v8, 10, v8")
            e("v_mul_u32_u24 v9, 18, v8")
            e("v_sub_u32 v9, v7, v9")
            e("v_mul_u32_u24 v10, 4864, v8")
            e("v_lshl_add_u32 v10, v9, 4, v10")
            e("v_cmp_gt_u32 vcc, 72, v7")
            e("v_add_u32 v10, v10, v15")
            e("v_mov_b32 v11, 32768")
            e("v_cndmask_b32 v%d, v11, v10, vcc" % (EA + 2 * q + pr))
    k.lab(lj)
    e("s_lshl_b32 s43, s30, 2")
    e("s_mul_i32 s44, s43, %d" % QHEAD)
    e("s_mul_i32 s38, s31, 2304")
    e("s_add_u32 s44, s44, s38")
    e("s_add_u32 s44, s44, 0x%x" % QPI)
    e("s_mul_i32 s38, s43, %d" % KVHEAD)
    e("s_mul_i32 s46, s31, 4864")
    e("s_add_u32 s38, s38, s46")
    e("s_add_u32 s38, s38, 0x%x" % (KVI - 9216))
    e("s_mov_b32 s46, %d" % (QHEAD - 2304))
    e("s_mov_b32 s39, %d" % (KVHEAD - 4864))
    for i in range(4):
        e("v_add_u32 v8, %d, v0" % (512 * i))
        if i == 3:
            e("v_min_u32 v8, 1791, v8")
        e("v_lshlrev_b32 v%d, 4, v8" % (EA + 28 + i))
        e("v_mul_u32_u24 v10, 1821, v8")
        e("v_lshrrev_b32 v10, 18, v10")
        e("v_mul_lo_u32 v10, v10, s46")
        e("v_add3_u32 v10, v10, v%d, s44" % (EA + 28 + i))
        e("v_subrev_u32 v11, 576, v8")
        e("v_mul_u32_u24 v11, 863, v11")
        e("v_lshrrev_b32 v11, 18, v11")
        e("v_mul_lo_u32 v11, v11, s39")
        e("v_add3_u32 v11, v11, v%d, s38" % (EA + 28 + i))
        e("v_cmp_gt_u32 vcc, 576, v8")
        e("s_nop 1")
        e("v_cndmask_b32 v%d, v11, v10, vcc" % (EA + 24 + i))


def epi_B(k, ACC, EA):
    e = k.e
    lv = k.newlab("ev")
    lj = k.newlab("ej")
    e("s_cmp_ge_u32 s35, 5")
    e("s_cbranch_scc1 %s" % lv)
    for q in range(4):
        for pr in range(2):
            d0 = EA + 3 * (2 * q + pr)
            for a in range(2):
                acc = ACC + 16 * a + 4 * q + 2 * pr
                e("v_mul_f32 v%d, v%d, v%d" % (acc, d0 + 2, acc))
                e("v_mul_f32 v%d, v%d, v%d" % (acc + 1, d0 + 2, acc + 1))
                e("v_cvt_pk_bf16_f32 v%d, v%d, v%d" % (acc, acc, acc + 1))
                e("ds_write_b32 v%d, v%d" % (d0 + a, acc))
    e("s_branch %s" % lj)
    k.lab(lv)
    for q in range(4):
        for pr in range(2):
            for a in range(2):
                acc = ACC + 16 * a + 4 * q + 2 * pr
                e("v_cvt_pk_bf16_f32 v%d, v%d, v%d" % (acc, acc, acc + 1))
                e("ds_write_b16 v%d, v%d offset:%d" % (EA + 2 * q + pr, acc, 2432 * a))
                e("ds_write_b16_d16_hi v%d, v%d offset:%d" % (EA + 2 * q + pr, acc, 2432 * a + 16))
    e("v_lshrrev_b32 v8, 2, v5")
    e("v_mul_u32_u24 v8, 2432, v8")
    e("v_and_b32 v7, 3, v5")
    e("v_mul_u32_u24 v7, 320, v7")
    e("v_add_u32 v7, v7, v8")
    for i in range(4):
        e("v_mov_b32 v%d, 0x3f803f80" % (8 + i))
    e("ds_write_b128 v7, v[8:11] offset:%d" % (9216 + 1152 + 288))
    k.lab(lj)
    e("s_waitcnt lgkmcnt(0)")
    e("s_barrier")
    for i in range(4):
        e("ds_read_b128 %s, v%d" % (vr(48 + 4 * i, 4), EA + 28 + i))
    e("s_waitcnt lgkmcnt(0)")
    for i in range(4):
        e("buffer_store_dwordx4 %s, v%d, s[16:19], 0 offen" % (vr(48 + 4 * i, 4), EA + 24 + i))


def gen_attn(name):
    k = Kern(name, 120, KVHEAD, (256, 1, 1), (1024, 1, 1))
    e = k.e
    SA, SB = 16, 32
    P = 48
    O = 56
    CM = 72
    Q1, Q2 = 88, 92
    K1, K2 = 96, 100
    VVa, VVb = 104, 108
    vK1, vK2, vV = 112, 113, 114
    vK1b, vK2b, vVb = 115, 116, 117
    SEGS = [2, 6, 8, 8, 8]
    HALF = 32 * 2432
    end = "L_%s_end" % name
    e("s_cmp_ge_u32 s2, 256")
    e("s_cbranch_scc1 %s" % end)
    e("s_load_dwordx2 s[4:5], s[0:1], %d" % KA_WS)
    k.stamp(0)
    e("s_and_b32 s30, s2, 7")
    e("s_lshr_b32 s31, s2, 3")
    e("s_and_b32 s32, s31, 3")
    e("s_lshl_b32 s30, s30, 2")
    e("s_add_u32 s30, s30, s32")
    e("s_lshr_b32 s31, s31, 2")
    e("v_lshrrev_b32 v4, 6, v0")
    e("v_and_b32 v3, 63, v0")
    e("v_readfirstlane_b32 s35, v4")
    e("s_mul_i32 s33, s30, %d" % KVHEAD)
    e("s_lshr_b32 s40, s35, 3")
    e("s_and_b32 s41, s35, 7")
    e("s_mul_i32 s42, s40, %d" % HALF)
    e("v_lshlrev_b32 v1, 4, v3")
    e("s_lshl_b32 s36, s31, 3")
    e("s_add_u32 s36, s36, s41")
    e("s_mul_i32 s37, s36, 1152")
    e("s_mul_i32 s38, s30, %d" % QHEAD)
    e("s_add_u32 s37, s37, s38")
    e("s_add_u32 s37, s37, 0x%x" % QPI)
    e("v_and_b32 v5, 31, v3")
    e("v_lshrrev_b32 v6, 5, v3")
    e("v_lshlrev_b32 v7, 2, v5")
    e("s_lshl_b32 s39, s41, 10")
    e("s_add_u32 s39, s39, s42")
    e("s_add_u32 s43, s42, %d" % (75 * 1024))
    e("s_waitcnt lgkmcnt(0)")
    e("s_add_u32 s8, s4, s33")
    e("s_addc_u32 s9, s5, 0")
    e("s_add_u32 s8, s8, 0x%x" % KVI)
    e("s_addc_u32 s9, s9, 0")
    e("s_mov_b32 s10, %d" % KVHEAD)
    e("s_mov_b32 s11, 0x00020000")
    k.srd(16, 4, 0, WS_SIZE)
    e("buffer_load_dwordx4 %s, v1, s[16:19], s37 offen" % vr(Q1, 4))
    e("buffer_load_dword v%d, v7, s[16:19], s37 offen offset:1024" % Q2)
    def dma(i):
        if i == 9:
            e("s_min_u32 s39, s39, s43")
        e("s_mov_b32 m0, s39")
        e("s_nop 0")
        e("buffer_load_dwordx4 v1, s[8:11], s39 offen lds")
        e("s_add_u32 s39, s39, 8192")

    dma(0)
    dma(1)
    e("v_add_u32 v%d, s42, v1" % vK1b)
    e("v_add_u32 v8, 1024, v7")
    e("v_add_u32 v%d, s42, v8" % vK2b)
    e("v_min_u32 v8, 18, v5")
    e("v_lshlrev_b32 v8, 4, v8")
    e("v_mul_u32_u24 v9, 320, v6")
    e("v_add3_u32 v8, v8, v9, s42")
    e("v_add_u32 v%d, 1152, v8" % vVb)
    for i in range(1, 4):
        e("v_mov_b32 v%d, 0" % (Q2 + i))
        e("v_mov_b32 v%d, 0" % (K2 + i))
    e("v_cmp_eq_u32 vcc, 0, v6")
    e("s_waitcnt vmcnt(2)")
    e("v_cndmask_b32 v%d, 0, v%d, vcc" % (Q2, Q2))
    e("s_mov_b32 s50, 0")

    def seg_wait(c):
        ntiles = sum(SEGS[:c + 1]) + 1
        need = min(-(-(ntiles * 2432) // 1024), 76)
        n = min((need - 1) // 8 + 1, 10)
        issued = 2 + min(sum(SEGS[:c]), 8)
        assert issued >= n
        return issued - n

    e("s_waitcnt vmcnt(%d)" % seg_wait(0))
    e("s_barrier")
    k.stamp(1)
    e("ds_read_b128 %s, v%d" % (vr(K1, 4), vK1b))
    e("ds_read_b32 v%d, v%d" % (K2, vK2b))
    e("s_waitcnt lgkmcnt(0)")
    e("v_mfma_f32_32x32x16_bf16 %s, %s, %s, 0" % (vr(SA, 16), vr(K1, 4), vr(Q1, 4)))
    e("v_mfma_f32_32x32x16_bf16 %s, %s, %s, %s" % (vr(SA, 16), vr(K2, 4), vr(Q2, 4), vr(SA, 16)))
    e("s_nop 7")
    e("s_nop 7")
    e("v_max3_f32 v10, v%d, v%d, v%d" % (SA, SA + 1, SA + 2))
    for i in range(3, 15, 2):
        e("v_max3_f32 v10, v10, v%d, v%d" % (SA + i, SA + i + 1))
    e("v_max_f32 v10, v10, v%d" % (SA + 15))
    run = "L_%s_run" % name
    k.lab(run)
    e("v_mov_b32 v11, v10")
    e("s_nop 1")
    e("v_permlane32_swap_b32 v11, v10")
    e("s_nop 1")
    e("v_max_f32 v10, v10, v11")
    e("v_sub_f32 v10, 0, v10")
    for i in range(16):
        e("v_mov_b32 v%d, v10" % (CM + i))
        e("v_mov_b32 v%d, 0" % (O + i))
    e("v_mov_b32 v%d, v%d" % (vK1, vK1b))
    e("v_mov_b32 v%d, v%d" % (vK2, vK2b))
    e("v_mov_b32 v%d, v%d" % (vV, vVb))
    e("ds_read_b128 %s, v%d" % (vr(K1, 4), vK1))
    e("ds_read_b32 v%d, v%d" % (K2, vK2))
    e("s_waitcnt lgkmcnt(0)")
    e("v_mfma_f32_32x32x16_bf16 %s, %s, %s, %s" % (vr(SA, 16), vr(K1, 4), vr(Q1, 4), vr(CM, 16)))
    e("v_mfma_f32_32x32x16_bf16 %s, %s, %s, %s" % (vr(SA, 16), vr(K2, 4), vr(Q2, 4), vr(SA, 16)))
    e("ds_read_b128 %s, v%d offset:2432" % (vr(K1, 4), vK1))
    e("ds_read_b32 v%d, v%d offset:2432" % (K2, vK2))
    e("ds_read_b128 %s, v%d" % (vr(VVa, 4), vV))
    e("ds_read_b128 %s, v%d offset:640" % (vr(VVb, 4), vV))
    e("s_nop 7")

    def body(t, Sc, Sn):
        o = 2432 * (t % 16)
        e("s_waitcnt lgkmcnt(2)")
        e("v_mfma_f32_32x32x16_bf16 %s, %s, %s, %s" % (vr(Sn, 16), vr(K1, 4), vr(Q1, 4), vr(CM, 16)))
        e("v_mfma_f32_32x32x16_bf16 %s, %s, %s, %s" % (vr(Sn, 16), vr(K2, 4), vr(Q2, 4), vr(Sn, 16)))
        e("ds_read_b128 %s, v%d offset:%d" % (vr(K1, 4), vK1, o + 2 * 2432))
        e("ds_read_b32 v%d, v%d offset:%d" % (K2, vK2, o + 2 * 2432))
        for i in range(16):
            e("v_exp_f32 v%d, v%d" % (Sc + i, Sc + i))
            if i & 1 and i >= 3:
                e("v_cvt_pk_bf16_f32 v%d, v%d, v%d" % (P + (i - 3) // 2, Sc + i - 3, Sc + i - 2))
        e("v_cvt_pk_bf16_f32 v%d, v%d, v%d" % (P + 7, Sc + 14, Sc + 15))
        e("s_waitcnt lgkmcnt(2)")
        e("v_mfma_f32_32x32x16_bf16 %s, %s, %s, %s" % (vr(O, 16), vr(VVa, 4), vr(P, 4), vr(O, 16)))
        e("v_mfma_f32_32x32x16_bf16 %s, %s, %s, %s" % (vr(O, 16), vr(VVb, 4), vr(P + 4, 4), vr(O, 16)))
        e("ds_read_b128 %s, v%d offset:%d" % (vr(VVa, 4), vV, o + 2432))
        e("ds_read_b128 %s, v%d offset:%d" % (vr(VVb, 4), vV, o + 2432 + 640))

    t = 0
    for c, nts in enumerate(SEGS):
        if c > 0:
            sk = k.newlab("sk")
            e("s_cmp_lg_u32 s50, 0")
            e("s_cbranch_scc1 %s" % sk)
            e("s_waitcnt vmcnt(%d)" % seg_wait(c))
            e("s_barrier")
            k.lab(sk)
        for i in range(nts):
            if t == 16:
                e("v_add_u32 v%d, %d, v%d" % (vK1, 16 * 2432, vK1))
                e("v_add_u32 v%d, %d, v%d" % (vK2, 16 * 2432, vK2))
                e("v_add_u32 v%d, %d, v%d" % (vV, 16 * 2432, vV))
            if t < 8:
                sk = k.newlab("sd")
                e("s_cmp_lg_u32 s50, 0")
                e("s_cbranch_scc1 %s" % sk)
                dma(t + 2)
                k.lab(sk)
            if t & 1:
                body(t, SB, SA)
            else:
                body(t, SA, SB)
            t += 1
    e("s_waitcnt lgkmcnt(0)")
    k.stamp(2)
    e("s_nop 7")
    e("s_nop 7")
    e("v_max3_f32 v10, |v%d|, |v%d|, |v%d|" % (O, O + 1, O + 2))
    for i in range(3, 11, 2):
        e("v_max3_f32 v10, v10, |v%d|, |v%d|" % (O + i, O + i + 1))
    e("v_max_f32 v10, v10, |v%d|" % (O + 11))
    e("v_add_f32 v11, v%d, v%d" % (O, O + 1))
    for i in range(2, 12):
        e("v_add_f32 v11, v11, v%d" % (O + i))
    e("v_mov_b32 v12, 0x%x" % f2u(2.0 ** 100))
    e("v_cmp_nlt_f32 vcc, v10, v12")
    e("v_cmp_u_f32 s[52:53], v11, v11")
    e("s_nop 3")
    e("s_or_b64 vcc, vcc, s[52:53]")
    e("s_cmp_lg_u32 s50, 0")
    fin = "L_%s_fin" % name
    e("s_cbranch_scc1 %s" % fin)
    e("s_cbranch_vccz %s" % fin)
    e("s_mov_b32 s50, 1")
    e("v_mov_b32 v%d, v%d" % (vK1, vK1b))
    e("v_mov_b32 v%d, v%d" % (vK2, vK2b))
    e("v_mov_b32 v10, 0xff800000")
    e("s_mov_b32 s51, 0")
    fl = "L_%s_fl" % name
    k.lab(fl)
    e("ds_read_b128 %s, v%d" % (vr(K1, 4), vK1))
    e("ds_read_b32 v%d, v%d" % (K2, vK2))
    e("s_waitcnt lgkmcnt(0)")
    e("v_mfma_f32_32x32x16_bf16 %s, %s, %s, 0" % (vr(SA, 16), vr(K1, 4), vr(Q1, 4)))
    e("v_mfma_f32_32x32x16_bf16 %s, %s, %s, %s" % (vr(SA, 16), vr(K2, 4), vr(Q2, 4), vr(SA, 16)))
    e("s_nop 7")
    e("s_nop 7")
    for i in range(0, 16, 2):
        e("v_max3_f32 v10, v10, v%d, v%d" % (SA + i, SA + i + 1))
    e("v_add_u32 v%d, 2432, v%d" % (vK1, vK1))
    e("v_add_u32 v%d, 2432, v%d" % (vK2, vK2))
    e("s_add_u32 s51, s51, 1")
    e("s_cmp_lt_u32 s51, 32")
    e("s_cbranch_scc1 %s" % fl)
    e("s_branch %s" % run)
    k.lab(fin)
    e("s_barrier")
    e("s_mul_i32 s37, s41, 4096")
    e("v_add_u32 v1, s37, v1")
    e("s_cmp_eq_u32 s40, 0")
    lo = "L_%s_lo" % name
    e("s_cbranch_scc1 %s" % lo)
    e("v_mov_b32 v%d, v%d" % (O + 10, CM))
    for i in range(3):
        e("ds_write_b128 v1, %s offset:%d" % (vr(O + 4 * i, 4), 1024 * i))
    e("s_waitcnt lgkmcnt(0)")
    e("s_barrier")
    e("s_endpgm")
    k.lab(lo)
    e("s_barrier")
    for i in range(3):
        e("ds_read_b128 %s, v1 offset:%d" % (vr(SA + 4 * i, 4), 1024 * i))
    e("s_waitcnt lgkmcnt(0)")
    e("v_min_f32 v10, v%d, v%d" % (CM, SA + 10))
    e("v_sub_f32 v11, v10, v%d" % CM)
    e("v_sub_f32 v12, v10, v%d" % (SA + 10))
    e("v_exp_f32 v11, v11")
    e("v_exp_f32 v12, v12")
    e("s_nop 0")
    for i in list(range(10)) + [11]:
        e("v_mul_f32 v%d, v11, v%d" % (O + i, O + i))
        e("v_fmac_f32 v%d, v12, v%d" % (O + i, SA + i))
    e("v_rcp_f32 v10, v%d" % (O + 11))
    e("s_nop 0")
    for i in range(10):
        e("v_mul_f32 v%d, v10, v%d" % (O + i, O + i))
    for i in range(5):
        e("v_cvt_pk_bf16_f32 v%d, v%d, v%d" % (O + i, O + 2 * i, O + 2 * i + 1))
    e("s_lshl_b32 s37, s36, 1")
    e("v_lshrrev_b32 v12, 4, v5")
    e("v_add_u32 v12, s37, v12")
    e("v_mul_u32_u24 v12, 18432, v12")
    e("v_and_b32 v13, 15, v5")
    e("v_lshl_add_u32 v12, v13, 4, v12")
    e("v_add_u32 v12, 0x%x, v12" % OB)
    e("s_mul_i32 s37, s30, 18")
    e("v_lshlrev_b32 v13, 2, v6")
    e("v_add_u32 v13, s37, v13")
    e("v_cmp_eq_u32 vcc, 0, v6")
    for i, dd in enumerate([0, 2, 8, 10, 16]):
        e("v_add_u32 v14, %d, v13" % dd)
        e("v_lshrrev_b32 v15, 3, v14")
        e("v_and_b32 v14, 7, v14")
        e("v_lshl_add_u32 v15, v15, 8, v12")
        e("v_lshl_add_u32 v15, v14, 1, v15")
        if dd == 16:
            e("v_mov_b32 v14, 0x40000000")
            e("v_cndmask_b32 v15, v14, v15, vcc")
        e("buffer_store_dword v%d, v15, s[16:19], 0 offen" % (O + i))
    k.stamp(3)
    k.dump()
    k.lab(end)
    e("s_endpgm")
    return k


def gen_out(name, kind, xsrc, xdst, layer):
    OA_BASE = 81 * 1024
    lds = OA_BASE + (72 * 1024 if kind == 'A' else 0)
    k = Kern(name, 216 if kind == 'A' else 128, lds, (256, 1, 1), (512, 1, 1))
    e = k.e
    ACC = 16
    XRES = 36
    AF = 48
    BF = 84
    VL16 = 104 if kind == 'B' else 208
    VB = VL16 + 1
    VB4 = VL16 + 2
    VX = VL16 + 3
    VX4 = VL16 + 4
    VD = VL16 + 5
    VD4 = VL16 + 6
    end = "L_%s_end" % name
    e("s_cmp_ge_u32 s2, 256")
    e("s_cbranch_scc1 %s" % end)
    e("s_load_dwordx2 s[4:5], s[0:1], %d" % KA_WS)
    if xdst is None:
        e("s_load_dwordx2 s[22:23], s[0:1], %d" % KA_OUT)
    k.stamp(0)
    e("s_and_b32 s28, s2, 7")
    e("s_lshr_b32 s29, s2, 3")
    e("s_and_b32 s30, s29, 7")
    e("s_lshr_b32 s31, s29, 3")
    e("s_lshl_b32 s28, s28, 2")
    e("s_add_u32 s31, s31, s28")
    e("v_lshrrev_b32 v4, 6, v0")
    e("v_and_b32 v3, 63, v0")
    e("v_readfirstlane_b32 s35, v4")
    e("v_and_b32 v5, 15, v3")
    e("v_lshrrev_b32 v6, 4, v3")
    e("v_lshlrev_b32 v%d, 4, v3" % VL16)
    e("s_and_b32 s36, s35, 3")
    e("s_lshr_b32 s37, s35, 2")
    e("s_lshl_b32 s38, s31, 2")
    e("s_add_u32 s38, s38, s36")
    e("s_mul_i32 s39, s38, 18432")
    e("s_mul_i32 s33, s30, %d" % (81 * 1024))
    e("s_lshl_b32 s52, s35, 10")
    e("s_waitcnt lgkmcnt(0)")
    k.srd(8, 4, xsrc, XB)
    k.srd(12, 4, WOA if kind == 'A' else WOB, WO_SZ)
    if xdst is None:
        k.srd(24, 22, 0, XB)
    else:
        k.srd(24, 4, xdst, XB)
    if kind == 'A':
        k.srd(16, 4, PQF, PQF_SZ)
        k.srd(44, 4, KVACC + layer * KVACC_L, KVACC_L)
    else:
        k.srd(16, 4, OB, XB)
    k.srd(56, 4, STATS, 2048 * 64)

    if kind == 'B':
        e("s_mul_i32 s40, s37, 9216")
        e("s_add_u32 s40, s40, s39")
        for i in range(9):
            e("buffer_load_dwordx4 %s, v%d, s[16:19], s40 offen offset:%d" % (vr(AF + 4 * i, 4), VL16, (1024 * i) % 4096))
            if i % 4 == 3:
                e("s_add_u32 s40, s40, 4096")
    else:
        KVR, PQR, DD = 48, 112, 176
        e("s_mul_i32 s40, s35, %d" % (4 * 2432))
        e("v_lshlrev_b32 v8, 7, v5")
        e("v_lshl_add_u32 v8, v6, 5, v8")
        e("v_add_u32 v8, s40, v8")
        e("v_and_b32 v9, 3, v5")
        e("v_min_u32 v9, 2, v9")
        e("v_add_u32 v9, 16, v9")
        e("v_lshlrev_b32 v9, 7, v9")
        e("v_lshl_add_u32 v9, v6, 5, v9")
        e("v_add_u32 v9, s40, v9")
        e("v_min_u32 v10, 2, v6")
        e("v_lshlrev_b32 v10, 8, v10")
        e("v_lshl_add_u32 v10, v5, 4, v10")
        e("s_lshl_b32 s41, s31, 7")
        e("s_lshl_b32 s42, s35, 2")
        e("s_add_u32 s41, s41, s42")
        e("s_mul_i32 s41, s41, 768")
        for hh in range(4):
            e("s_mov_b32 s34, %d" % (hh * 2432))
            e("buffer_load_dwordx4 %s, v8, s[44:47], s34 offen" % (vr(KVR + 16 * hh, 4)))
            e("buffer_load_dwordx4 %s, v8, s[44:47], s34 offen offset:16" % (vr(KVR + 16 * hh + 4, 4)))
            e("buffer_load_dwordx4 %s, v9, s[44:47], s34 offen" % (vr(KVR + 16 * hh + 8, 4)))
            e("buffer_load_dwordx4 %s, v9, s[44:47], s34 offen offset:16" % (vr(KVR + 16 * hh + 12, 4)))
            for a in range(4):
                e("s_add_u32 s34, s41, %d" % (a * 32 * 768))
                e("buffer_load_dwordx4 %s, v10, s[16:19], s34 offen offset:%d" % (vr(PQR + 16 * hh + 4 * a, 4), hh * 768))
    for i in range(11):
        if 8 * i + 7 < 81:
            e("s_add_u32 m0, s52, %d" % (8192 * i))
            e("s_add_u32 s34, m0, s33")
        else:
            e("s_add_u32 s54, s52, %d" % (8192 * i))
            e("s_min_u32 m0, s54, %d" % (80 * 1024))
            e("s_add_u32 s34, m0, s33")
        e("buffer_load_dwordx4 v%d, s[12:15], s34 offen lds" % VL16)
    e("s_lshr_b32 s40, s38, 1")
    e("s_mul_i32 s40, s40, 36864")
    e("s_and_b32 s41, s38, 1")
    e("s_lshl_b32 s41, s41, 8")
    e("s_add_u32 s40, s40, s41")
    e("s_mul_i32 s41, s30, 4608")
    e("s_add_u32 s40, s40, s41")
    e("v_lshrrev_b32 v7, 1, v6")
    e("v_lshlrev_b32 v7, 9, v7")
    e("v_lshl_add_u32 v7, v5, 4, v7")
    e("v_and_b32 v11, 1, v6")
    e("v_lshl_add_u32 v7, v11, 3, v7")
    e("v_add_u32 v%d, s40, v7" % VX)
    e("v_cmp_gt_u32 vcc, 2, v6")
    e("v_mov_b32 v11, 0x40000000")
    e("s_nop 0")
    e("v_cndmask_b32 v%d, v11, v%d, vcc" % (VX4, VX))
    if xdst is None:
        e("s_lshl_b32 s40, s38, 4")
        e("v_add_u32 v7, s40, v5")
        e("v_mul_u32_u24 v7, 1152, v7")
        e("v_lshl_add_u32 v7, v6, 3, v7")
        e("s_mul_i32 s40, s30, 144")
        e("v_add_u32 v%d, s40, v7" % VD)
        e("v_cndmask_b32 v%d, v11, v%d, vcc" % (VD4, VD))
    for t in range(5):
        e("s_mov_b32 s34, %d" % (1024 * t))
        e("buffer_load_dwordx2 %s, v%d, s[8:11], s34 offen" % (vr(XRES + 2 * t, 2), VX4 if t == 4 else VX))
    e("s_mul_i32 s40, s37, %d" % (4 * 9216))
    e("v_add_u32 v%d, s40, v%d" % (VB, VL16))
    e("v_and_b32 v7, 7, v5")
    e("v_lshlrev_b32 v7, 4, v7")
    e("v_lshl_add_u32 v7, v6, 7, v7")
    e("v_add_u32 v%d, s40, v7" % VB4)
    for i in range(20):
        e("v_mov_b32 v%d, 0" % (ACC + i))
    if kind == 'A':
        e("s_mul_i32 s41, s35, 2304")
        e("s_add_u32 s41, s41, %d" % OA_BASE)
        e("v_lshlrev_b32 v11, 4, v5")
        e("v_add_u32 v11, s41, v11")
        e("v_lshlrev_b32 v12, 2, v6")
        e("s_mov_b32 s42, 0x%x" % f2u(1e-6))
        for hh in range(4):
            kv = KVR + 16 * hh
            e("s_waitcnt vmcnt(%d)" % (16 + 8 * (3 - hh)))
            for i in range(8):
                e("v_cvt_pk_bf16_f32 v%d, v%d, v%d" % (kv + i, kv + 2 * i, kv + 2 * i + 1))
            e("s_nop 1")
            for a in range(4):
                e("v_mfma_f32_16x16x32_bf16 %s, %s, %s, 0" % (vr(DD + 8 * a, 4), vr(kv, 4), vr(PQR + 16 * hh + 4 * a, 4)))
                e("v_mfma_f32_16x16x32_bf16 %s, %s, %s, 0" % (vr(DD + 8 * a + 4, 4), vr(kv + 4, 4), vr(PQR + 16 * hh + 4 * a, 4)))
            for pr in range(2):
                e("v_add_u32 v13, %d, v12" % (18 * hh + 2 * pr))
                e("v_lshrrev_b32 v14, 3, v13")
                e("v_and_b32 v13, 7, v13")
                e("v_lshl_add_u32 v14, v14, 8, v11")
                e("v_lshl_add_u32 v%d, v13, 1, v14" % (2 if pr == 0 else 15))
            ct = 18 * hh + 16
            toff = (ct >> 3) * 256 + (ct & 7) * 2
            e("s_nop 1")
            for a in range(4):
                d = DD + 8 * a
                e("v_add_f32 v%d, s42, v%d" % (d + 6, d + 6))
                e("v_rcp_f32 v%d, v%d" % (d + 6, d + 6))
                e("s_nop 0")
                for i in range(6):
                    e("v_mul_f32 v%d, v%d, v%d" % (d + i, d + 6, d + i))
                e("v_cvt_pk_bf16_f32 v%d, v%d, v%d" % (d, d, d + 1))
                e("v_cvt_pk_bf16_f32 v%d, v%d, v%d" % (d + 1, d + 2, d + 3))
                e("v_cvt_pk_bf16_f32 v%d, v%d, v%d" % (d + 2, d + 4, d + 5))
                off = a * 18432
                e("ds_write_b32 v2, v%d offset:%d" % (d, off))
                e("ds_write_b32 v15, v%d offset:%d" % (d + 1, off))
                e("ds_write_b32 v11, v%d offset:%d" % (d + 2, off + toff))
        e("s_mul_i32 s40, s36, 18432")
        e("s_mul_i32 s41, s37, 9216")
        e("s_add_u32 s40, s40, s41")
        e("s_add_u32 s40, s40, %d" % OA_BASE)
        e("v_add_u32 v7, s40, v%d" % VL16)
    k.stamp(1)
    e("s_waitcnt vmcnt(0) lgkmcnt(0)")
    e("s_barrier")
    k.stamp(2)
    if kind == 'A':
        for i in range(9):
            e("ds_read_b128 %s, v7 offset:%d" % (vr(AF + 4 * i, 4), 1024 * i))
    l1 = "L_%s_k1" % name
    lj = "L_%s_kj" % name
    e("s_cmp_eq_u32 s37, 1")
    e("s_cbranch_scc1 %s" % l1)
    for kh in range(2):
        if kh == 1:
            k.lab(l1)
        for i in range(9):
            sl = i + kh
            po = (sl >> 1) * 9216
            for t in range(4):
                e("ds_read_b128 %s, v%d offset:%d" % (vr(BF + 4 * t, 4), VB, po + (sl & 1) * 4096 + t * 1024))
            e("ds_read_b128 %s, v%d offset:%d" % (vr(BF + 16, 4), VB4, po + 8192 + (sl & 1) * 512))
            e("s_waitcnt lgkmcnt(0)")
            for t in range(5):
                e("v_mfma_f32_16x16x32_bf16 %s, %s, %s, %s" % (vr(ACC + 4 * t, 4), vr(BF + 4 * t, 4), vr(AF + 4 * i, 4), vr(ACC + 4 * t, 4)))
        k.stamp(4)
        e("s_barrier")
        e("s_mul_i32 s40, s36, 5120")
        e("v_add_u32 v7, s40, v%d" % VL16)
        if kh == 1:
            e("s_nop 7")
            for t in range(5):
                e("ds_write_b128 v7, %s offset:%d" % (vr(ACC + 4 * t, 4), 1024 * t))
            e("s_waitcnt lgkmcnt(0)")
            e("s_barrier")
            e("s_endpgm")
        else:
            e("s_barrier")
            for t in range(5):
                e("ds_read_b128 %s, v7 offset:%d" % (vr(BF + 4 * t, 4), 1024 * t))
            e("s_waitcnt lgkmcnt(0)")
            for t in range(5):
                a = ACC + 4 * t
                x = XRES + 2 * t
                e("v_lshlrev_b32 v8, 16, v%d" % x)
                e("v_and_b32 v9, 0xffff0000, v%d" % x)
                e("v_lshlrev_b32 v10, 16, v%d" % (x + 1))
                e("v_and_b32 v11, 0xffff0000, v%d" % (x + 1))
                for r in range(4):
                    e("v_add_f32 v%d, v%d, v%d" % (a + r, a + r, BF + 4 * t + r))
                    e("v_add_f32 v%d, v%d, v%d" % (a + r, a + r, 8 + r))
                e("v_cvt_pk_bf16_f32 v%d, v%d, v%d" % (a, a, a + 1))
                e("v_cvt_pk_bf16_f32 v%d, v%d, v%d" % (a + 1, a + 2, a + 3))
                if xdst is None:
                    e("buffer_store_dwordx2 %s, v%d, s[24:27], 0 offen offset:%d" % (vr(a, 2), VD4 if t == 4 else VD, 32 * t))
                else:
                    e("s_mov_b32 s34, %d" % (1024 * t))
                    e("buffer_store_dwordx2 %s, v%d, s[24:27], s34 offen" % (vr(a, 2), VX4 if t == 4 else VX))
            if xdst is not None:
                e("s_mov_b32 s42, 0x3f803f80")
                e("v_cmp_gt_u32 vcc, 2, v6")
                e("v_mov_b32 v8, 0")
                e("v_mov_b32 v9, 0")
                e("v_cndmask_b32 v%d, 0, v%d, vcc" % (ACC + 18, ACC + 16))
                e("v_cndmask_b32 v%d, 0, v%d, vcc" % (ACC + 19, ACC + 17))
                for t in range(5):
                    for i in range(2):
                        r = ACC + 4 * t + i + (2 if t == 4 else 0)
                        e("v_dot2_f32_bf16 v8, v%d, s42, v8" % r)
                        e("v_dot2_f32_bf16 v9, v%d, v%d, v9" % (r, r))
                e("s_nop 2")
                e("v_mov_b32 v10, v8")
                e("v_mov_b32 v11, v9")
                e("s_nop 1")
                e("v_permlane16_swap_b32 v10, v8")
                e("v_permlane16_swap_b32 v11, v9")
                e("s_nop 1")
                e("v_add_f32 v8, v8, v10")
                e("v_add_f32 v9, v9, v11")
                e("v_mov_b32 v10, v8")
                e("v_mov_b32 v11, v9")
                e("s_nop 1")
                e("v_permlane32_swap_b32 v10, v8")
                e("v_permlane32_swap_b32 v11, v9")
                e("s_nop 1")
                e("v_add_f32 v8, v8, v10")
                e("v_add_f32 v9, v9, v11")
                e("s_lshl_b32 s40, s38, 10")
                e("s_lshl_b32 s41, s30, 3")
                e("s_add_u32 s40, s40, s41")
                e("v_lshlrev_b32 v10, 6, v5")
                e("v_cmp_eq_u32 vcc, 0, v6")
                e("v_mov_b32 v11, 0x40000000")
                e("s_nop 0")
                e("v_cndmask_b32 v10, v11, v10, vcc")
                e("buffer_store_dwordx2 v[8:9], v10, s[56:59], s40 offen")
            k.stamp(5)
            if STAMPS:
                e("s_waitcnt vmcnt(0)")
            k.stamp(6)
            k.dump()
            e("s_endpgm")
    k.lab(end)
    e("s_endpgm")
    return k


def main():
    qa = gen_qkv('A')
    qb = gen_qkv('B')
    ks = [
        gen_prep(),
        gen_stub("qkv_a1_kernel", qa, [(58, X0F), (59, KVACC)]),
        gen_stub("qkv_a2_kernel", qa, [(58, X2), (59, KVACC + KVACC_L)]),
        qa,
        gen_stub("qkv_b1_kernel", qb, [(58, X1), (59, 0)]),
        gen_stub("qkv_b2_kernel", qb, [(58, X3), (59, 0)]),
        qb,
        gen_out("out_a1_kernel", 'A', X0F, X1, 0),
        gen_attn("attn_kernel"),
        gen_out("out_b1_kernel", 'B', X1, X2, 0),
        gen_out("out_a2_kernel", 'A', X2, X3, 1),
        gen_out("out_b2_kernel", 'B', X3, None, 1),
    ]
    byname = {k.name: k for k in ks}
    order = ["prep_kernel", "qkv_a1_kernel", "out_a1_kernel", "qkv_b1_kernel", "attn_kernel", "out_b1_kernel",
             "qkv_a2_kernel", "out_a2_kernel", "qkv_b2_kernel", "attn_kernel", "out_b2_kernel"]
    hdr = open("cdna_kernels/%s.s.ref" % NAME).read().split("; Override launch geometry")[0]
    out = hdr
    for n in order:
        k = byname[n]
        out += "; @launch kernel=%s grid=(%d,%d,%d) block=(%d,%d,%d) lds=%d\n" % ((n,) + k.grid + k.block + (k.lds,))
    out += '.amdgcn_target "amdgcn-amd-amdhsa--gfx950"\n.text\n'
    for k in ks:
        if getattr(k, "nodesc", False):
            out += ".p2align 8\n%s:\n" % k.name + "\n".join(k.L) + "\n"
        else:
            out += k.text()
    out += '.section .rodata,"a"\n'
    for k in ks:
        if not getattr(k, "nodesc", False):
            out += ".p2align 6\n" + k.desc()
    dst = "cdna_kernels/%s.s" % NAME
    if STAMPS:
        dst = OUTFILE
    open(dst, "w").write(out)


if __name__ == "__main__":
    if len(sys.argv) > 1 and sys.argv[1] == "stamps":
        STAMPS = True
        for a in sys.argv[2:]:
            if a.startswith("out="):
                OUTFILE = a[4:]
            else:
                EXP[a] = True
    main()
```

```python
import sys, re

NAME = "interleave_layers__linear_attn_block__mha_block__prompt"

XB = 2048 * 576 * 2
X1 = 0x0
X2 = 0x240000
X3 = 0x480000
PQ = 0x6C0000
OB = 0x900000
QPI = 0xB40000
QHEAD = 64 * 1152
KVI = 0xF40000
KVHEAD = 64 * 2432
KVACC = 0x1400000
KVACC_L = 32 * 19 * 32 * 4
WFA = 0x2000000
WFB = 0x2240000
WF_SZ = 8 * 36 * 8 * 1024
STATS = 0x1440000
WOA = 0x1840000
WOB = 0x1900000
WO_SZ = 8 * 81 * 1024
CS = 0x1480000
CS_MAT = 6 * 8 * 1024
PQF = 0x1A00000
PQF_SZ = 128 * 32 * 768
X0F = 0x1D00000
WS_SIZE = 0x2500000

LOG2E = 1.4426950408889634
QSCALE = (18.0 ** -0.5) * LOG2E

import struct
def f2u(x):
    return struct.unpack("<I", struct.pack("<f", x))[0]


EXP = {}
STAMPS = False
STAMP_WG = 0


class Kern:
    def __init__(self, name, vgpr, lds, grid, block):
        self.name = name
        self.vgpr = vgpr
        self.lds = lds
        self.grid = grid
        self.block = block
        self.L = []
        self.uid = 0

    def e(self, s):
        m = re.search(r"offset:(\d+)", s)
        if m:
            o = int(m.group(1))
            if s.startswith("buffer_"):
                assert o <= 4095, s
            elif s.startswith("ds_"):
                assert o <= 65535, s
        self.L.append("    " + s)

    def lab(self, s):
        self.L.append(s + ":")

    def newlab(self, p):
        self.uid += 1
        return "L_%s_%s%d" % (self.name, p, self.uid)

    def srd(self, d, b, off, size):
        if off:
            self.e("s_add_u32 s%d, s%d, 0x%x" % (d, b, off))
            self.e("s_addc_u32 s%d, s%d, 0" % (d + 1, b + 1))
        else:
            self.e("s_mov_b32 s%d, s%d" % (d, b))
            self.e("s_mov_b32 s%d, s%d" % (d + 1, b + 1))
        self.e("s_mov_b32 s%d, 0x%x" % (d + 2, size))
        self.e("s_mov_b32 s%d, 0x00020000" % (d + 3))

    def stamp(self, i):
        if STAMPS:
            self.e("s_memtime s[%d:%d]" % (64 + 2 * i, 65 + 2 * i))
            self.nst = max(getattr(self, "nst", 0), i + 1)

    def dump(self):
        if STAMPS and getattr(self, "nst", 0):
            l = self.newlab("nd")
            self.e("s_cmp_lg_u32 s2, %d" % STAMP_WG)
            self.e("s_cbranch_scc1 %s" % l)
            self.e("s_load_dwordx2 s[60:61], s[0:1], %d" % KA_DBG)
            self.e("s_waitcnt lgkmcnt(0)")
            self.e("s_mov_b32 s62, 256")
            self.e("s_mov_b32 s63, 0x00020000")
            self.e("v_lshrrev_b32 v1, 6, v0")
            if EXP.get("hiwaves"):
                self.e("v_xor_b32 v1, 4, v1")
            self.e("v_lshlrev_b32 v1, 6, v1")
            for i in range(self.nst):
                self.e("v_mov_b32 v2, s%d" % (64 + 2 * i))
                self.e("buffer_store_dword v2, v1, s[60:63], 0 offen offset:%d" % (4 * i))
            self.lab(l)

    def text(self):
        if getattr(self, "stub", None):
            return (".globl %s\n.p2align 8\n.type %s,@function\n%s:\n" % (self.name, self.name, self.name)
                    + "".join("    %s\n" % x for x in self.stub))
        out = []
        out.append(".globl %s" % self.name)
        out.append(".p2align 8")
        out.append(".type %s,@function" % self.name)
        out.append("%s:" % self.name)
        out += self.L
        return "\n".join(out) + "\n"

    def desc(self):
        v = (self.vgpr + 3) // 4 * 4
        return """.amdhsa_kernel %s
  .amdhsa_next_free_vgpr %d
  .amdhsa_next_free_sgpr 96
  .amdhsa_accum_offset %d
  .amdhsa_group_segment_fixed_size 0
  .amdhsa_kernarg_size 72
  .amdhsa_user_sgpr_count 2
  .amdhsa_user_sgpr_kernarg_segment_ptr 1
  .amdhsa_system_sgpr_workgroup_id_x 1
.end_amdhsa_kernel
""" % (self.name, v, v)


def vr(a, n):
    return "v[%d:%d]" % (a, a + n - 1)


KA_AX, KA_AWQKV, KA_AWO, KA_BX, KA_BWQKV, KA_BWO, KA_OUT, KA_DBG, KA_WS = [8 * i for i in range(9)]


OUTFILE = 'st.s'
PB_ROW = 544
OB_ROW = 160


def gen_prep():
    NQ = 96
    NO = 96
    NZ = 0
    NX = 64
    GL = 32 * PB_ROW
    k = Kern("prep_kernel", 96, 3 * GL + 4096, (NQ + NO + NZ + NX, 1, 1), (768, 1, 1))
    e = k.e
    e("s_cmp_ge_u32 s2, %d" % (NQ + NO + NZ + NX))
    e("s_cbranch_scc1 L_prep_end")
    e("s_load_dwordx2 s[4:5], s[0:1], %d" % KA_WS)
    e("s_load_dwordx2 s[20:21], s[0:1], %d" % KA_AWQKV)
    e("s_load_dwordx2 s[22:23], s[0:1], %d" % KA_BWQKV)
    e("s_load_dwordx2 s[24:25], s[0:1], %d" % KA_AWO)
    e("s_load_dwordx2 s[26:27], s[0:1], %d" % KA_BWO)
    e("s_load_dwordx2 s[44:45], s[0:1], %d" % KA_AX)
    k.stamp(0)
    e("v_and_b32 v3, 63, v0")
    e("v_lshrrev_b32 v4, 6, v0")
    e("v_and_b32 v0, 255, v0")
    e("v_readfirstlane_b32 s35, v4")
    e("v_lshlrev_b32 v5, 4, v3")
    e("v_lshrrev_b32 v6, 4, v3")
    e("v_lshrrev_b32 v8, 2, v3")
    e("v_and_b32 v8, 3, v8")
    e("v_and_b32 v9, 3, v3")
    e("s_lshr_b32 s46, s35, 2")
    e("s_and_b32 s35, s35, 3")
    e("s_mul_i32 s47, s46, %d" % GL)
    e("s_waitcnt lgkmcnt(0)")
    k.srd(16, 4, 0, WS_SIZE)
    e("s_cmp_ge_u32 s2, %d" % (NQ + NO))
    e("s_cbranch_scc1 L_prep_misc")
    e("s_cmp_ge_u32 s2, %d" % NQ)
    e("s_cbranch_scc1 L_prep_wo")
    e("s_cmp_ge_u32 s2, 48")
    e("s_cselect_b32 s30, 1, 0")
    e("s_mul_i32 s31, s30, 48")
    e("s_sub_u32 s31, s2, s31")
    e("s_mul_i32 s32, s31, 10923")
    e("s_lshr_b32 s32, s32, 16")
    e("s_mul_i32 s33, s32, 6")
    e("s_sub_u32 s33, s31, s33")
    e("s_mul_i32 s48, s33, 3")
    e("s_add_u32 s48, s48, s46")
    e("s_cmp_eq_u32 s30, 0")
    e("s_cselect_b32 s8, s20, s22")
    e("s_cselect_b32 s9, s21, s23")
    e("s_mov_b32 s10, %d" % (576 * 3456))
    e("s_mov_b32 s11, 0x00020000")
    e("s_cselect_b32 s36, 1, 0")
    e("s_mul_i32 s37, s32, 144")
    e("s_mul_i32 s38, s48, %d" % (32 * 3456))
    e("s_add_u32 s37, s37, s38")
    for i in range(4):
        e("v_add_u32 v10, %d, v0" % (256 * i))
        if i == 3:
            e("v_min_u32 v10, 863, v10")
        e("v_mul_u32_u24 v11, 2428, v10")
        e("v_lshrrev_b32 v11, 16, v11")
        e("v_mul_u32_u24 v12, 27, v11")
        e("v_sub_u32 v12, v10, v12")
        e("v_mul_u32_u24 v13, 57, v12")
        e("v_lshrrev_b32 v13, 9, v13")
        e("v_mul_u32_u24 v14, 9, v13")
        e("v_sub_u32 v14, v12, v14")
        e("v_lshrrev_b32 v2, 1, v13")
        e("v_lshl_add_u32 v12, v2, 1, v12")
        e("v_add_u32 v13, s36, v13")
        e("v_cmp_eq_u32 vcc, 3, v13")
        e("s_nop 1")
        e("v_cndmask_b32_e64 v13, v13, 0, vcc")
        e("v_mul_u32_u24 v13, 1152, v13")
        e("v_mul_u32_u24 v15, 3456, v11")
        e("v_add3_u32 v15, v15, v13, s37")
        e("v_lshl_add_u32 v15, v14, 4, v15")
        e("buffer_load_dwordx4 %s, v15, s[8:11], 0 offen" % vr(32 + 4 * i, 4))
        e("v_mul_u32_u24 v15, %d, v11" % PB_ROW)
        e("v_lshl_add_u32 v15, v12, 4, v15")
        e("v_add_u32 v%d, s47, v15" % (20 + i))
    for i in range(4):
        e("v_mov_b32 v%d, 0" % (24 + i))
    e("v_min_u32 v10, 159, v0")
    e("v_mul_u32_u24 v11, 13108, v10")
    e("v_lshrrev_b32 v11, 16, v11")
    e("v_mul_u32_u24 v12, 5, v11")
    e("v_sub_u32 v12, v10, v12")
    e("v_cmp_gt_u32 vcc, 2, v12")
    e("v_add_u32 v13, 18, v12")
    e("v_add_u32 v14, 27, v12")
    e("v_cndmask_b32 v12, v14, v13, vcc")
    e("v_mul_u32_u24 v11, %d, v11" % PB_ROW)
    e("v_lshl_add_u32 v11, v12, 4, v11")
    e("v_add_u32 v11, s47, v11")
    e("ds_write_b128 v11, v[24:27]")
    e("v_lshrrev_b32 v7, 1, v6")
    e("v_lshl_add_u32 v7, v7, 3, v8")
    e("v_mul_u32_u24 v7, %d, v7" % PB_ROW)
    e("v_and_b32 v10, 1, v6")
    e("v_lshl_add_u32 v7, v10, 5, v7")
    e("v_lshl_add_u32 v7, v9, 3, v7")
    e("s_lshl_b32 s38, s35, 6")
    e("s_add_u32 s38, s38, s47")
    e("v_add_u32 v7, s38, v7")
    for i in range(4):
        e("v_mov_b32 v%d, 0x3f803f80" % (24 + i))
    e("s_mul_i32 s38, s32, 36")
    e("s_lshl_b32 s39, s48, 1")
    e("s_add_u32 s38, s38, s39")
    e("s_lshl_b32 s38, s38, 3")
    e("s_add_u32 s38, s38, s35")
    e("s_lshl_b32 s38, s38, 10")
    e("s_mul_i32 s39, s30, 0x%x" % (WFB - WFA))
    e("s_add_u32 s38, s38, s39")
    e("s_add_u32 s38, s38, 0x%x" % WFA)
    e("s_lshl_b32 s39, s33, 3")
    e("s_add_u32 s39, s39, s32")
    e("s_lshl_b32 s39, s39, 10")
    e("s_mul_i32 s40, s30, %d" % CS_MAT)
    e("s_add_u32 s39, s39, s40")
    e("s_add_u32 s39, s39, 0x%x" % CS)
    e("s_lshl_b32 s40, s46, 10")
    e("s_lshl_b32 s41, s35, 7")
    e("s_add_u32 s40, s40, s41")
    e("s_add_u32 s40, s40, %d" % (3 * GL))
    e("v_and_b32 v10, 31, v3")
    e("v_lshl_add_u32 v10, v10, 2, s40")
    k.stamp(1)
    e("s_waitcnt vmcnt(0)")
    k.stamp(2)
    for i in range(4):
        e("ds_write_b128 v%d, %s" % (20 + i, vr(32 + 4 * i, 4)))
    e("s_waitcnt lgkmcnt(0)")
    e("s_barrier")
    k.stamp(3)
    for q in range(2):
        for ks in range(2):
            for hf in range(2):
                e("ds_read_b64_tr_b16 %s, v7 offset:%d" % (vr(32 + 8 * q + 4 * ks + 2 * hf, 2), (16 * ks + 4 * hf) * PB_ROW + 256 * q))
    e("s_waitcnt lgkmcnt(0)")
    for q in range(2):
        for ks in range(2):
            c = "0" if ks == 0 else vr(48 + 16 * q, 16)
            e("v_mfma_f32_32x32x16_bf16 %s, v[24:27], %s, %s" % (vr(48 + 16 * q, 16), vr(32 + 8 * q + 4 * ks, 4), c))
            e("s_add_u32 s40, s38, %d" % (4096 * q + 8192 * ks))
            e("buffer_store_dwordx4 %s, v5, s[16:19], s40 offen" % vr(32 + 8 * q + 4 * ks, 4))
    e("s_nop 7")
    e("s_nop 7")
    for q in range(2):
        e("ds_write_b32 v10, v%d offset:%d" % (48 + 16 * q, 512 * q))
    e("s_waitcnt lgkmcnt(0)")
    e("s_barrier")
    e("s_cmp_lg_u32 s46, 0")
    e("s_cbranch_scc1 L_prep_end")
    e("v_lshlrev_b32 v10, 2, v0")
    for i in range(3):
        e("ds_read_b32 v%d, v10 offset:%d" % (12 + i, 3 * GL + 1024 * i))
    e("s_waitcnt lgkmcnt(0)")
    e("v_add_f32 v12, v12, v13")
    e("v_add_f32 v12, v12, v14")
    e("buffer_store_dword v12, v10, s[16:19], s39 offen")
    k.stamp(4)
    if STAMPS:
        e("s_waitcnt vmcnt(0)")
    k.stamp(5)
    k.dump()
    e("s_endpgm")
    k.lab("L_prep_wo")
    e("s_sub_u32 s29, s2, %d" % NQ)
    e("s_mul_i32 s29, s29, 3")
    e("s_add_u32 s29, s29, s46")
    e("s_cmp_ge_u32 s29, 144")
    e("s_cselect_b32 s30, 1, 0")
    e("s_mul_i32 s31, s30, 144")
    e("s_sub_u32 s31, s29, s31")
    e("s_mul_i32 s32, s31, 3641")
    e("s_lshr_b32 s32, s32, 16")
    e("s_mul_i32 s33, s32, 18")
    e("s_sub_u32 s33, s31, s33")
    e("s_cmp_eq_u32 s30, 0")
    e("s_cselect_b32 s8, s24, s26")
    e("s_cselect_b32 s9, s25, s27")
    e("s_mov_b32 s10, %d" % (576 * 1152))
    e("s_mov_b32 s11, 0x00020000")
    e("s_mul_i32 s37, s32, 144")
    e("s_mul_i32 s38, s33, %d" % (32 * 1152))
    e("s_add_u32 s37, s37, s38")
    for i in range(2):
        e("v_add_u32 v10, %d, v0" % (256 * i))
        if i == 1:
            e("v_min_u32 v10, 287, v10")
        e("v_mul_u32_u24 v11, 7282, v10")
        e("v_lshrrev_b32 v11, 16, v11")
        e("v_mul_u32_u24 v12, 9, v11")
        e("v_sub_u32 v12, v10, v12")
        e("v_mul_u32_u24 v15, 1152, v11")
        e("v_lshl_add_u32 v15, v12, 4, v15")
        e("v_add_u32 v15, s37, v15")
        e("buffer_load_dwordx4 %s, v15, s[8:11], 0 offen" % vr(32 + 4 * i, 4))
        e("v_mul_u32_u24 v15, %d, v11" % OB_ROW)
        e("v_lshrrev_b32 v13, 3, v11")
        e("v_lshl_add_u32 v15, v13, 7, v15")
        e("v_lshl_add_u32 v15, v12, 4, v15")
        e("v_add_u32 v%d, s47, v15" % (20 + i))
    e("s_waitcnt vmcnt(0)")
    for i in range(2):
        e("ds_write_b128 v%d, %s" % (20 + i, vr(32 + 4 * i, 4)))
    e("v_mul_u32_u24 v7, %d, v6" % (8 * OB_ROW + 128))
    e("v_mul_u32_u24 v10, %d, v8" % OB_ROW)
    e("v_lshl_add_u32 v10, v9, 3, v10")
    e("s_lshl_b32 s38, s35, 5")
    e("s_add_u32 s38, s38, s47")
    e("v_add3_u32 v7, v7, v10, s38")
    e("s_mul_i32 s38, s32, %d" % (81 * 1024))
    e("s_lshr_b32 s39, s33, 1")
    e("s_mul_i32 s39, s39, 9216")
    e("s_add_u32 s38, s38, s39")
    e("s_mul_i32 s39, s30, 0x%x" % (WOB - WOA))
    e("s_add_u32 s38, s38, s39")
    e("s_add_u32 s38, s38, 0x%x" % WOA)
    e("s_and_b32 s39, s33, 1")
    e("s_lshl_b32 s40, s39, 9")
    e("s_add_u32 s40, s40, s38")
    e("s_add_u32 s40, s40, 8192")
    e("s_lshl_b32 s39, s39, 12")
    e("s_add_u32 s38, s38, s39")
    e("s_lshl_b32 s39, s35, 10")
    e("s_add_u32 s38, s38, s39")
    e("v_and_b32 v10, 15, v3")
    e("v_lshlrev_b32 v11, 4, v10")
    e("v_lshl_add_u32 v11, v6, 7, v11")
    e("v_cmp_gt_u32 vcc, 8, v10")
    e("v_mov_b32 v12, 0x40000000")
    e("s_nop 0")
    e("v_cndmask_b32 v11, v12, v11, vcc")
    e("s_waitcnt lgkmcnt(0)")
    e("s_barrier")
    for q in range(2):
        for hf in range(2):
            e("ds_read_b64_tr_b16 %s, v7 offset:%d" % (vr(32 + 4 * q + 2 * hf, 2), hf * 4 * OB_ROW + 128 * q))
    e("s_waitcnt lgkmcnt(0)")
    e("buffer_store_dwordx4 %s, v5, s[16:19], s38 offen" % vr(32, 4))
    e("s_cmp_lg_u32 s35, 0")
    e("s_cbranch_scc1 L_prep_end")
    e("buffer_store_dwordx4 %s, v11, s[16:19], s40 offen" % vr(36, 4))
    e("s_endpgm")
    k.lab("L_prep_misc")
    e("s_sub_u32 s3, s2, %d" % (NQ + NO))
    e("s_cmp_eq_u32 s46, 0")
    e("s_cbranch_scc1 L_prep_x0")
    e("s_cmp_eq_u32 s46, 2")
    e("s_cbranch_scc1 L_prep_end")
    e("s_cmp_ge_u32 s3, 38")
    e("s_cbranch_scc1 L_prep_end")
    e("s_lshl_b32 s3, s3, 12")
    e("v_lshlrev_b32 v1, 4, v0")
    e("v_add_u32 v1, s3, v1")
    e("v_add_u32 v1, 0x%x, v1" % KVACC)
    for i in range(4):
        e("v_mov_b32 v%d, 0" % (4 + i))
    e("buffer_store_dwordx4 v[4:7], v1, s[16:19], 0 offen")
    e("s_endpgm")
    k.lab("L_prep_x0")

    e("s_mov_b32 s8, s44")
    e("s_mov_b32 s9, s45")
    e("s_mov_b32 s10, %d" % XB)
    e("s_mov_b32 s11, 0x00020000")
    e("s_mul_i32 s7, s3, 36864")
    e("s_add_u32 s6, s7, 0x%x" % X0F)
    e("s_mov_b32 s42, 0x3f803f80")
    e("v_and_b32 v1, 31, v3")
    e("v_lshrrev_b32 v2, 5, v3")
    e("s_lshl_b32 s28, s35, 1")
    e("v_add_u32 v2, s28, v2")
    e("v_mul_u32_u24 v4, 1152, v1")
    e("v_mul_u32_u24 v7, 144, v2")
    e("v_add_u32 v4, v4, v7")
    for i in range(9):
        e("buffer_load_dwordx4 %s, v4, s[8:11], s7 offen offset:%d" % (vr(32 + 4 * i, 4), 16 * i))
    e("v_mul_u32_u24 v7, 4608, v2")
    e("v_lshl_add_u32 v7, v1, 4, v7")
    e("v_lshlrev_b32 v10, 6, v1")
    e("v_lshl_add_u32 v10, v2, 3, v10")
    e("s_lshl_b32 s28, s3, 11")
    e("s_add_u32 s28, s28, 0x%x" % STATS)
    e("v_mov_b32 v8, 0")
    e("v_mov_b32 v9, 0")
    e("s_waitcnt vmcnt(0)")
    for i in range(9):
        e("s_add_u32 s7, s6, %d" % (512 * i))
        e("buffer_store_dwordx4 %s, v7, s[16:19], s7 offen" % vr(32 + 4 * i, 4))
        for q in range(4):
            e("v_dot2_f32_bf16 v8, v%d, s42, v8" % (32 + 4 * i + q))
            e("v_dot2_f32_bf16 v9, v%d, v%d, v9" % (32 + 4 * i + q, 32 + 4 * i + q))
    e("s_nop 2")
    e("buffer_store_dwordx2 v[8:9], v10, s[16:19], s28 offen")
    k.stamp(4)
    if STAMPS:
        e("s_waitcnt vmcnt(0)")
    k.stamp(5)
    k.dump()
    k.lab("L_prep_end")
    e("s_endpgm")
    return k


NB = 4
BSLOT = 16 * 1024
QA_BASE = NB * BSLOT
QCS_BASE = QA_BASE + 72 * 1024
QST_BASE = QCS_BASE + 2048
QPQ_BASE = QST_BASE + 1024
QKV_LDS = QPQ_BASE + 12288
T_STRIDE = 144


def emit_phi(e, x, t1, t2):
    e("v_min_f32 v%d, 0, v%d" % (t1, x))
    e("v_mul_f32 v%d, s40, v%d" % (t1, t1))
    e("v_exp_f32 v%d, v%d" % (t1, t1))
    e("v_max_f32 v%d, 0, v%d" % (t2, x))
    e("v_add_f32 v%d, s41, v%d" % (t2, t2))
    e("v_add_f32 v%d, v%d, v%d" % (x, t1, t2))


def gen_stub(name, body, params):
    k = Kern(name, body.vgpr, body.lds, body.grid, body.block)
    k.stub = ["s_mov_b32 s%d, 0x%x" % (r, v) for r, v in params] + ["s_branch %s" % body.name]
    return k


def gen_qkv(kind):
    name = "L_qkv%s" % kind
    k = Kern(name, 168, QKV_LDS, (256, 1, 1), (512, 1, 1))
    k.nodesc = True
    e = k.e
    ACC = 16
    FR = [48, 72]
    VBT = 100
    VL16 = 101
    VA = 102
    VB = 103
    CSR = 104
    VCS = 107
    VA1 = 108
    STR = 112
    EA = 128
    end = "%s_end" % name
    e("s_cmp_ge_u32 s2, 256")
    e("s_cbranch_scc1 %s" % end)
    e("s_load_dwordx2 s[4:5], s[0:1], %d" % KA_WS)
    k.stamp(0)
    e("s_and_b32 s28, s2, 7")
    e("s_lshr_b32 s29, s2, 3")
    e("s_lshr_b32 s31, s28, 1")
    e("s_lshl_b32 s31, s31, 3")
    e("s_lshr_b32 s32, s29, 2")
    e("s_add_u32 s31, s31, s32")
    e("s_and_b32 s30, s28, 1")
    e("s_lshl_b32 s30, s30, 2")
    e("s_and_b32 s32, s29, 3")
    e("s_add_u32 s30, s30, s32")
    e("v_and_b32 v3, 63, v0")
    e("v_lshrrev_b32 v4, 6, v0")
    e("v_and_b32 v5, 31, v3")
    e("v_readfirstlane_b32 s35, v4")
    e("v_lshrrev_b32 v6, 5, v3")
    e("v_lshlrev_b32 v%d, 4, v3" % VL16)
    e("s_mul_i32 s33, s30, %d" % (18 * BSLOT))
    e("s_mov_b32 s45, 0")
    e("s_and_b32 s50, s35, 1")
    e("s_lshl_b32 s50, s50, 10")
    e("s_bfe_u32 s51, s35, 0x10001")
    e("s_mul_i32 s51, s51, 36864")
    e("s_add_u32 s50, s50, s51")
    e("s_mul_i32 s51, s31, 73728")
    e("s_add_u32 s51, s51, s50")
    e("s_lshr_b32 s37, s35, 2")
    e("s_add_u32 s48, s37, s45")
    e("s_cmp_ge_u32 s48, 18")
    e("s_cselect_b32 s49, 18, 0")
    e("s_sub_u32 s48, s48, s49")
    e("s_lshl_b32 s49, s37, 11")
    e("s_add_u32 s50, s50, s49")
    e("s_add_u32 s50, s50, %d" % QA_BASE)
    e("s_lshl_b32 s52, s35, 11")
    e("s_add_u32 s53, s52, s33")
    e("s_mov_b32 s55, 0")
    e("s_lshl_b32 s36, s35, 5")
    e("s_add_u32 s57, s50, %d" % (8 * 4096))
    for i in range(32):
        e("v_mov_b32 v%d, 0" % (ACC + i))
    e("v_add_u32 v%d, %d, v%d" % (VA, QA_BASE, VL16))
    e("v_add_u32 v%d, %d, v%d" % (VA1, QA_BASE + 36864, VL16))
    e("s_lshl_b32 s34, s35, 10")
    e("v_add_u32 v%d, s34, v%d" % (VB, VL16))
    e("v_and_b32 v7, 255, v0")
    e("v_lshlrev_b32 v%d, 2, v7" % VCS)
    e("s_mov_b32 s40, 0x%x" % f2u(LOG2E))
    e("s_mov_b32 s41, 0x%x" % f2u(1e-6))
    if kind == 'A':
        for i in range(4):
            e("v_mov_b32 v%d, 0" % (8 + i))
        e("v_lshrrev_b32 v7, 4, v0")
        e("v_and_b32 v7, 15, v7")
        e("v_mul_u32_u24 v7, 768, v7")
        e("v_and_b32 v12, 15, v3")
        e("v_lshl_add_u32 v7, v12, 4, v7")
        e("v_add_u32 v7, %d, v7" % (QPQ_BASE + 512))
        e("ds_write_b128 v7, v[8:11]")
    e("s_waitcnt lgkmcnt(0)")
    k.stamp(2)
    e("s_add_u32 s8, s4, s58")
    e("s_addc_u32 s9, s5, 0")
    e("s_mov_b32 s10, %d" % XB)
    e("s_mov_b32 s11, 0x00020000")
    k.srd(12, 4, WFA if kind == 'A' else WFB, WF_SZ)
    k.srd(16, 4, 0, WS_SIZE)

    def b_ops():
        return [["s_mul_i32 s47, s45, %d" % BSLOT, "s_add_u32 s47, s47, s53",
                 "s_add_u32 m0, s52, s55", "s_nop 0",
                 "buffer_load_dwordx4 v%d, s[12:15], s47 offen lds" % VL16],
                ["s_add_u32 m0, m0, 1024", "s_add_u32 s47, s47, 1024",
                 "buffer_load_dwordx4 v%d, s[12:15], s47 offen lds" % VL16,
                 "s_add_u32 s45, s45, 1", "s_cmp_eq_u32 s45, 18", "s_cselect_b32 s45, 0, s45",
                 "s_add_u32 s55, s55, %d" % BSLOT, "s_and_b32 s55, s55, 0xffff"]]

    def a_ops():
        return [["s_mov_b32 m0, s50", "s_lshl_b32 s34, s48, 11", "s_add_u32 s34, s34, s51",
                 "buffer_load_dwordx4 v%d, s[8:11], s34 offen lds" % VL16,
                 "s_add_u32 s48, s48, 2", "s_cmp_ge_u32 s48, 18", "s_cselect_b32 s49, 18, 0",
                 "s_sub_u32 s48, s48, s49", "s_add_u32 s50, s50, 4096", "s_cmp_gt_u32 s50, s57",
                 "s_cselect_b32 s50, %d, s50" % QCS_BASE]]

    e("s_mul_i32 s54, s37, %d" % (3 * 8192))
    e("s_lshl_b32 s34, s30, 10")
    e("s_add_u32 s54, s54, s34")
    e("s_add_u32 s54, s54, 0x%x" % (CS + (0 if kind == 'A' else CS_MAT)))
    mem = []
    for s in range(NB):
        mem += b_ops()
        if s < 2:
            mem += a_ops()
    e("v_min_u32 v7, 223, v0")
    e("v_lshrrev_b32 v8, 4, v7")
    e("v_lshlrev_b32 v8, 14, v8")
    e("v_and_b32 v7, 15, v7")
    e("v_lshl_add_u32 v%d, v7, 7, v8" % 109)
    e("s_lshr_b32 s34, s29, 2")
    e("s_lshl_b32 s34, s34, 11")
    e("s_add_u32 s43, s34, s33")
    e("s_add_u32 s43, s43, %d" % (4 * BSLOT))
    mem.insert(6, ["buffer_load_dword v%d, v%d, s[12:15], s43 offen" % (110, 109)])
    e("v_min_u32 v7, 143, v0")
    e("v_lshlrev_b32 v111, 7, v7")
    e("s_and_b32 s34, s29, 3")
    e("s_mul_i32 s34, s34, 18432")
    e("s_mul_i32 s42, s31, 73728")
    e("s_add_u32 s42, s42, s34")
    mem.insert(6, ["buffer_load_dword v%d, v%d, s[8:11], s42 offen" % (110, 111)])
    for i in range(3):
        mem.append(["buffer_load_dword v%d, v%d, s[16:19], s54 offen" % (CSR + i, VCS), "s_add_u32 s54, s54, 8192"])
    for _ in range(3):
        for x in mem.pop(0):
            e(x)
    late = mem[5:]
    mem = mem[:5]
    k.mem = mem
    if EXP.get("memfirst"):
        sprinkle(k, 99)
        k.stamp(10)
    if EXP.get("memlast"):
        k.mem = []
    if kind == 'A':
        epi_A_pre(k, EA)
    else:
        epi_B_pre(k, EA)
    if EXP.get("memlast"):
        k.stamp(10)
        k.mem = mem
        sprinkle(k, 99)
    assert not k.mem
    k.stamp(13)
    e("s_waitcnt vmcnt(5) lgkmcnt(0)")
    k.stamp(1)
    e("s_barrier")
    k.stamp(3)

    def freads(f):
        ops = []
        for ks in range(2):
            ops.append(["ds_read_b128 %s, v%d offset:%d" % (vr(f + 16 + 4 * ks, 4), VBT, ks * 8192)])
            ops.append(["ds_read_b128 %s, v%d offset:%d" % (vr(f + 4 * ks, 4), VA, ks * 1024)])
            ops.append(["ds_read_b128 %s, v%d offset:%d" % (vr(f + 8 + 4 * ks, 4), VA1, ks * 1024)])
        return ops

    e("v_mov_b32 v%d, v%d" % (VBT, VB))
    for l in freads(FR[0]):
        e(l[0])
    for l in late:
        for x in l:
            e(x)
    ns = k.newlab("ns")
    e("s_cmp_lg_u32 s35, 7")
    e("s_cbranch_scc1 %s" % ns)
    e("s_lshl_b32 s34, s31, 12")
    e("s_add_u32 s34, s34, 0x%x" % STATS)
    e("v_lshlrev_b32 v7, 6, v3")
    for i in range(4):
        e("buffer_load_dwordx4 %s, v7, s[16:19], s34 offen offset:%d" % (vr(STR + 4 * i, 4), 16 * i))
    k.lab(ns)
    e("s_mov_b32 s56, %d" % BSLOT)

    def stage(p, nwait, with_a, with_b, last=False):
        fc, fn = FR[p], FR[1 - p]
        fill = []
        if not last:
            e("s_waitcnt vmcnt(%d) lgkmcnt(0)" % nwait)
            e("s_barrier")
            e("v_add_u32 v%d, s56, v%d" % (VBT, VB))
            e("v_add_u32 v%d, 2048, v%d" % (VA, VA))
            e("v_add_u32 v%d, 2048, v%d" % (VA1, VA1))
            fill += freads(fn)
            fill.append(["s_add_u32 s56, s56, %d" % BSLOT, "s_and_b32 s56, s56, 0xffff"])
            if with_a:
                fill += a_ops()
            if with_b:
                fill += b_ops()
        else:
            e("s_waitcnt lgkmcnt(0)")
        nfill = -(-len(fill) // 4)
        for ks in range(2):
            for a in range(2):
                acc = ACC + 16 * a
                e("v_mfma_f32_32x32x16_bf16 %s, %s, %s, %s" % (vr(acc, 16), vr(fc + 16 + 4 * ks, 4), vr(fc + 8 * a + 4 * ks, 4), vr(acc, 16)))
                for _ in range(nfill):
                    if fill:
                        for x in fill.pop(0):
                            e(x)

    l1 = k.newlab("p1")
    e("s_mov_b32 s44, 0")
    k.lab(l1)
    stage(0, 6, True, True)
    stage(1, 6, True, True)
    e("s_add_u32 s44, s44, 1")
    e("s_cmp_lt_u32 s44, 4")
    e("s_cbranch_scc1 %s" % l1)
    k.stamp(8)
    l2 = k.newlab("p2")
    e("s_mov_b32 s44, 0")
    k.lab(l2)
    stage(0, 4, False, True)
    stage(1, 4, False, True)
    e("s_add_u32 s44, s44, 1")
    e("s_cmp_lt_u32 s44, 3")
    e("s_cbranch_scc1 %s" % l2)
    k.stamp(9)
    stage(0, 4, False, False)
    stage(1, 2, False, False)
    stage(0, 0, False, False)
    stage(1, 0, False, False, last=True)
    k.stamp(4)
    e("v_add_f32 v%d, v%d, v%d" % (CSR, CSR, CSR + 1))
    e("v_add_f32 v%d, v%d, v%d" % (CSR, CSR, CSR + 2))
    e("s_lshl_b32 s34, s37, 10")
    e("s_add_u32 s34, s34, %d" % QCS_BASE)
    e("v_add_u32 v7, s34, v%d" % VCS)
    e("ds_write_b32 v7, v%d" % CSR)
    ns = k.newlab("ns")
    e("s_cmp_lg_u32 s35, 7")
    e("s_cbranch_scc1 %s" % ns)
    for i in range(1, 8):
        e("v_add_f32 v%d, v%d, v%d" % (STR, STR, STR + 2 * i))
        e("v_add_f32 v%d, v%d, v%d" % (STR + 1, STR + 1, STR + 2 * i + 1))
    e("v_mul_f32 v%d, 0x%x, v%d" % (STR, f2u(1.0 / 576), STR))
    e("v_mul_f32 v%d, 0x%x, v%d" % (STR + 1, f2u(1.0 / 576), STR + 1))
    e("v_fma_f32 v%d, -v%d, v%d, v%d" % (STR + 1, STR, STR, STR + 1))
    e("v_max_f32 v%d, 0, v%d" % (STR + 1, STR + 1))
    e("v_add_f32 v%d, 0x%x, v%d" % (STR + 1, f2u(1e-5), STR + 1))
    e("v_rsq_f32 v%d, v%d" % (STR + 1, STR + 1))
    e("s_nop 0")
    e("v_mul_f32 v%d, v%d, v%d" % (STR, STR, STR + 1))
    e("v_lshlrev_b32 v7, 2, v3")
    e("v_add_u32 v7, %d, v7" % QST_BASE)
    e("ds_write_b32 v7, v%d" % (STR + 1))
    e("ds_write_b32 v7, v%d offset:256" % STR)
    k.lab(ns)
    e("s_waitcnt lgkmcnt(0)")
    e("s_barrier")
    RS = 48
    e("v_lshlrev_b32 v7, 2, v5")
    e("v_add_u32 v7, %d, v7" % QST_BASE)
    for a in range(2):
        e("ds_read_b32 v%d, v7 offset:%d" % (RS + a, a * 128))
        e("ds_read_b32 v%d, v7 offset:%d" % (RS + 2 + a, 256 + a * 128))
    e("s_lshl_b32 s34, s35, 7")
    e("s_add_u32 s34, s34, %d" % QCS_BASE)
    e("v_lshlrev_b32 v8, 4, v6")
    e("v_add_u32 v8, s34, v8")
    for q in range(4):
        e("ds_read_b128 %s, v8 offset:%d" % (vr(56 + 4 * q, 4), 32 * q))
        e("ds_read_b128 %s, v8 offset:%d" % (vr(72 + 4 * q, 4), 1024 + 32 * q))
    e("s_waitcnt lgkmcnt(0)")
    for r in range(16):
        e("v_add_f32 v%d, v%d, v%d" % (56 + r, 56 + r, 72 + r))
    for a in range(2):
        for r in range(16):
            acc = ACC + 16 * a + r
            e("v_mul_f32 v10, v%d, v%d" % (RS + 2 + a, 56 + r))
            e("v_fma_f32 v%d, v%d, v%d, -v10" % (acc, acc, RS + a))
    if kind == 'A':
        epi_A(k, ACC, EA)
    else:
        epi_B(k, ACC, EA)
    k.stamp(5)
    if STAMPS:
        e("s_waitcnt vmcnt(0)")
    k.stamp(6)
    k.dump()
    k.lab(end)
    e("s_endpgm")
    return k


def sprinkle(k, n):
    for _ in range(n):
        if k.mem:
            for x in k.mem.pop(0):
                k.e(x)


def per_wave(k, fn, nw=8):
    e = k.e
    labs = [k.newlab("w") for _ in range(nw)]
    lj = k.newlab("wj")
    for w in range(1, nw):
        e("s_cmp_eq_u32 s35, %d" % w)
        e("s_cbranch_scc1 %s" % labs[w])
    saved = list(k.mem)
    for w in range(nw):
        k.lab(labs[w])
        k.mem = list(saved)
        fn(w)
        sprinkle(k, 99)
        if w < nw - 1:
            e("s_branch %s" % lj)
    k.lab(lj)


def half_consts(k, vals):
    e = k.e
    for i, (v, lo, hi) in enumerate(vals):
        e("v_mov_b32 v%d, 0x%x" % (v, lo))
        if i % 3 == 2:
            sprinkle(k, 1)
    e("s_mov_b32 exec_lo, 0")
    for v, lo, hi in vals:
        if hi != lo:
            e("v_mov_b32 v%d, 0x%x" % (v, hi))
    e("s_mov_b32 exec_lo, -1")


DUMMY = 49152


def epi_A_pre(k, EA):
    e = k.e

    def var(w):
        if w < 5:
            e("v_lshlrev_b32 v7, 2, v6")
            e("v_add_u32 v7, %d, v7" % (32 * w))
            e("v_mul_u32_u24 v7, %d, v7" % T_STRIDE)
            e("v_lshl_add_u32 v%d, v5, 1, v7" % EA)
        else:
            e("v_and_b32 v8, 15, v5")
            e("v_lshlrev_b32 v8, 4, v8")
            e("v_lshrrev_b32 v9, 4, v5")
            e("v_mul_u32_u24 v9, 3072, v9")
            e("v_add_u32 v8, v8, v9")
            vals = []
            for q in range(4):
                for pr in range(2):
                    c = []
                    for h in range(2):
                        qc = 32 * (w - 5) + 8 * q + 4 * h + 2 * pr
                        if qc < 72:
                            hl, d = qc // 18, qc % 18
                            c.append(QPQ_BASE + hl * 768 + (d >> 3) * 256 + (d & 7) * 2)
                        else:
                            c.append(DUMMY)
                    vals.append((EA + 2 * q + pr, c[0], c[1]))
            half_consts(k, vals)
            for i in range(8):
                e("v_add_u32 v%d, v%d, v8" % (EA + i, EA + i))
        if w < 4:
            e("v_min_u32 v7, 17, v5")
            e("v_add_u32 v7, %d, v7" % (18 * w))
            e("v_mul_u32_u24 v7, %d, v7" % T_STRIDE)
            e("v_lshl_add_u32 v%d, v6, 4, v7" % (EA + 10))
            e("v_add_u32 v8, %d, v5" % (72 + 18 * w))
            e("v_cmp_gt_u32 vcc, 18, v5")
            e("v_mov_b32 v9, 160")
            e("s_nop 0")
            e("v_cndmask_b32 v8, v9, v8, vcc")
            e("v_mul_u32_u24 v8, %d, v8" % T_STRIDE)
            e("v_lshl_add_u32 v%d, v6, 4, v8" % (EA + 11))
            e("v_lshlrev_b32 v10, 2, v5")
            e("v_lshl_add_u32 v10, v6, 9, v10")
            e("v_mov_b32 v9, 0x40000000")
            e("v_cndmask_b32 v%d, v9, v10, vcc" % (EA + 12))
            e("v_cmp_eq_u32 vcc, 0, v6")
            e("s_nop 1")
            e("v_cndmask_b32 v%d, v9, v%d, vcc" % (EA + 13, EA + 12))
        else:
            for i in range(4):
                e("v_mov_b32 v%d, 0x40000000" % (EA + 10 + i))

    per_wave(k, var)


def epi_A(k, ACC, EA):
    e = k.e
    lq = k.newlab("eq")
    lj = k.newlab("ej")
    e("s_cmp_ge_u32 s35, 5")
    e("s_cbranch_scc1 %s" % lq)
    e("v_lshl_add_u32 v13, v6, 2, s36")
    for q in range(4):
        e("v_add_u32 v14, %d, v13" % (8 * q))
        e("v_cmp_gt_u32 vcc, 72, v14")
        for a in range(2):
            acc = ACC + 16 * a + 4 * q
            for r in range(4):
                e("v_mov_b32 v12, v%d" % (acc + r))
                emit_phi(e, 12, 10, 11)
                e("v_cndmask_b32 v%d, v%d, v12, vcc" % (acc + r, acc + r))
            e("v_cvt_pk_bf16_f32 v%d, v%d, v%d" % (acc, acc, acc + 1))
            e("v_cvt_pk_bf16_f32 v%d, v%d, v%d" % (acc + 1, acc + 2, acc + 3))
            o = a * 64 + 8 * q * T_STRIDE
            e("ds_write_b16 v%d, v%d offset:%d" % (EA, acc, o))
            e("ds_write_b16_d16_hi v%d, v%d offset:%d" % (EA, acc, o + T_STRIDE))
            e("ds_write_b16 v%d, v%d offset:%d" % (EA, acc + 1, o + 2 * T_STRIDE))
            e("ds_write_b16_d16_hi v%d, v%d offset:%d" % (EA, acc + 1, o + 3 * T_STRIDE))
    e("v_lshlrev_b32 v10, 2, v5")
    e("v_mov_b32 v11, 0x3f803f80")
    e("ds_write_b32 v10, v11 offset:%d" % (160 * T_STRIDE))
    e("s_branch %s" % lj)
    k.lab(lq)
    for a in range(2):
        for q in range(4):
            acc = ACC + 16 * a + 4 * q
            for r in range(4):
                emit_phi(e, acc + r, 10, 11)
            e("v_cvt_pk_bf16_f32 v%d, v%d, v%d" % (acc, acc, acc + 1))
            e("v_cvt_pk_bf16_f32 v%d, v%d, v%d" % (acc + 1, acc + 2, acc + 3))
            e("ds_write_b32 v%d, v%d offset:%d" % (EA + 2 * q, acc, a * 6144))
            e("ds_write_b32 v%d, v%d offset:%d" % (EA + 2 * q + 1, acc + 1, a * 6144))
    k.lab(lj)
    e("s_waitcnt lgkmcnt(0)")
    e("s_barrier")
    lk = k.newlab("ek")
    lj = k.newlab("ej")
    e("s_cmp_lt_u32 s35, 4")
    e("s_cbranch_scc1 %s" % lk)
    e("s_sub_u32 s38, s35, 4")
    e("s_lshl_b32 s39, s31, 2")
    e("s_add_u32 s39, s39, s38")
    e("s_lshl_b32 s39, s39, 5")
    e("s_lshl_b32 s43, s30, 2")
    e("s_add_u32 s39, s39, s43")
    e("s_mul_i32 s39, s39, 768")
    e("s_add_u32 s39, s39, 0x%x" % PQF)
    e("s_mul_i32 s38, s38, 3072")
    e("s_add_u32 s38, s38, %d" % QPQ_BASE)
    e("v_lshlrev_b32 v8, 4, v3")
    e("v_add_u32 v9, s38, v8")
    for i in range(3):
        e("ds_read_b128 %s, v9 offset:%d" % (vr(48 + 4 * i, 4), 1024 * i))
    e("s_waitcnt lgkmcnt(0)")
    for i in range(3):
        e("buffer_store_dwordx4 %s, v8, s[16:19], s39 offen offset:%d" % (vr(48 + 4 * i, 4), 1024 * i))
    e("s_branch %s" % lj)
    k.lab(lk)
    for st in range(4):
        e("ds_read_b128 %s, v%d offset:%d" % (vr(48 + 8 * st, 4), EA + 10, 32 * st))
        e("ds_read_b128 %s, v%d offset:%d" % (vr(52 + 8 * st, 4), EA + 11, 32 * st))
    e("s_lshl_b32 s39, s30, 2")
    e("s_add_u32 s39, s39, s35")
    e("s_mul_i32 s39, s39, 2432")
    e("s_add_u32 s39, s39, s59")
    e("s_waitcnt lgkmcnt(0)")
    for st in range(4):
        c = "0" if st == 0 else vr(80, 16)
        e("v_mfma_f32_32x32x16_bf16 %s, %s, %s, %s" % (vr(80, 16), vr(52 + 8 * st, 4), vr(48 + 8 * st, 4), c))
    e("s_nop 7")
    e("s_nop 7")
    for r in range(11):
        ee = (r & 3) + 8 * (r >> 2)
        e("buffer_atomic_add_f32 v%d, v%d, s[16:19], s39 offen offset:%d" % (80 + r, EA + 12 if r < 8 else EA + 13, 128 * ee))
    k.lab(lj)


IMG_S = 2560
IMG_KV = 8 * IMG_S


def epi_B_pre(k, EA):
    e = k.e

    def var(w):
        if w < 5:
            vals = []
            for q in range(4):
                for pr in range(2):
                    i = 2 * q + pr
                    c, m, sc = [], [], []
                    for h in range(2):
                        vc = 32 * w + 8 * q + 4 * h + 2 * pr
                        if vc >= 144:
                            c.append(DUMMY); m.append(0); sc.append(f2u(1.0))
                            continue
                        isq = vc < 72
                        cc = vc % 72
                        hl, d = cc // 18, cc % 18
                        base = (0 if isq else IMG_KV) + 2 * hl * IMG_S
                        if d < 16:
                            c.append(base + (d >> 3) * 512 + (d & 7) * 2); m.append(16)
                        else:
                            c.append(base + 1024); m.append(4)
                        sc.append(f2u(QSCALE if isq else 1.0))
                    vals.append((EA + i, c[0], c[1]))
                    vals.append((EA + 16 + i, m[0], m[1]))
                    vals.append((EA + 8 + i, sc[0], sc[1]))
            half_consts(k, vals)
            for i in range(8):
                e("v_mad_u32_u24 v%d, v%d, v5, v%d" % (EA + i, EA + 16 + i, EA + i))
        else:
            e("v_lshrrev_b32 v8, 4, v5")
            e("v_mul_u32_u24 v8, 640, v8")
            e("v_bfe_u32 v9, v5, 2, 1")
            e("v_mul_u32_u24 v9, 320, v9")
            e("v_and_b32 v10, 3, v5")
            e("v_bfe_u32 v11, v5, 3, 1")
            e("v_lshl_add_u32 v10, v11, 2, v10")
            e("v_lshl_add_u32 v8, v10, 1, v8")
            e("v_add_u32 v8, v8, v9")
            vals = []
            for q in range(4):
                for pr in range(2):
                    c = []
                    for h in range(2):
                        cc = 32 * (w - 5) + 8 * q + 4 * h + 2 * pr
                        if cc < 72:
                            hl, d = cc // 18, cc % 18
                            c.append(IMG_KV + 2 * hl * IMG_S + 1152 + d * 16)
                        else:
                            c.append(DUMMY)
                    vals.append((EA + 2 * q + pr, c[0], c[1]))
            half_consts(k, vals)
            for i in range(8):
                e("v_add_u32 v%d, v%d, v8" % (EA + i, EA + i))

    per_wave(k, var)


def epi_B(k, ACC, EA):
    e = k.e
    lv = k.newlab("ev")
    lj = k.newlab("ej")
    e("s_cmp_ge_u32 s35, 5")
    e("s_cbranch_scc1 %s" % lv)
    for q in range(4):
        for pr in range(2):
            i = 2 * q + pr
            for a in range(2):
                acc = ACC + 16 * a + 4 * q + 2 * pr
                e("v_mul_f32 v%d, v%d, v%d" % (acc, EA + 8 + i, acc))
                e("v_mul_f32 v%d, v%d, v%d" % (acc + 1, EA + 8 + i, acc + 1))
                e("v_cvt_pk_bf16_f32 v%d, v%d, v%d" % (acc, acc, acc + 1))
                e("ds_write_b32 v%d, v%d offset:%d" % (EA + i, acc, IMG_S * a))
    e("s_branch %s" % lj)
    k.lab(lv)
    for q in range(4):
        for pr in range(2):
            for a in range(2):
                acc = ACC + 16 * a + 4 * q + 2 * pr
                e("v_cvt_pk_bf16_f32 v%d, v%d, v%d" % (acc, acc, acc + 1))
                e("ds_write_b16 v%d, v%d offset:%d" % (EA + 2 * q + pr, acc, IMG_S * a))
                e("ds_write_b16_d16_hi v%d, v%d offset:%d" % (EA + 2 * q + pr, acc, IMG_S * a + 16))
    e("v_lshrrev_b32 v8, 2, v5")
    e("v_mul_u32_u24 v8, %d, v8" % IMG_S)
    e("v_and_b32 v7, 3, v5")
    e("v_mul_u32_u24 v7, 320, v7")
    e("v_add_u32 v7, v7, v8")
    for i in range(4):
        e("v_mov_b32 v%d, 0x3f803f80" % (8 + i))
    e("ds_write_b128 v7, v[8:11] offset:%d" % (IMG_KV + 1152 + 288))
    k.lab(lj)
    e("s_waitcnt lgkmcnt(0)")
    e("s_barrier")
    e("s_mul_i32 s38, s35, %d" % IMG_S)
    e("v_lshlrev_b32 v8, 4, v3")
    e("v_add_u32 v9, s38, v8")
    e("ds_read_b128 v[48:51], v9")
    e("ds_read_b128 v[52:55], v9 offset:1024")
    e("ds_read_b128 v[56:59], v9 offset:%d" % IMG_KV)
    e("ds_read_b128 v[60:63], v9 offset:%d" % (IMG_KV + 1024))
    e("ds_read_b128 v[64:67], v9 offset:%d" % (IMG_KV + 2048))
    e("s_lshl_b32 s43, s30, 2")
    e("s_lshr_b32 s38, s35, 1")
    e("s_add_u32 s43, s43, s38")
    e("s_lshl_b32 s38, s31, 1")
    e("s_and_b32 s39, s35, 1")
    e("s_add_u32 s38, s38, s39")
    e("s_mul_i32 s44, s43, %d" % QHEAD)
    e("s_mul_i32 s39, s38, 1152")
    e("s_add_u32 s44, s44, s39")
    e("s_add_u32 s44, s44, 0x%x" % QPI)
    e("s_mul_i32 s46, s43, %d" % KVHEAD)
    e("s_mul_i32 s39, s38, 2432")
    e("s_add_u32 s46, s46, s39")
    e("s_add_u32 s46, s46, 0x%x" % KVI)
    e("v_mov_b32 v10, 0x40000000")
    e("v_cmp_gt_u32 vcc, 8, v3")
    e("s_nop 1")
    e("v_cndmask_b32 v11, v10, v8, vcc")
    e("v_cmp_gt_u32 vcc, 24, v3")
    e("s_nop 1")
    e("v_cndmask_b32 v12, v10, v8, vcc")
    e("s_waitcnt lgkmcnt(0)")
    e("buffer_store_dwordx4 v[48:51], v8, s[16:19], s44 offen")
    e("buffer_store_dwordx4 v[52:55], v11, s[16:19], s44 offen offset:1024")
    e("buffer_store_dwordx4 v[56:59], v8, s[16:19], s46 offen")
    e("buffer_store_dwordx4 v[60:63], v8, s[16:19], s46 offen offset:1024")
    e("buffer_store_dwordx4 v[64:67], v12, s[16:19], s46 offen offset:2048")


def gen_attn(name):
    k = Kern(name, 120, KVHEAD, (256, 1, 1), (1024, 1, 1))
    e = k.e
    SA, SB = 16, 32
    P = 48
    O = 56
    CM = 72
    Q1, Q2 = 88, 92
    K1, K2 = 96, 100
    VVa, VVb = 104, 108
    vK1, vK2, vV = 112, 113, 114
    vK1b, vK2b, vVb = 115, 116, 117
    SEGS = [2, 6, 8, 8, 8]
    HALF = 32 * 2432
    end = "L_%s_end" % name
    e("s_cmp_ge_u32 s2, 256")
    e("s_cbranch_scc1 %s" % end)
    e("s_load_dwordx2 s[4:5], s[0:1], %d" % KA_WS)
    k.stamp(0)
    e("s_and_b32 s30, s2, 7")
    e("s_lshr_b32 s31, s2, 3")
    e("s_and_b32 s32, s31, 3")
    e("s_lshl_b32 s30, s30, 2")
    e("s_add_u32 s30, s30, s32")
    e("s_lshr_b32 s31, s31, 2")
    e("v_lshrrev_b32 v4, 6, v0")
    e("v_and_b32 v3, 63, v0")
    e("v_readfirstlane_b32 s35, v4")
    e("s_mul_i32 s33, s30, %d" % KVHEAD)
    e("s_lshr_b32 s40, s35, 3")
    e("s_and_b32 s41, s35, 7")
    e("s_mul_i32 s42, s40, %d" % HALF)
    e("v_lshlrev_b32 v1, 4, v3")
    e("s_lshl_b32 s36, s31, 3")
    e("s_add_u32 s36, s36, s41")
    e("s_mul_i32 s37, s36, 1152")
    e("s_mul_i32 s38, s30, %d" % QHEAD)
    e("s_add_u32 s37, s37, s38")
    e("s_add_u32 s37, s37, 0x%x" % QPI)
    e("v_and_b32 v5, 31, v3")
    e("v_lshrrev_b32 v6, 5, v3")
    e("v_lshlrev_b32 v7, 2, v5")
    e("s_lshl_b32 s39, s41, 10")
    e("s_add_u32 s39, s39, s42")
    e("s_add_u32 s43, s42, %d" % (75 * 1024))
    e("s_waitcnt lgkmcnt(0)")
    e("s_add_u32 s8, s4, s33")
    e("s_addc_u32 s9, s5, 0")
    e("s_add_u32 s8, s8, 0x%x" % KVI)
    e("s_addc_u32 s9, s9, 0")
    e("s_mov_b32 s10, %d" % KVHEAD)
    e("s_mov_b32 s11, 0x00020000")
    k.srd(16, 4, 0, WS_SIZE)
    e("buffer_load_dwordx4 %s, v1, s[16:19], s37 offen" % vr(Q1, 4))
    e("buffer_load_dword v%d, v7, s[16:19], s37 offen offset:1024" % Q2)
    def dma(i):
        if i == 9:
            e("s_min_u32 s39, s39, s43")
        e("s_mov_b32 m0, s39")
        e("s_nop 0")
        e("buffer_load_dwordx4 v1, s[8:11], s39 offen lds")
        e("s_add_u32 s39, s39, 8192")

    dma(0)
    dma(1)
    e("v_add_u32 v%d, s42, v1" % vK1b)
    e("v_add_u32 v8, 1024, v7")
    e("v_add_u32 v%d, s42, v8" % vK2b)
    e("v_min_u32 v8, 18, v5")
    e("v_lshlrev_b32 v8, 4, v8")
    e("v_mul_u32_u24 v9, 320, v6")
    e("v_add3_u32 v8, v8, v9, s42")
    e("v_add_u32 v%d, 1152, v8" % vVb)
    for i in range(1, 4):
        e("v_mov_b32 v%d, 0" % (Q2 + i))
        e("v_mov_b32 v%d, 0" % (K2 + i))
    e("v_cmp_eq_u32 vcc, 0, v6")
    e("s_waitcnt vmcnt(2)")
    e("v_cndmask_b32 v%d, 0, v%d, vcc" % (Q2, Q2))
    e("s_mov_b32 s50, 0")

    def seg_wait(c):
        ntiles = sum(SEGS[:c + 1]) + 1
        need = min(-(-(ntiles * 2432) // 1024), 76)
        n = min((need - 1) // 8 + 1, 10)
        issued = 2 + min(sum(SEGS[:c]), 8)
        assert issued >= n
        return issued - n

    e("s_waitcnt vmcnt(%d)" % seg_wait(0))
    e("s_barrier")
    k.stamp(1)
    e("ds_read_b128 %s, v%d" % (vr(K1, 4), vK1b))
    e("ds_read_b32 v%d, v%d" % (K2, vK2b))
    e("s_waitcnt lgkmcnt(0)")
    e("v_mfma_f32_32x32x16_bf16 %s, %s, %s, 0" % (vr(SA, 16), vr(K1, 4), vr(Q1, 4)))
    e("v_mfma_f32_32x32x16_bf16 %s, %s, %s, %s" % (vr(SA, 16), vr(K2, 4), vr(Q2, 4), vr(SA, 16)))
    e("s_nop 7")
    e("s_nop 7")
    e("v_max3_f32 v10, v%d, v%d, v%d" % (SA, SA + 1, SA + 2))
    for i in range(3, 15, 2):
        e("v_max3_f32 v10, v10, v%d, v%d" % (SA + i, SA + i + 1))
    e("v_max_f32 v10, v10, v%d" % (SA + 15))
    run = "L_%s_run" % name
    k.lab(run)
    e("v_mov_b32 v11, v10")
    e("s_nop 1")
    e("v_permlane32_swap_b32 v11, v10")
    e("s_nop 1")
    e("v_max_f32 v10, v10, v11")
    e("v_sub_f32 v10, 0, v10")
    for i in range(16):
        e("v_mov_b32 v%d, v10" % (CM + i))
        e("v_mov_b32 v%d, 0" % (O + i))
    e("v_mov_b32 v%d, v%d" % (vK1, vK1b))
    e("v_mov_b32 v%d, v%d" % (vK2, vK2b))
    e("v_mov_b32 v%d, v%d" % (vV, vVb))
    e("ds_read_b128 %s, v%d" % (vr(K1, 4), vK1))
    e("ds_read_b32 v%d, v%d" % (K2, vK2))
    e("s_waitcnt lgkmcnt(0)")
    e("v_mfma_f32_32x32x16_bf16 %s, %s, %s, %s" % (vr(SA, 16), vr(K1, 4), vr(Q1, 4), vr(CM, 16)))
    e("v_mfma_f32_32x32x16_bf16 %s, %s, %s, %s" % (vr(SA, 16), vr(K2, 4), vr(Q2, 4), vr(SA, 16)))
    e("ds_read_b128 %s, v%d offset:2432" % (vr(K1, 4), vK1))
    e("ds_read_b32 v%d, v%d offset:2432" % (K2, vK2))
    e("ds_read_b128 %s, v%d" % (vr(VVa, 4), vV))
    e("ds_read_b128 %s, v%d offset:640" % (vr(VVb, 4), vV))
    e("s_nop 7")

    def body(t, Sc, Sn):
        o = 2432 * (t % 16)
        e("s_waitcnt lgkmcnt(2)")
        e("v_mfma_f32_32x32x16_bf16 %s, %s, %s, %s" % (vr(Sn, 16), vr(K1, 4), vr(Q1, 4), vr(CM, 16)))
        e("v_mfma_f32_32x32x16_bf16 %s, %s, %s, %s" % (vr(Sn, 16), vr(K2, 4), vr(Q2, 4), vr(Sn, 16)))
        e("ds_read_b128 %s, v%d offset:%d" % (vr(K1, 4), vK1, o + 2 * 2432))
        e("ds_read_b32 v%d, v%d offset:%d" % (K2, vK2, o + 2 * 2432))
        for i in range(16):
            e("v_exp_f32 v%d, v%d" % (Sc + i, Sc + i))
            if i & 1 and i >= 3:
                e("v_cvt_pk_bf16_f32 v%d, v%d, v%d" % (P + (i - 3) // 2, Sc + i - 3, Sc + i - 2))
        e("v_cvt_pk_bf16_f32 v%d, v%d, v%d" % (P + 7, Sc + 14, Sc + 15))
        e("s_waitcnt lgkmcnt(2)")
        e("v_mfma_f32_32x32x16_bf16 %s, %s, %s, %s" % (vr(O, 16), vr(VVa, 4), vr(P, 4), vr(O, 16)))
        e("v_mfma_f32_32x32x16_bf16 %s, %s, %s, %s" % (vr(O, 16), vr(VVb, 4), vr(P + 4, 4), vr(O, 16)))
        e("ds_read_b128 %s, v%d offset:%d" % (vr(VVa, 4), vV, o + 2432))
        e("ds_read_b128 %s, v%d offset:%d" % (vr(VVb, 4), vV, o + 2432 + 640))

    t = 0
    for c, nts in enumerate(SEGS):
        if c > 0:
            sk = k.newlab("sk")
            e("s_cmp_lg_u32 s50, 0")
            e("s_cbranch_scc1 %s" % sk)
            e("s_waitcnt vmcnt(%d)" % seg_wait(c))
            e("s_barrier")
            k.lab(sk)
        for i in range(nts):
            if t == 16:
                e("v_add_u32 v%d, %d, v%d" % (vK1, 16 * 2432, vK1))
                e("v_add_u32 v%d, %d, v%d" % (vK2, 16 * 2432, vK2))
                e("v_add_u32 v%d, %d, v%d" % (vV, 16 * 2432, vV))
            if t < 8:
                sk = k.newlab("sd")
                e("s_cmp_lg_u32 s50, 0")
                e("s_cbranch_scc1 %s" % sk)
                dma(t + 2)
                k.lab(sk)
            if t & 1:
                body(t, SB, SA)
            else:
                body(t, SA, SB)
            t += 1
    e("s_waitcnt lgkmcnt(0)")
    k.stamp(2)
    e("s_nop 7")
    e("s_nop 7")
    e("v_max3_f32 v10, |v%d|, |v%d|, |v%d|" % (O, O + 1, O + 2))
    for i in range(3, 11, 2):
        e("v_max3_f32 v10, v10, |v%d|, |v%d|" % (O + i, O + i + 1))
    e("v_max_f32 v10, v10, |v%d|" % (O + 11))
    e("v_add_f32 v11, v%d, v%d" % (O, O + 1))
    for i in range(2, 12):
        e("v_add_f32 v11, v11, v%d" % (O + i))
    e("v_mov_b32 v12, 0x%x" % f2u(2.0 ** 100))
    e("v_cmp_nlt_f32 vcc, v10, v12")
    e("v_cmp_u_f32 s[52:53], v11, v11")
    e("s_nop 3")
    e("s_or_b64 vcc, vcc, s[52:53]")
    e("s_cmp_lg_u32 s50, 0")
    fin = "L_%s_fin" % name
    e("s_cbranch_scc1 %s" % fin)
    e("s_cbranch_vccz %s" % fin)
    e("s_mov_b32 s50, 1")
    e("v_mov_b32 v%d, v%d" % (vK1, vK1b))
    e("v_mov_b32 v%d, v%d" % (vK2, vK2b))
    e("v_mov_b32 v10, 0xff800000")
    e("s_mov_b32 s51, 0")
    fl = "L_%s_fl" % name
    k.lab(fl)
    e("ds_read_b128 %s, v%d" % (vr(K1, 4), vK1))
    e("ds_read_b32 v%d, v%d" % (K2, vK2))
    e("s_waitcnt lgkmcnt(0)")
    e("v_mfma_f32_32x32x16_bf16 %s, %s, %s, 0" % (vr(SA, 16), vr(K1, 4), vr(Q1, 4)))
    e("v_mfma_f32_32x32x16_bf16 %s, %s, %s, %s" % (vr(SA, 16), vr(K2, 4), vr(Q2, 4), vr(SA, 16)))
    e("s_nop 7")
    e("s_nop 7")
    for i in range(0, 16, 2):
        e("v_max3_f32 v10, v10, v%d, v%d" % (SA + i, SA + i + 1))
    e("v_add_u32 v%d, 2432, v%d" % (vK1, vK1))
    e("v_add_u32 v%d, 2432, v%d" % (vK2, vK2))
    e("s_add_u32 s51, s51, 1")
    e("s_cmp_lt_u32 s51, 32")
    e("s_cbranch_scc1 %s" % fl)
    e("s_branch %s" % run)
    k.lab(fin)
    e("s_barrier")
    e("s_mul_i32 s37, s41, 4096")
    e("v_add_u32 v1, s37, v1")
    e("s_cmp_eq_u32 s40, 0")
    lo = "L_%s_lo" % name
    e("s_cbranch_scc1 %s" % lo)
    e("v_mov_b32 v%d, v%d" % (O + 10, CM))
    for i in range(3):
        e("ds_write_b128 v1, %s offset:%d" % (vr(O + 4 * i, 4), 1024 * i))
    e("s_waitcnt lgkmcnt(0)")
    e("s_barrier")
    e("s_endpgm")
    k.lab(lo)
    e("s_barrier")
    for i in range(3):
        e("ds_read_b128 %s, v1 offset:%d" % (vr(SA + 4 * i, 4), 1024 * i))
    e("s_waitcnt lgkmcnt(0)")
    e("v_min_f32 v10, v%d, v%d" % (CM, SA + 10))
    e("v_sub_f32 v11, v10, v%d" % CM)
    e("v_sub_f32 v12, v10, v%d" % (SA + 10))
    e("v_exp_f32 v11, v11")
    e("v_exp_f32 v12, v12")
    e("s_nop 0")
    for i in list(range(10)) + [11]:
        e("v_mul_f32 v%d, v11, v%d" % (O + i, O + i))
        e("v_fmac_f32 v%d, v12, v%d" % (O + i, SA + i))
    e("v_rcp_f32 v10, v%d" % (O + 11))
    e("s_nop 0")
    for i in range(10):
        e("v_mul_f32 v%d, v10, v%d" % (O + i, O + i))
    for i in range(5):
        e("v_cvt_pk_bf16_f32 v%d, v%d, v%d" % (O + i, O + 2 * i, O + 2 * i + 1))
    e("s_lshl_b32 s37, s36, 1")
    e("v_lshrrev_b32 v12, 4, v5")
    e("v_add_u32 v12, s37, v12")
    e("v_mul_u32_u24 v12, 18432, v12")
    e("v_and_b32 v13, 15, v5")
    e("v_lshl_add_u32 v12, v13, 4, v12")
    e("v_add_u32 v12, 0x%x, v12" % OB)
    e("s_mul_i32 s37, s30, 18")
    e("v_lshlrev_b32 v13, 2, v6")
    e("v_add_u32 v13, s37, v13")
    e("v_cmp_eq_u32 vcc, 0, v6")
    for i, dd in enumerate([0, 2, 8, 10, 16]):
        e("v_add_u32 v14, %d, v13" % dd)
        e("v_lshrrev_b32 v15, 3, v14")
        e("v_and_b32 v14, 7, v14")
        e("v_lshl_add_u32 v15, v15, 8, v12")
        e("v_lshl_add_u32 v15, v14, 1, v15")
        if dd == 16:
            e("v_mov_b32 v14, 0x40000000")
            e("v_cndmask_b32 v15, v14, v15, vcc")
        e("buffer_store_dword v%d, v15, s[16:19], 0 offen" % (O + i))
    k.stamp(3)
    k.dump()
    k.lab(end)
    e("s_endpgm")
    return k


def gen_out(name, kind, xsrc, xdst, layer):
    OA_BASE = 81 * 1024
    lds = OA_BASE + (72 * 1024 if kind == 'A' else 0)
    k = Kern(name, 216 if kind == 'A' else 128, lds, (256, 1, 1), (512, 1, 1))
    e = k.e
    ACC = 16
    XRES = 36
    AF = 48
    BF = 84
    VL16 = 104 if kind == 'B' else 208
    VB = VL16 + 1
    VB4 = VL16 + 2
    VX = VL16 + 3
    VX4 = VL16 + 4
    VD = VL16 + 5
    VD4 = VL16 + 6
    end = "L_%s_end" % name
    e("s_cmp_ge_u32 s2, 256")
    e("s_cbranch_scc1 %s" % end)
    e("s_load_dwordx2 s[4:5], s[0:1], %d" % KA_WS)
    if xdst is None:
        e("s_load_dwordx2 s[22:23], s[0:1], %d" % KA_OUT)
    k.stamp(0)
    e("s_and_b32 s28, s2, 7")
    e("s_lshr_b32 s29, s2, 3")
    e("s_and_b32 s30, s29, 7")
    e("s_lshr_b32 s31, s29, 3")
    e("s_lshl_b32 s28, s28, 2")
    e("s_add_u32 s31, s31, s28")
    e("v_lshrrev_b32 v4, 6, v0")
    e("v_and_b32 v3, 63, v0")
    e("v_readfirstlane_b32 s35, v4")
    e("v_and_b32 v5, 15, v3")
    e("v_lshrrev_b32 v6, 4, v3")
    e("v_lshlrev_b32 v%d, 4, v3" % VL16)
    e("s_and_b32 s36, s35, 3")
    e("s_lshr_b32 s37, s35, 2")
    e("s_lshl_b32 s38, s31, 2")
    e("s_add_u32 s38, s38, s36")
    e("s_mul_i32 s39, s38, 18432")
    e("s_mul_i32 s33, s30, %d" % (81 * 1024))
    e("s_lshl_b32 s52, s35, 10")
    e("s_waitcnt lgkmcnt(0)")
    k.srd(8, 4, xsrc, XB)
    k.srd(12, 4, WOA if kind == 'A' else WOB, WO_SZ)
    if xdst is None:
        k.srd(24, 22, 0, XB)
    else:
        k.srd(24, 4, xdst, XB)
    if kind == 'A':
        k.srd(16, 4, PQF, PQF_SZ)
        k.srd(44, 4, KVACC + layer * KVACC_L, KVACC_L)
    else:
        k.srd(16, 4, OB, XB)
    k.srd(56, 4, STATS, 2048 * 64)

    if kind == 'B':
        e("s_mul_i32 s40, s37, 9216")
        e("s_add_u32 s40, s40, s39")
        for i in range(9):
            e("buffer_load_dwordx4 %s, v%d, s[16:19], s40 offen offset:%d" % (vr(AF + 4 * i, 4), VL16, (1024 * i) % 4096))
            if i % 4 == 3:
                e("s_add_u32 s40, s40, 4096")
    else:
        KVR, PQR, DD = 48, 112, 176
        e("s_mul_i32 s40, s35, %d" % (4 * 2432))
        e("v_lshlrev_b32 v8, 7, v5")
        e("v_lshl_add_u32 v8, v6, 5, v8")
        e("v_add_u32 v8, s40, v8")
        e("v_and_b32 v9, 3, v5")
        e("v_min_u32 v9, 2, v9")
        e("v_add_u32 v9, 16, v9")
        e("v_lshlrev_b32 v9, 7, v9")
        e("v_lshl_add_u32 v9, v6, 5, v9")
        e("v_add_u32 v9, s40, v9")
        e("v_min_u32 v10, 2, v6")
        e("v_lshlrev_b32 v10, 8, v10")
        e("v_lshl_add_u32 v10, v5, 4, v10")
        e("s_lshl_b32 s41, s31, 7")
        e("s_lshl_b32 s42, s35, 2")
        e("s_add_u32 s41, s41, s42")
        e("s_mul_i32 s41, s41, 768")
        for i in range(128):
            e("v_mov_b32 v%d, 0" % (KVR + i))
        e("s_mov_b32 exec_hi, 0xffff")
        for hh in range(4):
            e("s_mov_b32 s34, %d" % (hh * 2432))
            e("buffer_load_dwordx4 %s, v8, s[44:47], s34 offen" % (vr(KVR + 16 * hh, 4)))
            e("buffer_load_dwordx4 %s, v9, s[44:47], s34 offen" % (vr(KVR + 16 * hh + 8, 4)))
            e("s_mov_b32 exec_hi, 0")
            e("buffer_load_dwordx4 %s, v8, s[44:47], s34 offen offset:16" % (vr(KVR + 16 * hh + 4, 4)))
            e("buffer_load_dwordx4 %s, v9, s[44:47], s34 offen offset:16" % (vr(KVR + 16 * hh + 12, 4)))
            e("s_mov_b32 exec_hi, 0xffff")
            for a in range(4):
                e("s_add_u32 s34, s41, %d" % (a * 32 * 768))
                e("buffer_load_dwordx4 %s, v10, s[16:19], s34 offen offset:%d" % (vr(PQR + 16 * hh + 4 * a, 4), hh * 768))
        e("s_mov_b32 exec_hi, -1")
    def wdma(lo, hi):
        for i in range(lo, hi):
            if 8 * i + 7 < 81:
                e("s_add_u32 m0, s52, %d" % (8192 * i))
                e("s_add_u32 s34, m0, s33")
            else:
                e("s_add_u32 s54, s52, %d" % (8192 * i))
                e("s_min_u32 m0, s54, %d" % (80 * 1024))
                e("s_add_u32 s34, m0, s33")
            e("buffer_load_dwordx4 v%d, s[12:15], s34 offen lds" % VL16)

    if kind == 'B':
        wdma(0, 11)
    e("s_lshr_b32 s40, s38, 1")
    e("s_mul_i32 s40, s40, 36864")
    e("s_and_b32 s41, s38, 1")
    e("s_lshl_b32 s41, s41, 8")
    e("s_add_u32 s40, s40, s41")
    e("s_mul_i32 s41, s30, 4608")
    e("s_add_u32 s40, s40, s41")
    e("v_lshrrev_b32 v7, 1, v6")
    e("v_lshlrev_b32 v7, 9, v7")
    e("v_lshl_add_u32 v7, v5, 4, v7")
    e("v_and_b32 v11, 1, v6")
    e("v_lshl_add_u32 v7, v11, 3, v7")
    e("v_add_u32 v%d, s40, v7" % VX)
    e("v_cmp_gt_u32 vcc, 2, v6")
    e("v_mov_b32 v11, 0x40000000")
    e("s_nop 0")
    e("v_cndmask_b32 v%d, v11, v%d, vcc" % (VX4, VX))
    if xdst is None:
        e("s_lshl_b32 s40, s38, 4")
        e("v_add_u32 v7, s40, v5")
        e("v_mul_u32_u24 v7, 1152, v7")
        e("v_lshl_add_u32 v7, v6, 3, v7")
        e("s_mul_i32 s40, s30, 144")
        e("v_add_u32 v%d, s40, v7" % VD)
        e("v_cndmask_b32 v%d, v11, v%d, vcc" % (VD4, VD))
    def xres():
        for t in range(5):
            e("s_mov_b32 s34, %d" % (1024 * t))
            e("buffer_load_dwordx2 %s, v%d, s[8:11], s34 offen" % (vr(XRES + 2 * t, 2), VX4 if t == 4 else VX))

    if kind == 'B':
        xres()
    e("s_mul_i32 s40, s37, %d" % (4 * 9216))
    e("v_add_u32 v%d, s40, v%d" % (VB, VL16))
    e("v_and_b32 v7, 7, v5")
    e("v_lshlrev_b32 v7, 4, v7")
    e("v_lshl_add_u32 v7, v6, 7, v7")
    e("v_add_u32 v%d, s40, v7" % VB4)
    for i in range(20):
        e("v_mov_b32 v%d, 0" % (ACC + i))
    if kind == 'A':
        e("s_mul_i32 s41, s35, 2304")
        e("s_add_u32 s41, s41, %d" % OA_BASE)
        e("v_lshlrev_b32 v11, 4, v5")
        e("v_add_u32 v11, s41, v11")
        e("v_lshlrev_b32 v12, 2, v6")
        e("s_mov_b32 s42, 0x%x" % f2u(1e-6))
        for hh in range(4):
            kv = KVR + 16 * hh
            e("s_waitcnt vmcnt(%d)" % (8 * (3 - hh) + 3 * hh))
            for i in range(8):
                e("v_cvt_pk_bf16_f32 v%d, v%d, v%d" % (kv + i, kv + 2 * i, kv + 2 * i + 1))
            e("s_nop 1")
            for a in range(4):
                e("v_mfma_f32_16x16x32_bf16 %s, %s, %s, 0" % (vr(DD + 8 * a, 4), vr(kv, 4), vr(PQR + 16 * hh + 4 * a, 4)))
                e("v_mfma_f32_16x16x32_bf16 %s, %s, %s, 0" % (vr(DD + 8 * a + 4, 4), vr(kv + 4, 4), vr(PQR + 16 * hh + 4 * a, 4)))
            wdma(3 * hh, min(3 * hh + 3, 11))
            if hh == 3:
                xres()
            for pr in range(2):
                e("v_add_u32 v13, %d, v12" % (18 * hh + 2 * pr))
                e("v_lshrrev_b32 v14, 3, v13")
                e("v_and_b32 v13, 7, v13")
                e("v_lshl_add_u32 v14, v14, 8, v11")
                e("v_lshl_add_u32 v%d, v13, 1, v14" % (2 if pr == 0 else 15))
            ct = 18 * hh + 16
            toff = (ct >> 3) * 256 + (ct & 7) * 2
            e("s_nop 1")
            for a in range(4):
                d = DD + 8 * a
                e("v_add_f32 v%d, s42, v%d" % (d + 6, d + 6))
                e("v_rcp_f32 v%d, v%d" % (d + 6, d + 6))
                e("s_nop 0")
                for i in range(6):
                    e("v_mul_f32 v%d, v%d, v%d" % (d + i, d + 6, d + i))
                e("v_cvt_pk_bf16_f32 v%d, v%d, v%d" % (d, d, d + 1))
                e("v_cvt_pk_bf16_f32 v%d, v%d, v%d" % (d + 1, d + 2, d + 3))
                e("v_cvt_pk_bf16_f32 v%d, v%d, v%d" % (d + 2, d + 4, d + 5))
                off = a * 18432
                e("ds_write_b32 v2, v%d offset:%d" % (d, off))
                e("ds_write_b32 v15, v%d offset:%d" % (d + 1, off))
                e("ds_write_b32 v11, v%d offset:%d" % (d + 2, off + toff))
        e("s_mul_i32 s40, s36, 18432")
        e("s_mul_i32 s41, s37, 9216")
        e("s_add_u32 s40, s40, s41")
        e("s_add_u32 s40, s40, %d" % OA_BASE)
        e("v_add_u32 v7, s40, v%d" % VL16)
    k.stamp(1)
    e("s_waitcnt vmcnt(0) lgkmcnt(0)")
    e("s_barrier")
    k.stamp(2)
    if kind == 'A':
        for i in range(9):
            e("ds_read_b128 %s, v7 offset:%d" % (vr(AF + 4 * i, 4), 1024 * i))
    l1 = "L_%s_k1" % name
    lj = "L_%s_kj" % name
    e("s_cmp_eq_u32 s37, 1")
    e("s_cbranch_scc1 %s" % l1)
    for kh in range(2):
        if kh == 1:
            k.lab(l1)
        for i in range(9):
            sl = i + kh
            po = (sl >> 1) * 9216
            for t in range(4):
                e("ds_read_b128 %s, v%d offset:%d" % (vr(BF + 4 * t, 4), VB, po + (sl & 1) * 4096 + t * 1024))
            e("ds_read_b128 %s, v%d offset:%d" % (vr(BF + 16, 4), VB4, po + 8192 + (sl & 1) * 512))
            e("s_waitcnt lgkmcnt(0)")
            for t in range(5):
                e("v_mfma_f32_16x16x32_bf16 %s, %s, %s, %s" % (vr(ACC + 4 * t, 4), vr(BF + 4 * t, 4), vr(AF + 4 * i, 4), vr(ACC + 4 * t, 4)))
        k.stamp(4)
        e("s_barrier")
        e("s_mul_i32 s40, s36, 5120")
        e("v_add_u32 v7, s40, v%d" % VL16)
        if kh == 1:
            e("s_nop 7")
            for t in range(5):
                e("ds_write_b128 v7, %s offset:%d" % (vr(ACC + 4 * t, 4), 1024 * t))
            e("s_waitcnt lgkmcnt(0)")
            e("s_barrier")
            e("s_endpgm")
        else:
            e("s_barrier")
            for t in range(5):
                e("ds_read_b128 %s, v7 offset:%d" % (vr(BF + 4 * t, 4), 1024 * t))
            e("s_waitcnt lgkmcnt(0)")
            for t in range(5):
                a = ACC + 4 * t
                x = XRES + 2 * t
                e("v_lshlrev_b32 v8, 16, v%d" % x)
                e("v_and_b32 v9, 0xffff0000, v%d" % x)
                e("v_lshlrev_b32 v10, 16, v%d" % (x + 1))
                e("v_and_b32 v11, 0xffff0000, v%d" % (x + 1))
                for r in range(4):
                    e("v_add_f32 v%d, v%d, v%d" % (a + r, a + r, BF + 4 * t + r))
                    e("v_add_f32 v%d, v%d, v%d" % (a + r, a + r, 8 + r))
                e("v_cvt_pk_bf16_f32 v%d, v%d, v%d" % (a, a, a + 1))
                e("v_cvt_pk_bf16_f32 v%d, v%d, v%d" % (a + 1, a + 2, a + 3))
                if xdst is None:
                    e("buffer_store_dwordx2 %s, v%d, s[24:27], 0 offen offset:%d" % (vr(a, 2), VD4 if t == 4 else VD, 32 * t))
                else:
                    e("s_mov_b32 s34, %d" % (1024 * t))
                    e("buffer_store_dwordx2 %s, v%d, s[24:27], s34 offen" % (vr(a, 2), VX4 if t == 4 else VX))
            if xdst is not None:
                e("s_mov_b32 s42, 0x3f803f80")
                e("v_cmp_gt_u32 vcc, 2, v6")
                e("v_mov_b32 v8, 0")
                e("v_mov_b32 v9, 0")
                e("v_cndmask_b32 v%d, 0, v%d, vcc" % (ACC + 18, ACC + 16))
                e("v_cndmask_b32 v%d, 0, v%d, vcc" % (ACC + 19, ACC + 17))
                for t in range(5):
                    for i in range(2):
                        r = ACC + 4 * t + i + (2 if t == 4 else 0)
                        e("v_dot2_f32_bf16 v8, v%d, s42, v8" % r)
                        e("v_dot2_f32_bf16 v9, v%d, v%d, v9" % (r, r))
                e("s_nop 2")
                e("v_mov_b32 v10, v8")
                e("v_mov_b32 v11, v9")
                e("s_nop 1")
                e("v_permlane16_swap_b32 v10, v8")
                e("v_permlane16_swap_b32 v11, v9")
                e("s_nop 1")
                e("v_add_f32 v8, v8, v10")
                e("v_add_f32 v9, v9, v11")
                e("v_mov_b32 v10, v8")
                e("v_mov_b32 v11, v9")
                e("s_nop 1")
                e("v_permlane32_swap_b32 v10, v8")
                e("v_permlane32_swap_b32 v11, v9")
                e("s_nop 1")
                e("v_add_f32 v8, v8, v10")
                e("v_add_f32 v9, v9, v11")
                e("s_lshl_b32 s40, s38, 10")
                e("s_lshl_b32 s41, s30, 3")
                e("s_add_u32 s40, s40, s41")
                e("v_lshlrev_b32 v10, 6, v5")
                e("v_cmp_eq_u32 vcc, 0, v6")
                e("v_mov_b32 v11, 0x40000000")
                e("s_nop 0")
                e("v_cndmask_b32 v10, v11, v10, vcc")
                e("buffer_store_dwordx2 v[8:9], v10, s[56:59], s40 offen")
            k.stamp(5)
            if STAMPS:
                e("s_waitcnt vmcnt(0)")
            k.stamp(6)
            k.dump()
            e("s_endpgm")
    k.lab(end)
    e("s_endpgm")
    return k


def main():
    qa = gen_qkv('A')
    qb = gen_qkv('B')
    ks = [
        gen_prep(),
        gen_stub("qkv_a1_kernel", qa, [(58, X0F), (59, KVACC)]),
        gen_stub("qkv_a2_kernel", qa, [(58, X2), (59, KVACC + KVACC_L)]),
        qa,
        gen_stub("qkv_b1_kernel", qb, [(58, X1), (59, 0)]),
        gen_stub("qkv_b2_kernel", qb, [(58, X3), (59, 0)]),
        qb,
        gen_out("out_a1_kernel", 'A', X0F, X1, 0),
        gen_attn("attn_kernel"),
        gen_out("out_b1_kernel", 'B', X1, X2, 0),
        gen_out("out_a2_kernel", 'A', X2, X3, 1),
        gen_out("out_b2_kernel", 'B', X3, None, 1),
    ]
    byname = {k.name: k for k in ks}
    order = ["prep_kernel", "qkv_a1_kernel", "out_a1_kernel", "qkv_b1_kernel", "attn_kernel", "out_b1_kernel",
             "qkv_a2_kernel", "out_a2_kernel", "qkv_b2_kernel", "attn_kernel", "out_b2_kernel"]
    hdr = open("cdna_kernels/%s.s.ref" % NAME).read().split("; Override launch geometry")[0]
    out = hdr
    for n in order:
        k = byname[n]
        out += "; @launch kernel=%s grid=(%d,%d,%d) block=(%d,%d,%d) lds=%d\n" % ((n,) + k.grid + k.block + (k.lds,))
    out += '.amdgcn_target "amdgcn-amd-amdhsa--gfx950"\n.text\n'
    for k in ks:
        if getattr(k, "nodesc", False):
            out += ".p2align 8\n%s:\n" % k.name + "\n".join(k.L) + "\n"
        else:
            out += k.text()
    out += '.section .rodata,"a"\n'
    for k in ks:
        if not getattr(k, "nodesc", False):
            out += ".p2align 6\n" + k.desc()
    dst = "cdna_kernels/%s.s" % NAME
    if STAMPS:
        dst = OUTFILE
    open(dst, "w").write(out)


if __name__ == "__main__":
    if len(sys.argv) > 1 and sys.argv[1] == "stamps":
        STAMPS = True
        for a in sys.argv[2:]:
            if a.startswith("out="):
                OUTFILE = a[4:]
            elif a.startswith("wg="):
                STAMP_WG = int(a[3:])
            else:
                EXP[a] = True
    main()
```

```python
import sys, re

NAME = "interleave_layers__linear_attn_block__mha_block__prompt"

XB = 2048 * 576 * 2
X1 = 0x0
X2 = 0x240000
X3 = 0x480000
PQ = 0x6C0000
OB = 0x900000
QPI = 0xB40000
QHEAD = 64 * 1152
KVI = 0xF40000
KVHEAD = 64 * 2432
KVACC = 0x1400000
KVACC_L = 32 * 19 * 32 * 4
WFA = 0x2000000
WFB = 0x2240000
WF_SZ = 8 * 36 * 8 * 1024
STATS = 0x1440000
WOA = 0x1840000
WOB = 0x1900000
WO_SZ = 8 * 81 * 1024
CS = 0x1480000
CS_MAT = 3 * 16 * 512
PQF = 0x1A00000
PQF_SZ = 128 * 32 * 768
X0F = 0x1D00000
WS_SIZE = 0x2500000

LOG2E = 1.4426950408889634
QSCALE = (18.0 ** -0.5) * LOG2E

import struct
def f2u(x):
    return struct.unpack("<I", struct.pack("<f", x))[0]


EXP = {}
STAMPS = False
STAMP_WG = 0


class Kern:
    def __init__(self, name, vgpr, lds, grid, block):
        self.name = name
        self.vgpr = vgpr
        self.lds = lds
        self.grid = grid
        self.block = block
        self.L = []
        self.uid = 0

    def e(self, s):
        m = re.search(r"offset:(\d+)", s)
        if m:
            o = int(m.group(1))
            if s.startswith("buffer_"):
                assert o <= 4095, s
            elif s.startswith("ds_"):
                assert o <= 65535, s
        self.L.append("    " + s)

    def lab(self, s):
        self.L.append(s + ":")

    def newlab(self, p):
        self.uid += 1
        return "L_%s_%s%d" % (self.name, p, self.uid)

    def srd(self, d, b, off, size):
        if off:
            self.e("s_add_u32 s%d, s%d, 0x%x" % (d, b, off))
            self.e("s_addc_u32 s%d, s%d, 0" % (d + 1, b + 1))
        else:
            self.e("s_mov_b32 s%d, s%d" % (d, b))
            self.e("s_mov_b32 s%d, s%d" % (d + 1, b + 1))
        self.e("s_mov_b32 s%d, 0x%x" % (d + 2, size))
        self.e("s_mov_b32 s%d, 0x00020000" % (d + 3))

    def stamp(self, i):
        if STAMPS:
            self.e("s_memtime s[%d:%d]" % (64 + 2 * i, 65 + 2 * i))
            self.nst = max(getattr(self, "nst", 0), i + 1)

    def dump(self):
        if STAMPS and getattr(self, "nst", 0):
            l = self.newlab("nd")
            self.e("s_cmp_lg_u32 s2, %d" % STAMP_WG)
            self.e("s_cbranch_scc1 %s" % l)
            self.e("s_load_dwordx2 s[60:61], s[0:1], %d" % KA_DBG)
            self.e("s_waitcnt lgkmcnt(0)")
            self.e("s_mov_b32 s62, 256")
            self.e("s_mov_b32 s63, 0x00020000")
            self.e("v_lshrrev_b32 v1, 6, v0")
            if EXP.get("hiwaves"):
                self.e("v_xor_b32 v1, 4, v1")
            self.e("v_lshlrev_b32 v1, 6, v1")
            for i in range(self.nst):
                self.e("v_mov_b32 v2, s%d" % (64 + 2 * i))
                self.e("buffer_store_dword v2, v1, s[60:63], 0 offen offset:%d" % (4 * i))
            self.lab(l)

    def text(self):
        if getattr(self, "stub", None):
            return (".globl %s\n.p2align 8\n.type %s,@function\n%s:\n" % (self.name, self.name, self.name)
                    + "".join("    %s\n" % x for x in self.stub))
        out = []
        out.append(".globl %s" % self.name)
        out.append(".p2align 8")
        out.append(".type %s,@function" % self.name)
        out.append("%s:" % self.name)
        out += self.L
        return "\n".join(out) + "\n"

    def desc(self):
        v = (self.vgpr + 3) // 4 * 4
        return """.amdhsa_kernel %s
  .amdhsa_next_free_vgpr %d
  .amdhsa_next_free_sgpr 96
  .amdhsa_accum_offset %d
  .amdhsa_group_segment_fixed_size 0
  .amdhsa_kernarg_size 72
  .amdhsa_user_sgpr_count 2
  .amdhsa_user_sgpr_kernarg_segment_ptr 1
  .amdhsa_system_sgpr_workgroup_id_x 1
.end_amdhsa_kernel
""" % (self.name, v, v)


def vr(a, n):
    return "v[%d:%d]" % (a, a + n - 1)


KA_AX, KA_AWQKV, KA_AWO, KA_BX, KA_BWQKV, KA_BWO, KA_OUT, KA_DBG, KA_WS = [8 * i for i in range(9)]


OUTFILE = 'st.s'
PB_ROW = 288
OB_ROW = 160


def gen_prep():
    NQ = 96
    NO = 96
    NZ = 0
    NX = 64
    GL = 64 * PB_ROW
    k = Kern("prep_kernel", 96, 3 * GL + 4096, (NQ + NO + NZ + NX, 1, 1), (768, 1, 1))
    e = k.e
    e("s_cmp_ge_u32 s2, %d" % (NQ + NO + NZ + NX))
    e("s_cbranch_scc1 L_prep_end")
    e("s_load_dwordx2 s[4:5], s[0:1], %d" % KA_WS)
    e("s_load_dwordx2 s[20:21], s[0:1], %d" % KA_AWQKV)
    e("s_load_dwordx2 s[22:23], s[0:1], %d" % KA_BWQKV)
    e("s_load_dwordx2 s[24:25], s[0:1], %d" % KA_AWO)
    e("s_load_dwordx2 s[26:27], s[0:1], %d" % KA_BWO)
    e("s_load_dwordx2 s[44:45], s[0:1], %d" % KA_AX)
    k.stamp(0)
    e("v_and_b32 v3, 63, v0")
    e("v_lshrrev_b32 v4, 6, v0")
    e("v_and_b32 v0, 255, v0")
    e("v_readfirstlane_b32 s35, v4")
    e("v_lshlrev_b32 v5, 4, v3")
    e("v_lshrrev_b32 v6, 4, v3")
    e("v_lshrrev_b32 v8, 2, v3")
    e("v_and_b32 v8, 3, v8")
    e("v_and_b32 v9, 3, v3")
    e("s_lshr_b32 s46, s35, 2")
    e("s_and_b32 s35, s35, 3")
    e("s_mul_i32 s47, s46, %d" % GL)
    e("s_waitcnt lgkmcnt(0)")
    k.srd(16, 4, 0, WS_SIZE)
    e("s_cmp_ge_u32 s2, %d" % (NQ + NO))
    e("s_cbranch_scc1 L_prep_misc")
    e("s_cmp_ge_u32 s2, %d" % NQ)
    e("s_cbranch_scc1 L_prep_wo")
    e("s_cmp_ge_u32 s2, 48")
    e("s_cselect_b32 s30, 1, 0")
    e("s_mul_i32 s31, s30, 48")
    e("s_sub_u32 s31, s2, s31")
    e("s_mul_i32 s32, s31, 21846")
    e("s_lshr_b32 s32, s32, 16")
    e("s_mul_i32 s33, s32, 3")
    e("s_sub_u32 s33, s31, s33")
    e("s_mul_i32 s48, s33, 6")
    e("s_lshl_b32 s49, s46, 1")
    e("s_add_u32 s48, s48, s49")
    e("s_cmp_eq_u32 s30, 0")
    e("s_cselect_b32 s8, s20, s22")
    e("s_cselect_b32 s9, s21, s23")
    e("s_mov_b32 s10, %d" % (576 * 3456))
    e("s_mov_b32 s11, 0x00020000")
    e("s_cselect_b32 s36, 1, 0")
    e("s_mul_i32 s37, s32, 72")
    e("s_mul_i32 s38, s48, %d" % (32 * 3456))
    e("s_add_u32 s37, s37, s38")
    for i in range(7):
        e("v_add_u32 v10, %d, v0" % (256 * i))
        if i == 6:
            e("v_min_u32 v10, 1727, v10")
        e("v_mul_u32_u24 v11, 9710, v10")
        e("v_lshrrev_b32 v11, 18, v11")
        e("v_mul_u32_u24 v12, 27, v11")
        e("v_sub_u32 v12, v10, v12")
        e("v_mul_u32_u24 v13, 57, v12")
        e("v_lshrrev_b32 v13, 9, v13")
        e("v_mul_u32_u24 v14, 9, v13")
        e("v_sub_u32 v14, v12, v14")
        e("v_add_u32 v13, s36, v13")
        e("v_cmp_eq_u32 vcc, 3, v13")
        e("s_nop 1")
        e("v_cndmask_b32_e64 v13, v13, 0, vcc")
        e("v_mul_u32_u24 v13, 1152, v13")
        e("v_mul_u32_u24 v15, 3456, v11")
        e("v_add3_u32 v15, v15, v13, s37")
        e("v_lshl_add_u32 v15, v14, 3, v15")
        e("buffer_load_dwordx2 %s, v15, s[8:11], 0 offen" % vr(32 + 2 * i, 2))
        e("v_mul_u32_u24 v15, %d, v11" % PB_ROW)
        e("v_lshl_add_u32 v15, v12, 3, v15")
        e("v_add_u32 v%d, s47, v15" % (20 + i))
    e("v_mov_b32 v28, 0")
    e("v_mov_b32 v29, 0")
    for i in range(2):
        e("v_add_u32 v10, %d, v0" % (256 * i))
        e("v_min_u32 v10, 319, v10")
        e("v_mul_u32_u24 v11, 13108, v10")
        e("v_lshrrev_b32 v11, 16, v11")
        e("v_mul_u32_u24 v12, 5, v11")
        e("v_sub_u32 v12, v10, v12")
        e("v_mul_u32_u24 v11, %d, v11" % PB_ROW)
        e("v_lshl_add_u32 v11, v12, 3, v11")
        e("v_add_u32 v11, s47, v11")
        e("ds_write_b64 v11, v[28:29] offset:216")
    e("v_lshrrev_b32 v7, 1, v6")
    e("v_lshl_add_u32 v7, v7, 3, v8")
    e("v_mul_u32_u24 v7, %d, v7" % PB_ROW)
    e("v_and_b32 v10, 1, v6")
    e("v_lshl_add_u32 v7, v10, 5, v7")
    e("v_lshl_add_u32 v7, v9, 3, v7")
    e("s_lshl_b32 s38, s35, 6")
    e("s_add_u32 s38, s38, s47")
    e("v_add_u32 v7, s38, v7")
    for i in range(4):
        e("v_mov_b32 v%d, 0x3f803f80" % (28 + i))
    e("s_mul_i32 s38, s32, 36")
    e("s_lshl_b32 s39, s48, 1")
    e("s_add_u32 s38, s38, s39")
    e("s_lshl_b32 s38, s38, 2")
    e("s_add_u32 s38, s38, s35")
    e("s_lshl_b32 s38, s38, 10")
    e("s_mul_i32 s39, s30, 0x%x" % (WFB - WFA))
    e("s_add_u32 s38, s38, s39")
    e("s_add_u32 s38, s38, 0x%x" % WFA)
    e("s_lshl_b32 s39, s33, 4")
    e("s_add_u32 s39, s39, s32")
    e("s_lshl_b32 s39, s39, 9")
    e("s_mul_i32 s40, s30, %d" % CS_MAT)
    e("s_add_u32 s39, s39, s40")
    e("s_add_u32 s39, s39, 0x%x" % CS)
    e("s_lshl_b32 s40, s46, 9")
    e("s_lshl_b32 s41, s35, 7")
    e("s_add_u32 s40, s40, s41")
    e("s_add_u32 s40, s40, %d" % (3 * GL))
    e("v_and_b32 v10, 31, v3")
    e("v_lshl_add_u32 v10, v10, 2, s40")
    k.stamp(1)
    e("s_waitcnt vmcnt(0)")
    k.stamp(2)
    for i in range(7):
        e("ds_write_b64 v%d, %s" % (20 + i, vr(32 + 2 * i, 2)))
    e("s_waitcnt lgkmcnt(0)")
    e("s_barrier")
    k.stamp(3)
    for ks in range(4):
        for hf in range(2):
            e("ds_read_b64_tr_b16 %s, v7 offset:%d" % (vr(32 + 4 * ks + 2 * hf, 2), (16 * ks + 4 * hf) * PB_ROW))
    e("s_waitcnt lgkmcnt(0)")
    for ks in range(4):
        c = "0" if ks == 0 else vr(48, 16)
        e("v_mfma_f32_32x32x16_bf16 %s, v[28:31], %s, %s" % (vr(48, 16), vr(32 + 4 * ks, 4), c))
        e("s_add_u32 s40, s38, %d" % (4096 * ks))
        e("buffer_store_dwordx4 %s, v5, s[16:19], s40 offen" % vr(32 + 4 * ks, 4))
    e("s_nop 7")
    e("s_nop 7")
    e("ds_write_b32 v10, v48")
    e("s_waitcnt lgkmcnt(0)")
    e("s_barrier")
    e("s_cmp_lg_u32 s46, 0")
    e("s_cbranch_scc1 L_prep_end")
    e("s_cmp_ge_u32 s35, 2")
    e("s_cbranch_scc1 L_prep_end")
    e("v_lshlrev_b32 v10, 2, v0")
    for i in range(3):
        e("ds_read_b32 v%d, v10 offset:%d" % (12 + i, 3 * GL + 512 * i))
    e("s_waitcnt lgkmcnt(0)")
    e("v_add_f32 v12, v12, v13")
    e("v_add_f32 v12, v12, v14")
    e("buffer_store_dword v12, v10, s[16:19], s39 offen")
    k.stamp(4)
    if STAMPS:
        e("s_waitcnt vmcnt(0)")
    k.stamp(5)
    k.dump()
    e("s_endpgm")
    k.lab("L_prep_wo")
    e("s_sub_u32 s29, s2, %d" % NQ)
    e("s_mul_i32 s29, s29, 3")
    e("s_add_u32 s29, s29, s46")
    e("s_cmp_ge_u32 s29, 144")
    e("s_cselect_b32 s30, 1, 0")
    e("s_mul_i32 s31, s30, 144")
    e("s_sub_u32 s31, s29, s31")
    e("s_mul_i32 s32, s31, 3641")
    e("s_lshr_b32 s32, s32, 16")
    e("s_mul_i32 s33, s32, 18")
    e("s_sub_u32 s33, s31, s33")
    e("s_cmp_eq_u32 s30, 0")
    e("s_cselect_b32 s8, s24, s26")
    e("s_cselect_b32 s9, s25, s27")
    e("s_mov_b32 s10, %d" % (576 * 1152))
    e("s_mov_b32 s11, 0x00020000")
    e("s_mul_i32 s37, s32, 144")
    e("s_mul_i32 s38, s33, %d" % (32 * 1152))
    e("s_add_u32 s37, s37, s38")
    for i in range(2):
        e("v_add_u32 v10, %d, v0" % (256 * i))
        if i == 1:
            e("v_min_u32 v10, 287, v10")
        e("v_mul_u32_u24 v11, 7282, v10")
        e("v_lshrrev_b32 v11, 16, v11")
        e("v_mul_u32_u24 v12, 9, v11")
        e("v_sub_u32 v12, v10, v12")
        e("v_mul_u32_u24 v15, 1152, v11")
        e("v_lshl_add_u32 v15, v12, 4, v15")
        e("v_add_u32 v15, s37, v15")
        e("buffer_load_dwordx4 %s, v15, s[8:11], 0 offen" % vr(32 + 4 * i, 4))
        e("v_mul_u32_u24 v15, %d, v11" % OB_ROW)
        e("v_lshrrev_b32 v13, 3, v11")
        e("v_lshl_add_u32 v15, v13, 7, v15")
        e("v_lshl_add_u32 v15, v12, 4, v15")
        e("v_add_u32 v%d, s47, v15" % (20 + i))
    e("s_waitcnt vmcnt(0)")
    for i in range(2):
        e("ds_write_b128 v%d, %s" % (20 + i, vr(32 + 4 * i, 4)))
    e("v_mul_u32_u24 v7, %d, v6" % (8 * OB_ROW + 128))
    e("v_mul_u32_u24 v10, %d, v8" % OB_ROW)
    e("v_lshl_add_u32 v10, v9, 3, v10")
    e("s_lshl_b32 s38, s35, 5")
    e("s_add_u32 s38, s38, s47")
    e("v_add3_u32 v7, v7, v10, s38")
    e("s_mul_i32 s38, s32, %d" % (81 * 1024))
    e("s_lshr_b32 s39, s33, 1")
    e("s_mul_i32 s39, s39, 9216")
    e("s_add_u32 s38, s38, s39")
    e("s_mul_i32 s39, s30, 0x%x" % (WOB - WOA))
    e("s_add_u32 s38, s38, s39")
    e("s_add_u32 s38, s38, 0x%x" % WOA)
    e("s_and_b32 s39, s33, 1")
    e("s_lshl_b32 s40, s39, 9")
    e("s_add_u32 s40, s40, s38")
    e("s_add_u32 s40, s40, 8192")
    e("s_lshl_b32 s39, s39, 12")
    e("s_add_u32 s38, s38, s39")
    e("s_lshl_b32 s39, s35, 10")
    e("s_add_u32 s38, s38, s39")
    e("v_and_b32 v10, 15, v3")
    e("v_lshlrev_b32 v11, 4, v10")
    e("v_lshl_add_u32 v11, v6, 7, v11")
    e("v_cmp_gt_u32 vcc, 8, v10")
    e("v_mov_b32 v12, 0x40000000")
    e("s_nop 0")
    e("v_cndmask_b32 v11, v12, v11, vcc")
    e("s_waitcnt lgkmcnt(0)")
    e("s_barrier")
    for q in range(2):
        for hf in range(2):
            e("ds_read_b64_tr_b16 %s, v7 offset:%d" % (vr(32 + 4 * q + 2 * hf, 2), hf * 4 * OB_ROW + 128 * q))
    e("s_waitcnt lgkmcnt(0)")
    e("buffer_store_dwordx4 %s, v5, s[16:19], s38 offen" % vr(32, 4))
    e("s_cmp_lg_u32 s35, 0")
    e("s_cbranch_scc1 L_prep_end")
    e("buffer_store_dwordx4 %s, v11, s[16:19], s40 offen" % vr(36, 4))
    e("s_endpgm")
    k.lab("L_prep_misc")
    e("s_sub_u32 s3, s2, %d" % (NQ + NO))
    e("s_cmp_eq_u32 s46, 0")
    e("s_cbranch_scc1 L_prep_x0")
    e("s_cmp_eq_u32 s46, 2")
    e("s_cbranch_scc1 L_prep_end")
    e("s_cmp_ge_u32 s3, 38")
    e("s_cbranch_scc1 L_prep_end")
    e("s_lshl_b32 s3, s3, 12")
    e("v_lshlrev_b32 v1, 4, v0")
    e("v_add_u32 v1, s3, v1")
    e("v_add_u32 v1, 0x%x, v1" % KVACC)
    for i in range(4):
        e("v_mov_b32 v%d, 0" % (4 + i))
    e("buffer_store_dwordx4 v[4:7], v1, s[16:19], 0 offen")
    e("s_endpgm")
    k.lab("L_prep_x0")

    e("s_mov_b32 s8, s44")
    e("s_mov_b32 s9, s45")
    e("s_mov_b32 s10, %d" % XB)
    e("s_mov_b32 s11, 0x00020000")
    e("s_mul_i32 s7, s3, 36864")
    e("s_add_u32 s6, s7, 0x%x" % X0F)
    e("s_mov_b32 s42, 0x3f803f80")
    e("v_and_b32 v1, 31, v3")
    e("v_lshrrev_b32 v2, 5, v3")
    e("s_lshl_b32 s28, s35, 1")
    e("v_add_u32 v2, s28, v2")
    e("v_mul_u32_u24 v4, 1152, v1")
    e("v_mul_u32_u24 v7, 144, v2")
    e("v_add_u32 v4, v4, v7")
    for i in range(9):
        e("buffer_load_dwordx4 %s, v4, s[8:11], s7 offen offset:%d" % (vr(32 + 4 * i, 4), 16 * i))
    e("v_mul_u32_u24 v7, 4608, v2")
    e("v_lshl_add_u32 v7, v1, 4, v7")
    e("v_lshlrev_b32 v10, 6, v1")
    e("v_lshl_add_u32 v10, v2, 3, v10")
    e("s_lshl_b32 s28, s3, 11")
    e("s_add_u32 s28, s28, 0x%x" % STATS)
    e("v_mov_b32 v8, 0")
    e("v_mov_b32 v9, 0")
    e("s_waitcnt vmcnt(0)")
    for i in range(9):
        e("s_add_u32 s7, s6, %d" % (512 * i))
        e("buffer_store_dwordx4 %s, v7, s[16:19], s7 offen" % vr(32 + 4 * i, 4))
        for q in range(4):
            e("v_dot2_f32_bf16 v8, v%d, s42, v8" % (32 + 4 * i + q))
            e("v_dot2_f32_bf16 v9, v%d, v%d, v9" % (32 + 4 * i + q, 32 + 4 * i + q))
    e("s_nop 2")
    e("buffer_store_dwordx2 v[8:9], v10, s[16:19], s28 offen")
    k.stamp(4)
    if STAMPS:
        e("s_waitcnt vmcnt(0)")
    k.stamp(5)
    k.dump()
    k.lab("L_prep_end")
    e("s_endpgm")
    return k


NB = 8
BSLOT = 16 * 1024
QCS_BASE = NB * BSLOT
QST_BASE = QCS_BASE + 1536
QPQ_BASE = QST_BASE + 1024
QKV_LDS = QPQ_BASE + 12288
T_STRIDE = 272


def emit_phi(e, x, t1, t2):
    e("v_min_f32 v%d, 0, v%d" % (t1, x))
    e("v_mul_f32 v%d, s40, v%d" % (t1, t1))
    e("v_exp_f32 v%d, v%d" % (t1, t1))
    e("v_max_f32 v%d, 0, v%d" % (t2, x))
    e("v_add_f32 v%d, s41, v%d" % (t2, t2))
    e("v_add_f32 v%d, v%d, v%d" % (x, t1, t2))


def gen_stub(name, body, params):
    k = Kern(name, body.vgpr, body.lds, body.grid, body.block)
    k.stub = ["s_mov_b32 s%d, 0x%x" % (r, v) for r, v in params] + ["s_branch %s" % body.name]
    return k


def gen_qkv(kind):
    name = "L_qkv%s" % kind
    k = Kern(name, 184, QKV_LDS, (256, 1, 1), (512, 1, 1))
    k.nodesc = True
    e = k.e
    ACC = 16
    FR = [48, 72]
    VL16 = 100
    VA = [101, 102]
    VB = [103, 104]
    CSR = 105
    VCS = 106
    STR = 112
    EA = 128
    end = "%s_end" % name
    e("s_cmp_ge_u32 s2, 256")
    e("s_cbranch_scc1 %s" % end)
    e("s_load_dwordx2 s[4:5], s[0:1], %d" % KA_WS)
    k.stamp(0)
    e("s_and_b32 s28, s2, 7")
    e("s_lshr_b32 s29, s2, 3")
    e("s_lshr_b32 s31, s28, 1")
    e("s_lshl_b32 s31, s31, 2")
    e("s_lshr_b32 s32, s29, 3")
    e("s_add_u32 s31, s31, s32")
    e("s_and_b32 s30, s28, 1")
    e("s_lshl_b32 s30, s30, 3")
    e("s_and_b32 s32, s29, 7")
    e("s_add_u32 s30, s30, s32")
    e("v_and_b32 v3, 63, v0")
    e("v_lshrrev_b32 v4, 6, v0")
    e("v_and_b32 v5, 31, v3")
    e("v_readfirstlane_b32 s35, v4")
    e("v_lshrrev_b32 v6, 5, v3")
    e("v_lshlrev_b32 v%d, 4, v3" % VL16)
    e("s_lshl_b32 s52, s35, 10")
    e("s_mul_i32 s53, s30, %d" % (36 * 4096))
    e("s_add_u32 s53, s53, s52")
    e("s_lshl_b32 s50, s31, 2")
    e("s_lshr_b32 s51, s35, 1")
    e("s_add_u32 s50, s50, s51")
    e("s_mul_i32 s50, s50, 36864")
    e("s_and_b32 s51, s35, 1")
    e("s_lshl_b32 s51, s51, 10")
    e("s_add_u32 s50, s50, s51")
    e("s_and_b32 s36, s35, 3")
    e("s_lshr_b32 s37, s35, 2")
    for i in range(32):
        e("v_mov_b32 v%d, 0" % (ACC + i))
    e("s_lshl_b32 s34, s37, 12")
    e("v_add_u32 v%d, s34, v%d" % (VA[0], VL16))
    e("v_add_u32 v%d, 0x10000, v%d" % (VA[1], VA[0]))
    e("s_lshl_b32 s34, s36, 10")
    e("s_add_u32 s34, s34, 8192")
    e("v_add_u32 v%d, s34, v%d" % (VB[0], VL16))
    e("v_add_u32 v%d, 0x10000, v%d" % (VB[1], VB[0]))
    e("s_mov_b32 s40, 0x%x" % f2u(LOG2E))
    e("s_mov_b32 s41, 0x%x" % f2u(1e-6))
    if kind == 'A':
        for i in range(4):
            e("v_mov_b32 v%d, 0" % (8 + i))
        e("v_lshrrev_b32 v7, 4, v0")
        e("v_and_b32 v7, 15, v7")
        e("v_mul_u32_u24 v7, 768, v7")
        e("v_and_b32 v12, 15, v3")
        e("v_lshl_add_u32 v7, v12, 4, v7")
        e("v_add_u32 v7, %d, v7" % (QPQ_BASE + 512))
        e("ds_write_b128 v7, v[8:11]")
    e("s_waitcnt lgkmcnt(0)")
    k.stamp(2)
    e("s_add_u32 s8, s4, s58")
    e("s_addc_u32 s9, s5, 0")
    e("s_mov_b32 s10, %d" % XB)
    e("s_mov_b32 s11, 0x00020000")
    k.srd(12, 4, WFA if kind == 'A' else WFB, WF_SZ)
    k.srd(16, 4, 0, WS_SIZE)
    issued = []

    def group_ops(g):
        slot = (g % NB) * BSLOT
        return [(g, ["s_add_u32 m0, s52, %d" % slot, "s_nop 0",
                     "buffer_load_dwordx4 v%d, s[8:11], s50 offen lds" % VL16,
                     "s_add_u32 s50, s50, 2048"]),
                (g, ["s_add_u32 m0, s52, %d" % (slot + 8192), "s_nop 0",
                     "buffer_load_dwordx4 v%d, s[12:15], s53 offen lds" % VL16,
                     "s_add_u32 s53, s53, 8192"])]

    def emit_op(op):
        tag, lines = op
        for x in lines:
            e(x)
        if tag is not None:
            issued.append(tag)

    def wait_for(stage):
        last = max(i for i, t in enumerate(issued) if t <= stage)
        return len(issued) - 1 - last

    for g in range(3):
        for op in group_ops(g):
            emit_op(op)
    k.mem = []
    if kind == 'A':
        epi_A_pre(k, EA)
    else:
        epi_B_pre(k, EA)
    e("v_min_u32 v7, 383, v0")
    e("v_lshrrev_b32 v8, 7, v7")
    e("v_and_b32 v7, 127, v7")
    e("v_lshlrev_b32 v7, 2, v7")
    e("v_lshl_add_u32 v%d, v8, 13, v7" % VCS)
    e("v_lshl_add_u32 v107, v8, 9, v7")
    e("s_lshl_b32 s54, s30, 9")
    e("s_add_u32 s54, s54, 0x%x" % (CS + (0 if kind == 'A' else CS_MAT)))
    k.stamp(13)
    e("s_waitcnt vmcnt(%d) lgkmcnt(0)" % wait_for(0))
    k.stamp(1)
    e("s_barrier")
    k.stamp(3)

    def fread_ops(s):
        f = FR[s & 1]
        slot = s % NB
        hi, so = slot >> 2, (slot & 3) * BSLOT
        ops = []
        for ks in range(2):
            ops.append((None, ["ds_read_b128 %s, v%d offset:%d" % (vr(f + 16 + 4 * ks, 4), VB[hi], so + ks * 4096)]))
            for a in range(2):
                ops.append((None, ["ds_read_b128 %s, v%d offset:%d" % (vr(f + 8 * a + 4 * ks, 4), VA[hi], so + a * 2048 + ks * 1024)]))
        return ops

    for op in fread_ops(0):
        emit_op(op)
    nextg = 3
    for s in range(18):
        fill = []
        if s + 1 <= 17:
            e("s_waitcnt vmcnt(%d) lgkmcnt(0)" % wait_for(s + 1))
            e("s_barrier")
            fill += fread_ops(s + 1)
            for _ in range(2):
                if nextg <= 17 and nextg <= s + NB:
                    fill += group_ops(nextg)
                    nextg += 1
            if s == 10:
                fill.append((99, ["buffer_load_dword v%d, v%d, s[16:19], s54 offen" % (CSR, VCS)]))
        else:
            e("s_waitcnt lgkmcnt(0)")
        if s == 11:
            ns = k.newlab("ns")
            e("s_cmp_lt_u32 s35, 6")
            e("s_cbranch_scc1 %s" % ns)
            e("s_lshl_b32 s34, s31, 13")
            e("s_add_u32 s34, s34, 0x%x" % (STATS - 6 * 4096))
            e("v_lshlrev_b32 v7, 6, v0")
            for i in range(4):
                e("buffer_load_dwordx4 %s, v7, s[16:19], s34 offen offset:%d" % (vr(STR + 4 * i, 4), 16 * i))
            k.lab(ns)
        if s % 3 == 0 and s > 0:
            k.stamp(6 + s // 3)
        f = FR[s & 1]
        nfill = -(-len(fill) // 4)
        for ks in range(2):
            for a in range(2):
                acc = ACC + 16 * a
                e("v_mfma_f32_32x32x16_bf16 %s, %s, %s, %s" % (vr(acc, 16), vr(f + 16 + 4 * ks, 4), vr(f + 8 * a + 4 * ks, 4), vr(acc, 16)))
                for _ in range(nfill):
                    if fill:
                        emit_op(fill.pop(0))
    k.stamp(4)
    e("s_waitcnt vmcnt(0)")
    e("ds_write_b32 v107, v%d offset:0" % CSR if False else "v_add_u32 v7, %d, v107" % QCS_BASE)
    e("ds_write_b32 v7, v%d" % CSR)
    ns = k.newlab("ns")
    e("s_cmp_lt_u32 s35, 6")
    e("s_cbranch_scc1 %s" % ns)
    for i in range(1, 8):
        e("v_add_f32 v%d, v%d, v%d" % (STR, STR, STR + 2 * i))
        e("v_add_f32 v%d, v%d, v%d" % (STR + 1, STR + 1, STR + 2 * i + 1))
    e("v_mul_f32 v%d, 0x%x, v%d" % (STR, f2u(1.0 / 576), STR))
    e("v_mul_f32 v%d, 0x%x, v%d" % (STR + 1, f2u(1.0 / 576), STR + 1))
    e("v_fma_f32 v%d, -v%d, v%d, v%d" % (STR + 1, STR, STR, STR + 1))
    e("v_max_f32 v%d, 0, v%d" % (STR + 1, STR + 1))
    e("v_add_f32 v%d, 0x%x, v%d" % (STR + 1, f2u(1e-5), STR + 1))
    e("v_rsq_f32 v%d, v%d" % (STR + 1, STR + 1))
    e("s_nop 0")
    e("v_mul_f32 v%d, v%d, v%d" % (STR, STR, STR + 1))
    e("v_lshlrev_b32 v7, 2, v0")
    e("v_add_u32 v7, %d, v7" % (QST_BASE - 6 * 256))
    e("ds_write_b32 v7, v%d" % (STR + 1))
    e("ds_write_b32 v7, v%d offset:512" % STR)
    k.lab(ns)
    e("s_waitcnt lgkmcnt(0)")
    e("s_barrier")
    RS = 100
    e("s_lshl_b32 s34, s37, 8")
    e("s_add_u32 s34, s34, %d" % QST_BASE)
    e("v_lshl_add_u32 v7, v5, 2, s34")
    for a in range(2):
        e("ds_read_b32 v%d, v7 offset:%d" % (RS + 2 * a, a * 128))
        e("ds_read_b32 v%d, v7 offset:%d" % (RS + 4 + 2 * a, 512 + a * 128))
    e("s_lshl_b32 s34, s36, 7")
    e("s_add_u32 s34, s34, %d" % QCS_BASE)
    e("v_lshl_add_u32 v8, v6, 4, s34")
    for q in range(4):
        for p in range(3):
            e("ds_read_b128 %s, v8 offset:%d" % (vr(52 + 16 * p + 4 * q, 4), 512 * p + 32 * q))
    e("s_waitcnt lgkmcnt(0)")
    for i in range(4):
        e("v_mov_b32 v%d, v%d" % (RS + 2 * i + 1, RS + 2 * i))
    for r in range(0, 16, 2):
        e("v_pk_add_f32 %s, %s, %s" % (vr(52 + r, 2), vr(52 + r, 2), vr(68 + r, 2)))
        e("v_pk_add_f32 %s, %s, %s" % (vr(52 + r, 2), vr(52 + r, 2), vr(84 + r, 2)))
    for a in range(2):
        for r in range(0, 16, 2):
            acc = ACC + 16 * a + r
            e("v_pk_mul_f32 v[10:11], %s, %s" % (vr(RS + 4 + 2 * a, 2), vr(52 + r, 2)))
            e("v_pk_fma_f32 %s, %s, %s, v[10:11] neg_lo:[0,0,1] neg_hi:[0,0,1]" % (vr(acc, 2), vr(acc, 2), vr(RS + 2 * a, 2)))
    if kind == 'A':
        epi_A(k, ACC, EA)
    else:
        epi_B(k, ACC, EA)
    k.stamp(5)
    if STAMPS:
        e("s_waitcnt vmcnt(0)")
    k.stamp(6)
    k.dump()
    k.lab(end)
    e("s_endpgm")
    return k


def sprinkle(k, n):
    for _ in range(n):
        if k.mem:
            for x in k.mem.pop(0):
                k.e(x)


def per_wave(k, fn, nw=8):
    e = k.e
    labs = [k.newlab("w") for _ in range(nw)]
    lj = k.newlab("wj")
    for w in range(1, nw):
        e("s_cmp_eq_u32 s35, %d" % w)
        e("s_cbranch_scc1 %s" % labs[w])
    for w in range(nw):
        k.lab(labs[w])
        fn(w)
        if w < nw - 1:
            e("s_branch %s" % lj)
    k.lab(lj)


def half_ops(k, lo, hi):
    for x in lo:
        k.e(x)
    k.e("s_mov_b32 exec_lo, 0")
    for x in hi:
        k.e(x)
    k.e("s_mov_b32 exec_lo, -1")


DUMMY = 98304


KV_ROW = 168


def epi_A_pre(k, EA):
    e = k.e
    e("v_mul_u32_u24 v12, %d, v5" % KV_ROW)
    e("v_and_b32 v8, 15, v5")
    e("v_lshlrev_b32 v8, 4, v8")
    e("v_lshrrev_b32 v9, 4, v5")
    e("v_mul_u32_u24 v9, 1536, v9")
    e("v_add_u32 v13, v8, v9")

    def var(w):
        ct, rh = w & 3, w >> 2
        ops = [[], []]
        for q in range(4):
            for pr in range(2):
                i = 2 * q + pr
                for h in range(2):
                    vc = 32 * ct + 8 * q + 4 * h + 2 * pr
                    for a in range(2):
                        if vc < 72:
                            c = (64 * rh + 32 * a) * KV_ROW + (vc // 18) * 40 + (vc % 18) * 2
                            t = 12
                        elif vc < 108:
                            hl, d = (vc - 72) // 18, (vc - 72) % 18
                            c = QPQ_BASE + (4 * rh + 2 * a) * 1536 + hl * 768 + (d >> 3) * 256 + (d & 7) * 2
                            t = 13
                        else:
                            c, t = DUMMY, 12
                        ops[h].append("v_add_u32 v%d, %d, v%d" % (EA + 2 * i + a, c, t))
                    isv = 36 <= vc < 72
                    ops[h].append("v_mov_b32 v%d, 0x%x" % (EA + 32 + i, 0 if isv else f2u(1.0)))
                    ops[h].append("v_mov_b32 v%d, 0x%x" % (EA + 44 + i, 0xff800000 if isv else 0))
        half_ops(k, ops[0], ops[1])
        if w < 2:
            e("v_lshrrev_b32 v7, 2, v3")
            e("v_and_b32 v7, 3, v7")
            e("v_lshl_add_u32 v7, v6, 3, v7")
            e("v_mul_u32_u24 v7, %d, v7" % KV_ROW)
            e("v_bfe_u32 v8, v3, 4, 1")
            e("v_lshl_add_u32 v7, v8, 5, v7")
            e("v_and_b32 v8, 3, v3")
            e("v_lshl_add_u32 v7, v8, 3, v7")
            e("v_add_u32 v%d, %d, v7" % (EA + 40, 40 * w))
            e("v_add_u32 v%d, %d, v7" % (EA + 41, 80 + 40 * w))
            e("v_cmp_gt_u32 vcc, 18, v5")
            e("v_lshlrev_b32 v10, 2, v5")
            e("v_lshl_add_u32 v10, v6, 9, v10")
            e("v_mov_b32 v9, 0x40000000")
            e("v_cndmask_b32 v%d, v9, v10, vcc" % (EA + 42))
            e("v_cmp_eq_u32 vcc, 0, v6")
            e("s_nop 1")
            e("v_cndmask_b32 v%d, v9, v%d, vcc" % (EA + 43, EA + 42))
        else:
            for i in range(4):
                e("v_mov_b32 v%d, 0x40000000" % (EA + 40 + i))

    per_wave(k, var)


def epi_A(k, ACC, EA):
    e = k.e
    e("v_mov_b32 v12, s40")
    e("v_mov_b32 v13, s40")
    e("v_mov_b32 v14, s41")
    e("v_mov_b32 v15, s41")
    for q in range(4):
        for pr in range(2):
            i = 2 * q + pr
            for a in range(2):
                acc = ACC + 16 * a + 4 * q + 2 * pr
                e("v_pk_mul_f32 v[10:11], %s, v[12:13]" % vr(acc, 2))
                e("v_min_f32 v10, 0, v10")
                e("v_min_f32 v11, 0, v11")
                e("v_exp_f32 v10, v10")
                e("v_exp_f32 v11, v11")
                e("v_max_f32 v%d, v%d, v%d" % (acc, acc, EA + 44 + i))
                e("v_max_f32 v%d, v%d, v%d" % (acc + 1, acc + 1, EA + 44 + i))
                e("v_pk_add_f32 v[10:11], v[10:11], v[14:15]")
                e("v_fmac_f32 v%d, v10, v%d" % (acc, EA + 32 + i))
                e("v_fmac_f32 v%d, v11, v%d" % (acc + 1, EA + 32 + i))
                e("v_cvt_pk_bf16_f32 v%d, v%d, v%d" % (acc, acc, acc + 1))
                e("ds_write_b32 v%d, v%d" % (EA + 2 * i + a, acc))
    e("v_lshrrev_b32 v10, 2, v0")
    e("v_mul_u32_u24 v10, %d, v10" % KV_ROW)
    e("v_and_b32 v11, 3, v0")
    e("v_mul_u32_u24 v11, 40, v11")
    e("v_add_u32 v10, v10, v11")
    e("v_mov_b32 v11, 0x3f80")
    e("ds_write_b32 v10, v11 offset:36")
    e("s_waitcnt lgkmcnt(0)")
    e("s_barrier")
    e("s_lshl_b32 s39, s31, 3")
    e("s_add_u32 s39, s39, s35")
    e("s_lshl_b32 s39, s39, 5")
    e("s_lshl_b32 s43, s30, 1")
    e("s_add_u32 s39, s39, s43")
    e("s_mul_i32 s39, s39, 768")
    e("s_add_u32 s39, s39, 0x%x" % PQF)
    e("s_mul_i32 s38, s35, 1536")
    e("s_add_u32 s38, s38, %d" % QPQ_BASE)
    e("v_lshlrev_b32 v8, 4, v3")
    e("v_add_u32 v9, s38, v8")
    e("ds_read_b128 v[100:103], v9")
    e("ds_read_b128 v[104:107], v9 offset:1024")
    e("v_mov_b32 v10, 0x40000000")
    e("v_cmp_gt_u32 vcc, 32, v3")
    e("s_nop 1")
    e("v_cndmask_b32 v11, v10, v8, vcc")
    e("s_waitcnt lgkmcnt(0)")
    e("buffer_store_dwordx4 v[100:103], v8, s[16:19], s39 offen")
    e("buffer_store_dwordx4 v[104:107], v11, s[16:19], s39 offen offset:1024")
    lj = k.newlab("ej")
    e("s_cmp_ge_u32 s35, 2")
    e("s_cbranch_scc1 %s" % lj)
    for st in range(8):
        for hf in range(2):
            o = (16 * st + 4 * hf) * KV_ROW
            e("ds_read_b64_tr_b16 %s, v%d offset:%d" % (vr(16 + 8 * st + 2 * hf, 2), EA + 40, o))
            e("ds_read_b64_tr_b16 %s, v%d offset:%d" % (vr(20 + 8 * st + 2 * hf, 2), EA + 41, o))
    e("s_lshl_b32 s39, s30, 1")
    e("s_add_u32 s39, s39, s35")
    e("s_mul_i32 s39, s39, 2432")
    e("s_add_u32 s39, s39, s59")
    e("s_waitcnt lgkmcnt(0)")
    for st in range(8):
        c = "0" if st == 0 else vr(80, 16)
        e("v_mfma_f32_32x32x16_bf16 %s, %s, %s, %s" % (vr(80, 16), vr(20 + 8 * st, 4), vr(16 + 8 * st, 4), c))
    e("s_nop 7")
    e("s_nop 7")
    for r in range(11):
        ee = (r & 3) + 8 * (r >> 2)
        e("buffer_atomic_add_f32 v%d, v%d, s[16:19], s39 offen offset:%d" % (80 + r, EA + 42 if r < 8 else EA + 43, 128 * ee))
    k.lab(lj)


IMG_S = 2560
IMG_K = 8 * IMG_S
IMG_V = 16 * IMG_S
V_ROW = 72


def epi_B_pre(k, EA):
    e = k.e
    e("v_lshlrev_b32 v12, 4, v5")
    e("v_lshlrev_b32 v13, 2, v5")
    e("v_mul_u32_u24 v14, %d, v5" % V_ROW)

    def var(w):
        ct, rh = w & 3, w >> 2
        ops = [[], []]
        for q in range(4):
            for pr in range(2):
                i = 2 * q + pr
                for h in range(2):
                    vc = 32 * ct + 8 * q + 4 * h + 2 * pr
                    sc = 1.0
                    if vc >= 108:
                        c, t = DUMMY, 13
                    else:
                        seg, cc = vc // 36, vc % 36
                        hl, d = cc // 18, cc % 18
                        sb = (4 * hl + 2 * rh) * IMG_S
                        if seg == 2:
                            c, t = IMG_V + sb + d * 2, 14
                        else:
                            base = sb + (IMG_K if seg == 1 else 0)
                            if d < 16:
                                c, t = base + (d >> 3) * 512 + (d & 7) * 2, 12
                            else:
                                c, t = base + 1024, 13
                            if seg == 0:
                                sc = QSCALE
                    ops[h].append("v_add_u32 v%d, %d, v%d" % (EA + i, c, t))
                    ops[h].append("v_mov_b32 v%d, 0x%x" % (EA + 16 + 2 * i, f2u(sc)))
                    ops[h].append("v_mov_b32 v%d, 0x%x" % (EA + 17 + 2 * i, f2u(sc)))
        half_ops(k, ops[0], ops[1])

    per_wave(k, var)
    e("v_lshrrev_b32 v7, 2, v3")
    e("v_and_b32 v7, 3, v7")
    e("v_lshl_add_u32 v7, v6, 2, v7")
    e("v_mul_u32_u24 v7, %d, v7" % V_ROW)
    e("v_bfe_u32 v8, v3, 4, 1")
    e("v_lshl_add_u32 v7, v8, 5, v7")
    e("v_and_b32 v9, 3, v3")
    e("v_lshl_add_u32 v7, v9, 3, v7")
    e("s_mul_i32 s38, s35, %d" % IMG_S)
    e("s_add_u32 s38, s38, %d" % IMG_V)
    e("v_add_u32 v%d, s38, v7" % (EA + 8))
    e("v_mul_u32_u24 v7, 320, v6")
    e("v_lshl_add_u32 v7, v5, 4, v7")
    e("v_add_u32 v7, 1152, v7")
    e("v_cmp_gt_u32 vcc, 19, v5")
    e("v_mov_b32 v10, 0x40000000")
    e("s_nop 0")
    e("v_cndmask_b32 v%d, v10, v7, vcc" % (EA + 9))
    e("v_lshlrev_b32 v8, 4, v3")
    e("v_cmp_gt_u32 vcc, 8, v3")
    e("s_nop 1")
    e("v_cndmask_b32 v%d, v10, v8, vcc" % (EA + 10))


def epi_B(k, ACC, EA):
    e = k.e
    for q in range(4):
        for pr in range(2):
            i = 2 * q + pr
            for a in range(2):
                acc = ACC + 16 * a + 4 * q + 2 * pr
                e("v_pk_mul_f32 %s, %s, %s" % (vr(acc, 2), vr(acc, 2), vr(EA + 16 + 2 * i, 2)))
                e("v_cvt_pk_bf16_f32 v%d, v%d, v%d" % (acc, acc, acc + 1))
                e("ds_write_b32 v%d, v%d offset:%d" % (EA + i, acc, IMG_S * a))
    e("s_mul_i32 s38, s35, %d" % IMG_S)
    e("v_mul_u32_u24 v7, %d, v5" % V_ROW)
    e("v_add_u32 v7, s38, v7")
    e("v_mov_b32 v8, 0x3f80")
    e("ds_write_b32 v7, v8 offset:%d" % (IMG_V + 36))
    e("s_waitcnt lgkmcnt(0)")
    e("s_barrier")
    e("v_lshlrev_b32 v8, 4, v3")
    e("v_add_u32 v9, s38, v8")
    e("ds_read_b128 v[48:51], v9")
    e("ds_read_b128 v[52:55], v9 offset:1024")
    e("ds_read_b128 v[56:59], v9 offset:%d" % IMG_K)
    e("ds_read_b128 v[60:63], v9 offset:%d" % (IMG_K + 1024))
    for ab in range(2):
        for hf in range(2):
            e("ds_read_b64_tr_b16 %s, v%d offset:%d" % (vr(64 + 4 * ab + 2 * hf, 2), EA + 8, (16 * ab + 8 * hf) * V_ROW))
    e("s_lshl_b32 s43, s30, 1")
    e("s_add_u32 s43, s43, s37")
    e("s_lshl_b32 s38, s31, 2")
    e("s_add_u32 s38, s38, s36")
    e("s_mul_i32 s44, s43, %d" % QHEAD)
    e("s_mul_i32 s39, s38, 1152")
    e("s_add_u32 s44, s44, s39")
    e("s_add_u32 s44, s44, 0x%x" % QPI)
    e("s_mul_i32 s46, s43, %d" % KVHEAD)
    e("s_mul_i32 s39, s38, 2432")
    e("s_add_u32 s46, s46, s39")
    e("s_add_u32 s46, s46, 0x%x" % KVI)
    e("s_waitcnt lgkmcnt(0)")
    e("buffer_store_dwordx4 v[48:51], v8, s[16:19], s44 offen")
    e("buffer_store_dwordx4 v[52:55], v%d, s[16:19], s44 offen offset:1024" % (EA + 10))
    e("buffer_store_dwordx4 v[56:59], v8, s[16:19], s46 offen")
    e("buffer_store_dwordx4 v[60:63], v%d, s[16:19], s46 offen offset:1024" % (EA + 10))
    e("buffer_store_dwordx4 v[64:67], v%d, s[16:19], s46 offen" % (EA + 9))
    e("buffer_store_dwordx4 v[68:71], v%d, s[16:19], s46 offen offset:640" % (EA + 9))


def gen_attn(name):
    k = Kern(name, 120, KVHEAD, (256, 1, 1), (1024, 1, 1))
    e = k.e
    SA, SB = 16, 32
    P = 48
    O = 56
    CM = 72
    Q1, Q2 = 88, 92
    K1, K2 = 96, 100
    VVa, VVb = 104, 108
    vK1, vK2, vV = 112, 113, 114
    vK1b, vK2b, vVb = 115, 116, 117
    SEGS = [2, 6, 8, 8, 8]
    HALF = 32 * 2432
    end = "L_%s_end" % name
    e("s_cmp_ge_u32 s2, 256")
    e("s_cbranch_scc1 %s" % end)
    e("s_load_dwordx2 s[4:5], s[0:1], %d" % KA_WS)
    k.stamp(0)
    e("s_and_b32 s30, s2, 7")
    e("s_lshr_b32 s31, s2, 3")
    e("s_and_b32 s32, s31, 3")
    e("s_lshl_b32 s30, s30, 2")
    e("s_add_u32 s30, s30, s32")
    e("s_lshr_b32 s31, s31, 2")
    e("v_lshrrev_b32 v4, 6, v0")
    e("v_and_b32 v3, 63, v0")
    e("v_readfirstlane_b32 s35, v4")
    e("s_mul_i32 s33, s30, %d" % KVHEAD)
    e("s_lshr_b32 s40, s35, 3")
    e("s_and_b32 s41, s35, 7")
    e("s_mul_i32 s42, s40, %d" % HALF)
    e("v_lshlrev_b32 v1, 4, v3")
    e("s_lshl_b32 s36, s31, 3")
    e("s_add_u32 s36, s36, s41")
    e("s_mul_i32 s37, s36, 1152")
    e("s_mul_i32 s38, s30, %d" % QHEAD)
    e("s_add_u32 s37, s37, s38")
    e("s_add_u32 s37, s37, 0x%x" % QPI)
    e("v_and_b32 v5, 31, v3")
    e("v_lshrrev_b32 v6, 5, v3")
    e("v_lshlrev_b32 v7, 2, v5")
    e("s_lshl_b32 s39, s41, 10")
    e("s_add_u32 s39, s39, s42")
    e("s_add_u32 s43, s42, %d" % (75 * 1024))
    e("s_waitcnt lgkmcnt(0)")
    e("s_add_u32 s8, s4, s33")
    e("s_addc_u32 s9, s5, 0")
    e("s_add_u32 s8, s8, 0x%x" % KVI)
    e("s_addc_u32 s9, s9, 0")
    e("s_mov_b32 s10, %d" % KVHEAD)
    e("s_mov_b32 s11, 0x00020000")
    k.srd(16, 4, 0, WS_SIZE)
    e("buffer_load_dwordx4 %s, v1, s[16:19], s37 offen" % vr(Q1, 4))
    e("buffer_load_dword v%d, v7, s[16:19], s37 offen offset:1024" % Q2)
    def dma(i):
        if i == 9:
            e("s_min_u32 s39, s39, s43")
        e("s_mov_b32 m0, s39")
        e("s_nop 0")
        e("buffer_load_dwordx4 v1, s[8:11], s39 offen lds")
        e("s_add_u32 s39, s39, 8192")

    dma(0)
    dma(1)
    e("v_add_u32 v%d, s42, v1" % vK1b)
    e("v_add_u32 v8, 1024, v7")
    e("v_add_u32 v%d, s42, v8" % vK2b)
    e("v_min_u32 v8, 18, v5")
    e("v_lshlrev_b32 v8, 4, v8")
    e("v_mul_u32_u24 v9, 320, v6")
    e("v_add3_u32 v8, v8, v9, s42")
    e("v_add_u32 v%d, 1152, v8" % vVb)
    for i in range(1, 4):
        e("v_mov_b32 v%d, 0" % (Q2 + i))
        e("v_mov_b32 v%d, 0" % (K2 + i))
    e("v_cmp_eq_u32 vcc, 0, v6")
    e("s_waitcnt vmcnt(2)")
    e("v_cndmask_b32 v%d, 0, v%d, vcc" % (Q2, Q2))
    e("s_mov_b32 s50, 0")

    def seg_wait(c):
        ntiles = sum(SEGS[:c + 1]) + 1
        need = min(-(-(ntiles * 2432) // 1024), 76)
        n = min((need - 1) // 8 + 1, 10)
        issued = 2 + min(sum(SEGS[:c]), 8)
        assert issued >= n
        return issued - n

    e("s_waitcnt vmcnt(%d)" % seg_wait(0))
    e("s_barrier")
    k.stamp(1)
    e("ds_read_b128 %s, v%d" % (vr(K1, 4), vK1b))
    e("ds_read_b32 v%d, v%d" % (K2, vK2b))
    e("s_waitcnt lgkmcnt(0)")
    e("v_mfma_f32_32x32x16_bf16 %s, %s, %s, 0" % (vr(SA, 16), vr(K1, 4), vr(Q1, 4)))
    e("v_mfma_f32_32x32x16_bf16 %s, %s, %s, %s" % (vr(SA, 16), vr(K2, 4), vr(Q2, 4), vr(SA, 16)))
    e("s_nop 7")
    e("s_nop 7")
    e("v_max3_f32 v10, v%d, v%d, v%d" % (SA, SA + 1, SA + 2))
    for i in range(3, 15, 2):
        e("v_max3_f32 v10, v10, v%d, v%d" % (SA + i, SA + i + 1))
    e("v_max_f32 v10, v10, v%d" % (SA + 15))
    run = "L_%s_run" % name
    k.lab(run)
    e("v_mov_b32 v11, v10")
    e("s_nop 1")
    e("v_permlane32_swap_b32 v11, v10")
    e("s_nop 1")
    e("v_max_f32 v10, v10, v11")
    e("v_sub_f32 v10, 0, v10")
    for i in range(16):
        e("v_mov_b32 v%d, v10" % (CM + i))
        e("v_mov_b32 v%d, 0" % (O + i))
    e("v_mov_b32 v%d, v%d" % (vK1, vK1b))
    e("v_mov_b32 v%d, v%d" % (vK2, vK2b))
    e("v_mov_b32 v%d, v%d" % (vV, vVb))
    e("ds_read_b128 %s, v%d" % (vr(K1, 4), vK1))
    e("ds_read_b32 v%d, v%d" % (K2, vK2))
    e("s_waitcnt lgkmcnt(0)")
    e("v_mfma_f32_32x32x16_bf16 %s, %s, %s, %s" % (vr(SA, 16), vr(K1, 4), vr(Q1, 4), vr(CM, 16)))
    e("v_mfma_f32_32x32x16_bf16 %s, %s, %s, %s" % (vr(SA, 16), vr(K2, 4), vr(Q2, 4), vr(SA, 16)))
    e("ds_read_b128 %s, v%d offset:2432" % (vr(K1, 4), vK1))
    e("ds_read_b32 v%d, v%d offset:2432" % (K2, vK2))
    e("ds_read_b128 %s, v%d" % (vr(VVa, 4), vV))
    e("ds_read_b128 %s, v%d offset:640" % (vr(VVb, 4), vV))
    e("s_nop 7")

    def body(t, Sc, Sn):
        o = 2432 * (t % 16)
        e("s_waitcnt lgkmcnt(2)")
        e("v_mfma_f32_32x32x16_bf16 %s, %s, %s, %s" % (vr(Sn, 16), vr(K1, 4), vr(Q1, 4), vr(CM, 16)))
        e("v_mfma_f32_32x32x16_bf16 %s, %s, %s, %s" % (vr(Sn, 16), vr(K2, 4), vr(Q2, 4), vr(Sn, 16)))
        e("ds_read_b128 %s, v%d offset:%d" % (vr(K1, 4), vK1, o + 2 * 2432))
        e("ds_read_b32 v%d, v%d offset:%d" % (K2, vK2, o + 2 * 2432))
        for i in range(16):
            e("v_exp_f32 v%d, v%d" % (Sc + i, Sc + i))
            if i & 1 and i >= 3:
                e("v_cvt_pk_bf16_f32 v%d, v%d, v%d" % (P + (i - 3) // 2, Sc + i - 3, Sc + i - 2))
        e("v_cvt_pk_bf16_f32 v%d, v%d, v%d" % (P + 7, Sc + 14, Sc + 15))
        e("s_waitcnt lgkmcnt(2)")
        e("v_mfma_f32_32x32x16_bf16 %s, %s, %s, %s" % (vr(O, 16), vr(VVa, 4), vr(P, 4), vr(O, 16)))
        e("v_mfma_f32_32x32x16_bf16 %s, %s, %s, %s" % (vr(O, 16), vr(VVb, 4), vr(P + 4, 4), vr(O, 16)))
        e("ds_read_b128 %s, v%d offset:%d" % (vr(VVa, 4), vV, o + 2432))
        e("ds_read_b128 %s, v%d offset:%d" % (vr(VVb, 4), vV, o + 2432 + 640))

    t = 0
    for c, nts in enumerate(SEGS):
        if c > 0:
            sk = k.newlab("sk")
            e("s_cmp_lg_u32 s50, 0")
            e("s_cbranch_scc1 %s" % sk)
            e("s_waitcnt vmcnt(%d)" % seg_wait(c))
            e("s_barrier")
            k.lab(sk)
        for i in range(nts):
            if t == 16:
                e("v_add_u32 v%d, %d, v%d" % (vK1, 16 * 2432, vK1))
                e("v_add_u32 v%d, %d, v%d" % (vK2, 16 * 2432, vK2))
                e("v_add_u32 v%d, %d, v%d" % (vV, 16 * 2432, vV))
            if t < 8:
                sk = k.newlab("sd")
                e("s_cmp_lg_u32 s50, 0")
                e("s_cbranch_scc1 %s" % sk)
                dma(t + 2)
                k.lab(sk)
            if t & 1:
                body(t, SB, SA)
            else:
                body(t, SA, SB)
            t += 1
    e("s_waitcnt lgkmcnt(0)")
    k.stamp(2)
    e("s_nop 7")
    e("s_nop 7")
    e("v_max3_f32 v10, |v%d|, |v%d|, |v%d|" % (O, O + 1, O + 2))
    for i in range(3, 11, 2):
        e("v_max3_f32 v10, v10, |v%d|, |v%d|" % (O + i, O + i + 1))
    e("v_max_f32 v10, v10, |v%d|" % (O + 11))
    e("v_add_f32 v11, v%d, v%d" % (O, O + 1))
    for i in range(2, 12):
        e("v_add_f32 v11, v11, v%d" % (O + i))
    e("v_mov_b32 v12, 0x%x" % f2u(2.0 ** 100))
    e("v_cmp_nlt_f32 vcc, v10, v12")
    e("v_cmp_u_f32 s[52:53], v11, v11")
    e("s_nop 3")
    e("s_or_b64 vcc, vcc, s[52:53]")
    e("s_cmp_lg_u32 s50, 0")
    fin = "L_%s_fin" % name
    e("s_cbranch_scc1 %s" % fin)
    e("s_cbranch_vccz %s" % fin)
    e("s_mov_b32 s50, 1")
    e("v_mov_b32 v%d, v%d" % (vK1, vK1b))
    e("v_mov_b32 v%d, v%d" % (vK2, vK2b))
    e("v_mov_b32 v10, 0xff800000")
    e("s_mov_b32 s51, 0")
    fl = "L_%s_fl" % name
    k.lab(fl)
    e("ds_read_b128 %s, v%d" % (vr(K1, 4), vK1))
    e("ds_read_b32 v%d, v%d" % (K2, vK2))
    e("s_waitcnt lgkmcnt(0)")
    e("v_mfma_f32_32x32x16_bf16 %s, %s, %s, 0" % (vr(SA, 16), vr(K1, 4), vr(Q1, 4)))
    e("v_mfma_f32_32x32x16_bf16 %s, %s, %s, %s" % (vr(SA, 16), vr(K2, 4), vr(Q2, 4), vr(SA, 16)))
    e("s_nop 7")
    e("s_nop 7")
    for i in range(0, 16, 2):
        e("v_max3_f32 v10, v10, v%d, v%d" % (SA + i, SA + i + 1))
    e("v_add_u32 v%d, 2432, v%d" % (vK1, vK1))
    e("v_add_u32 v%d, 2432, v%d" % (vK2, vK2))
    e("s_add_u32 s51, s51, 1")
    e("s_cmp_lt_u32 s51, 32")
    e("s_cbranch_scc1 %s" % fl)
    e("s_branch %s" % run)
    k.lab(fin)
    e("s_barrier")
    e("s_mul_i32 s37, s41, 4096")
    e("v_add_u32 v1, s37, v1")
    e("s_cmp_eq_u32 s40, 0")
    lo = "L_%s_lo" % name
    e("s_cbranch_scc1 %s" % lo)
    e("v_mov_b32 v%d, v%d" % (O + 10, CM))
    for i in range(3):
        e("ds_write_b128 v1, %s offset:%d" % (vr(O + 4 * i, 4), 1024 * i))
    e("s_waitcnt lgkmcnt(0)")
    e("s_barrier")
    e("s_endpgm")
    k.lab(lo)
    e("s_barrier")
    for i in range(3):
        e("ds_read_b128 %s, v1 offset:%d" % (vr(SA + 4 * i, 4), 1024 * i))
    e("s_waitcnt lgkmcnt(0)")
    e("v_min_f32 v10, v%d, v%d" % (CM, SA + 10))
    e("v_sub_f32 v11, v10, v%d" % CM)
    e("v_sub_f32 v12, v10, v%d" % (SA + 10))
    e("v_exp_f32 v11, v11")
    e("v_exp_f32 v12, v12")
    e("s_nop 0")
    for i in list(range(10)) + [11]:
        e("v_mul_f32 v%d, v11, v%d" % (O + i, O + i))
        e("v_fmac_f32 v%d, v12, v%d" % (O + i, SA + i))
    e("v_rcp_f32 v10, v%d" % (O + 11))
    e("s_nop 0")
    for i in range(10):
        e("v_mul_f32 v%d, v10, v%d" % (O + i, O + i))
    for i in range(5):
        e("v_cvt_pk_bf16_f32 v%d, v%d, v%d" % (O + i, O + 2 * i, O + 2 * i + 1))
    e("s_lshl_b32 s37, s36, 1")
    e("v_lshrrev_b32 v12, 4, v5")
    e("v_add_u32 v12, s37, v12")
    e("v_mul_u32_u24 v12, 18432, v12")
    e("v_and_b32 v13, 15, v5")
    e("v_lshl_add_u32 v12, v13, 4, v12")
    e("v_add_u32 v12, 0x%x, v12" % OB)
    e("s_mul_i32 s37, s30, 18")
    e("v_lshlrev_b32 v13, 2, v6")
    e("v_add_u32 v13, s37, v13")
    e("v_cmp_eq_u32 vcc, 0, v6")
    for i, dd in enumerate([0, 2, 8, 10, 16]):
        e("v_add_u32 v14, %d, v13" % dd)
        e("v_lshrrev_b32 v15, 3, v14")
        e("v_and_b32 v14, 7, v14")
        e("v_lshl_add_u32 v15, v15, 8, v12")
        e("v_lshl_add_u32 v15, v14, 1, v15")
        if dd == 16:
            e("v_mov_b32 v14, 0x40000000")
            e("v_cndmask_b32 v15, v14, v15, vcc")
        e("buffer_store_dword v%d, v15, s[16:19], 0 offen" % (O + i))
    k.stamp(3)
    k.dump()
    k.lab(end)
    e("s_endpgm")
    return k


def gen_out(name, kind, xsrc, xdst, layer):
    OA_BASE = 81 * 1024
    lds = OA_BASE + (72 * 1024 if kind == 'A' else 0)
    k = Kern(name, 216 if kind == 'A' else 128, lds, (256, 1, 1), (512, 1, 1))
    e = k.e
    ACC = 16
    XRES = 36
    AF = 48
    BF = 84
    VL16 = 104 if kind == 'B' else 208
    VB = VL16 + 1
    VB4 = VL16 + 2
    VX = VL16 + 3
    VX4 = VL16 + 4
    VD = VL16 + 5
    VD4 = VL16 + 6
    end = "L_%s_end" % name
    e("s_cmp_ge_u32 s2, 256")
    e("s_cbranch_scc1 %s" % end)
    e("s_load_dwordx2 s[4:5], s[0:1], %d" % KA_WS)
    if xdst is None:
        e("s_load_dwordx2 s[22:23], s[0:1], %d" % KA_OUT)
    k.stamp(0)
    e("s_and_b32 s28, s2, 7")
    e("s_lshr_b32 s29, s2, 3")
    e("s_and_b32 s30, s29, 7")
    e("s_lshr_b32 s31, s29, 3")
    e("s_lshl_b32 s28, s28, 2")
    e("s_add_u32 s31, s31, s28")
    e("v_lshrrev_b32 v4, 6, v0")
    e("v_and_b32 v3, 63, v0")
    e("v_readfirstlane_b32 s35, v4")
    e("v_and_b32 v5, 15, v3")
    e("v_lshrrev_b32 v6, 4, v3")
    e("v_lshlrev_b32 v%d, 4, v3" % VL16)
    e("s_and_b32 s36, s35, 3")
    e("s_lshr_b32 s37, s35, 2")
    e("s_lshl_b32 s38, s31, 2")
    e("s_add_u32 s38, s38, s36")
    e("s_mul_i32 s39, s38, 18432")
    e("s_mul_i32 s33, s30, %d" % (81 * 1024))
    e("s_lshl_b32 s52, s35, 10")
    e("s_waitcnt lgkmcnt(0)")
    k.srd(8, 4, xsrc, XB)
    k.srd(12, 4, WOA if kind == 'A' else WOB, WO_SZ)
    if xdst is None:
        k.srd(24, 22, 0, XB)
    else:
        k.srd(24, 4, xdst, XB)
    if kind == 'A':
        k.srd(16, 4, PQF, PQF_SZ)
        k.srd(44, 4, KVACC + layer * KVACC_L, KVACC_L)
    else:
        k.srd(16, 4, OB, XB)
    k.srd(56, 4, STATS, 2048 * 64)

    if kind == 'B':
        e("s_mul_i32 s40, s37, 9216")
        e("s_add_u32 s40, s40, s39")
        for i in range(9):
            e("buffer_load_dwordx4 %s, v%d, s[16:19], s40 offen offset:%d" % (vr(AF + 4 * i, 4), VL16, (1024 * i) % 4096))
            if i % 4 == 3:
                e("s_add_u32 s40, s40, 4096")
    else:
        KVR, PQR, DD = 48, 112, 176
        e("s_mul_i32 s40, s35, %d" % (4 * 2432))
        e("v_lshlrev_b32 v8, 7, v5")
        e("v_lshl_add_u32 v8, v6, 5, v8")
        e("v_add_u32 v8, s40, v8")
        e("v_and_b32 v9, 3, v5")
        e("v_min_u32 v9, 2, v9")
        e("v_add_u32 v9, 16, v9")
        e("v_lshlrev_b32 v9, 7, v9")
        e("v_lshl_add_u32 v9, v6, 5, v9")
        e("v_add_u32 v9, s40, v9")
        e("v_min_u32 v10, 2, v6")
        e("v_lshlrev_b32 v10, 8, v10")
        e("v_lshl_add_u32 v10, v5, 4, v10")
        e("s_lshl_b32 s41, s31, 7")
        e("s_lshl_b32 s42, s35, 2")
        e("s_add_u32 s41, s41, s42")
        e("s_mul_i32 s41, s41, 768")
        for i in range(128):
            e("v_mov_b32 v%d, 0" % (KVR + i))
        e("s_mov_b32 exec_hi, 0xffff")
        for hh in range(4):
            e("s_mov_b32 s34, %d" % (hh * 2432))
            e("buffer_load_dwordx4 %s, v8, s[44:47], s34 offen" % (vr(KVR + 16 * hh, 4)))
            e("buffer_load_dwordx4 %s, v9, s[44:47], s34 offen" % (vr(KVR + 16 * hh + 8, 4)))
            e("s_mov_b32 exec_hi, 0")
            e("buffer_load_dwordx4 %s, v8, s[44:47], s34 offen offset:16" % (vr(KVR + 16 * hh + 4, 4)))
            e("buffer_load_dwordx4 %s, v9, s[44:47], s34 offen offset:16" % (vr(KVR + 16 * hh + 12, 4)))
            e("s_mov_b32 exec_hi, 0xffff")
            for a in range(4):
                e("s_add_u32 s34, s41, %d" % (a * 32 * 768))
                e("buffer_load_dwordx4 %s, v10, s[16:19], s34 offen offset:%d" % (vr(PQR + 16 * hh + 4 * a, 4), hh * 768))
        e("s_mov_b32 exec_hi, -1")
    def wdma(lo, hi):
        for i in range(lo, hi):
            if 8 * i + 7 < 81:
                e("s_add_u32 m0, s52, %d" % (8192 * i))
                e("s_add_u32 s34, m0, s33")
            else:
                e("s_add_u32 s54, s52, %d" % (8192 * i))
                e("s_min_u32 m0, s54, %d" % (80 * 1024))
                e("s_add_u32 s34, m0, s33")
            e("buffer_load_dwordx4 v%d, s[12:15], s34 offen lds" % VL16)

    if kind == 'B':
        wdma(0, 11)
    e("s_lshr_b32 s40, s38, 1")
    e("s_mul_i32 s40, s40, 36864")
    e("s_and_b32 s41, s38, 1")
    e("s_lshl_b32 s41, s41, 8")
    e("s_add_u32 s40, s40, s41")
    e("s_mul_i32 s41, s30, 4608")
    e("s_add_u32 s40, s40, s41")
    e("v_lshrrev_b32 v7, 1, v6")
    e("v_lshlrev_b32 v7, 9, v7")
    e("v_lshl_add_u32 v7, v5, 4, v7")
    e("v_and_b32 v11, 1, v6")
    e("v_lshl_add_u32 v7, v11, 3, v7")
    e("v_add_u32 v%d, s40, v7" % VX)
    e("v_cmp_gt_u32 vcc, 2, v6")
    e("v_mov_b32 v11, 0x40000000")
    e("s_nop 0")
    e("v_cndmask_b32 v%d, v11, v%d, vcc" % (VX4, VX))
    if xdst is None:
        e("s_lshl_b32 s40, s38, 4")
        e("v_add_u32 v7, s40, v5")
        e("v_mul_u32_u24 v7, 1152, v7")
        e("v_lshl_add_u32 v7, v6, 3, v7")
        e("s_mul_i32 s40, s30, 144")
        e("v_add_u32 v%d, s40, v7" % VD)
        e("v_cndmask_b32 v%d, v11, v%d, vcc" % (VD4, VD))
    def xres():
        for t in range(5):
            e("s_mov_b32 s34, %d" % (1024 * t))
            e("buffer_load_dwordx2 %s, v%d, s[8:11], s34 offen" % (vr(XRES + 2 * t, 2), VX4 if t == 4 else VX))

    if kind == 'B':
        xres()
    e("s_mul_i32 s40, s37, %d" % (4 * 9216))
    e("v_add_u32 v%d, s40, v%d" % (VB, VL16))
    e("v_and_b32 v7, 7, v5")
    e("v_lshlrev_b32 v7, 4, v7")
    e("v_lshl_add_u32 v7, v6, 7, v7")
    e("v_add_u32 v%d, s40, v7" % VB4)
    for i in range(20):
        e("v_mov_b32 v%d, 0" % (ACC + i))
    if kind == 'A':
        e("s_mul_i32 s41, s35, 2304")
        e("s_add_u32 s41, s41, %d" % OA_BASE)
        e("v_lshlrev_b32 v11, 4, v5")
        e("v_add_u32 v11, s41, v11")
        e("v_lshlrev_b32 v12, 2, v6")
        e("s_mov_b32 s42, 0x%x" % f2u(1e-6))
        for hh in range(4):
            kv = KVR + 16 * hh
            e("s_waitcnt vmcnt(%d)" % (8 * (3 - hh) + 3 * hh))
            for i in range(8):
                e("v_cvt_pk_bf16_f32 v%d, v%d, v%d" % (kv + i, kv + 2 * i, kv + 2 * i + 1))
            e("s_nop 1")
            for a in range(4):
                e("v_mfma_f32_16x16x32_bf16 %s, %s, %s, 0" % (vr(DD + 8 * a, 4), vr(kv, 4), vr(PQR + 16 * hh + 4 * a, 4)))
                e("v_mfma_f32_16x16x32_bf16 %s, %s, %s, 0" % (vr(DD + 8 * a + 4, 4), vr(kv + 4, 4), vr(PQR + 16 * hh + 4 * a, 4)))
            wdma(3 * hh, min(3 * hh + 3, 11))
            if hh == 3:
                xres()
            for pr in range(2):
                e("v_add_u32 v13, %d, v12" % (18 * hh + 2 * pr))
                e("v_lshrrev_b32 v14, 3, v13")
                e("v_and_b32 v13, 7, v13")
                e("v_lshl_add_u32 v14, v14, 8, v11")
                e("v_lshl_add_u32 v%d, v13, 1, v14" % (2 if pr == 0 else 15))
            ct = 18 * hh + 16
            toff = (ct >> 3) * 256 + (ct & 7) * 2
            e("s_nop 1")
            for a in range(4):
                d = DD + 8 * a
                e("v_add_f32 v%d, s42, v%d" % (d + 6, d + 6))
                e("v_rcp_f32 v%d, v%d" % (d + 6, d + 6))
                e("s_nop 0")
                for i in range(6):
                    e("v_mul_f32 v%d, v%d, v%d" % (d + i, d + 6, d + i))
                e("v_cvt_pk_bf16_f32 v%d, v%d, v%d" % (d, d, d + 1))
                e("v_cvt_pk_bf16_f32 v%d, v%d, v%d" % (d + 1, d + 2, d + 3))
                e("v_cvt_pk_bf16_f32 v%d, v%d, v%d" % (d + 2, d + 4, d + 5))
                off = a * 18432
                e("ds_write_b32 v2, v%d offset:%d" % (d, off))
                e("ds_write_b32 v15, v%d offset:%d" % (d + 1, off))
                e("ds_write_b32 v11, v%d offset:%d" % (d + 2, off + toff))
        e("s_mul_i32 s40, s36, 18432")
        e("s_mul_i32 s41, s37, 9216")
        e("s_add_u32 s40, s40, s41")
        e("s_add_u32 s40, s40, %d" % OA_BASE)
        e("v_add_u32 v7, s40, v%d" % VL16)
    k.stamp(1)
    e("s_waitcnt vmcnt(0) lgkmcnt(0)")
    e("s_barrier")
    k.stamp(2)
    if kind == 'A':
        for i in range(9):
            e("ds_read_b128 %s, v7 offset:%d" % (vr(AF + 4 * i, 4), 1024 * i))
    l1 = "L_%s_k1" % name
    lj = "L_%s_kj" % name
    e("s_cmp_eq_u32 s37, 1")
    e("s_cbranch_scc1 %s" % l1)
    for kh in range(2):
        if kh == 1:
            k.lab(l1)
        for i in range(9):
            sl = i + kh
            po = (sl >> 1) * 9216
            for t in range(4):
                e("ds_read_b128 %s, v%d offset:%d" % (vr(BF + 4 * t, 4), VB, po + (sl & 1) * 4096 + t * 1024))
            e("ds_read_b128 %s, v%d offset:%d" % (vr(BF + 16, 4), VB4, po + 8192 + (sl & 1) * 512))
            e("s_waitcnt lgkmcnt(0)")
            for t in range(5):
                e("v_mfma_f32_16x16x32_bf16 %s, %s, %s, %s" % (vr(ACC + 4 * t, 4), vr(BF + 4 * t, 4), vr(AF + 4 * i, 4), vr(ACC + 4 * t, 4)))
        k.stamp(4)
        e("s_barrier")
        e("s_mul_i32 s40, s36, 5120")
        e("v_add_u32 v7, s40, v%d" % VL16)
        if kh == 1:
            e("s_nop 7")
            for t in range(5):
                e("ds_write_b128 v7, %s offset:%d" % (vr(ACC + 4 * t, 4), 1024 * t))
            e("s_waitcnt lgkmcnt(0)")
            e("s_barrier")
            e("s_endpgm")
        else:
            e("s_barrier")
            for t in range(5):
                e("ds_read_b128 %s, v7 offset:%d" % (vr(BF + 4 * t, 4), 1024 * t))
            e("s_waitcnt lgkmcnt(0)")
            for t in range(5):
                a = ACC + 4 * t
                x = XRES + 2 * t
                e("v_lshlrev_b32 v8, 16, v%d" % x)
                e("v_and_b32 v9, 0xffff0000, v%d" % x)
                e("v_lshlrev_b32 v10, 16, v%d" % (x + 1))
                e("v_and_b32 v11, 0xffff0000, v%d" % (x + 1))
                for r in range(4):
                    e("v_add_f32 v%d, v%d, v%d" % (a + r, a + r, BF + 4 * t + r))
                    e("v_add_f32 v%d, v%d, v%d" % (a + r, a + r, 8 + r))
                e("v_cvt_pk_bf16_f32 v%d, v%d, v%d" % (a, a, a + 1))
                e("v_cvt_pk_bf16_f32 v%d, v%d, v%d" % (a + 1, a + 2, a + 3))
                if xdst is None:
                    e("buffer_store_dwordx2 %s, v%d, s[24:27], 0 offen offset:%d" % (vr(a, 2), VD4 if t == 4 else VD, 32 * t))
                else:
                    e("s_mov_b32 s34, %d" % (1024 * t))
                    e("buffer_store_dwordx2 %s, v%d, s[24:27], s34 offen" % (vr(a, 2), VX4 if t == 4 else VX))
            if xdst is not None:
                e("s_mov_b32 s42, 0x3f803f80")
                e("v_cmp_gt_u32 vcc, 2, v6")
                e("v_mov_b32 v8, 0")
                e("v_mov_b32 v9, 0")
                e("v_cndmask_b32 v%d, 0, v%d, vcc" % (ACC + 18, ACC + 16))
                e("v_cndmask_b32 v%d, 0, v%d, vcc" % (ACC + 19, ACC + 17))
                for t in range(5):
                    for i in range(2):
                        r = ACC + 4 * t + i + (2 if t == 4 else 0)
                        e("v_dot2_f32_bf16 v8, v%d, s42, v8" % r)
                        e("v_dot2_f32_bf16 v9, v%d, v%d, v9" % (r, r))
                e("s_nop 2")
                e("v_mov_b32 v10, v8")
                e("v_mov_b32 v11, v9")
                e("s_nop 1")
                e("v_permlane16_swap_b32 v10, v8")
                e("v_permlane16_swap_b32 v11, v9")
                e("s_nop 1")
                e("v_add_f32 v8, v8, v10")
                e("v_add_f32 v9, v9, v11")
                e("v_mov_b32 v10, v8")
                e("v_mov_b32 v11, v9")
                e("s_nop 1")
                e("v_permlane32_swap_b32 v10, v8")
                e("v_permlane32_swap_b32 v11, v9")
                e("s_nop 1")
                e("v_add_f32 v8, v8, v10")
                e("v_add_f32 v9, v9, v11")
                e("s_lshl_b32 s40, s38, 10")
                e("s_lshl_b32 s41, s30, 3")
                e("s_add_u32 s40, s40, s41")
                e("v_lshlrev_b32 v10, 6, v5")
                e("v_cmp_eq_u32 vcc, 0, v6")
                e("v_mov_b32 v11, 0x40000000")
                e("s_nop 0")
                e("v_cndmask_b32 v10, v11, v10, vcc")
                e("buffer_store_dwordx2 v[8:9], v10, s[56:59], s40 offen")
            k.stamp(5)
            if STAMPS:
                e("s_waitcnt vmcnt(0)")
            k.stamp(6)
            k.dump()
            e("s_endpgm")
    k.lab(end)
    e("s_endpgm")
    return k


def main():
    qa = gen_qkv('A')
    qb = gen_qkv('B')
    ks = [
        gen_prep(),
        gen_stub("qkv_a1_kernel", qa, [(58, X0F), (59, KVACC)]),
        gen_stub("qkv_a2_kernel", qa, [(58, X2), (59, KVACC + KVACC_L)]),
        qa,
        gen_stub("qkv_b1_kernel", qb, [(58, X1), (59, 0)]),
        gen_stub("qkv_b2_kernel", qb, [(58, X3), (59, 0)]),
        qb,
        gen_out("out_a1_kernel", 'A', X0F, X1, 0),
        gen_attn("attn_kernel"),
        gen_out("out_b1_kernel", 'B', X1, X2, 0),
        gen_out("out_a2_kernel", 'A', X2, X3, 1),
        gen_out("out_b2_kernel", 'B', X3, None, 1),
    ]
    byname = {k.name: k for k in ks}
    order = ["prep_kernel", "qkv_a1_kernel", "out_a1_kernel", "qkv_b1_kernel", "attn_kernel", "out_b1_kernel",
             "qkv_a2_kernel", "out_a2_kernel", "qkv_b2_kernel", "attn_kernel", "out_b2_kernel"]
    hdr = open("cdna_kernels/%s.s.ref" % NAME).read().split("; Override launch geometry")[0]
    out = hdr
    for n in order:
        k = byname[n]
        out += "; @launch kernel=%s grid=(%d,%d,%d) block=(%d,%d,%d) lds=%d\n" % ((n,) + k.grid + k.block + (k.lds,))
    out += '.amdgcn_target "amdgcn-amd-amdhsa--gfx950"\n.text\n'
    for k in ks:
        if getattr(k, "nodesc", False):
            out += ".p2align 8\n%s:\n" % k.name + "\n".join(k.L) + "\n"
        else:
            out += k.text()
    out += '.section .rodata,"a"\n'
    for k in ks:
        if not getattr(k, "nodesc", False):
            out += ".p2align 6\n" + k.desc()
    dst = "cdna_kernels/%s.s" % NAME
    if STAMPS:
        dst = OUTFILE
    open(dst, "w").write(out)


if __name__ == "__main__":
    if len(sys.argv) > 1 and sys.argv[1] == "stamps":
        STAMPS = True
        for a in sys.argv[2:]:
            if a.startswith("out="):
                OUTFILE = a[4:]
            elif a.startswith("wg="):
                STAMP_WG = int(a[3:])
            else:
                EXP[a] = True
    main()
```

```python
import sys, re

NAME = "interleave_layers__linear_attn_block__mha_block__prompt"

XB = 2048 * 576 * 2
X1 = 0x0
X2 = 0x240000
X3 = 0x480000
PQ = 0x6C0000
OB = 0x900000
QPI = 0xB40000
QHEAD = 64 * 1152
KVI = 0xF40000
KVHEAD = 64 * 2432
KVACC = 0x1400000
KVACC_L = 32 * 19 * 32 * 4
WFA = 0x2000000
WFB = 0x2240000
WF_SZ = 8 * 36 * 8 * 1024
STATS = 0x1440000
WOA = 0x1840000
WOB = 0x1900000
WO_SZ = 8 * 81 * 1024
CS = 0x1480000
CS_MAT = 3 * 16 * 512
PQF = 0x1A00000
PQF_SZ = 64 * 32 * 1152
X0F = 0x1D00000
WS_SIZE = 0x2500000

LOG2E = 1.4426950408889634
QSCALE = (18.0 ** -0.5) * LOG2E

import struct
def f2u(x):
    return struct.unpack("<I", struct.pack("<f", x))[0]


EXP = {}
STAMPS = False
STAMP_WG = 0


class Kern:
    def __init__(self, name, vgpr, lds, grid, block):
        self.name = name
        self.vgpr = vgpr
        self.lds = lds
        self.grid = grid
        self.block = block
        self.L = []
        self.uid = 0

    def e(self, s):
        m = re.search(r"offset:(\d+)", s)
        if m:
            o = int(m.group(1))
            if s.startswith("buffer_"):
                assert o <= 4095, s
            elif s.startswith("ds_"):
                assert o <= 65535, s
        self.L.append("    " + s)

    def lab(self, s):
        self.L.append(s + ":")

    def newlab(self, p):
        self.uid += 1
        return "L_%s_%s%d" % (self.name, p, self.uid)

    def srd(self, d, b, off, size):
        if off:
            self.e("s_add_u32 s%d, s%d, 0x%x" % (d, b, off))
            self.e("s_addc_u32 s%d, s%d, 0" % (d + 1, b + 1))
        else:
            self.e("s_mov_b32 s%d, s%d" % (d, b))
            self.e("s_mov_b32 s%d, s%d" % (d + 1, b + 1))
        self.e("s_mov_b32 s%d, 0x%x" % (d + 2, size))
        self.e("s_mov_b32 s%d, 0x00020000" % (d + 3))

    def stamp(self, i):
        if STAMPS:
            self.e("s_memtime s[%d:%d]" % (64 + 2 * i, 65 + 2 * i))
            self.nst = max(getattr(self, "nst", 0), i + 1)

    def dump(self):
        if STAMPS and getattr(self, "nst", 0):
            l = self.newlab("nd")
            self.e("s_cmp_lg_u32 s2, %d" % STAMP_WG)
            self.e("s_cbranch_scc1 %s" % l)
            self.e("s_load_dwordx2 s[60:61], s[0:1], %d" % KA_DBG)
            self.e("s_waitcnt lgkmcnt(0)")
            self.e("s_mov_b32 s62, 256")
            self.e("s_mov_b32 s63, 0x00020000")
            self.e("v_lshrrev_b32 v1, 6, v0")
            if EXP.get("hiwaves"):
                self.e("v_xor_b32 v1, 4, v1")
            self.e("v_lshlrev_b32 v1, 6, v1")
            for i in range(self.nst):
                self.e("v_mov_b32 v2, s%d" % (64 + 2 * i))
                self.e("buffer_store_dword v2, v1, s[60:63], 0 offen offset:%d" % (4 * i))
            self.lab(l)

    def text(self):
        if getattr(self, "stub", None):
            return (".globl %s\n.p2align 8\n.type %s,@function\n%s:\n" % (self.name, self.name, self.name)
                    + "".join("    %s\n" % x for x in self.stub))
        out = []
        out.append(".globl %s" % self.name)
        out.append(".p2align 8")
        out.append(".type %s,@function" % self.name)
        out.append("%s:" % self.name)
        out += self.L
        return "\n".join(out) + "\n"

    def desc(self):
        v = (self.vgpr + 3) // 4 * 4
        return """.amdhsa_kernel %s
  .amdhsa_next_free_vgpr %d
  .amdhsa_next_free_sgpr 96
  .amdhsa_accum_offset %d
  .amdhsa_group_segment_fixed_size 0
  .amdhsa_kernarg_size 72
  .amdhsa_user_sgpr_count 2
  .amdhsa_user_sgpr_kernarg_segment_ptr 1
  .amdhsa_system_sgpr_workgroup_id_x 1
.end_amdhsa_kernel
""" % (self.name, v, v)


def vr(a, n):
    return "v[%d:%d]" % (a, a + n - 1)


KA_AX, KA_AWQKV, KA_AWO, KA_BX, KA_BWQKV, KA_BWO, KA_OUT, KA_DBG, KA_WS = [8 * i for i in range(9)]


OUTFILE = 'st.s'
PB_ROW = 288
OB_ROW = 160


def gen_prep():
    NQ = 96
    NO = 96
    NZ = 0
    NX = 64
    GL = 64 * PB_ROW
    k = Kern("prep_kernel", 96, 3 * GL + 4096, (NQ + NO + NZ + NX, 1, 1), (768, 1, 1))
    e = k.e
    e("s_cmp_ge_u32 s2, %d" % (NQ + NO + NZ + NX))
    e("s_cbranch_scc1 L_prep_end")
    e("s_load_dwordx2 s[4:5], s[0:1], %d" % KA_WS)
    e("s_load_dwordx2 s[20:21], s[0:1], %d" % KA_AWQKV)
    e("s_load_dwordx2 s[22:23], s[0:1], %d" % KA_BWQKV)
    e("s_load_dwordx2 s[24:25], s[0:1], %d" % KA_AWO)
    e("s_load_dwordx2 s[26:27], s[0:1], %d" % KA_BWO)
    e("s_load_dwordx2 s[44:45], s[0:1], %d" % KA_AX)
    k.stamp(0)
    e("v_and_b32 v3, 63, v0")
    e("v_lshrrev_b32 v4, 6, v0")
    e("v_and_b32 v0, 255, v0")
    e("v_readfirstlane_b32 s35, v4")
    e("v_lshlrev_b32 v5, 4, v3")
    e("v_lshrrev_b32 v6, 4, v3")
    e("v_lshrrev_b32 v8, 2, v3")
    e("v_and_b32 v8, 3, v8")
    e("v_and_b32 v9, 3, v3")
    e("s_lshr_b32 s46, s35, 2")
    e("s_and_b32 s35, s35, 3")
    e("s_mul_i32 s47, s46, %d" % GL)
    e("s_waitcnt lgkmcnt(0)")
    k.srd(16, 4, 0, WS_SIZE)
    e("s_cmp_ge_u32 s2, %d" % (NQ + NO))
    e("s_cbranch_scc1 L_prep_misc")
    e("s_cmp_ge_u32 s2, %d" % NQ)
    e("s_cbranch_scc1 L_prep_wo")
    e("s_cmp_ge_u32 s2, 48")
    e("s_cselect_b32 s30, 1, 0")
    e("s_mul_i32 s31, s30, 48")
    e("s_sub_u32 s31, s2, s31")
    e("s_mul_i32 s32, s31, 21846")
    e("s_lshr_b32 s32, s32, 16")
    e("s_mul_i32 s33, s32, 3")
    e("s_sub_u32 s33, s31, s33")
    e("s_mul_i32 s48, s33, 6")
    e("s_lshl_b32 s49, s46, 1")
    e("s_add_u32 s48, s48, s49")
    e("s_cmp_eq_u32 s30, 0")
    e("s_cselect_b32 s8, s20, s22")
    e("s_cselect_b32 s9, s21, s23")
    e("s_mov_b32 s10, %d" % (576 * 3456))
    e("s_mov_b32 s11, 0x00020000")
    e("s_cselect_b32 s36, 1, 0")
    e("s_mul_i32 s37, s32, 72")
    e("s_mul_i32 s38, s48, %d" % (32 * 3456))
    e("s_add_u32 s37, s37, s38")
    for i in range(7):
        e("v_add_u32 v10, %d, v0" % (256 * i))
        if i == 6:
            e("v_min_u32 v10, 1727, v10")
        e("v_mul_u32_u24 v11, 9710, v10")
        e("v_lshrrev_b32 v11, 18, v11")
        e("v_mul_u32_u24 v12, 27, v11")
        e("v_sub_u32 v12, v10, v12")
        e("v_mul_u32_u24 v13, 57, v12")
        e("v_lshrrev_b32 v13, 9, v13")
        e("v_mul_u32_u24 v14, 9, v13")
        e("v_sub_u32 v14, v12, v14")
        e("v_add_u32 v13, s36, v13")
        e("v_cmp_eq_u32 vcc, 3, v13")
        e("s_nop 1")
        e("v_cndmask_b32_e64 v13, v13, 0, vcc")
        e("v_mul_u32_u24 v13, 1152, v13")
        e("v_mul_u32_u24 v15, 3456, v11")
        e("v_add3_u32 v15, v15, v13, s37")
        e("v_lshl_add_u32 v15, v14, 3, v15")
        e("buffer_load_dwordx2 %s, v15, s[8:11], 0 offen" % vr(32 + 2 * i, 2))
        e("v_mul_u32_u24 v15, %d, v11" % PB_ROW)
        e("v_lshl_add_u32 v15, v12, 3, v15")
        e("v_add_u32 v%d, s47, v15" % (20 + i))
    e("v_mov_b32 v28, 0")
    e("v_mov_b32 v29, 0")
    for i in range(2):
        e("v_add_u32 v10, %d, v0" % (256 * i))
        e("v_min_u32 v10, 319, v10")
        e("v_mul_u32_u24 v11, 13108, v10")
        e("v_lshrrev_b32 v11, 16, v11")
        e("v_mul_u32_u24 v12, 5, v11")
        e("v_sub_u32 v12, v10, v12")
        e("v_mul_u32_u24 v11, %d, v11" % PB_ROW)
        e("v_lshl_add_u32 v11, v12, 3, v11")
        e("v_add_u32 v11, s47, v11")
        e("ds_write_b64 v11, v[28:29] offset:216")
    e("v_lshrrev_b32 v7, 1, v6")
    e("v_lshl_add_u32 v7, v7, 3, v8")
    e("v_mul_u32_u24 v7, %d, v7" % PB_ROW)
    e("v_and_b32 v10, 1, v6")
    e("v_lshl_add_u32 v7, v10, 5, v7")
    e("v_lshl_add_u32 v7, v9, 3, v7")
    e("s_lshl_b32 s38, s35, 6")
    e("s_add_u32 s38, s38, s47")
    e("v_add_u32 v7, s38, v7")
    for i in range(4):
        e("v_mov_b32 v%d, 0x3f803f80" % (28 + i))
    e("s_mul_i32 s38, s32, 36")
    e("s_lshl_b32 s39, s48, 1")
    e("s_add_u32 s38, s38, s39")
    e("s_lshl_b32 s38, s38, 2")
    e("s_add_u32 s38, s38, s35")
    e("s_lshl_b32 s38, s38, 10")
    e("s_mul_i32 s39, s30, 0x%x" % (WFB - WFA))
    e("s_add_u32 s38, s38, s39")
    e("s_add_u32 s38, s38, 0x%x" % WFA)
    e("s_lshl_b32 s39, s33, 4")
    e("s_add_u32 s39, s39, s32")
    e("s_lshl_b32 s39, s39, 9")
    e("s_mul_i32 s40, s30, %d" % CS_MAT)
    e("s_add_u32 s39, s39, s40")
    e("s_add_u32 s39, s39, 0x%x" % CS)
    e("s_lshl_b32 s40, s46, 9")
    e("s_lshl_b32 s41, s35, 7")
    e("s_add_u32 s40, s40, s41")
    e("s_add_u32 s40, s40, %d" % (3 * GL))
    e("v_and_b32 v10, 31, v3")
    e("v_lshl_add_u32 v10, v10, 2, s40")
    k.stamp(1)
    e("s_waitcnt vmcnt(0)")
    k.stamp(2)
    for i in range(7):
        e("ds_write_b64 v%d, %s" % (20 + i, vr(32 + 2 * i, 2)))
    e("s_waitcnt lgkmcnt(0)")
    e("s_barrier")
    k.stamp(3)
    for ks in range(4):
        for hf in range(2):
            e("ds_read_b64_tr_b16 %s, v7 offset:%d" % (vr(32 + 4 * ks + 2 * hf, 2), (16 * ks + 4 * hf) * PB_ROW))
    e("s_waitcnt lgkmcnt(0)")
    for ks in range(4):
        c = "0" if ks == 0 else vr(48, 16)
        e("v_mfma_f32_32x32x16_bf16 %s, v[28:31], %s, %s" % (vr(48, 16), vr(32 + 4 * ks, 4), c))
        e("s_add_u32 s40, s38, %d" % (4096 * ks))
        e("buffer_store_dwordx4 %s, v5, s[16:19], s40 offen" % vr(32 + 4 * ks, 4))
    e("s_nop 7")
    e("s_nop 7")
    e("ds_write_b32 v10, v48")
    e("s_waitcnt lgkmcnt(0)")
    e("s_barrier")
    e("s_cmp_lg_u32 s46, 0")
    e("s_cbranch_scc1 L_prep_end")
    e("s_cmp_ge_u32 s35, 2")
    e("s_cbranch_scc1 L_prep_end")
    e("v_lshlrev_b32 v10, 2, v0")
    for i in range(3):
        e("ds_read_b32 v%d, v10 offset:%d" % (12 + i, 3 * GL + 512 * i))
    e("s_waitcnt lgkmcnt(0)")
    e("v_add_f32 v12, v12, v13")
    e("v_add_f32 v12, v12, v14")
    e("buffer_store_dword v12, v10, s[16:19], s39 offen")
    k.stamp(4)
    if STAMPS:
        e("s_waitcnt vmcnt(0)")
    k.stamp(5)
    k.dump()
    e("s_endpgm")
    k.lab("L_prep_wo")
    e("s_sub_u32 s29, s2, %d" % NQ)
    e("s_mul_i32 s29, s29, 3")
    e("s_add_u32 s29, s29, s46")
    e("s_cmp_ge_u32 s29, 144")
    e("s_cselect_b32 s30, 1, 0")
    e("s_mul_i32 s31, s30, 144")
    e("s_sub_u32 s31, s29, s31")
    e("s_mul_i32 s32, s31, 3641")
    e("s_lshr_b32 s32, s32, 16")
    e("s_mul_i32 s33, s32, 18")
    e("s_sub_u32 s33, s31, s33")
    e("s_cmp_eq_u32 s30, 0")
    e("s_cselect_b32 s8, s24, s26")
    e("s_cselect_b32 s9, s25, s27")
    e("s_mov_b32 s10, %d" % (576 * 1152))
    e("s_mov_b32 s11, 0x00020000")
    e("s_mul_i32 s37, s32, 144")
    e("s_mul_i32 s38, s33, %d" % (32 * 1152))
    e("s_add_u32 s37, s37, s38")
    for i in range(2):
        e("v_add_u32 v10, %d, v0" % (256 * i))
        if i == 1:
            e("v_min_u32 v10, 287, v10")
        e("v_mul_u32_u24 v11, 7282, v10")
        e("v_lshrrev_b32 v11, 16, v11")
        e("v_mul_u32_u24 v12, 9, v11")
        e("v_sub_u32 v12, v10, v12")
        e("v_mul_u32_u24 v15, 1152, v11")
        e("v_lshl_add_u32 v15, v12, 4, v15")
        e("v_add_u32 v15, s37, v15")
        e("buffer_load_dwordx4 %s, v15, s[8:11], 0 offen" % vr(32 + 4 * i, 4))
        e("v_mul_u32_u24 v15, %d, v11" % OB_ROW)
        e("v_lshrrev_b32 v13, 3, v11")
        e("v_lshl_add_u32 v15, v13, 7, v15")
        e("v_lshl_add_u32 v15, v12, 4, v15")
        e("v_add_u32 v%d, s47, v15" % (20 + i))
    e("s_waitcnt vmcnt(0)")
    for i in range(2):
        e("ds_write_b128 v%d, %s" % (20 + i, vr(32 + 4 * i, 4)))
    e("v_mul_u32_u24 v7, %d, v6" % (8 * OB_ROW + 128))
    e("v_mul_u32_u24 v10, %d, v8" % OB_ROW)
    e("v_lshl_add_u32 v10, v9, 3, v10")
    e("s_lshl_b32 s38, s35, 5")
    e("s_add_u32 s38, s38, s47")
    e("v_add3_u32 v7, v7, v10, s38")
    e("s_mul_i32 s38, s32, %d" % (81 * 1024))
    e("s_lshr_b32 s39, s33, 1")
    e("s_mul_i32 s39, s39, 9216")
    e("s_add_u32 s38, s38, s39")
    e("s_mul_i32 s39, s30, 0x%x" % (WOB - WOA))
    e("s_add_u32 s38, s38, s39")
    e("s_add_u32 s38, s38, 0x%x" % WOA)
    e("s_and_b32 s39, s33, 1")
    e("s_lshl_b32 s40, s39, 9")
    e("s_add_u32 s40, s40, s38")
    e("s_add_u32 s40, s40, 8192")
    e("s_lshl_b32 s39, s39, 12")
    e("s_add_u32 s38, s38, s39")
    e("s_lshl_b32 s39, s35, 10")
    e("s_add_u32 s38, s38, s39")
    e("v_and_b32 v10, 15, v3")
    e("v_lshlrev_b32 v11, 4, v10")
    e("v_lshl_add_u32 v11, v6, 7, v11")
    e("v_cmp_gt_u32 vcc, 8, v10")
    e("v_mov_b32 v12, 0x40000000")
    e("s_nop 0")
    e("v_cndmask_b32 v11, v12, v11, vcc")
    e("s_waitcnt lgkmcnt(0)")
    e("s_barrier")
    for q in range(2):
        for hf in range(2):
            e("ds_read_b64_tr_b16 %s, v7 offset:%d" % (vr(32 + 4 * q + 2 * hf, 2), hf * 4 * OB_ROW + 128 * q))
    e("s_waitcnt lgkmcnt(0)")
    e("buffer_store_dwordx4 %s, v5, s[16:19], s38 offen" % vr(32, 4))
    e("s_cmp_lg_u32 s35, 0")
    e("s_cbranch_scc1 L_prep_end")
    e("buffer_store_dwordx4 %s, v11, s[16:19], s40 offen" % vr(36, 4))
    e("s_endpgm")
    k.lab("L_prep_misc")
    e("s_sub_u32 s3, s2, %d" % (NQ + NO))
    e("s_cmp_eq_u32 s46, 0")
    e("s_cbranch_scc1 L_prep_x0")
    e("s_cmp_eq_u32 s46, 2")
    e("s_cbranch_scc1 L_prep_end")
    e("s_cmp_ge_u32 s3, 38")
    e("s_cbranch_scc1 L_prep_end")
    e("s_lshl_b32 s3, s3, 12")
    e("v_lshlrev_b32 v1, 4, v0")
    e("v_add_u32 v1, s3, v1")
    e("v_add_u32 v1, 0x%x, v1" % KVACC)
    for i in range(4):
        e("v_mov_b32 v%d, 0" % (4 + i))
    e("buffer_store_dwordx4 v[4:7], v1, s[16:19], 0 offen")
    e("s_endpgm")
    k.lab("L_prep_x0")

    e("s_mov_b32 s8, s44")
    e("s_mov_b32 s9, s45")
    e("s_mov_b32 s10, %d" % XB)
    e("s_mov_b32 s11, 0x00020000")
    e("s_mul_i32 s7, s3, 36864")
    e("s_add_u32 s6, s7, 0x%x" % X0F)
    e("s_mov_b32 s42, 0x3f803f80")
    e("v_and_b32 v1, 31, v3")
    e("v_lshrrev_b32 v2, 5, v3")
    e("s_lshl_b32 s28, s35, 1")
    e("v_add_u32 v2, s28, v2")
    e("v_mul_u32_u24 v4, 1152, v1")
    e("v_mul_u32_u24 v7, 144, v2")
    e("v_add_u32 v4, v4, v7")
    for i in range(9):
        e("buffer_load_dwordx4 %s, v4, s[8:11], s7 offen offset:%d" % (vr(32 + 4 * i, 4), 16 * i))
    e("v_mul_u32_u24 v7, 4608, v2")
    e("v_lshl_add_u32 v7, v1, 4, v7")
    e("v_lshlrev_b32 v10, 6, v1")
    e("v_lshl_add_u32 v10, v2, 3, v10")
    e("s_lshl_b32 s28, s3, 11")
    e("s_add_u32 s28, s28, 0x%x" % STATS)
    e("v_mov_b32 v8, 0")
    e("v_mov_b32 v9, 0")
    e("s_waitcnt vmcnt(0)")
    for i in range(9):
        e("s_add_u32 s7, s6, %d" % (512 * i))
        e("buffer_store_dwordx4 %s, v7, s[16:19], s7 offen" % vr(32 + 4 * i, 4))
        for q in range(4):
            e("v_dot2_f32_bf16 v8, v%d, s42, v8" % (32 + 4 * i + q))
            e("v_dot2_f32_bf16 v9, v%d, v%d, v9" % (32 + 4 * i + q, 32 + 4 * i + q))
    e("s_nop 2")
    e("buffer_store_dwordx2 v[8:9], v10, s[16:19], s28 offen")
    k.stamp(4)
    if STAMPS:
        e("s_waitcnt vmcnt(0)")
    k.stamp(5)
    k.dump()
    k.lab("L_prep_end")
    e("s_endpgm")
    return k


NB = 8
BSLOT = 16 * 1024
QCS_BASE = NB * BSLOT
QST_BASE = QCS_BASE + 1536
QPQ_BASE = 32768
QKV_LDS = QST_BASE + 1024
T_STRIDE = 272


def emit_phi(e, x, t1, t2):
    e("v_min_f32 v%d, 0, v%d" % (t1, x))
    e("v_mul_f32 v%d, s40, v%d" % (t1, t1))
    e("v_exp_f32 v%d, v%d" % (t1, t1))
    e("v_max_f32 v%d, 0, v%d" % (t2, x))
    e("v_add_f32 v%d, s41, v%d" % (t2, t2))
    e("v_add_f32 v%d, v%d, v%d" % (x, t1, t2))


def gen_stub(name, body, params):
    k = Kern(name, body.vgpr, body.lds, body.grid, body.block)
    k.stub = ["s_mov_b32 s%d, 0x%x" % (r, v) for r, v in params] + ["s_branch %s" % body.name]
    return k


def gen_qkv(kind):
    name = "L_qkv%s" % kind
    k = Kern(name, 184, QKV_LDS, (256, 1, 1), (512, 1, 1))
    k.nodesc = True
    e = k.e
    ACC = 16
    FR = [48, 72]
    VL16 = 100
    VA = [101, 102]
    VB = [103, 104]
    CSR = 105
    VCS = 106
    STR = 112
    EA = 128
    end = "%s_end" % name
    e("s_cmp_ge_u32 s2, 256")
    e("s_cbranch_scc1 %s" % end)
    e("s_load_dwordx2 s[4:5], s[0:1], %d" % KA_WS)
    k.stamp(0)
    e("s_and_b32 s28, s2, 7")
    e("s_lshr_b32 s29, s2, 3")
    e("s_lshr_b32 s31, s28, 1")
    e("s_lshl_b32 s31, s31, 2")
    e("s_lshr_b32 s32, s29, 3")
    e("s_add_u32 s31, s31, s32")
    e("s_and_b32 s30, s28, 1")
    e("s_lshl_b32 s30, s30, 3")
    e("s_and_b32 s32, s29, 7")
    e("s_add_u32 s30, s30, s32")
    e("v_and_b32 v3, 63, v0")
    e("v_lshrrev_b32 v4, 6, v0")
    e("v_and_b32 v5, 31, v3")
    e("v_readfirstlane_b32 s35, v4")
    e("v_lshrrev_b32 v6, 5, v3")
    e("v_lshlrev_b32 v%d, 4, v3" % VL16)
    e("s_lshl_b32 s52, s35, 10")
    e("s_mul_i32 s53, s30, %d" % (36 * 4096))
    e("s_add_u32 s53, s53, s52")
    e("s_lshl_b32 s50, s31, 2")
    e("s_lshr_b32 s51, s35, 1")
    e("s_add_u32 s50, s50, s51")
    e("s_mul_i32 s50, s50, 36864")
    e("s_and_b32 s51, s35, 1")
    e("s_lshl_b32 s51, s51, 10")
    e("s_add_u32 s50, s50, s51")
    e("s_and_b32 s36, s35, 3")
    e("s_lshr_b32 s37, s35, 2")
    for i in range(32):
        e("v_mov_b32 v%d, 0" % (ACC + i))
    e("s_lshl_b32 s34, s37, 12")
    e("v_add_u32 v%d, s34, v%d" % (VA[0], VL16))
    e("v_add_u32 v%d, 0x10000, v%d" % (VA[1], VA[0]))
    e("s_lshl_b32 s34, s36, 10")
    e("s_add_u32 s34, s34, 8192")
    e("v_add_u32 v%d, s34, v%d" % (VB[0], VL16))
    e("v_add_u32 v%d, 0x10000, v%d" % (VB[1], VB[0]))
    e("s_mov_b32 s40, 0x%x" % f2u(LOG2E))
    e("s_mov_b32 s41, 0x%x" % f2u(1e-6))
    e("s_waitcnt lgkmcnt(0)")
    k.stamp(2)
    e("s_add_u32 s8, s4, s58")
    e("s_addc_u32 s9, s5, 0")
    e("s_mov_b32 s10, %d" % XB)
    e("s_mov_b32 s11, 0x00020000")
    k.srd(12, 4, WFA if kind == 'A' else WFB, WF_SZ)
    k.srd(16, 4, 0, WS_SIZE)
    issued = []

    def group_ops(g):
        slot = (g % NB) * BSLOT
        return [(g, ["s_add_u32 m0, s52, %d" % slot, "s_nop 0",
                     "buffer_load_dwordx4 v%d, s[8:11], s50 offen lds" % VL16,
                     "s_add_u32 s50, s50, 2048"]),
                (g, ["s_add_u32 m0, s52, %d" % (slot + 8192), "s_nop 0",
                     "buffer_load_dwordx4 v%d, s[12:15], s53 offen lds" % VL16,
                     "s_add_u32 s53, s53, 8192"])]

    def emit_op(op):
        tag, lines = op
        for x in lines:
            e(x)
        if tag is not None:
            issued.append(tag)

    def wait_for(stage):
        last = max(i for i, t in enumerate(issued) if t <= stage)
        return len(issued) - 1 - last

    for g in range(3):
        for op in group_ops(g):
            emit_op(op)
    k.mem = []
    if kind == 'A':
        epi_A_pre(k, EA)
    else:
        epi_B_pre(k, EA)
    e("v_min_u32 v7, 383, v0")
    e("v_lshrrev_b32 v8, 7, v7")
    e("v_and_b32 v7, 127, v7")
    e("v_lshlrev_b32 v7, 2, v7")
    e("v_lshl_add_u32 v%d, v8, 13, v7" % VCS)
    e("v_lshl_add_u32 v107, v8, 9, v7")
    e("s_lshl_b32 s54, s30, 9")
    e("s_add_u32 s54, s54, 0x%x" % (CS + (0 if kind == 'A' else CS_MAT)))
    k.stamp(13)
    e("s_waitcnt vmcnt(%d) lgkmcnt(0)" % wait_for(0))
    k.stamp(1)
    e("s_barrier")
    k.stamp(3)

    def fread_ops(s):
        f = FR[s & 1]
        slot = s % NB
        hi, so = slot >> 2, (slot & 3) * BSLOT
        ops = []
        for ks in range(2):
            ops.append((None, ["ds_read_b128 %s, v%d offset:%d" % (vr(f + 16 + 4 * ks, 4), VB[hi], so + ks * 4096)]))
            for a in range(2):
                ops.append((None, ["ds_read_b128 %s, v%d offset:%d" % (vr(f + 8 * a + 4 * ks, 4), VA[hi], so + a * 2048 + ks * 1024)]))
        return ops

    for op in fread_ops(0):
        emit_op(op)
    nextg = 3
    for s in range(18):
        fill = []
        if s + 1 <= 17:
            e("s_waitcnt vmcnt(%d) lgkmcnt(0)" % wait_for(s + 1))
            e("s_barrier")
            fill += fread_ops(s + 1)
            for _ in range(int(EXP.get("ng", 2))):
                if nextg <= 17 and nextg <= s + NB:
                    fill += group_ops(nextg)
                    nextg += 1
            if s == 10:
                fill.append((99, ["buffer_load_dword v%d, v%d, s[16:19], s54 offen" % (CSR, VCS)]))
        else:
            e("s_waitcnt lgkmcnt(0)")
        if s == 11:
            ns = k.newlab("ns")
            e("s_cmp_lt_u32 s35, 6")
            e("s_cbranch_scc1 %s" % ns)
            e("s_lshl_b32 s34, s31, 13")
            e("s_add_u32 s34, s34, 0x%x" % (STATS - 6 * 4096))
            e("v_lshlrev_b32 v7, 6, v0")
            for i in range(4):
                e("buffer_load_dwordx4 %s, v7, s[16:19], s34 offen offset:%d" % (vr(STR + 4 * i, 4), 16 * i))
            k.lab(ns)
        if s % 3 == 0 and s > 0:
            k.stamp(6 + s // 3)
        f = FR[s & 1]
        nfill = -(-len(fill) // 4)
        for ks in range(2):
            for a in range(2):
                acc = ACC + 16 * a
                e("v_mfma_f32_32x32x16_bf16 %s, %s, %s, %s" % (vr(acc, 16), vr(f + 16 + 4 * ks, 4), vr(f + 8 * a + 4 * ks, 4), vr(acc, 16)))
                for _ in range(nfill):
                    if fill:
                        emit_op(fill.pop(0))
    k.stamp(4)
    e("s_waitcnt vmcnt(0)")
    e("ds_write_b32 v107, v%d offset:0" % CSR if False else "v_add_u32 v7, %d, v107" % QCS_BASE)
    e("ds_write_b32 v7, v%d" % CSR)
    ns = k.newlab("ns")
    e("s_cmp_lt_u32 s35, 6")
    e("s_cbranch_scc1 %s" % ns)
    for i in range(1, 8):
        e("v_add_f32 v%d, v%d, v%d" % (STR, STR, STR + 2 * i))
        e("v_add_f32 v%d, v%d, v%d" % (STR + 1, STR + 1, STR + 2 * i + 1))
    e("v_mul_f32 v%d, 0x%x, v%d" % (STR, f2u(1.0 / 576), STR))
    e("v_mul_f32 v%d, 0x%x, v%d" % (STR + 1, f2u(1.0 / 576), STR + 1))
    e("v_fma_f32 v%d, -v%d, v%d, v%d" % (STR + 1, STR, STR, STR + 1))
    e("v_max_f32 v%d, 0, v%d" % (STR + 1, STR + 1))
    e("v_add_f32 v%d, 0x%x, v%d" % (STR + 1, f2u(1e-5), STR + 1))
    e("v_rsq_f32 v%d, v%d" % (STR + 1, STR + 1))
    e("s_nop 0")
    e("v_mul_f32 v%d, v%d, v%d" % (STR, STR, STR + 1))
    e("v_lshlrev_b32 v7, 2, v0")
    e("v_add_u32 v7, %d, v7" % (QST_BASE - 6 * 256))
    e("ds_write_b32 v7, v%d" % (STR + 1))
    e("ds_write_b32 v7, v%d offset:512" % STR)
    k.lab(ns)
    e("s_waitcnt lgkmcnt(0)")
    e("s_barrier")
    RS = 100
    e("s_lshl_b32 s34, s37, 8")
    e("s_add_u32 s34, s34, %d" % QST_BASE)
    e("v_lshl_add_u32 v7, v5, 2, s34")
    for a in range(2):
        e("ds_read_b32 v%d, v7 offset:%d" % (RS + 2 * a, a * 128))
        e("ds_read_b32 v%d, v7 offset:%d" % (RS + 4 + 2 * a, 512 + a * 128))
    e("s_lshl_b32 s34, s36, 7")
    e("s_add_u32 s34, s34, %d" % QCS_BASE)
    e("v_lshl_add_u32 v8, v6, 4, s34")
    for q in range(4):
        for p in range(3):
            e("ds_read_b128 %s, v8 offset:%d" % (vr(52 + 16 * p + 4 * q, 4), 512 * p + 32 * q))
    e("s_waitcnt lgkmcnt(0)")
    for i in range(4):
        e("v_mov_b32 v%d, v%d" % (RS + 2 * i + 1, RS + 2 * i))
    for r in range(0, 16, 2):
        e("v_pk_add_f32 %s, %s, %s" % (vr(52 + r, 2), vr(52 + r, 2), vr(68 + r, 2)))
        e("v_pk_add_f32 %s, %s, %s" % (vr(52 + r, 2), vr(52 + r, 2), vr(84 + r, 2)))
    for a in range(2):
        for r in range(0, 16, 2):
            acc = ACC + 16 * a + r
            e("v_pk_mul_f32 v[10:11], %s, %s" % (vr(RS + 4 + 2 * a, 2), vr(52 + r, 2)))
            e("v_pk_fma_f32 %s, %s, %s, v[10:11] neg_lo:[0,0,1] neg_hi:[0,0,1]" % (vr(acc, 2), vr(acc, 2), vr(RS + 2 * a, 2)))
    if kind == 'A':
        epi_A(k, ACC, EA)
    else:
        epi_B(k, ACC, EA)
    k.stamp(5)
    if STAMPS:
        e("s_waitcnt vmcnt(0)")
    k.stamp(6)
    k.dump()
    k.lab(end)
    e("s_endpgm")
    return k


def sprinkle(k, n):
    for _ in range(n):
        if k.mem:
            for x in k.mem.pop(0):
                k.e(x)


def per_wave(k, fn, nw=8):
    e = k.e
    labs = [k.newlab("w") for _ in range(nw)]
    lj = k.newlab("wj")
    for w in range(1, nw):
        e("s_cmp_eq_u32 s35, %d" % w)
        e("s_cbranch_scc1 %s" % labs[w])
    for w in range(nw):
        k.lab(labs[w])
        fn(w)
        if w < nw - 1:
            e("s_branch %s" % lj)
    k.lab(lj)


def half_ops(k, lo, hi):
    for x in lo:
        k.e(x)
    k.e("s_mov_b32 exec_lo, 0")
    for x in hi:
        k.e(x)
    k.e("s_mov_b32 exec_lo, -1")


DUMMY = 98304


KV_ROW = 168


def epi_A_pre(k, EA):
    e = k.e
    e("v_mul_u32_u24 v12, %d, v5" % KV_ROW)
    e("v_lshlrev_b32 v13, 4, v5")
    e("v_lshlrev_b32 v14, 2, v5")

    def var(w):
        ct, rh = w & 3, w >> 2
        ops = [[], []]
        for q in range(4):
            for pr in range(2):
                i = 2 * q + pr
                for h in range(2):
                    vc = 32 * ct + 8 * q + 4 * h + 2 * pr
                    for a in range(2):
                        if vc < 72:
                            c = (64 * rh + 32 * a) * KV_ROW + (vc // 18) * 40 + (vc % 18) * 2
                            t = 12
                        elif vc < 108:
                            hl, d = (vc - 72) // 18, (vc - 72) % 18
                            sb = QPQ_BASE + (4 * hl + 2 * rh + a) * 2560
                            if d < 16:
                                c, t = sb + (d >> 3) * 512 + (d & 7) * 2, 13
                            else:
                                c, t = sb + 1024, 14
                        else:
                            c, t = DUMMY, 12
                        ops[h].append("v_add_u32 v%d, %d, v%d" % (EA + 2 * i + a, c, t))
                    isv = 36 <= vc < 72
                    ops[h].append("v_mov_b32 v%d, 0x%x" % (EA + 32 + i, 0 if isv else f2u(1.0)))
                    ops[h].append("v_mov_b32 v%d, 0x%x" % (EA + 44 + i, 0xff800000 if isv else 0))
        half_ops(k, ops[0], ops[1])
        if w < 2:
            e("v_lshrrev_b32 v7, 2, v3")
            e("v_and_b32 v7, 3, v7")
            e("v_lshl_add_u32 v7, v6, 3, v7")
            e("v_mul_u32_u24 v7, %d, v7" % KV_ROW)
            e("v_bfe_u32 v8, v3, 4, 1")
            e("v_lshl_add_u32 v7, v8, 5, v7")
            e("v_and_b32 v8, 3, v3")
            e("v_lshl_add_u32 v7, v8, 3, v7")
            e("v_add_u32 v%d, %d, v7" % (EA + 40, 40 * w))
            e("v_add_u32 v%d, %d, v7" % (EA + 41, 80 + 40 * w))
            e("v_cmp_gt_u32 vcc, 18, v5")
            e("v_lshlrev_b32 v10, 2, v5")
            e("v_lshl_add_u32 v10, v6, 9, v10")
            e("v_mov_b32 v9, 0x40000000")
            e("v_cndmask_b32 v%d, v9, v10, vcc" % (EA + 42))
            e("v_cmp_eq_u32 vcc, 0, v6")
            e("s_nop 1")
            e("v_cndmask_b32 v%d, v9, v%d, vcc" % (EA + 43, EA + 42))
        else:
            for i in range(4):
                e("v_mov_b32 v%d, 0x40000000" % (EA + 40 + i))

    per_wave(k, var)


def epi_A(k, ACC, EA):
    e = k.e
    e("v_mov_b32 v12, s40")
    e("v_mov_b32 v13, s40")
    e("v_mov_b32 v14, s41")
    e("v_mov_b32 v15, s41")
    for q in range(4):
        for pr in range(2):
            i = 2 * q + pr
            for a in range(2):
                acc = ACC + 16 * a + 4 * q + 2 * pr
                e("v_pk_mul_f32 v[10:11], %s, v[12:13]" % vr(acc, 2))
                e("v_min_f32 v10, 0, v10")
                e("v_min_f32 v11, 0, v11")
                e("v_exp_f32 v10, v10")
                e("v_exp_f32 v11, v11")
                e("v_max_f32 v%d, v%d, v%d" % (acc, acc, EA + 44 + i))
                e("v_max_f32 v%d, v%d, v%d" % (acc + 1, acc + 1, EA + 44 + i))
                e("v_pk_add_f32 v[10:11], v[10:11], v[14:15]")
                e("v_fmac_f32 v%d, v10, v%d" % (acc, EA + 32 + i))
                e("v_fmac_f32 v%d, v11, v%d" % (acc + 1, EA + 32 + i))
                e("v_cvt_pk_bf16_f32 v%d, v%d, v%d" % (acc, acc, acc + 1))
                e("ds_write_b32 v%d, v%d" % (EA + 2 * i + a, acc))
    e("v_lshrrev_b32 v10, 2, v0")
    e("v_mul_u32_u24 v10, %d, v10" % KV_ROW)
    e("v_and_b32 v11, 3, v0")
    e("v_mul_u32_u24 v11, 40, v11")
    e("v_add_u32 v10, v10, v11")
    e("v_mov_b32 v11, 0x3f80")
    e("ds_write_b32 v10, v11 offset:36")
    e("s_waitcnt lgkmcnt(0)")
    e("s_barrier")
    e("s_lshl_b32 s39, s31, 2")
    e("s_add_u32 s39, s39, s36")
    e("s_lshl_b32 s39, s39, 5")
    e("s_lshl_b32 s43, s30, 1")
    e("s_add_u32 s39, s39, s43")
    e("s_add_u32 s39, s39, s37")
    e("s_mul_i32 s39, s39, 1152")
    e("s_add_u32 s39, s39, 0x%x" % PQF)
    e("s_mul_i32 s38, s35, 2560")
    e("s_add_u32 s38, s38, %d" % QPQ_BASE)
    e("v_lshlrev_b32 v8, 4, v3")
    e("v_add_u32 v9, s38, v8")
    e("ds_read_b128 v[100:103], v9")
    e("ds_read_b128 v[104:107], v9 offset:1024")
    e("v_mov_b32 v10, 0x40000000")
    e("v_cmp_gt_u32 vcc, 8, v3")
    e("s_nop 1")
    e("v_cndmask_b32 v11, v10, v8, vcc")
    e("s_waitcnt lgkmcnt(0)")
    e("buffer_store_dwordx4 v[100:103], v8, s[16:19], s39 offen")
    e("buffer_store_dwordx4 v[104:107], v11, s[16:19], s39 offen offset:1024")
    lj = k.newlab("ej")
    e("s_cmp_ge_u32 s35, 2")
    e("s_cbranch_scc1 %s" % lj)
    for st in range(8):
        for hf in range(2):
            o = (16 * st + 4 * hf) * KV_ROW
            e("ds_read_b64_tr_b16 %s, v%d offset:%d" % (vr(16 + 8 * st + 2 * hf, 2), EA + 40, o))
            e("ds_read_b64_tr_b16 %s, v%d offset:%d" % (vr(20 + 8 * st + 2 * hf, 2), EA + 41, o))
    e("s_lshl_b32 s39, s30, 1")
    e("s_add_u32 s39, s39, s35")
    e("s_mul_i32 s39, s39, 2432")
    e("s_add_u32 s39, s39, s59")
    e("s_waitcnt lgkmcnt(0)")
    for st in range(8):
        c = "0" if st == 0 else vr(80, 16)
        e("v_mfma_f32_32x32x16_bf16 %s, %s, %s, %s" % (vr(80, 16), vr(20 + 8 * st, 4), vr(16 + 8 * st, 4), c))
    e("s_nop 7")
    e("s_nop 7")
    for r in range(11):
        ee = (r & 3) + 8 * (r >> 2)
        e("buffer_atomic_add_f32 v%d, v%d, s[16:19], s39 offen offset:%d" % (80 + r, EA + 42 if r < 8 else EA + 43, 128 * ee))
    k.lab(lj)


IMG_S = 2560
IMG_K = 8 * IMG_S
IMG_V = 16 * IMG_S
V_ROW = 72


def epi_B_pre(k, EA):
    e = k.e
    e("v_lshlrev_b32 v12, 4, v5")
    e("v_lshlrev_b32 v13, 2, v5")
    e("v_mul_u32_u24 v14, %d, v5" % V_ROW)

    def var(w):
        ct, rh = w & 3, w >> 2
        ops = [[], []]
        for q in range(4):
            for pr in range(2):
                i = 2 * q + pr
                for h in range(2):
                    vc = 32 * ct + 8 * q + 4 * h + 2 * pr
                    sc = 1.0
                    if vc >= 108:
                        c, t = DUMMY, 13
                    else:
                        seg, cc = vc // 36, vc % 36
                        hl, d = cc // 18, cc % 18
                        sb = (4 * hl + 2 * rh) * IMG_S
                        if seg == 2:
                            c, t = IMG_V + sb + d * 2, 14
                        else:
                            base = sb + (IMG_K if seg == 1 else 0)
                            if d < 16:
                                c, t = base + (d >> 3) * 512 + (d & 7) * 2, 12
                            else:
                                c, t = base + 1024, 13
                            if seg == 0:
                                sc = QSCALE
                    ops[h].append("v_add_u32 v%d, %d, v%d" % (EA + i, c, t))
                    ops[h].append("v_mov_b32 v%d, 0x%x" % (EA + 16 + 2 * i, f2u(sc)))
                    ops[h].append("v_mov_b32 v%d, 0x%x" % (EA + 17 + 2 * i, f2u(sc)))
        half_ops(k, ops[0], ops[1])

    per_wave(k, var)
    e("v_lshrrev_b32 v7, 2, v3")
    e("v_and_b32 v7, 3, v7")
    e("v_lshl_add_u32 v7, v6, 2, v7")
    e("v_mul_u32_u24 v7, %d, v7" % V_ROW)
    e("v_bfe_u32 v8, v3, 4, 1")
    e("v_lshl_add_u32 v7, v8, 5, v7")
    e("v_and_b32 v9, 3, v3")
    e("v_lshl_add_u32 v7, v9, 3, v7")
    e("s_mul_i32 s38, s35, %d" % IMG_S)
    e("s_add_u32 s38, s38, %d" % IMG_V)
    e("v_add_u32 v%d, s38, v7" % (EA + 8))
    e("v_mul_u32_u24 v7, 320, v6")
    e("v_lshl_add_u32 v7, v5, 4, v7")
    e("v_add_u32 v7, 1152, v7")
    e("v_cmp_gt_u32 vcc, 19, v5")
    e("v_mov_b32 v10, 0x40000000")
    e("s_nop 0")
    e("v_cndmask_b32 v%d, v10, v7, vcc" % (EA + 9))
    e("v_lshlrev_b32 v8, 4, v3")
    e("v_cmp_gt_u32 vcc, 8, v3")
    e("s_nop 1")
    e("v_cndmask_b32 v%d, v10, v8, vcc" % (EA + 10))


def epi_B(k, ACC, EA):
    e = k.e
    for q in range(4):
        for pr in range(2):
            i = 2 * q + pr
            for a in range(2):
                acc = ACC + 16 * a + 4 * q + 2 * pr
                e("v_pk_mul_f32 %s, %s, %s" % (vr(acc, 2), vr(acc, 2), vr(EA + 16 + 2 * i, 2)))
                e("v_cvt_pk_bf16_f32 v%d, v%d, v%d" % (acc, acc, acc + 1))
                e("ds_write_b32 v%d, v%d offset:%d" % (EA + i, acc, IMG_S * a))
    e("s_mul_i32 s38, s35, %d" % IMG_S)
    e("v_mul_u32_u24 v7, %d, v5" % V_ROW)
    e("v_add_u32 v7, s38, v7")
    e("v_mov_b32 v8, 0x3f80")
    e("ds_write_b32 v7, v8 offset:%d" % (IMG_V + 36))
    e("s_waitcnt lgkmcnt(0)")
    e("s_barrier")
    e("v_lshlrev_b32 v8, 4, v3")
    e("v_add_u32 v9, s38, v8")
    e("ds_read_b128 v[48:51], v9")
    e("ds_read_b128 v[52:55], v9 offset:1024")
    e("ds_read_b128 v[56:59], v9 offset:%d" % IMG_K)
    e("ds_read_b128 v[60:63], v9 offset:%d" % (IMG_K + 1024))
    for ab in range(2):
        for hf in range(2):
            e("ds_read_b64_tr_b16 %s, v%d offset:%d" % (vr(64 + 4 * ab + 2 * hf, 2), EA + 8, (16 * ab + 8 * hf) * V_ROW))
    e("s_lshl_b32 s43, s30, 1")
    e("s_add_u32 s43, s43, s37")
    e("s_lshl_b32 s38, s31, 2")
    e("s_add_u32 s38, s38, s36")
    e("s_mul_i32 s44, s43, %d" % QHEAD)
    e("s_mul_i32 s39, s38, 1152")
    e("s_add_u32 s44, s44, s39")
    e("s_add_u32 s44, s44, 0x%x" % QPI)
    e("s_mul_i32 s46, s43, %d" % KVHEAD)
    e("s_mul_i32 s39, s38, 2432")
    e("s_add_u32 s46, s46, s39")
    e("s_add_u32 s46, s46, 0x%x" % KVI)
    e("s_waitcnt lgkmcnt(0)")
    e("buffer_store_dwordx4 v[48:51], v8, s[16:19], s44 offen")
    e("buffer_store_dwordx4 v[52:55], v%d, s[16:19], s44 offen offset:1024" % (EA + 10))
    e("buffer_store_dwordx4 v[56:59], v8, s[16:19], s46 offen")
    e("buffer_store_dwordx4 v[60:63], v%d, s[16:19], s46 offen offset:1024" % (EA + 10))
    e("buffer_store_dwordx4 v[64:67], v%d, s[16:19], s46 offen" % (EA + 9))
    e("buffer_store_dwordx4 v[68:71], v%d, s[16:19], s46 offen offset:640" % (EA + 9))


def gen_attn(name):
    k = Kern(name, 120, KVHEAD, (256, 1, 1), (1024, 1, 1))
    e = k.e
    SA, SB = 16, 32
    P = 48
    O = 56
    CM = 72
    Q1, Q2 = 88, 92
    K1, K2 = 96, 100
    VVa, VVb = 104, 108
    vK1, vK2, vV = 112, 113, 114
    vK1b, vK2b, vVb = 115, 116, 117
    SEGS = [2, 6, 24]
    HALF = 32 * 2432
    end = "L_%s_end" % name
    e("s_cmp_ge_u32 s2, 256")
    e("s_cbranch_scc1 %s" % end)
    e("s_load_dwordx2 s[4:5], s[0:1], %d" % KA_WS)
    k.stamp(0)
    e("s_and_b32 s30, s2, 7")
    e("s_lshr_b32 s31, s2, 3")
    e("s_and_b32 s32, s31, 3")
    e("s_lshl_b32 s30, s30, 2")
    e("s_add_u32 s30, s30, s32")
    e("s_lshr_b32 s31, s31, 2")
    e("v_lshrrev_b32 v4, 6, v0")
    e("v_and_b32 v3, 63, v0")
    e("v_readfirstlane_b32 s35, v4")
    e("s_mul_i32 s33, s30, %d" % KVHEAD)
    e("s_lshr_b32 s40, s35, 3")
    e("s_and_b32 s41, s35, 7")
    e("s_mul_i32 s42, s40, %d" % HALF)
    e("v_lshlrev_b32 v1, 4, v3")
    e("s_lshl_b32 s36, s31, 3")
    e("s_add_u32 s36, s36, s41")
    e("s_mul_i32 s37, s36, 1152")
    e("s_mul_i32 s38, s30, %d" % QHEAD)
    e("s_add_u32 s37, s37, s38")
    e("s_add_u32 s37, s37, 0x%x" % QPI)
    e("v_and_b32 v5, 31, v3")
    e("v_lshrrev_b32 v6, 5, v3")
    e("v_lshlrev_b32 v7, 2, v5")
    e("s_lshl_b32 s39, s41, 10")
    e("s_add_u32 s39, s39, s42")
    e("s_add_u32 s43, s42, %d" % (75 * 1024))
    e("s_waitcnt lgkmcnt(0)")
    e("s_add_u32 s8, s4, s33")
    e("s_addc_u32 s9, s5, 0")
    e("s_add_u32 s8, s8, 0x%x" % KVI)
    e("s_addc_u32 s9, s9, 0")
    e("s_mov_b32 s10, %d" % KVHEAD)
    e("s_mov_b32 s11, 0x00020000")
    k.srd(16, 4, 0, WS_SIZE)
    e("buffer_load_dwordx4 %s, v1, s[16:19], s37 offen" % vr(Q1, 4))
    e("buffer_load_dword v%d, v7, s[16:19], s37 offen offset:1024" % Q2)
    def dma(i):
        if i == 9:
            e("s_min_u32 s39, s39, s43")
        e("s_mov_b32 m0, s39")
        e("s_nop 0")
        e("buffer_load_dwordx4 v1, s[8:11], s39 offen lds")
        e("s_add_u32 s39, s39, 8192")

    dma(0)
    dma(1)
    e("v_add_u32 v%d, s42, v1" % vK1b)
    e("v_add_u32 v8, 1024, v7")
    e("v_add_u32 v%d, s42, v8" % vK2b)
    e("v_min_u32 v8, 18, v5")
    e("v_lshlrev_b32 v8, 4, v8")
    e("v_mul_u32_u24 v9, 320, v6")
    e("v_add3_u32 v8, v8, v9, s42")
    e("v_add_u32 v%d, 1152, v8" % vVb)
    for i in range(1, 4):
        e("v_mov_b32 v%d, 0" % (Q2 + i))
        e("v_mov_b32 v%d, 0" % (K2 + i))
    e("v_cmp_eq_u32 vcc, 0, v6")
    e("s_waitcnt vmcnt(2)")
    e("v_cndmask_b32 v%d, 0, v%d, vcc" % (Q2, Q2))
    e("s_mov_b32 s50, 0")

    def seg_wait(c):
        ntiles = sum(SEGS[:c + 1]) + 1
        need = min(-(-(ntiles * 2432) // 1024), 76)
        n = min((need - 1) // 8 + 1, 10)
        issued = 2 + min(sum(SEGS[:c]), 8)
        assert issued >= n
        return issued - n

    e("s_waitcnt vmcnt(%d)" % seg_wait(0))
    e("s_barrier")
    k.stamp(1)
    e("ds_read_b128 %s, v%d" % (vr(K1, 4), vK1b))
    e("ds_read_b32 v%d, v%d" % (K2, vK2b))
    e("s_waitcnt lgkmcnt(0)")
    e("v_mfma_f32_32x32x16_bf16 %s, %s, %s, 0" % (vr(SA, 16), vr(K1, 4), vr(Q1, 4)))
    e("v_mfma_f32_32x32x16_bf16 %s, %s, %s, %s" % (vr(SA, 16), vr(K2, 4), vr(Q2, 4), vr(SA, 16)))
    e("s_nop 7")
    e("s_nop 7")
    e("v_max3_f32 v10, v%d, v%d, v%d" % (SA, SA + 1, SA + 2))
    for i in range(3, 15, 2):
        e("v_max3_f32 v10, v10, v%d, v%d" % (SA + i, SA + i + 1))
    e("v_max_f32 v10, v10, v%d" % (SA + 15))
    run = "L_%s_run" % name
    k.lab(run)
    e("v_mov_b32 v11, v10")
    e("s_nop 1")
    e("v_permlane32_swap_b32 v11, v10")
    e("s_nop 1")
    e("v_max_f32 v10, v10, v11")
    e("v_sub_f32 v10, 0, v10")
    for i in range(16):
        e("v_mov_b32 v%d, v10" % (CM + i))
        e("v_mov_b32 v%d, 0" % (O + i))
    e("v_mov_b32 v%d, v%d" % (vK1, vK1b))
    e("v_mov_b32 v%d, v%d" % (vK2, vK2b))
    e("v_mov_b32 v%d, v%d" % (vV, vVb))
    e("ds_read_b128 %s, v%d" % (vr(K1, 4), vK1))
    e("ds_read_b32 v%d, v%d" % (K2, vK2))
    e("s_waitcnt lgkmcnt(0)")
    e("v_mfma_f32_32x32x16_bf16 %s, %s, %s, %s" % (vr(SA, 16), vr(K1, 4), vr(Q1, 4), vr(CM, 16)))
    e("v_mfma_f32_32x32x16_bf16 %s, %s, %s, %s" % (vr(SA, 16), vr(K2, 4), vr(Q2, 4), vr(SA, 16)))
    e("ds_read_b128 %s, v%d offset:2432" % (vr(K1, 4), vK1))
    e("ds_read_b32 v%d, v%d offset:2432" % (K2, vK2))
    e("ds_read_b128 %s, v%d" % (vr(VVa, 4), vV))
    e("ds_read_b128 %s, v%d offset:640" % (vr(VVb, 4), vV))
    e("s_nop 7")

    def body(t, Sc, Sn):
        o = 2432 * (t % 16)
        e("s_waitcnt lgkmcnt(2)")
        e("v_mfma_f32_32x32x16_bf16 %s, %s, %s, %s" % (vr(Sn, 16), vr(K1, 4), vr(Q1, 4), vr(CM, 16)))
        e("v_mfma_f32_32x32x16_bf16 %s, %s, %s, %s" % (vr(Sn, 16), vr(K2, 4), vr(Q2, 4), vr(Sn, 16)))
        e("ds_read_b128 %s, v%d offset:%d" % (vr(K1, 4), vK1, o + 2 * 2432))
        e("ds_read_b32 v%d, v%d offset:%d" % (K2, vK2, o + 2 * 2432))
        for i in range(16):
            e("v_exp_f32 v%d, v%d" % (Sc + i, Sc + i))
            if i & 1 and i >= 3:
                e("v_cvt_pk_bf16_f32 v%d, v%d, v%d" % (P + (i - 3) // 2, Sc + i - 3, Sc + i - 2))
        e("v_cvt_pk_bf16_f32 v%d, v%d, v%d" % (P + 7, Sc + 14, Sc + 15))
        e("s_waitcnt lgkmcnt(2)")
        e("v_mfma_f32_32x32x16_bf16 %s, %s, %s, %s" % (vr(O, 16), vr(VVa, 4), vr(P, 4), vr(O, 16)))
        e("v_mfma_f32_32x32x16_bf16 %s, %s, %s, %s" % (vr(O, 16), vr(VVb, 4), vr(P + 4, 4), vr(O, 16)))
        e("ds_read_b128 %s, v%d offset:%d" % (vr(VVa, 4), vV, o + 2432))
        e("ds_read_b128 %s, v%d offset:%d" % (vr(VVb, 4), vV, o + 2432 + 640))

    t = 0
    for c, nts in enumerate(SEGS):
        if c > 0:
            sk = k.newlab("sk")
            e("s_cmp_lg_u32 s50, 0")
            e("s_cbranch_scc1 %s" % sk)
            e("s_waitcnt vmcnt(%d)" % seg_wait(c))
            e("s_barrier")
            k.lab(sk)
        for i in range(nts):
            if t == 16:
                e("v_add_u32 v%d, %d, v%d" % (vK1, 16 * 2432, vK1))
                e("v_add_u32 v%d, %d, v%d" % (vK2, 16 * 2432, vK2))
                e("v_add_u32 v%d, %d, v%d" % (vV, 16 * 2432, vV))
            if t < 8:
                sk = k.newlab("sd")
                e("s_cmp_lg_u32 s50, 0")
                e("s_cbranch_scc1 %s" % sk)
                dma(t + 2)
                k.lab(sk)
            if t & 1:
                body(t, SB, SA)
            else:
                body(t, SA, SB)
            t += 1
    e("s_waitcnt lgkmcnt(0)")
    k.stamp(2)
    e("s_nop 7")
    e("s_nop 7")
    e("v_max3_f32 v10, |v%d|, |v%d|, |v%d|" % (O, O + 1, O + 2))
    for i in range(3, 11, 2):
        e("v_max3_f32 v10, v10, |v%d|, |v%d|" % (O + i, O + i + 1))
    e("v_max_f32 v10, v10, |v%d|" % (O + 11))
    e("v_add_f32 v11, v%d, v%d" % (O, O + 1))
    for i in range(2, 12):
        e("v_add_f32 v11, v11, v%d" % (O + i))
    e("v_mov_b32 v12, 0x%x" % f2u(2.0 ** (-100 if EXP.get("forcefb") else 100)))
    e("v_cmp_nlt_f32 vcc, v10, v12")
    e("v_cmp_u_f32 s[52:53], v11, v11")
    e("s_nop 3")
    e("s_or_b64 vcc, vcc, s[52:53]")
    e("s_cmp_lg_u32 s50, 0")
    fin = "L_%s_fin" % name
    e("s_cbranch_scc1 %s" % fin)
    e("s_cbranch_vccz %s" % fin)
    e("s_mov_b32 s50, 1")
    e("v_mov_b32 v%d, v%d" % (vK1, vK1b))
    e("v_mov_b32 v%d, v%d" % (vK2, vK2b))
    e("v_mov_b32 v10, 0xff800000")
    e("s_mov_b32 s51, 0")
    fl = "L_%s_fl" % name
    k.lab(fl)
    e("ds_read_b128 %s, v%d" % (vr(K1, 4), vK1))
    e("ds_read_b32 v%d, v%d" % (K2, vK2))
    e("s_waitcnt lgkmcnt(0)")
    e("v_mfma_f32_32x32x16_bf16 %s, %s, %s, 0" % (vr(SA, 16), vr(K1, 4), vr(Q1, 4)))
    e("v_mfma_f32_32x32x16_bf16 %s, %s, %s, %s" % (vr(SA, 16), vr(K2, 4), vr(Q2, 4), vr(SA, 16)))
    e("s_nop 7")
    e("s_nop 7")
    for i in range(0, 16, 2):
        e("v_max3_f32 v10, v10, v%d, v%d" % (SA + i, SA + i + 1))
    e("v_add_u32 v%d, 2432, v%d" % (vK1, vK1))
    e("v_add_u32 v%d, 2432, v%d" % (vK2, vK2))
    e("s_add_u32 s51, s51, 1")
    e("s_cmp_lt_u32 s51, 32")
    e("s_cbranch_scc1 %s" % fl)
    e("s_branch %s" % run)
    k.lab(fin)
    e("s_barrier")
    e("s_mul_i32 s37, s41, 4096")
    e("v_add_u32 v1, s37, v1")
    e("s_cmp_eq_u32 s40, 0")
    lo = "L_%s_lo" % name
    e("s_cbranch_scc1 %s" % lo)
    e("v_mov_b32 v%d, v%d" % (O + 10, CM))
    for i in range(3):
        e("ds_write_b128 v1, %s offset:%d" % (vr(O + 4 * i, 4), 1024 * i))
    e("s_waitcnt lgkmcnt(0)")
    e("s_barrier")
    e("s_endpgm")
    k.lab(lo)
    e("s_barrier")
    for i in range(3):
        e("ds_read_b128 %s, v1 offset:%d" % (vr(SA + 4 * i, 4), 1024 * i))
    e("s_waitcnt lgkmcnt(0)")
    e("v_min_f32 v10, v%d, v%d" % (CM, SA + 10))
    e("v_sub_f32 v11, v10, v%d" % CM)
    e("v_sub_f32 v12, v10, v%d" % (SA + 10))
    e("v_exp_f32 v11, v11")
    e("v_exp_f32 v12, v12")
    e("s_nop 0")
    for i in list(range(10)) + [11]:
        e("v_mul_f32 v%d, v11, v%d" % (O + i, O + i))
        e("v_fmac_f32 v%d, v12, v%d" % (O + i, SA + i))
    e("v_rcp_f32 v10, v%d" % (O + 11))
    e("s_nop 0")
    for i in range(10):
        e("v_mul_f32 v%d, v10, v%d" % (O + i, O + i))
    for i in range(5):
        e("v_cvt_pk_bf16_f32 v%d, v%d, v%d" % (O + i, O + 2 * i, O + 2 * i + 1))
    e("s_lshl_b32 s37, s36, 1")
    e("v_lshrrev_b32 v12, 4, v5")
    e("v_add_u32 v12, s37, v12")
    e("v_mul_u32_u24 v12, 18432, v12")
    e("v_and_b32 v13, 15, v5")
    e("v_lshl_add_u32 v12, v13, 4, v12")
    e("v_add_u32 v12, 0x%x, v12" % OB)
    e("s_mul_i32 s37, s30, 18")
    e("v_lshlrev_b32 v13, 2, v6")
    e("v_add_u32 v13, s37, v13")
    e("v_cmp_eq_u32 vcc, 0, v6")
    for i, dd in enumerate([0, 2, 8, 10, 16]):
        e("v_add_u32 v14, %d, v13" % dd)
        e("v_lshrrev_b32 v15, 3, v14")
        e("v_and_b32 v14, 7, v14")
        e("v_lshl_add_u32 v15, v15, 8, v12")
        e("v_lshl_add_u32 v15, v14, 1, v15")
        if dd == 16:
            e("v_mov_b32 v14, 0x40000000")
            e("v_cndmask_b32 v15, v14, v15, vcc")
        e("buffer_store_dword v%d, v15, s[16:19], 0 offen" % (O + i))
    k.stamp(3)
    k.dump()
    k.lab(end)
    e("s_endpgm")
    return k


def gen_out(name, kind, xsrc, xdst, layer):
    OA_BASE = 81 * 1024
    lds = OA_BASE + (72 * 1024 if kind == 'A' else 0)
    k = Kern(name, 216 if kind == 'A' else 136, lds, (256, 1, 1), (512, 1, 1))
    e = k.e
    ACC = 16
    XRES = 36
    AF = 48
    BF = 84
    BF2 = [84, 104]
    VL16 = 124 if kind == 'B' else 208
    VB = VL16 + 1
    VB4 = VL16 + 2
    VX = VL16 + 3
    VX4 = VL16 + 4
    VD = VL16 + 5
    VD4 = VL16 + 6
    end = "L_%s_end" % name
    e("s_cmp_ge_u32 s2, 256")
    e("s_cbranch_scc1 %s" % end)
    e("s_load_dwordx2 s[4:5], s[0:1], %d" % KA_WS)
    if xdst is None:
        e("s_load_dwordx2 s[22:23], s[0:1], %d" % KA_OUT)
    k.stamp(0)
    e("s_and_b32 s28, s2, 7")
    e("s_lshr_b32 s29, s2, 3")
    e("s_and_b32 s30, s29, 7")
    e("s_lshr_b32 s31, s29, 3")
    e("s_lshl_b32 s28, s28, 2")
    e("s_add_u32 s31, s31, s28")
    e("v_lshrrev_b32 v4, 6, v0")
    e("v_and_b32 v3, 63, v0")
    e("v_readfirstlane_b32 s35, v4")
    e("v_and_b32 v5, 15, v3")
    e("v_lshrrev_b32 v6, 4, v3")
    e("v_lshlrev_b32 v%d, 4, v3" % VL16)
    e("s_and_b32 s36, s35, 3")
    e("s_lshr_b32 s37, s35, 2")
    e("s_lshl_b32 s38, s31, 2")
    e("s_add_u32 s38, s38, s36")
    e("s_mul_i32 s39, s38, 18432")
    e("s_mul_i32 s33, s30, %d" % (81 * 1024))
    e("s_lshl_b32 s52, s35, 10")
    e("s_waitcnt lgkmcnt(0)")
    k.srd(8, 4, xsrc, XB)
    k.srd(12, 4, WOA if kind == 'A' else WOB, WO_SZ)
    if xdst is None:
        k.srd(24, 22, 0, XB)
    else:
        k.srd(24, 4, xdst, XB)
    if kind == 'A':
        k.srd(16, 4, PQF, PQF_SZ)
        k.srd(44, 4, KVACC + layer * KVACC_L, KVACC_L)
    else:
        k.srd(16, 4, OB, XB)
    k.srd(56, 4, STATS, 2048 * 64)

    if kind == 'B':
        e("s_mul_i32 s40, s37, 9216")
        e("s_add_u32 s40, s40, s39")
        for i in range(9):
            e("buffer_load_dwordx4 %s, v%d, s[16:19], s40 offen offset:%d" % (vr(AF + 4 * i, 4), VL16, (1024 * i) % 4096))
            if i % 4 == 3:
                e("s_add_u32 s40, s40, 4096")
    else:
        KVR, PQR, DD = 48, 96, 160
        e("v_and_b32 v1, 31, v3")
        e("v_lshrrev_b32 v2, 5, v3")
        e("s_mul_i32 s40, s35, %d" % (4 * 2432))
        e("v_min_u32 v8, 18, v1")
        e("v_lshlrev_b32 v8, 7, v8")
        e("v_add_u32 v9, s40, v8")
        e("v_lshl_add_u32 v8, v2, 5, v9")
        e("v_lshlrev_b32 v10, 2, v1")
        e("s_lshl_b32 s41, s31, 6")
        e("s_lshl_b32 s42, s35, 2")
        e("s_add_u32 s41, s41, s42")
        e("s_mul_i32 s55, s41, 1152")
        for hh in range(4):
            for t in range(2):
                for i in range(1, 4):
                    e("v_mov_b32 v%d, 0" % (PQR + 16 * hh + 8 * t + 4 + i))

        def s1load(hh):
            e("s_mov_b32 s34, %d" % (hh * 2432))
            e("buffer_load_dwordx4 %s, v8, s[44:47], s34 offen" % (vr(KVR + 12 * hh, 4)))
            e("buffer_load_dwordx4 %s, v8, s[44:47], s34 offen offset:16" % (vr(KVR + 12 * hh + 4, 4)))
            e("buffer_load_dwordx2 %s, v9, s[44:47], s34 offen offset:64" % (vr(KVR + 12 * hh + 8, 2)))
            for t in range(2):
                e("s_add_u32 s34, s55, %d" % (t * 32 * 1152 + hh * 1152))
                e("buffer_load_dwordx4 %s, v%d, s[16:19], s34 offen" % (vr(PQR + 16 * hh + 8 * t, 4), VL16))
                e("buffer_load_dword v%d, v10, s[16:19], s34 offen offset:1024" % (PQR + 16 * hh + 8 * t + 4))

        s1load(0)
        s1load(1)
    def wdma(lo, hi):
        for i in range(lo, hi):
            if 8 * i + 7 < 81:
                e("s_add_u32 m0, s52, %d" % (8192 * i))
                e("s_add_u32 s34, m0, s33")
            else:
                e("s_add_u32 s54, s52, %d" % (8192 * i))
                e("s_min_u32 m0, s54, %d" % (80 * 1024))
                e("s_add_u32 s34, m0, s33")
            e("buffer_load_dwordx4 v%d, s[12:15], s34 offen lds" % VL16)

    if kind == 'B':
        wdma(0, 11)
    e("s_lshr_b32 s40, s38, 1")
    e("s_mul_i32 s40, s40, 36864")
    e("s_and_b32 s41, s38, 1")
    e("s_lshl_b32 s41, s41, 8")
    e("s_add_u32 s40, s40, s41")
    e("s_mul_i32 s41, s30, 4608")
    e("s_add_u32 s40, s40, s41")
    e("v_lshrrev_b32 v7, 1, v6")
    e("v_lshlrev_b32 v7, 9, v7")
    e("v_lshl_add_u32 v7, v5, 4, v7")
    e("v_and_b32 v11, 1, v6")
    e("v_lshl_add_u32 v7, v11, 3, v7")
    e("v_add_u32 v%d, s40, v7" % VX)
    e("v_cmp_gt_u32 vcc, 2, v6")
    e("v_mov_b32 v11, 0x40000000")
    e("s_nop 0")
    e("v_cndmask_b32 v%d, v11, v%d, vcc" % (VX4, VX))
    if xdst is None:
        e("s_lshl_b32 s40, s38, 4")
        e("v_add_u32 v7, s40, v5")
        e("v_mul_u32_u24 v7, 1152, v7")
        e("v_lshl_add_u32 v7, v6, 3, v7")
        e("s_mul_i32 s40, s30, 144")
        e("v_add_u32 v%d, s40, v7" % VD)
        e("v_cndmask_b32 v%d, v11, v%d, vcc" % (VD4, VD))
    def xres():
        for t in range(5):
            e("s_mov_b32 s34, %d" % (1024 * t))
            e("buffer_load_dwordx2 %s, v%d, s[8:11], s34 offen" % (vr(XRES + 2 * t, 2), VX4 if t == 4 else VX))

    if kind == 'B':
        xres()
    e("s_mul_i32 s40, s37, %d" % (4 * 9216))
    e("v_add_u32 v%d, s40, v%d" % (VB, VL16))
    e("v_and_b32 v7, 7, v5")
    e("v_lshlrev_b32 v7, 4, v7")
    e("v_lshl_add_u32 v7, v6, 7, v7")
    e("v_add_u32 v%d, s40, v7" % VB4)
    for i in range(20):
        e("v_mov_b32 v%d, 0" % (ACC + i))
    if kind == 'A':
        e("s_mul_i32 s41, s35, 2304")
        e("s_add_u32 s41, s41, %d" % OA_BASE)
        e("v_lshrrev_b32 v11, 4, v1")
        e("v_mul_u32_u24 v11, 18432, v11")
        e("v_and_b32 v12, 15, v1")
        e("v_lshl_add_u32 v11, v12, 4, v11")
        e("v_add_u32 v11, s41, v11")
        e("s_mov_b32 s42, 0x%x" % f2u(1e-6))
        e("v_cmp_eq_u32 s[48:49], 0, v2")
        for hh in range(4):
            kv = KVR + 12 * hh
            k.stamp(7 + 2 * hh)
            e("s_waitcnt vmcnt(%d)" % [7, 7, 7, 6][hh])
            k.stamp(8 + 2 * hh)
            for i in range(5):
                e("v_cvt_pk_bf16_f32 v%d, v%d, v%d" % (kv + i, kv + 2 * i, kv + 2 * i + 1))
            for i in range(5, 8):
                e("v_mov_b32 v%d, 0" % (kv + i))
            for t in range(2):
                q2 = PQR + 16 * hh + 8 * t + 4
                e("v_cndmask_b32 v%d, 0, v%d, s[48:49]" % (q2, q2))
            e("s_nop 1")
            for t in range(2):
                q1 = PQR + 16 * hh + 8 * t
                e("v_mfma_f32_32x32x16_bf16 %s, %s, %s, 0" % (vr(DD + 16 * t, 16), vr(kv, 4), vr(q1, 4)))
                e("v_mfma_f32_32x32x16_bf16 %s, %s, %s, %s" % (vr(DD + 16 * t, 16), vr(kv + 4, 4), vr(q1 + 4, 4), vr(DD + 16 * t, 16)))
            if hh < 2:
                s1load(hh + 2)
            elif hh == 2:
                wdma(0, 6)
            else:
                wdma(6, 11)
                xres()
            lo, hi = [], []
            for i, dd in enumerate([0, 2, 8, 10, 16]):
                for h in range(2):
                    c = 18 * hh + dd + 4 * h
                    off = (c >> 3) * 256 + (c & 7) * 2
                    if not (dd == 16 and h == 1):
                        (lo if h == 0 else hi).append("v_add_u32 v%d, %d, v11" % (192 + i, off))
            half_ops(k, lo, hi)
            e("s_nop 3")
            for t in range(2):
                d = DD + 16 * t
                e("v_add_f32 v%d, s42, v%d" % (d + 12, d + 11))
            for t in range(2):
                d = DD + 16 * t
                e("v_rcp_f32 v%d, v%d" % (d + 12, d + 12))
            for t in range(2):
                d = DD + 16 * t
                e("v_mov_b32 v%d, v%d" % (d + 13, d + 12))
            for t in range(2):
                d = DD + 16 * t
                for i in range(5):
                    e("v_pk_mul_f32 %s, %s, %s" % (vr(d + 2 * i, 2), vr(d + 2 * i, 2), vr(d + 12, 2)))
                    e("v_cvt_pk_bf16_f32 v%d, v%d, v%d" % (d + 2 * i, d + 2 * i, d + 2 * i + 1))
                    if i == 4:
                        e("s_mov_b32 exec_hi, 0")
                    e("ds_write_b32 v%d, v%d offset:%d" % (192 + i, d + 2 * i, t * 36864))
                    if i == 4:
                        e("s_mov_b32 exec_hi, -1")
        e("s_mul_i32 s40, s36, 18432")
        e("s_mul_i32 s41, s37, 9216")
        e("s_add_u32 s40, s40, s41")
        e("s_add_u32 s40, s40, %d" % OA_BASE)
        e("v_add_u32 v7, s40, v%d" % VL16)
    k.stamp(1)
    e("s_waitcnt vmcnt(0) lgkmcnt(0)")
    e("s_barrier")
    k.stamp(2)
    if kind == 'A':
        for i in range(9):
            e("ds_read_b128 %s, v7 offset:%d" % (vr(AF + 4 * i, 4), 1024 * i))
    l1 = "L_%s_k1" % name
    lj = "L_%s_kj" % name
    e("s_cmp_eq_u32 s37, 1")
    e("s_cbranch_scc1 %s" % l1)
    for kh in range(2):
        if kh == 1:
            k.lab(l1)
        def bread(i):
            bf = BF2[i & 1]
            sl = i + kh
            po = (sl >> 1) * 9216
            for t in range(4):
                e("ds_read_b128 %s, v%d offset:%d" % (vr(bf + 4 * t, 4), VB, po + (sl & 1) * 4096 + t * 1024))
            e("ds_read_b128 %s, v%d offset:%d" % (vr(bf + 16, 4), VB4, po + 8192 + (sl & 1) * 512))

        bread(0)
        for i in range(9):
            if i + 1 < 9:
                bread(i + 1)
                e("s_waitcnt lgkmcnt(5)")
            else:
                e("s_waitcnt lgkmcnt(0)")
            bf = BF2[i & 1]
            for t in range(5):
                e("v_mfma_f32_16x16x32_bf16 %s, %s, %s, %s" % (vr(ACC + 4 * t, 4), vr(bf + 4 * t, 4), vr(AF + 4 * i, 4), vr(ACC + 4 * t, 4)))
        k.stamp(4)
        e("s_barrier")
        e("s_mul_i32 s40, s36, 5120")
        e("v_add_u32 v7, s40, v%d" % VL16)
        if kh == 1:
            e("s_nop 7")
            for t in range(5):
                e("ds_write_b128 v7, %s offset:%d" % (vr(ACC + 4 * t, 4), 1024 * t))
            e("s_waitcnt lgkmcnt(0)")
            e("s_barrier")
            e("s_endpgm")
        else:
            e("s_barrier")
            for t in range(5):
                e("ds_read_b128 %s, v7 offset:%d" % (vr(BF + 4 * t, 4), 1024 * t))
            e("s_waitcnt lgkmcnt(0)")
            for t in range(5):
                a = ACC + 4 * t
                x = XRES + 2 * t
                e("v_lshlrev_b32 v8, 16, v%d" % x)
                e("v_and_b32 v9, 0xffff0000, v%d" % x)
                e("v_lshlrev_b32 v10, 16, v%d" % (x + 1))
                e("v_and_b32 v11, 0xffff0000, v%d" % (x + 1))
                for r in range(4):
                    e("v_add_f32 v%d, v%d, v%d" % (a + r, a + r, BF + 4 * t + r))
                    e("v_add_f32 v%d, v%d, v%d" % (a + r, a + r, 8 + r))
                e("v_cvt_pk_bf16_f32 v%d, v%d, v%d" % (a, a, a + 1))
                e("v_cvt_pk_bf16_f32 v%d, v%d, v%d" % (a + 1, a + 2, a + 3))
                if xdst is None:
                    e("buffer_store_dwordx2 %s, v%d, s[24:27], 0 offen offset:%d" % (vr(a, 2), VD4 if t == 4 else VD, 32 * t))
                else:
                    e("s_mov_b32 s34, %d" % (1024 * t))
                    e("buffer_store_dwordx2 %s, v%d, s[24:27], s34 offen" % (vr(a, 2), VX4 if t == 4 else VX))
            if xdst is not None:
                e("s_mov_b32 s42, 0x3f803f80")
                e("v_cmp_gt_u32 vcc, 2, v6")
                e("v_mov_b32 v8, 0")
                e("v_mov_b32 v9, 0")
                e("v_cndmask_b32 v%d, 0, v%d, vcc" % (ACC + 18, ACC + 16))
                e("v_cndmask_b32 v%d, 0, v%d, vcc" % (ACC + 19, ACC + 17))
                for t in range(5):
                    for i in range(2):
                        r = ACC + 4 * t + i + (2 if t == 4 else 0)
                        e("v_dot2_f32_bf16 v8, v%d, s42, v8" % r)
                        e("v_dot2_f32_bf16 v9, v%d, v%d, v9" % (r, r))
                e("s_nop 2")
                e("v_mov_b32 v10, v8")
                e("v_mov_b32 v11, v9")
                e("s_nop 1")
                e("v_permlane16_swap_b32 v10, v8")
                e("v_permlane16_swap_b32 v11, v9")
                e("s_nop 1")
                e("v_add_f32 v8, v8, v10")
                e("v_add_f32 v9, v9, v11")
                e("v_mov_b32 v10, v8")
                e("v_mov_b32 v11, v9")
                e("s_nop 1")
                e("v_permlane32_swap_b32 v10, v8")
                e("v_permlane32_swap_b32 v11, v9")
                e("s_nop 1")
                e("v_add_f32 v8, v8, v10")
                e("v_add_f32 v9, v9, v11")
                e("s_lshl_b32 s40, s38, 10")
                e("s_lshl_b32 s41, s30, 3")
                e("s_add_u32 s40, s40, s41")
                e("v_lshlrev_b32 v10, 6, v5")
                e("v_cmp_eq_u32 vcc, 0, v6")
                e("v_mov_b32 v11, 0x40000000")
                e("s_nop 0")
                e("v_cndmask_b32 v10, v11, v10, vcc")
                e("buffer_store_dwordx2 v[8:9], v10, s[56:59], s40 offen")
            k.stamp(5)
            if STAMPS:
                e("s_waitcnt vmcnt(0)")
            k.stamp(6)
            k.dump()
            e("s_endpgm")
    k.lab(end)
    e("s_endpgm")
    return k


def main():
    qa = gen_qkv('A')
    qb = gen_qkv('B')
    ks = [
        gen_prep(),
        gen_stub("qkv_a1_kernel", qa, [(58, X0F), (59, KVACC)]),
        gen_stub("qkv_a2_kernel", qa, [(58, X2), (59, KVACC + KVACC_L)]),
        qa,
        gen_stub("qkv_b1_kernel", qb, [(58, X1), (59, 0)]),
        gen_stub("qkv_b2_kernel", qb, [(58, X3), (59, 0)]),
        qb,
        gen_out("out_a1_kernel", 'A', X0F, X1, 0),
        gen_attn("attn_kernel"),
        gen_out("out_b1_kernel", 'B', X1, X2, 0),
        gen_out("out_a2_kernel", 'A', X2, X3, 1),
        gen_out("out_b2_kernel", 'B', X3, None, 1),
    ]
    byname = {k.name: k for k in ks}
    order = ["prep_kernel", "qkv_a1_kernel", "out_a1_kernel", "qkv_b1_kernel", "attn_kernel", "out_b1_kernel",
             "qkv_a2_kernel", "out_a2_kernel", "qkv_b2_kernel", "attn_kernel", "out_b2_kernel"]
    hdr = open("cdna_kernels/%s.s.ref" % NAME).read().split("; Override launch geometry")[0]
    out = hdr
    for n in order:
        k = byname[n]
        out += "; @launch kernel=%s grid=(%d,%d,%d) block=(%d,%d,%d) lds=%d\n" % ((n,) + k.grid + k.block + (k.lds,))
    out += '.amdgcn_target "amdgcn-amd-amdhsa--gfx950"\n.text\n'
    for k in ks:
        if getattr(k, "nodesc", False):
            out += ".p2align 8\n%s:\n" % k.name + "\n".join(k.L) + "\n"
        else:
            out += k.text()
    out += '.section .rodata,"a"\n'
    for k in ks:
        if not getattr(k, "nodesc", False):
            out += ".p2align 6\n" + k.desc()
    dst = "cdna_kernels/%s.s" % NAME
    if STAMPS:
        dst = OUTFILE
    open(dst, "w").write(out)


if __name__ == "__main__":
    if len(sys.argv) > 1 and sys.argv[1] == "stamps":
        STAMPS = True
        for a in sys.argv[2:]:
            if a.startswith("out="):
                OUTFILE = a[4:]
            elif a.startswith("wg="):
                STAMP_WG = int(a[3:])
            elif "=" in a:
                EXP[a.split("=")[0]] = a.split("=")[1]
            else:
                EXP[a] = True
    main()
```

```python
import sys, re

NAME = "interleave_layers__linear_attn_block__mha_block__prompt"

XB = 2048 * 576 * 2
X1 = 0x0
X2 = 0x240000
X3 = 0x480000
PQ = 0x6C0000
OB = 0x900000
QPI = 0xB40000
QHEAD = 64 * 1152
KVI = 0xF40000
KVHEAD = 64 * 2432
KVACC = 0x1400000
KVACC_L = 32 * 19 * 32 * 4
WFA = 0x2000000
WFB = 0x2240000
WF_SZ = 8 * 36 * 8 * 1024
STATS = 0x1440000
WOA = 0x1840000
WOB = 0x1900000
WO_SZ = 8 * 81 * 1024
CS = 0x1480000
CS_MAT = 3 * 16 * 512
PQF = 0x1A00000
PQF_SZ = 64 * 32 * 1152
X0F = 0x1D00000
FLAGS = KVACC + 2 * KVACC_L
WS_SIZE = 0x2500000

LOG2E = 1.4426950408889634
QSCALE = (18.0 ** -0.5) * LOG2E

import struct
def f2u(x):
    return struct.unpack("<I", struct.pack("<f", x))[0]


EXP = {}
STAMPS = False
STAMP_WG = 0


class Kern:
    def __init__(self, name, vgpr, lds, grid, block):
        self.name = name
        self.vgpr = vgpr
        self.lds = lds
        self.grid = grid
        self.block = block
        self.L = []
        self.uid = 0

    def e(self, s):
        m = re.search(r"offset:(\d+)", s)
        if m:
            o = int(m.group(1))
            if s.startswith("buffer_"):
                assert o <= 4095, s
            elif s.startswith("ds_"):
                assert o <= 65535, s
        self.L.append("    " + s)

    def lab(self, s):
        self.L.append(s + ":")

    def newlab(self, p):
        self.uid += 1
        return "L_%s_%s%d" % (self.name, p, self.uid)

    def srd(self, d, b, off, size):
        if off:
            self.e("s_add_u32 s%d, s%d, 0x%x" % (d, b, off))
            self.e("s_addc_u32 s%d, s%d, 0" % (d + 1, b + 1))
        else:
            self.e("s_mov_b32 s%d, s%d" % (d, b))
            self.e("s_mov_b32 s%d, s%d" % (d + 1, b + 1))
        self.e("s_mov_b32 s%d, 0x%x" % (d + 2, size))
        self.e("s_mov_b32 s%d, 0x00020000" % (d + 3))

    def rstamp(self, i):
        if STAMPS:
            self.e("s_memrealtime s[%d:%d]" % (64 + 2 * i, 65 + 2 * i))
            self.nst = max(getattr(self, "nst", 0), i + 1)

    def stamp(self, i):
        if STAMPS:
            self.e("s_memtime s[%d:%d]" % (64 + 2 * i, 65 + 2 * i))
            self.nst = max(getattr(self, "nst", 0), i + 1)

    def dump(self):
        if STAMPS and getattr(self, "nst", 0):
            l = self.newlab("nd")
            self.e("s_cmp_lg_u32 s2, %d" % STAMP_WG)
            self.e("s_cbranch_scc1 %s" % l)
            self.e("s_load_dwordx2 s[60:61], s[0:1], %d" % KA_DBG)
            self.e("s_waitcnt lgkmcnt(0)")
            self.e("s_mov_b32 s62, 256")
            self.e("s_mov_b32 s63, 0x00020000")
            self.e("v_lshrrev_b32 v1, 6, v0")
            if EXP.get("hiwaves"):
                self.e("v_xor_b32 v1, 4, v1")
            self.e("v_lshlrev_b32 v1, 6, v1")
            if getattr(self, "endlab", None):
                self.e("v_add_u32 v1, 128, v1")
            for i in range(self.nst):
                self.e("v_mov_b32 v2, s%d" % (64 + 2 * i))
                self.e("buffer_store_dword v2, v1, s[60:63], 0 offen offset:%d" % (4 * i))
            self.lab(l)

    def text(self):
        if getattr(self, "stub", None):
            return (".globl %s\n.p2align 8\n.type %s,@function\n%s:\n" % (self.name, self.name, self.name)
                    + "".join("    %s\n" % x for x in self.stub))
        out = []
        out.append(".globl %s" % self.name)
        out.append(".p2align 8")
        out.append(".type %s,@function" % self.name)
        out.append("%s:" % self.name)
        out += self.L
        return "\n".join(out) + "\n"

    def desc(self):
        v = (self.vgpr + 3) // 4 * 4
        return """.amdhsa_kernel %s
  .amdhsa_next_free_vgpr %d
  .amdhsa_next_free_sgpr 96
  .amdhsa_accum_offset %d
  .amdhsa_group_segment_fixed_size 0
  .amdhsa_kernarg_size 72
  .amdhsa_user_sgpr_count 2
  .amdhsa_user_sgpr_kernarg_segment_ptr 1
  .amdhsa_system_sgpr_workgroup_id_x 1
.end_amdhsa_kernel
""" % (self.name, v, v)


def vr(a, n):
    return "v[%d:%d]" % (a, a + n - 1)


KA_AX, KA_AWQKV, KA_AWO, KA_BX, KA_BWQKV, KA_BWO, KA_OUT, KA_DBG, KA_WS = [8 * i for i in range(9)]


OUTFILE = 'st.s'
PB_ROW = 288
OB_ROW = 160


def gen_prep():
    NQ = 96
    NO = 96
    NZ = 0
    NX = 64
    GL = 64 * PB_ROW
    k = Kern("prep_kernel", 96, 3 * GL + 4096, (NQ + NO + NZ + NX, 1, 1), (768, 1, 1))
    e = k.e
    e("s_cmp_ge_u32 s2, %d" % (NQ + NO + NZ + NX))
    e("s_cbranch_scc1 L_prep_end")
    e("s_load_dwordx2 s[4:5], s[0:1], %d" % KA_WS)
    e("s_load_dwordx2 s[20:21], s[0:1], %d" % KA_AWQKV)
    e("s_load_dwordx2 s[22:23], s[0:1], %d" % KA_BWQKV)
    e("s_load_dwordx2 s[24:25], s[0:1], %d" % KA_AWO)
    e("s_load_dwordx2 s[26:27], s[0:1], %d" % KA_BWO)
    e("s_load_dwordx2 s[44:45], s[0:1], %d" % KA_AX)
    k.stamp(0)
    e("v_and_b32 v3, 63, v0")
    e("v_lshrrev_b32 v4, 6, v0")
    e("v_and_b32 v0, 255, v0")
    e("v_readfirstlane_b32 s35, v4")
    e("v_lshlrev_b32 v5, 4, v3")
    e("v_lshrrev_b32 v6, 4, v3")
    e("v_lshrrev_b32 v8, 2, v3")
    e("v_and_b32 v8, 3, v8")
    e("v_and_b32 v9, 3, v3")
    e("s_lshr_b32 s46, s35, 2")
    e("s_and_b32 s35, s35, 3")
    e("s_mul_i32 s47, s46, %d" % GL)
    e("s_waitcnt lgkmcnt(0)")
    k.srd(16, 4, 0, WS_SIZE)
    e("s_cmp_ge_u32 s2, %d" % (NQ + NO))
    e("s_cbranch_scc1 L_prep_misc")
    e("s_cmp_ge_u32 s2, %d" % NQ)
    e("s_cbranch_scc1 L_prep_wo")
    e("s_cmp_ge_u32 s2, 48")
    e("s_cselect_b32 s30, 1, 0")
    e("s_mul_i32 s31, s30, 48")
    e("s_sub_u32 s31, s2, s31")
    e("s_mul_i32 s32, s31, 21846")
    e("s_lshr_b32 s32, s32, 16")
    e("s_mul_i32 s33, s32, 3")
    e("s_sub_u32 s33, s31, s33")
    e("s_mul_i32 s48, s33, 6")
    e("s_lshl_b32 s49, s46, 1")
    e("s_add_u32 s48, s48, s49")
    e("s_cmp_eq_u32 s30, 0")
    e("s_cselect_b32 s8, s20, s22")
    e("s_cselect_b32 s9, s21, s23")
    e("s_mov_b32 s10, %d" % (576 * 3456))
    e("s_mov_b32 s11, 0x00020000")
    e("s_cselect_b32 s36, 1, 0")
    e("s_mul_i32 s37, s32, 72")
    e("s_mul_i32 s38, s48, %d" % (32 * 3456))
    e("s_add_u32 s37, s37, s38")
    for i in range(7):
        e("v_add_u32 v10, %d, v0" % (256 * i))
        if i == 6:
            e("v_min_u32 v10, 1727, v10")
        e("v_mul_u32_u24 v11, 9710, v10")
        e("v_lshrrev_b32 v11, 18, v11")
        e("v_mul_u32_u24 v12, 27, v11")
        e("v_sub_u32 v12, v10, v12")
        e("v_mul_u32_u24 v13, 57, v12")
        e("v_lshrrev_b32 v13, 9, v13")
        e("v_mul_u32_u24 v14, 9, v13")
        e("v_sub_u32 v14, v12, v14")
        e("v_add_u32 v13, s36, v13")
        e("v_cmp_eq_u32 vcc, 3, v13")
        e("s_nop 1")
        e("v_cndmask_b32_e64 v13, v13, 0, vcc")
        e("v_mul_u32_u24 v13, 1152, v13")
        e("v_mul_u32_u24 v15, 3456, v11")
        e("v_add3_u32 v15, v15, v13, s37")
        e("v_lshl_add_u32 v15, v14, 3, v15")
        e("buffer_load_dwordx2 %s, v15, s[8:11], 0 offen" % vr(32 + 2 * i, 2))
        e("v_mul_u32_u24 v15, %d, v11" % PB_ROW)
        e("v_lshl_add_u32 v15, v12, 3, v15")
        e("v_add_u32 v%d, s47, v15" % (20 + i))
    e("v_mov_b32 v28, 0")
    e("v_mov_b32 v29, 0")
    for i in range(2):
        e("v_add_u32 v10, %d, v0" % (256 * i))
        e("v_min_u32 v10, 319, v10")
        e("v_mul_u32_u24 v11, 13108, v10")
        e("v_lshrrev_b32 v11, 16, v11")
        e("v_mul_u32_u24 v12, 5, v11")
        e("v_sub_u32 v12, v10, v12")
        e("v_mul_u32_u24 v11, %d, v11" % PB_ROW)
        e("v_lshl_add_u32 v11, v12, 3, v11")
        e("v_add_u32 v11, s47, v11")
        e("ds_write_b64 v11, v[28:29] offset:216")
    e("v_lshrrev_b32 v7, 1, v6")
    e("v_lshl_add_u32 v7, v7, 3, v8")
    e("v_mul_u32_u24 v7, %d, v7" % PB_ROW)
    e("v_and_b32 v10, 1, v6")
    e("v_lshl_add_u32 v7, v10, 5, v7")
    e("v_lshl_add_u32 v7, v9, 3, v7")
    e("s_lshl_b32 s38, s35, 6")
    e("s_add_u32 s38, s38, s47")
    e("v_add_u32 v7, s38, v7")
    for i in range(4):
        e("v_mov_b32 v%d, 0x3f803f80" % (28 + i))
    e("s_mul_i32 s38, s32, 36")
    e("s_lshl_b32 s39, s48, 1")
    e("s_add_u32 s38, s38, s39")
    e("s_lshl_b32 s38, s38, 2")
    e("s_add_u32 s38, s38, s35")
    e("s_lshl_b32 s38, s38, 10")
    e("s_mul_i32 s39, s30, 0x%x" % (WFB - WFA))
    e("s_add_u32 s38, s38, s39")
    e("s_add_u32 s38, s38, 0x%x" % WFA)
    e("s_lshl_b32 s39, s33, 4")
    e("s_add_u32 s39, s39, s32")
    e("s_lshl_b32 s39, s39, 9")
    e("s_mul_i32 s40, s30, %d" % CS_MAT)
    e("s_add_u32 s39, s39, s40")
    e("s_add_u32 s39, s39, 0x%x" % CS)
    e("s_lshl_b32 s40, s46, 9")
    e("s_lshl_b32 s41, s35, 7")
    e("s_add_u32 s40, s40, s41")
    e("s_add_u32 s40, s40, %d" % (3 * GL))
    e("v_and_b32 v10, 31, v3")
    e("v_lshl_add_u32 v10, v10, 2, s40")
    k.stamp(1)
    e("s_waitcnt vmcnt(0)")
    k.stamp(2)
    for i in range(7):
        e("ds_write_b64 v%d, %s" % (20 + i, vr(32 + 2 * i, 2)))
    e("s_waitcnt lgkmcnt(0)")
    e("s_barrier")
    k.stamp(3)
    for ks in range(4):
        for hf in range(2):
            e("ds_read_b64_tr_b16 %s, v7 offset:%d" % (vr(32 + 4 * ks + 2 * hf, 2), (16 * ks + 4 * hf) * PB_ROW))
    e("s_waitcnt lgkmcnt(0)")
    for ks in range(4):
        c = "0" if ks == 0 else vr(48, 16)
        e("v_mfma_f32_32x32x16_bf16 %s, v[28:31], %s, %s" % (vr(48, 16), vr(32 + 4 * ks, 4), c))
        e("s_add_u32 s40, s38, %d" % (4096 * ks))
        e("buffer_store_dwordx4 %s, v5, s[16:19], s40 offen" % vr(32 + 4 * ks, 4))
    e("s_nop 7")
    e("s_nop 7")
    e("ds_write_b32 v10, v48")
    e("s_waitcnt lgkmcnt(0)")
    e("s_barrier")
    e("s_cmp_lg_u32 s46, 0")
    e("s_cbranch_scc1 L_prep_end")
    e("s_cmp_ge_u32 s35, 2")
    e("s_cbranch_scc1 L_prep_end")
    e("v_lshlrev_b32 v10, 2, v0")
    for i in range(3):
        e("ds_read_b32 v%d, v10 offset:%d" % (12 + i, 3 * GL + 512 * i))
    e("s_waitcnt lgkmcnt(0)")
    e("v_add_f32 v12, v12, v13")
    e("v_add_f32 v12, v12, v14")
    e("buffer_store_dword v12, v10, s[16:19], s39 offen")
    k.stamp(4)
    if STAMPS:
        e("s_waitcnt vmcnt(0)")
    k.stamp(5)
    k.dump()
    e("s_endpgm")
    k.lab("L_prep_wo")
    e("s_sub_u32 s29, s2, %d" % NQ)
    e("s_mul_i32 s29, s29, 3")
    e("s_add_u32 s29, s29, s46")
    e("s_cmp_ge_u32 s29, 144")
    e("s_cselect_b32 s30, 1, 0")
    e("s_mul_i32 s31, s30, 144")
    e("s_sub_u32 s31, s29, s31")
    e("s_mul_i32 s32, s31, 3641")
    e("s_lshr_b32 s32, s32, 16")
    e("s_mul_i32 s33, s32, 18")
    e("s_sub_u32 s33, s31, s33")
    e("s_cmp_eq_u32 s30, 0")
    e("s_cselect_b32 s8, s24, s26")
    e("s_cselect_b32 s9, s25, s27")
    e("s_mov_b32 s10, %d" % (576 * 1152))
    e("s_mov_b32 s11, 0x00020000")
    e("s_mul_i32 s37, s32, 144")
    e("s_mul_i32 s38, s33, %d" % (32 * 1152))
    e("s_add_u32 s37, s37, s38")
    for i in range(2):
        e("v_add_u32 v10, %d, v0" % (256 * i))
        if i == 1:
            e("v_min_u32 v10, 287, v10")
        e("v_mul_u32_u24 v11, 7282, v10")
        e("v_lshrrev_b32 v11, 16, v11")
        e("v_mul_u32_u24 v12, 9, v11")
        e("v_sub_u32 v12, v10, v12")
        e("v_mul_u32_u24 v15, 1152, v11")
        e("v_lshl_add_u32 v15, v12, 4, v15")
        e("v_add_u32 v15, s37, v15")
        e("buffer_load_dwordx4 %s, v15, s[8:11], 0 offen" % vr(32 + 4 * i, 4))
        e("v_mul_u32_u24 v15, %d, v11" % OB_ROW)
        e("v_lshrrev_b32 v13, 3, v11")
        e("v_lshl_add_u32 v15, v13, 7, v15")
        e("v_lshl_add_u32 v15, v12, 4, v15")
        e("v_add_u32 v%d, s47, v15" % (20 + i))
    e("s_waitcnt vmcnt(0)")
    for i in range(2):
        e("ds_write_b128 v%d, %s" % (20 + i, vr(32 + 4 * i, 4)))
    e("v_mul_u32_u24 v7, %d, v6" % (8 * OB_ROW + 128))
    e("v_mul_u32_u24 v10, %d, v8" % OB_ROW)
    e("v_lshl_add_u32 v10, v9, 3, v10")
    e("s_lshl_b32 s38, s35, 5")
    e("s_add_u32 s38, s38, s47")
    e("v_add3_u32 v7, v7, v10, s38")
    e("s_mul_i32 s38, s32, %d" % (81 * 1024))
    e("s_lshr_b32 s39, s33, 1")
    e("s_mul_i32 s39, s39, 9216")
    e("s_add_u32 s38, s38, s39")
    e("s_mul_i32 s39, s30, 0x%x" % (WOB - WOA))
    e("s_add_u32 s38, s38, s39")
    e("s_add_u32 s38, s38, 0x%x" % WOA)
    e("s_and_b32 s39, s33, 1")
    e("s_lshl_b32 s40, s39, 9")
    e("s_add_u32 s40, s40, s38")
    e("s_add_u32 s40, s40, 8192")
    e("s_lshl_b32 s39, s39, 12")
    e("s_add_u32 s38, s38, s39")
    e("s_lshl_b32 s39, s35, 10")
    e("s_add_u32 s38, s38, s39")
    e("v_and_b32 v10, 15, v3")
    e("v_lshlrev_b32 v11, 4, v10")
    e("v_lshl_add_u32 v11, v6, 7, v11")
    e("v_cmp_gt_u32 vcc, 8, v10")
    e("v_mov_b32 v12, 0x40000000")
    e("s_nop 0")
    e("v_cndmask_b32 v11, v12, v11, vcc")
    e("s_waitcnt lgkmcnt(0)")
    e("s_barrier")
    for q in range(2):
        for hf in range(2):
            e("ds_read_b64_tr_b16 %s, v7 offset:%d" % (vr(32 + 4 * q + 2 * hf, 2), hf * 4 * OB_ROW + 128 * q))
    e("s_waitcnt lgkmcnt(0)")
    e("buffer_store_dwordx4 %s, v5, s[16:19], s38 offen" % vr(32, 4))
    e("s_cmp_lg_u32 s35, 0")
    e("s_cbranch_scc1 L_prep_end")
    e("buffer_store_dwordx4 %s, v11, s[16:19], s40 offen" % vr(36, 4))
    e("s_endpgm")
    k.lab("L_prep_misc")
    e("s_sub_u32 s3, s2, %d" % (NQ + NO))
    e("s_cmp_eq_u32 s46, 0")
    e("s_cbranch_scc1 L_prep_x0")
    e("s_cmp_eq_u32 s46, 2")
    e("s_cbranch_scc1 L_prep_end")
    e("s_cmp_ge_u32 s3, 40")
    e("s_cbranch_scc1 L_prep_end")
    e("s_lshl_b32 s3, s3, 12")
    e("v_lshlrev_b32 v1, 4, v0")
    e("v_add_u32 v1, s3, v1")
    e("v_add_u32 v1, 0x%x, v1" % KVACC)
    for i in range(4):
        e("v_mov_b32 v%d, 0" % (4 + i))
    e("buffer_store_dwordx4 v[4:7], v1, s[16:19], 0 offen")
    e("s_endpgm")
    k.lab("L_prep_x0")

    e("s_mov_b32 s8, s44")
    e("s_mov_b32 s9, s45")
    e("s_mov_b32 s10, %d" % XB)
    e("s_mov_b32 s11, 0x00020000")
    e("s_mul_i32 s7, s3, 36864")
    e("s_add_u32 s6, s7, 0x%x" % X0F)
    e("s_mov_b32 s42, 0x3f803f80")
    e("v_and_b32 v1, 31, v3")
    e("v_lshrrev_b32 v2, 5, v3")
    e("s_lshl_b32 s28, s35, 1")
    e("v_add_u32 v2, s28, v2")
    e("v_mul_u32_u24 v4, 1152, v1")
    e("v_mul_u32_u24 v7, 144, v2")
    e("v_add_u32 v4, v4, v7")
    for i in range(9):
        e("buffer_load_dwordx4 %s, v4, s[8:11], s7 offen offset:%d" % (vr(32 + 4 * i, 4), 16 * i))
    e("v_mul_u32_u24 v7, 4608, v2")
    e("v_lshl_add_u32 v7, v1, 4, v7")
    e("v_lshlrev_b32 v10, 6, v1")
    e("v_lshl_add_u32 v10, v2, 3, v10")
    e("s_lshl_b32 s28, s3, 11")
    e("s_add_u32 s28, s28, 0x%x" % STATS)
    e("v_mov_b32 v8, 0")
    e("v_mov_b32 v9, 0")
    e("s_waitcnt vmcnt(0)")
    for i in range(9):
        e("s_add_u32 s7, s6, %d" % (512 * i))
        e("buffer_store_dwordx4 %s, v7, s[16:19], s7 offen" % vr(32 + 4 * i, 4))
        for q in range(4):
            e("v_dot2_f32_bf16 v8, v%d, s42, v8" % (32 + 4 * i + q))
            e("v_dot2_f32_bf16 v9, v%d, v%d, v9" % (32 + 4 * i + q, 32 + 4 * i + q))
    e("s_nop 2")
    e("buffer_store_dwordx2 v[8:9], v10, s[16:19], s28 offen")
    k.stamp(4)
    if STAMPS:
        e("s_waitcnt vmcnt(0)")
    k.stamp(5)
    k.dump()
    k.lab("L_prep_end")
    e("s_endpgm")
    return k


NB = 8
BSLOT = 16 * 1024
QCS_BASE = NB * BSLOT
QST_BASE = QCS_BASE + 1536
QPQ_BASE = 32768
QKV_LDS = QST_BASE + 1024
T_STRIDE = 272


def emit_phi(e, x, t1, t2):
    e("v_min_f32 v%d, 0, v%d" % (t1, x))
    e("v_mul_f32 v%d, s40, v%d" % (t1, t1))
    e("v_exp_f32 v%d, v%d" % (t1, t1))
    e("v_max_f32 v%d, 0, v%d" % (t2, x))
    e("v_add_f32 v%d, s41, v%d" % (t2, t2))
    e("v_add_f32 v%d, v%d, v%d" % (x, t1, t2))


def gen_stub(name, body, params):
    k = Kern(name, body.vgpr, body.lds, body.grid, body.block)
    k.stub = ["s_mov_b32 s%d, 0x%x" % (r, v) for r, v in params] + ["s_branch %s" % body.name]
    return k


def gen_qkv(kind, k=None, params=None):
    fused = k is not None
    name = "L_qkv%s" % kind
    if not fused:
        k = Kern(name, 184, QKV_LDS, (256, 1, 1), (512, 1, 1))
        k.nodesc = True
    else:
        k.vgpr = max(k.vgpr, 184)
        k.lds = max(k.lds, QKV_LDS)
    SC = " sc1" if fused else ""
    e = k.e
    ACC = 16
    FR = [48, 72]
    VL16 = 100
    VA = [101, 102]
    VB = [103, 104]
    CSR = 105
    VCS = 106
    STR = 112
    EA = 128
    if fused:
        end = k.endlab
        for r, v in params:
            e("s_mov_b32 s%d, 0x%x" % (r, v))
    else:
        end = "%s_end" % name
        e("s_cmp_ge_u32 s2, 256")
        e("s_cbranch_scc1 %s" % end)
        e("s_load_dwordx2 s[4:5], s[0:1], %d" % KA_WS)
        k.stamp(0)
    e("s_and_b32 s28, s2, 7")
    e("s_lshr_b32 s29, s2, 3")
    e("s_lshr_b32 s31, s28, 1")
    e("s_lshl_b32 s31, s31, 2")
    e("s_lshr_b32 s32, s29, 3")
    e("s_add_u32 s31, s31, s32")
    e("s_and_b32 s30, s28, 1")
    e("s_lshl_b32 s30, s30, 3")
    e("s_and_b32 s32, s29, 7")
    e("s_add_u32 s30, s30, s32")
    e("v_and_b32 v3, 63, v0")
    e("v_lshrrev_b32 v4, 6, v0")
    e("v_and_b32 v5, 31, v3")
    e("v_readfirstlane_b32 s35, v4")
    e("v_lshrrev_b32 v6, 5, v3")
    e("v_lshlrev_b32 v%d, 4, v3" % VL16)
    e("s_lshl_b32 s52, s35, 10")
    e("s_mul_i32 s53, s30, %d" % (36 * 4096))
    e("s_add_u32 s53, s53, s52")
    e("s_lshl_b32 s50, s31, 2")
    e("s_lshr_b32 s51, s35, 1")
    e("s_add_u32 s50, s50, s51")
    e("s_mul_i32 s50, s50, 36864")
    e("s_and_b32 s51, s35, 1")
    e("s_lshl_b32 s51, s51, 10")
    e("s_add_u32 s50, s50, s51")
    e("s_and_b32 s36, s35, 3")
    e("s_lshr_b32 s37, s35, 2")
    for i in range(32):
        e("v_mov_b32 v%d, 0" % (ACC + i))
    e("s_lshl_b32 s34, s37, 12")
    e("v_add_u32 v%d, s34, v%d" % (VA[0], VL16))
    e("v_add_u32 v%d, 0x10000, v%d" % (VA[1], VA[0]))
    e("s_lshl_b32 s34, s36, 10")
    e("s_add_u32 s34, s34, 8192")
    e("v_add_u32 v%d, s34, v%d" % (VB[0], VL16))
    e("v_add_u32 v%d, 0x10000, v%d" % (VB[1], VB[0]))
    e("s_mov_b32 s40, 0x%x" % f2u(LOG2E))
    e("s_mov_b32 s41, 0x%x" % f2u(1e-6))
    e("s_waitcnt lgkmcnt(0)")
    k.stamp(2)
    e("s_add_u32 s8, s4, s58")
    e("s_addc_u32 s9, s5, 0")
    e("s_mov_b32 s10, %d" % XB)
    e("s_mov_b32 s11, 0x00020000")
    k.srd(12, 4, WFA if kind == 'A' else WFB, WF_SZ)
    k.srd(16, 4, 0, WS_SIZE)
    issued = []

    def group_ops(g):
        slot = (g % NB) * BSLOT
        return [(g, ["s_add_u32 m0, s52, %d" % slot, "s_nop 0",
                     "buffer_load_dwordx4 v%d, s[8:11], s50 offen%s lds" % (VL16, SC),
                     "s_add_u32 s50, s50, 2048"]),
                (g, ["s_add_u32 m0, s52, %d" % (slot + 8192), "s_nop 0",
                     "buffer_load_dwordx4 v%d, s[12:15], s53 offen lds" % VL16,
                     "s_add_u32 s53, s53, 8192"])]

    def emit_op(op):
        tag, lines = op
        for x in lines:
            e(x)
        if tag is not None:
            issued.append(tag)

    def wait_for(stage):
        last = max(i for i, t in enumerate(issued) if t <= stage)
        return len(issued) - 1 - last

    if fused:
        sk = k.newlab("nb")
        e("s_cmp_lg_u32 s35, 4")
        e("s_cbranch_scc1 %s" % sk)
        e("s_sub_u32 s34, s53, 4096")
        for g in range(NB):
            e("s_mov_b32 m0, %d" % ((g % NB) * BSLOT + 8192))
            e("s_nop 0")
            e("buffer_load_dwordx4 v%d, s[12:15], s34 offen lds" % VL16)
            e("s_add_u32 s34, s34, 8192")
        k.lab(sk)
        sk = k.newlab("nb")
        e("s_cmp_eq_u32 s35, 0")
        e("s_cselect_b32 s34, %d, 0" % (NB * 8192))
        e("s_add_u32 s53, s53, s34")
        e("s_cmp_eq_u32 s35, 0")
        e("s_cbranch_scc1 %s" % sk)
        for g in range(NB):
            emit_op(group_ops(g)[1])
        k.lab(sk)
    else:
        for g in range(3):
            for op in group_ops(g):
                emit_op(op)
    k.mem = []
    if kind == 'A':
        epi_A_pre(k, EA)
    else:
        epi_B_pre(k, EA)
    e("v_min_u32 v7, 383, v0")
    e("v_lshrrev_b32 v8, 7, v7")
    e("v_and_b32 v7, 127, v7")
    e("v_lshlrev_b32 v7, 2, v7")
    e("v_lshl_add_u32 v%d, v8, 13, v7" % VCS)
    e("v_lshl_add_u32 v107, v8, 9, v7")
    e("s_lshl_b32 s54, s30, 9")
    e("s_add_u32 s54, s54, 0x%x" % (CS + (0 if kind == 'A' else CS_MAT)))
    k.stamp(13)
    if fused:
        sk = k.newlab("nw")
        lp = k.newlab("poll")
        e("s_cmp_lg_u32 s35, 0")
        e("s_cbranch_scc1 %s" % sk)
        e("s_lshl_b32 s38, s31, 7")
        e("v_and_b32 v9, 15, v3")
        e("v_lshlrev_b32 v9, 2, v9")
        e("s_mov_b32 s39, 0")
        k.lab(lp)
        e("buffer_load_dword v8, v9, s[20:23], s38 offen sc1")
        e("s_waitcnt vmcnt(0)")
        e("v_cmp_ne_u32 vcc, 1, v8")
        e("s_add_u32 s39, s39, 1")
        e("s_nop 3")
        e("s_cbranch_vccz %s" % sk)
        e("s_sleep 1")
        e("s_cmp_lt_u32 s39, 0x400000")
        e("s_cbranch_scc1 %s" % lp)
        k.lab(sk)
        e("s_barrier")
        k.stamp(12)
        for g in range(NB):
            emit_op(group_ops(g)[0])
    e("s_waitcnt vmcnt(%d) lgkmcnt(0)" % wait_for(0))
    k.stamp(1)
    e("s_barrier")
    k.stamp(3)

    def fread_ops(s):
        f = FR[s & 1]
        slot = s % NB
        hi, so = slot >> 2, (slot & 3) * BSLOT
        ops = []
        for ks in range(2):
            ops.append((None, ["ds_read_b128 %s, v%d offset:%d" % (vr(f + 16 + 4 * ks, 4), VB[hi], so + ks * 4096)]))
            for a in range(2):
                ops.append((None, ["ds_read_b128 %s, v%d offset:%d" % (vr(f + 8 * a + 4 * ks, 4), VA[hi], so + a * 2048 + ks * 1024)]))
        return ops

    for op in fread_ops(0):
        emit_op(op)
    nextg = NB if fused else 3
    for s in range(18):
        fill = []
        if s + 1 <= 17:
            e("s_waitcnt vmcnt(%d) lgkmcnt(0)" % wait_for(s + 1))
            e("s_barrier")
            fill += fread_ops(s + 1)
            for _ in range(int(EXP.get("ng", 2))):
                if nextg <= 17 and nextg <= s + NB:
                    fill += group_ops(nextg)
                    nextg += 1
            if s == 10:
                fill.append((99, ["buffer_load_dword v%d, v%d, s[16:19], s54 offen" % (CSR, VCS)]))
        else:
            e("s_waitcnt lgkmcnt(0)")
        if s == 11:
            ns = k.newlab("ns")
            e("s_cmp_lt_u32 s35, 6")
            e("s_cbranch_scc1 %s" % ns)
            e("s_lshl_b32 s34, s31, 13")
            e("s_add_u32 s34, s34, 0x%x" % (STATS - 6 * 4096))
            e("v_lshlrev_b32 v7, 6, v0")
            for i in range(4):
                e("buffer_load_dwordx4 %s, v7, s[16:19], s34 offen offset:%d%s" % (vr(STR + 4 * i, 4), 16 * i, SC))
            k.lab(ns)
        if s % 3 == 0 and s > 0:
            k.stamp(6 + s // 3)
        f = FR[s & 1]
        nfill = -(-len(fill) // 4)
        for ks in range(2):
            for a in range(2):
                acc = ACC + 16 * a
                e("v_mfma_f32_32x32x16_bf16 %s, %s, %s, %s" % (vr(acc, 16), vr(f + 16 + 4 * ks, 4), vr(f + 8 * a + 4 * ks, 4), vr(acc, 16)))
                for _ in range(nfill):
                    if fill:
                        emit_op(fill.pop(0))
    k.stamp(4)
    e("s_waitcnt vmcnt(0)")
    e("ds_write_b32 v107, v%d offset:0" % CSR if False else "v_add_u32 v7, %d, v107" % QCS_BASE)
    e("ds_write_b32 v7, v%d" % CSR)
    ns = k.newlab("ns")
    e("s_cmp_lt_u32 s35, 6")
    e("s_cbranch_scc1 %s" % ns)
    for i in range(1, 8):
        e("v_add_f32 v%d, v%d, v%d" % (STR, STR, STR + 2 * i))
        e("v_add_f32 v%d, v%d, v%d" % (STR + 1, STR + 1, STR + 2 * i + 1))
    e("v_mul_f32 v%d, 0x%x, v%d" % (STR, f2u(1.0 / 576), STR))
    e("v_mul_f32 v%d, 0x%x, v%d" % (STR + 1, f2u(1.0 / 576), STR + 1))
    e("v_fma_f32 v%d, -v%d, v%d, v%d" % (STR + 1, STR, STR, STR + 1))
    e("v_max_f32 v%d, 0, v%d" % (STR + 1, STR + 1))
    e("v_add_f32 v%d, 0x%x, v%d" % (STR + 1, f2u(1e-5), STR + 1))
    e("v_rsq_f32 v%d, v%d" % (STR + 1, STR + 1))
    e("s_nop 0")
    e("v_mul_f32 v%d, v%d, v%d" % (STR, STR, STR + 1))
    e("v_lshlrev_b32 v7, 2, v0")
    e("v_add_u32 v7, %d, v7" % (QST_BASE - 6 * 256))
    e("ds_write_b32 v7, v%d" % (STR + 1))
    e("ds_write_b32 v7, v%d offset:512" % STR)
    k.lab(ns)
    e("s_waitcnt lgkmcnt(0)")
    e("s_barrier")
    RS = 100
    e("s_lshl_b32 s34, s37, 8")
    e("s_add_u32 s34, s34, %d" % QST_BASE)
    e("v_lshl_add_u32 v7, v5, 2, s34")
    for a in range(2):
        e("ds_read_b32 v%d, v7 offset:%d" % (RS + 2 * a, a * 128))
        e("ds_read_b32 v%d, v7 offset:%d" % (RS + 4 + 2 * a, 512 + a * 128))
    e("s_lshl_b32 s34, s36, 7")
    e("s_add_u32 s34, s34, %d" % QCS_BASE)
    e("v_lshl_add_u32 v8, v6, 4, s34")
    for q in range(4):
        for p in range(3):
            e("ds_read_b128 %s, v8 offset:%d" % (vr(52 + 16 * p + 4 * q, 4), 512 * p + 32 * q))
    e("s_waitcnt lgkmcnt(0)")
    for i in range(4):
        e("v_mov_b32 v%d, v%d" % (RS + 2 * i + 1, RS + 2 * i))
    for r in range(0, 16, 2):
        e("v_pk_add_f32 %s, %s, %s" % (vr(52 + r, 2), vr(52 + r, 2), vr(68 + r, 2)))
        e("v_pk_add_f32 %s, %s, %s" % (vr(52 + r, 2), vr(52 + r, 2), vr(84 + r, 2)))
    for a in range(2):
        for r in range(0, 16, 2):
            acc = ACC + 16 * a + r
            e("v_pk_mul_f32 v[10:11], %s, %s" % (vr(RS + 4 + 2 * a, 2), vr(52 + r, 2)))
            e("v_pk_fma_f32 %s, %s, %s, v[10:11] neg_lo:[0,0,1] neg_hi:[0,0,1]" % (vr(acc, 2), vr(acc, 2), vr(RS + 2 * a, 2)))
    if kind == 'A':
        epi_A(k, ACC, EA)
    else:
        epi_B(k, ACC, EA)
    k.stamp(5)
    if STAMPS:
        e("s_waitcnt vmcnt(0)")
    k.stamp(6)
    k.dump()
    k.lab(end)
    e("s_endpgm")
    return k


def sprinkle(k, n):
    for _ in range(n):
        if k.mem:
            for x in k.mem.pop(0):
                k.e(x)


def per_wave(k, fn, nw=8):
    e = k.e
    labs = [k.newlab("w") for _ in range(nw)]
    lj = k.newlab("wj")
    for w in range(1, nw):
        e("s_cmp_eq_u32 s35, %d" % w)
        e("s_cbranch_scc1 %s" % labs[w])
    for w in range(nw):
        k.lab(labs[w])
        fn(w)
        if w < nw - 1:
            e("s_branch %s" % lj)
    k.lab(lj)


def half_ops(k, lo, hi):
    for x in lo:
        k.e(x)
    k.e("s_mov_b32 exec_lo, 0")
    for x in hi:
        k.e(x)
    k.e("s_mov_b32 exec_lo, -1")


DUMMY = 98304


KV_ROW = 168


def epi_A_pre(k, EA):
    e = k.e
    e("v_mul_u32_u24 v12, %d, v5" % KV_ROW)
    e("v_lshlrev_b32 v13, 4, v5")
    e("v_lshlrev_b32 v14, 2, v5")

    def var(w):
        ct, rh = w & 3, w >> 2
        ops = [[], []]
        for q in range(4):
            for pr in range(2):
                i = 2 * q + pr
                for h in range(2):
                    vc = 32 * ct + 8 * q + 4 * h + 2 * pr
                    for a in range(2):
                        if vc < 72:
                            c = (64 * rh + 32 * a) * KV_ROW + (vc // 18) * 40 + (vc % 18) * 2
                            t = 12
                        elif vc < 108:
                            hl, d = (vc - 72) // 18, (vc - 72) % 18
                            sb = QPQ_BASE + (4 * hl + 2 * rh + a) * 2560
                            if d < 16:
                                c, t = sb + (d >> 3) * 512 + (d & 7) * 2, 13
                            else:
                                c, t = sb + 1024, 14
                        else:
                            c, t = DUMMY, 12
                        ops[h].append("v_add_u32 v%d, %d, v%d" % (EA + 2 * i + a, c, t))
                    isv = 36 <= vc < 72
                    ops[h].append("v_mov_b32 v%d, 0x%x" % (EA + 32 + i, 0 if isv else f2u(1.0)))
                    ops[h].append("v_mov_b32 v%d, 0x%x" % (EA + 44 + i, 0xff800000 if isv else 0))
        half_ops(k, ops[0], ops[1])
        if w < 2:
            e("v_lshrrev_b32 v7, 2, v3")
            e("v_and_b32 v7, 3, v7")
            e("v_lshl_add_u32 v7, v6, 3, v7")
            e("v_mul_u32_u24 v7, %d, v7" % KV_ROW)
            e("v_bfe_u32 v8, v3, 4, 1")
            e("v_lshl_add_u32 v7, v8, 5, v7")
            e("v_and_b32 v8, 3, v3")
            e("v_lshl_add_u32 v7, v8, 3, v7")
            e("v_add_u32 v%d, %d, v7" % (EA + 40, 40 * w))
            e("v_add_u32 v%d, %d, v7" % (EA + 41, 80 + 40 * w))
            e("v_cmp_gt_u32 vcc, 18, v5")
            e("v_lshlrev_b32 v10, 2, v5")
            e("v_lshl_add_u32 v10, v6, 9, v10")
            e("v_mov_b32 v9, 0x40000000")
            e("v_cndmask_b32 v%d, v9, v10, vcc" % (EA + 42))
            e("v_cmp_eq_u32 vcc, 0, v6")
            e("s_nop 1")
            e("v_cndmask_b32 v%d, v9, v%d, vcc" % (EA + 43, EA + 42))
        else:
            for i in range(4):
                e("v_mov_b32 v%d, 0x40000000" % (EA + 40 + i))

    per_wave(k, var)


def epi_A(k, ACC, EA):
    e = k.e
    e("v_mov_b32 v12, s40")
    e("v_mov_b32 v13, s40")
    e("v_mov_b32 v14, s41")
    e("v_mov_b32 v15, s41")
    for q in range(4):
        for pr in range(2):
            i = 2 * q + pr
            for a in range(2):
                acc = ACC + 16 * a + 4 * q + 2 * pr
                e("v_pk_mul_f32 v[10:11], %s, v[12:13]" % vr(acc, 2))
                e("v_min_f32 v10, 0, v10")
                e("v_min_f32 v11, 0, v11")
                e("v_exp_f32 v10, v10")
                e("v_exp_f32 v11, v11")
                e("v_max_f32 v%d, v%d, v%d" % (acc, acc, EA + 44 + i))
                e("v_max_f32 v%d, v%d, v%d" % (acc + 1, acc + 1, EA + 44 + i))
                e("v_pk_add_f32 v[10:11], v[10:11], v[14:15]")
                e("v_fmac_f32 v%d, v10, v%d" % (acc, EA + 32 + i))
                e("v_fmac_f32 v%d, v11, v%d" % (acc + 1, EA + 32 + i))
                e("v_cvt_pk_bf16_f32 v%d, v%d, v%d" % (acc, acc, acc + 1))
                e("ds_write_b32 v%d, v%d" % (EA + 2 * i + a, acc))
    e("v_lshrrev_b32 v10, 2, v0")
    e("v_mul_u32_u24 v10, %d, v10" % KV_ROW)
    e("v_and_b32 v11, 3, v0")
    e("v_mul_u32_u24 v11, 40, v11")
    e("v_add_u32 v10, v10, v11")
    e("v_mov_b32 v11, 0x3f80")
    e("ds_write_b32 v10, v11 offset:36")
    e("s_waitcnt lgkmcnt(0)")
    e("s_barrier")
    e("s_lshl_b32 s39, s31, 2")
    e("s_add_u32 s39, s39, s36")
    e("s_lshl_b32 s39, s39, 5")
    e("s_lshl_b32 s43, s30, 1")
    e("s_add_u32 s39, s39, s43")
    e("s_add_u32 s39, s39, s37")
    e("s_mul_i32 s39, s39, 1152")
    e("s_add_u32 s39, s39, 0x%x" % PQF)
    e("s_mul_i32 s38, s35, 2560")
    e("s_add_u32 s38, s38, %d" % QPQ_BASE)
    e("v_lshlrev_b32 v8, 4, v3")
    e("v_add_u32 v9, s38, v8")
    e("ds_read_b128 v[100:103], v9")
    e("ds_read_b128 v[104:107], v9 offset:1024")
    e("v_mov_b32 v10, 0x40000000")
    e("v_cmp_gt_u32 vcc, 8, v3")
    e("s_nop 1")
    e("v_cndmask_b32 v11, v10, v8, vcc")
    e("s_waitcnt lgkmcnt(0)")
    e("buffer_store_dwordx4 v[100:103], v8, s[16:19], s39 offen")
    e("buffer_store_dwordx4 v[104:107], v11, s[16:19], s39 offen offset:1024")
    lj = k.newlab("ej")
    e("s_cmp_ge_u32 s35, 2")
    e("s_cbranch_scc1 %s" % lj)
    for st in range(8):
        for hf in range(2):
            o = (16 * st + 4 * hf) * KV_ROW
            e("ds_read_b64_tr_b16 %s, v%d offset:%d" % (vr(16 + 8 * st + 2 * hf, 2), EA + 40, o))
            e("ds_read_b64_tr_b16 %s, v%d offset:%d" % (vr(20 + 8 * st + 2 * hf, 2), EA + 41, o))
    e("s_lshl_b32 s39, s30, 1")
    e("s_add_u32 s39, s39, s35")
    e("s_mul_i32 s39, s39, 2432")
    e("s_add_u32 s39, s39, s59")
    e("s_waitcnt lgkmcnt(0)")
    for st in range(8):
        c = "0" if st == 0 else vr(80, 16)
        e("v_mfma_f32_32x32x16_bf16 %s, %s, %s, %s" % (vr(80, 16), vr(20 + 8 * st, 4), vr(16 + 8 * st, 4), c))
    e("s_nop 7")
    e("s_nop 7")
    for r in range(11):
        ee = (r & 3) + 8 * (r >> 2)
        e("buffer_atomic_add_f32 v%d, v%d, s[16:19], s39 offen offset:%d" % (80 + r, EA + 42 if r < 8 else EA + 43, 128 * ee))
    k.lab(lj)


IMG_S = 2560
IMG_K = 8 * IMG_S
IMG_V = 16 * IMG_S
V_ROW = 72


def epi_B_pre(k, EA):
    e = k.e
    e("v_lshlrev_b32 v12, 4, v5")
    e("v_lshlrev_b32 v13, 2, v5")
    e("v_mul_u32_u24 v14, %d, v5" % V_ROW)

    def var(w):
        ct, rh = w & 3, w >> 2
        ops = [[], []]
        for q in range(4):
            for pr in range(2):
                i = 2 * q + pr
                for h in range(2):
                    vc = 32 * ct + 8 * q + 4 * h + 2 * pr
                    sc = 1.0
                    if vc >= 108:
                        c, t = DUMMY, 13
                    else:
                        seg, cc = vc // 36, vc % 36
                        hl, d = cc // 18, cc % 18
                        sb = (4 * hl + 2 * rh) * IMG_S
                        if seg == 2:
                            c, t = IMG_V + sb + d * 2, 14
                        else:
                            base = sb + (IMG_K if seg == 1 else 0)
                            if d < 16:
                                c, t = base + (d >> 3) * 512 + (d & 7) * 2, 12
                            else:
                                c, t = base + 1024, 13
                            if seg == 0:
                                sc = QSCALE
                    ops[h].append("v_add_u32 v%d, %d, v%d" % (EA + i, c, t))
                    ops[h].append("v_mov_b32 v%d, 0x%x" % (EA + 16 + 2 * i, f2u(sc)))
                    ops[h].append("v_mov_b32 v%d, 0x%x" % (EA + 17 + 2 * i, f2u(sc)))
        half_ops(k, ops[0], ops[1])

    per_wave(k, var)
    e("v_lshrrev_b32 v7, 2, v3")
    e("v_and_b32 v7, 3, v7")
    e("v_lshl_add_u32 v7, v6, 2, v7")
    e("v_mul_u32_u24 v7, %d, v7" % V_ROW)
    e("v_bfe_u32 v8, v3, 4, 1")
    e("v_lshl_add_u32 v7, v8, 5, v7")
    e("v_and_b32 v9, 3, v3")
    e("v_lshl_add_u32 v7, v9, 3, v7")
    e("s_mul_i32 s38, s35, %d" % IMG_S)
    e("s_add_u32 s38, s38, %d" % IMG_V)
    e("v_add_u32 v%d, s38, v7" % (EA + 8))
    e("v_mul_u32_u24 v7, 320, v6")
    e("v_lshl_add_u32 v7, v5, 4, v7")
    e("v_add_u32 v7, 1152, v7")
    e("v_cmp_gt_u32 vcc, 19, v5")
    e("v_mov_b32 v10, 0x40000000")
    e("s_nop 0")
    e("v_cndmask_b32 v%d, v10, v7, vcc" % (EA + 9))
    e("v_lshlrev_b32 v8, 4, v3")
    e("v_cmp_gt_u32 vcc, 8, v3")
    e("s_nop 1")
    e("v_cndmask_b32 v%d, v10, v8, vcc" % (EA + 10))


def epi_B(k, ACC, EA):
    e = k.e
    for q in range(4):
        for pr in range(2):
            i = 2 * q + pr
            for a in range(2):
                acc = ACC + 16 * a + 4 * q + 2 * pr
                e("v_pk_mul_f32 %s, %s, %s" % (vr(acc, 2), vr(acc, 2), vr(EA + 16 + 2 * i, 2)))
                e("v_cvt_pk_bf16_f32 v%d, v%d, v%d" % (acc, acc, acc + 1))
                e("ds_write_b32 v%d, v%d offset:%d" % (EA + i, acc, IMG_S * a))
    e("s_mul_i32 s38, s35, %d" % IMG_S)
    e("v_mul_u32_u24 v7, %d, v5" % V_ROW)
    e("v_add_u32 v7, s38, v7")
    e("v_mov_b32 v8, 0x3f80")
    e("ds_write_b32 v7, v8 offset:%d" % (IMG_V + 36))
    e("s_waitcnt lgkmcnt(0)")
    e("s_barrier")
    e("v_lshlrev_b32 v8, 4, v3")
    e("v_add_u32 v9, s38, v8")
    e("ds_read_b128 v[48:51], v9")
    e("ds_read_b128 v[52:55], v9 offset:1024")
    e("ds_read_b128 v[56:59], v9 offset:%d" % IMG_K)
    e("ds_read_b128 v[60:63], v9 offset:%d" % (IMG_K + 1024))
    for ab in range(2):
        for hf in range(2):
            e("ds_read_b64_tr_b16 %s, v%d offset:%d" % (vr(64 + 4 * ab + 2 * hf, 2), EA + 8, (16 * ab + 8 * hf) * V_ROW))
    e("s_lshl_b32 s43, s30, 1")
    e("s_add_u32 s43, s43, s37")
    e("s_lshl_b32 s38, s31, 2")
    e("s_add_u32 s38, s38, s36")
    e("s_mul_i32 s44, s43, %d" % QHEAD)
    e("s_mul_i32 s39, s38, 1152")
    e("s_add_u32 s44, s44, s39")
    e("s_add_u32 s44, s44, 0x%x" % QPI)
    e("s_mul_i32 s46, s43, %d" % KVHEAD)
    e("s_mul_i32 s39, s38, 2432")
    e("s_add_u32 s46, s46, s39")
    e("s_add_u32 s46, s46, 0x%x" % KVI)
    e("s_waitcnt lgkmcnt(0)")
    e("buffer_store_dwordx4 v[48:51], v8, s[16:19], s44 offen")
    e("buffer_store_dwordx4 v[52:55], v%d, s[16:19], s44 offen offset:1024" % (EA + 10))
    e("buffer_store_dwordx4 v[56:59], v8, s[16:19], s46 offen")
    e("buffer_store_dwordx4 v[60:63], v%d, s[16:19], s46 offen offset:1024" % (EA + 10))
    e("buffer_store_dwordx4 v[64:67], v%d, s[16:19], s46 offen" % (EA + 9))
    e("buffer_store_dwordx4 v[68:71], v%d, s[16:19], s46 offen offset:640" % (EA + 9))


def gen_attn(name):
    k = Kern(name, 120, KVHEAD, (256, 1, 1), (1024, 1, 1))
    e = k.e
    SA, SB = 16, 32
    P = 48
    O = 56
    CM = 72
    Q1, Q2 = 88, 92
    K1, K2 = 96, 100
    VVa, VVb = 104, 108
    vK1, vK2, vV = 112, 113, 114
    vK1b, vK2b, vVb = 115, 116, 117
    SEGS = [2, 6, 24]
    HALF = 32 * 2432
    end = "L_%s_end" % name
    e("s_cmp_ge_u32 s2, 256")
    e("s_cbranch_scc1 %s" % end)
    e("s_load_dwordx2 s[4:5], s[0:1], %d" % KA_WS)
    k.stamp(0)
    k.rstamp(4)
    e("s_and_b32 s30, s2, 7")
    e("s_lshr_b32 s31, s2, 3")
    e("s_and_b32 s32, s31, 3")
    e("s_lshl_b32 s30, s30, 2")
    e("s_add_u32 s30, s30, s32")
    e("s_lshr_b32 s31, s31, 2")
    e("v_lshrrev_b32 v4, 6, v0")
    e("v_and_b32 v3, 63, v0")
    e("v_readfirstlane_b32 s35, v4")
    e("s_mul_i32 s33, s30, %d" % KVHEAD)
    e("s_lshr_b32 s40, s35, 3")
    e("s_and_b32 s41, s35, 7")
    e("s_mul_i32 s42, s40, %d" % HALF)
    e("v_lshlrev_b32 v1, 4, v3")
    e("s_lshl_b32 s36, s31, 3")
    e("s_add_u32 s36, s36, s41")
    e("s_mul_i32 s37, s36, 1152")
    e("s_mul_i32 s38, s30, %d" % QHEAD)
    e("s_add_u32 s37, s37, s38")
    e("s_add_u32 s37, s37, 0x%x" % QPI)
    e("v_and_b32 v5, 31, v3")
    e("v_lshrrev_b32 v6, 5, v3")
    e("v_lshlrev_b32 v7, 2, v5")
    e("s_lshl_b32 s39, s41, 10")
    e("s_add_u32 s39, s39, s42")
    e("s_add_u32 s43, s42, %d" % (75 * 1024))
    e("s_waitcnt lgkmcnt(0)")
    e("s_add_u32 s8, s4, s33")
    e("s_addc_u32 s9, s5, 0")
    e("s_add_u32 s8, s8, 0x%x" % KVI)
    e("s_addc_u32 s9, s9, 0")
    e("s_mov_b32 s10, %d" % KVHEAD)
    e("s_mov_b32 s11, 0x00020000")
    k.srd(16, 4, 0, WS_SIZE)
    e("buffer_load_dwordx4 %s, v1, s[16:19], s37 offen" % vr(Q1, 4))
    e("buffer_load_dword v%d, v7, s[16:19], s37 offen offset:1024" % Q2)
    def dma(i):
        if i == 9:
            e("s_min_u32 s39, s39, s43")
        e("s_mov_b32 m0, s39")
        e("s_nop 0")
        e("buffer_load_dwordx4 v1, s[8:11], s39 offen lds")
        e("s_add_u32 s39, s39, 8192")

    dma(0)
    dma(1)
    e("v_add_u32 v%d, s42, v1" % vK1b)
    e("v_add_u32 v8, 1024, v7")
    e("v_add_u32 v%d, s42, v8" % vK2b)
    e("v_min_u32 v8, 18, v5")
    e("v_lshlrev_b32 v8, 4, v8")
    e("v_mul_u32_u24 v9, 320, v6")
    e("v_add3_u32 v8, v8, v9, s42")
    e("v_add_u32 v%d, 1152, v8" % vVb)
    for i in range(1, 4):
        e("v_mov_b32 v%d, 0" % (Q2 + i))
        e("v_mov_b32 v%d, 0" % (K2 + i))
    e("v_cmp_eq_u32 vcc, 0, v6")
    e("s_waitcnt vmcnt(2)")
    e("v_cndmask_b32 v%d, 0, v%d, vcc" % (Q2, Q2))
    e("s_mov_b32 s50, 0")

    def seg_wait(c):
        ntiles = sum(SEGS[:c + 1]) + 1
        need = min(-(-(ntiles * 2432) // 1024), 76)
        n = min((need - 1) // 8 + 1, 10)
        issued = 2 + min(sum(SEGS[:c]), 8)
        assert issued >= n
        return issued - n

    e("s_waitcnt vmcnt(%d)" % seg_wait(0))
    e("s_barrier")
    k.stamp(1)
    e("ds_read_b128 %s, v%d" % (vr(K1, 4), vK1b))
    e("ds_read_b32 v%d, v%d" % (K2, vK2b))
    e("s_waitcnt lgkmcnt(0)")
    e("v_mfma_f32_32x32x16_bf16 %s, %s, %s, 0" % (vr(SA, 16), vr(K1, 4), vr(Q1, 4)))
    e("v_mfma_f32_32x32x16_bf16 %s, %s, %s, %s" % (vr(SA, 16), vr(K2, 4), vr(Q2, 4), vr(SA, 16)))
    e("s_nop 7")
    e("s_nop 7")
    e("v_max3_f32 v10, v%d, v%d, v%d" % (SA, SA + 1, SA + 2))
    for i in range(3, 15, 2):
        e("v_max3_f32 v10, v10, v%d, v%d" % (SA + i, SA + i + 1))
    e("v_max_f32 v10, v10, v%d" % (SA + 15))
    run = "L_%s_run" % name
    k.lab(run)
    e("v_mov_b32 v11, v10")
    e("s_nop 1")
    e("v_permlane32_swap_b32 v11, v10")
    e("s_nop 1")
    e("v_max_f32 v10, v10, v11")
    e("v_sub_f32 v10, 0, v10")
    for i in range(16):
        e("v_mov_b32 v%d, v10" % (CM + i))
        e("v_mov_b32 v%d, 0" % (O + i))
    e("v_mov_b32 v%d, v%d" % (vK1, vK1b))
    e("v_mov_b32 v%d, v%d" % (vK2, vK2b))
    e("v_mov_b32 v%d, v%d" % (vV, vVb))
    e("ds_read_b128 %s, v%d" % (vr(K1, 4), vK1))
    e("ds_read_b32 v%d, v%d" % (K2, vK2))
    e("s_waitcnt lgkmcnt(0)")
    e("v_mfma_f32_32x32x16_bf16 %s, %s, %s, %s" % (vr(SA, 16), vr(K1, 4), vr(Q1, 4), vr(CM, 16)))
    e("v_mfma_f32_32x32x16_bf16 %s, %s, %s, %s" % (vr(SA, 16), vr(K2, 4), vr(Q2, 4), vr(SA, 16)))
    e("ds_read_b128 %s, v%d offset:2432" % (vr(K1, 4), vK1))
    e("ds_read_b32 v%d, v%d offset:2432" % (K2, vK2))
    e("ds_read_b128 %s, v%d" % (vr(VVa, 4), vV))
    e("ds_read_b128 %s, v%d offset:640" % (vr(VVb, 4), vV))
    e("s_nop 7")

    def body(t, Sc, Sn):
        o = 2432 * (t % 16)
        e("s_waitcnt lgkmcnt(2)")
        e("v_mfma_f32_32x32x16_bf16 %s, %s, %s, %s" % (vr(Sn, 16), vr(K1, 4), vr(Q1, 4), vr(CM, 16)))
        e("v_mfma_f32_32x32x16_bf16 %s, %s, %s, %s" % (vr(Sn, 16), vr(K2, 4), vr(Q2, 4), vr(Sn, 16)))
        e("ds_read_b128 %s, v%d offset:%d" % (vr(K1, 4), vK1, o + 2 * 2432))
        e("ds_read_b32 v%d, v%d offset:%d" % (K2, vK2, o + 2 * 2432))
        for i in range(16):
            e("v_exp_f32 v%d, v%d" % (Sc + i, Sc + i))
            if i & 1 and i >= 3:
                e("v_cvt_pk_bf16_f32 v%d, v%d, v%d" % (P + (i - 3) // 2, Sc + i - 3, Sc + i - 2))
        e("v_cvt_pk_bf16_f32 v%d, v%d, v%d" % (P + 7, Sc + 14, Sc + 15))
        e("s_waitcnt lgkmcnt(2)")
        e("v_mfma_f32_32x32x16_bf16 %s, %s, %s, %s" % (vr(O, 16), vr(VVa, 4), vr(P, 4), vr(O, 16)))
        e("v_mfma_f32_32x32x16_bf16 %s, %s, %s, %s" % (vr(O, 16), vr(VVb, 4), vr(P + 4, 4), vr(O, 16)))
        e("ds_read_b128 %s, v%d offset:%d" % (vr(VVa, 4), vV, o + 2432))
        e("ds_read_b128 %s, v%d offset:%d" % (vr(VVb, 4), vV, o + 2432 + 640))

    t = 0
    for c, nts in enumerate(SEGS):
        if c > 0:
            sk = k.newlab("sk")
            e("s_cmp_lg_u32 s50, 0")
            e("s_cbranch_scc1 %s" % sk)
            e("s_waitcnt vmcnt(%d)" % seg_wait(c))
            e("s_barrier")
            k.lab(sk)
        for i in range(nts):
            if t == 16:
                e("v_add_u32 v%d, %d, v%d" % (vK1, 16 * 2432, vK1))
                e("v_add_u32 v%d, %d, v%d" % (vK2, 16 * 2432, vK2))
                e("v_add_u32 v%d, %d, v%d" % (vV, 16 * 2432, vV))
            if t < 8:
                sk = k.newlab("sd")
                e("s_cmp_lg_u32 s50, 0")
                e("s_cbranch_scc1 %s" % sk)
                dma(t + 2)
                k.lab(sk)
            if t & 1:
                body(t, SB, SA)
            else:
                body(t, SA, SB)
            t += 1
    e("s_waitcnt lgkmcnt(0)")
    k.stamp(2)
    e("s_nop 7")
    e("s_nop 7")
    e("v_max3_f32 v10, |v%d|, |v%d|, |v%d|" % (O, O + 1, O + 2))
    for i in range(3, 11, 2):
        e("v_max3_f32 v10, v10, |v%d|, |v%d|" % (O + i, O + i + 1))
    e("v_max_f32 v10, v10, |v%d|" % (O + 11))
    e("v_add_f32 v11, v%d, v%d" % (O, O + 1))
    for i in range(2, 12):
        e("v_add_f32 v11, v11, v%d" % (O + i))
    e("v_mov_b32 v12, 0x%x" % f2u(2.0 ** (-100 if EXP.get("forcefb") else 100)))
    e("v_cmp_nlt_f32 vcc, v10, v12")
    e("v_cmp_u_f32 s[52:53], v11, v11")
    e("s_nop 3")
    e("s_or_b64 vcc, vcc, s[52:53]")
    e("s_cmp_lg_u32 s50, 0")
    fin = "L_%s_fin" % name
    e("s_cbranch_scc1 %s" % fin)
    e("s_cbranch_vccz %s" % fin)
    e("s_mov_b32 s50, 1")
    e("v_mov_b32 v%d, v%d" % (vK1, vK1b))
    e("v_mov_b32 v%d, v%d" % (vK2, vK2b))
    e("v_mov_b32 v10, 0xff800000")
    e("s_mov_b32 s51, 0")
    fl = "L_%s_fl" % name
    k.lab(fl)
    e("ds_read_b128 %s, v%d" % (vr(K1, 4), vK1))
    e("ds_read_b32 v%d, v%d" % (K2, vK2))
    e("s_waitcnt lgkmcnt(0)")
    e("v_mfma_f32_32x32x16_bf16 %s, %s, %s, 0" % (vr(SA, 16), vr(K1, 4), vr(Q1, 4)))
    e("v_mfma_f32_32x32x16_bf16 %s, %s, %s, %s" % (vr(SA, 16), vr(K2, 4), vr(Q2, 4), vr(SA, 16)))
    e("s_nop 7")
    e("s_nop 7")
    for i in range(0, 16, 2):
        e("v_max3_f32 v10, v10, v%d, v%d" % (SA + i, SA + i + 1))
    e("v_add_u32 v%d, 2432, v%d" % (vK1, vK1))
    e("v_add_u32 v%d, 2432, v%d" % (vK2, vK2))
    e("s_add_u32 s51, s51, 1")
    e("s_cmp_lt_u32 s51, 32")
    e("s_cbranch_scc1 %s" % fl)
    e("s_branch %s" % run)
    k.lab(fin)
    e("s_barrier")
    e("s_mul_i32 s37, s41, 4096")
    e("v_add_u32 v1, s37, v1")
    e("s_cmp_eq_u32 s40, 0")
    lo = "L_%s_lo" % name
    e("s_cbranch_scc1 %s" % lo)
    e("v_mov_b32 v%d, v%d" % (O + 10, CM))
    for i in range(3):
        e("ds_write_b128 v1, %s offset:%d" % (vr(O + 4 * i, 4), 1024 * i))
    e("s_waitcnt lgkmcnt(0)")
    e("s_barrier")
    e("s_endpgm")
    k.lab(lo)
    e("s_barrier")
    for i in range(3):
        e("ds_read_b128 %s, v1 offset:%d" % (vr(SA + 4 * i, 4), 1024 * i))
    e("s_waitcnt lgkmcnt(0)")
    e("v_min_f32 v10, v%d, v%d" % (CM, SA + 10))
    e("v_sub_f32 v11, v10, v%d" % CM)
    e("v_sub_f32 v12, v10, v%d" % (SA + 10))
    e("v_exp_f32 v11, v11")
    e("v_exp_f32 v12, v12")
    e("s_nop 0")
    for i in list(range(10)) + [11]:
        e("v_mul_f32 v%d, v11, v%d" % (O + i, O + i))
        e("v_fmac_f32 v%d, v12, v%d" % (O + i, SA + i))
    e("v_rcp_f32 v10, v%d" % (O + 11))
    e("s_nop 0")
    for i in range(10):
        e("v_mul_f32 v%d, v10, v%d" % (O + i, O + i))
    for i in range(5):
        e("v_cvt_pk_bf16_f32 v%d, v%d, v%d" % (O + i, O + 2 * i, O + 2 * i + 1))
    e("s_lshl_b32 s37, s36, 1")
    e("v_lshrrev_b32 v12, 4, v5")
    e("v_add_u32 v12, s37, v12")
    e("v_mul_u32_u24 v12, 18432, v12")
    e("v_and_b32 v13, 15, v5")
    e("v_lshl_add_u32 v12, v13, 4, v12")
    e("v_add_u32 v12, 0x%x, v12" % OB)
    e("s_mul_i32 s37, s30, 18")
    e("v_lshlrev_b32 v13, 2, v6")
    e("v_add_u32 v13, s37, v13")
    e("v_cmp_eq_u32 vcc, 0, v6")
    for i, dd in enumerate([0, 2, 8, 10, 16]):
        e("v_add_u32 v14, %d, v13" % dd)
        e("v_lshrrev_b32 v15, 3, v14")
        e("v_and_b32 v14, 7, v14")
        e("v_lshl_add_u32 v15, v15, 8, v12")
        e("v_lshl_add_u32 v15, v14, 1, v15")
        if dd == 16:
            e("v_mov_b32 v14, 0x40000000")
            e("v_cndmask_b32 v15, v14, v15, vcc")
        e("buffer_store_dword v%d, v15, s[16:19], 0 offen" % (O + i))
    k.stamp(3)
    k.rstamp(5)
    k.dump()
    k.lab(end)
    e("s_endpgm")
    return k


def gen_out(name, kind, xsrc, xdst, layer, fused=False, fid=0):
    OA_BASE = 81 * 1024
    lds = OA_BASE + (72 * 1024 if kind == 'A' else 0)
    k = Kern(name, 216 if kind == 'A' else 136, lds, (256, 1, 1), (512, 1, 1))
    SC = " sc1" if fused else ""
    e = k.e
    ACC = 16
    XRES = 36
    AF = 48
    BF = 84
    BF2 = [84, 104]
    VL16 = 124 if kind == 'B' else 208
    VB = VL16 + 1
    VB4 = VL16 + 2
    VX = VL16 + 3
    VX4 = VL16 + 4
    VD = VL16 + 5
    VD4 = VL16 + 6
    end = "L_%s_end" % name
    e("s_cmp_ge_u32 s2, 256")
    e("s_cbranch_scc1 %s" % end)
    e("s_load_dwordx2 s[4:5], s[0:1], %d" % KA_WS)
    if xdst is None:
        e("s_load_dwordx2 s[22:23], s[0:1], %d" % KA_OUT)
    k.stamp(0)
    e("s_and_b32 s28, s2, 7")
    e("s_lshr_b32 s29, s2, 3")
    e("s_and_b32 s30, s29, 7")
    e("s_lshr_b32 s31, s29, 3")
    e("s_lshl_b32 s28, s28, 2")
    e("s_add_u32 s31, s31, s28")
    e("v_lshrrev_b32 v4, 6, v0")
    e("v_and_b32 v3, 63, v0")
    e("v_readfirstlane_b32 s35, v4")
    e("v_and_b32 v5, 15, v3")
    e("v_lshrrev_b32 v6, 4, v3")
    e("v_lshlrev_b32 v%d, 4, v3" % VL16)
    e("s_and_b32 s36, s35, 3")
    e("s_lshr_b32 s37, s35, 2")
    e("s_lshl_b32 s38, s31, 2")
    e("s_add_u32 s38, s38, s36")
    e("s_mul_i32 s39, s38, 18432")
    e("s_mul_i32 s33, s30, %d" % (81 * 1024))
    e("s_lshl_b32 s52, s35, 10")
    e("s_waitcnt lgkmcnt(0)")
    k.srd(8, 4, xsrc, XB)
    k.srd(12, 4, WOA if kind == 'A' else WOB, WO_SZ)
    if xdst is None:
        k.srd(24, 22, 0, XB)
    else:
        k.srd(24, 4, xdst, XB)
    if kind == 'A':
        k.srd(16, 4, PQF, PQF_SZ)
        k.srd(44, 4, KVACC + layer * KVACC_L, KVACC_L)
    else:
        k.srd(16, 4, OB, XB)
    k.srd(56, 4, STATS, 2048 * 64)

    if kind == 'B':
        e("s_mul_i32 s40, s37, 9216")
        e("s_add_u32 s40, s40, s39")
        for i in range(9):
            e("buffer_load_dwordx4 %s, v%d, s[16:19], s40 offen offset:%d" % (vr(AF + 4 * i, 4), VL16, (1024 * i) % 4096))
            if i % 4 == 3:
                e("s_add_u32 s40, s40, 4096")
    else:
        KVR, PQR, DD = 48, 96, 160
        e("v_and_b32 v1, 31, v3")
        e("v_lshrrev_b32 v2, 5, v3")
        e("s_mul_i32 s40, s35, %d" % (4 * 2432))
        e("v_min_u32 v8, 18, v1")
        e("v_lshlrev_b32 v8, 7, v8")
        e("v_add_u32 v9, s40, v8")
        e("v_lshl_add_u32 v8, v2, 5, v9")
        e("v_lshlrev_b32 v10, 2, v1")
        e("s_lshl_b32 s41, s31, 6")
        e("s_lshl_b32 s42, s35, 2")
        e("s_add_u32 s41, s41, s42")
        e("s_mul_i32 s55, s41, 1152")
        for hh in range(4):
            for t in range(2):
                for i in range(1, 4):
                    e("v_mov_b32 v%d, 0" % (PQR + 16 * hh + 8 * t + 4 + i))

        def s1load(hh):
            e("s_mov_b32 s34, %d" % (hh * 2432))
            e("buffer_load_dwordx4 %s, v8, s[44:47], s34 offen" % (vr(KVR + 12 * hh, 4)))
            e("buffer_load_dwordx4 %s, v8, s[44:47], s34 offen offset:16" % (vr(KVR + 12 * hh + 4, 4)))
            e("buffer_load_dwordx2 %s, v9, s[44:47], s34 offen offset:64" % (vr(KVR + 12 * hh + 8, 2)))
            for t in range(2):
                e("s_add_u32 s34, s55, %d" % (t * 32 * 1152 + hh * 1152))
                e("buffer_load_dwordx4 %s, v%d, s[16:19], s34 offen" % (vr(PQR + 16 * hh + 8 * t, 4), VL16))
                e("buffer_load_dword v%d, v10, s[16:19], s34 offen offset:1024" % (PQR + 16 * hh + 8 * t + 4))

        s1load(0)
        s1load(1)
    def wdma(lo, hi):
        for i in range(lo, hi):
            if 8 * i + 7 < 81:
                e("s_add_u32 m0, s52, %d" % (8192 * i))
                e("s_add_u32 s34, m0, s33")
            else:
                e("s_add_u32 s54, s52, %d" % (8192 * i))
                e("s_min_u32 m0, s54, %d" % (80 * 1024))
                e("s_add_u32 s34, m0, s33")
            e("buffer_load_dwordx4 v%d, s[12:15], s34 offen lds" % VL16)

    if kind == 'B':
        wdma(0, 11)
    e("s_lshr_b32 s40, s38, 1")
    e("s_mul_i32 s40, s40, 36864")
    e("s_and_b32 s41, s38, 1")
    e("s_lshl_b32 s41, s41, 8")
    e("s_add_u32 s40, s40, s41")
    e("s_mul_i32 s41, s30, 4608")
    e("s_add_u32 s40, s40, s41")
    e("v_lshrrev_b32 v7, 1, v6")
    e("v_lshlrev_b32 v7, 9, v7")
    e("v_lshl_add_u32 v7, v5, 4, v7")
    e("v_and_b32 v11, 1, v6")
    e("v_lshl_add_u32 v7, v11, 3, v7")
    e("v_add_u32 v%d, s40, v7" % VX)
    e("v_cmp_gt_u32 vcc, 2, v6")
    e("v_mov_b32 v11, 0x40000000")
    e("s_nop 0")
    e("v_cndmask_b32 v%d, v11, v%d, vcc" % (VX4, VX))
    if xdst is None:
        e("s_lshl_b32 s40, s38, 4")
        e("v_add_u32 v7, s40, v5")
        e("v_mul_u32_u24 v7, 1152, v7")
        e("v_lshl_add_u32 v7, v6, 3, v7")
        e("s_mul_i32 s40, s30, 144")
        e("v_add_u32 v%d, s40, v7" % VD)
        e("v_cndmask_b32 v%d, v11, v%d, vcc" % (VD4, VD))
    def xres():
        for t in range(5):
            e("s_mov_b32 s34, %d" % (1024 * t))
            e("buffer_load_dwordx2 %s, v%d, s[8:11], s34 offen" % (vr(XRES + 2 * t, 2), VX4 if t == 4 else VX))

    if kind == 'B':
        xres()
    e("s_mul_i32 s40, s37, %d" % (4 * 9216))
    e("v_add_u32 v%d, s40, v%d" % (VB, VL16))
    e("v_and_b32 v7, 7, v5")
    e("v_lshlrev_b32 v7, 4, v7")
    e("v_lshl_add_u32 v7, v6, 7, v7")
    e("v_add_u32 v%d, s40, v7" % VB4)
    for i in range(20):
        e("v_mov_b32 v%d, 0" % (ACC + i))
    if kind == 'A':
        e("s_mul_i32 s41, s35, 2304")
        e("s_add_u32 s41, s41, %d" % OA_BASE)
        e("v_lshrrev_b32 v11, 4, v1")
        e("v_mul_u32_u24 v11, 18432, v11")
        e("v_and_b32 v12, 15, v1")
        e("v_lshl_add_u32 v11, v12, 4, v11")
        e("v_add_u32 v11, s41, v11")
        e("s_mov_b32 s42, 0x%x" % f2u(1e-6))
        e("v_cmp_eq_u32 s[48:49], 0, v2")
        for hh in range(4):
            kv = KVR + 12 * hh
            k.stamp(7 + 2 * hh)
            e("s_waitcnt vmcnt(%d)" % [7, 7, 7, 6][hh])
            k.stamp(8 + 2 * hh)
            for i in range(5):
                e("v_cvt_pk_bf16_f32 v%d, v%d, v%d" % (kv + i, kv + 2 * i, kv + 2 * i + 1))
            for i in range(5, 8):
                e("v_mov_b32 v%d, 0" % (kv + i))
            for t in range(2):
                q2 = PQR + 16 * hh + 8 * t + 4
                e("v_cndmask_b32 v%d, 0, v%d, s[48:49]" % (q2, q2))
            e("s_nop 1")
            for t in range(2):
                q1 = PQR + 16 * hh + 8 * t
                e("v_mfma_f32_32x32x16_bf16 %s, %s, %s, 0" % (vr(DD + 16 * t, 16), vr(kv, 4), vr(q1, 4)))
                e("v_mfma_f32_32x32x16_bf16 %s, %s, %s, %s" % (vr(DD + 16 * t, 16), vr(kv + 4, 4), vr(q1 + 4, 4), vr(DD + 16 * t, 16)))
            if hh < 2:
                s1load(hh + 2)
            elif hh == 2:
                wdma(0, 6)
            else:
                wdma(6, 11)
                xres()
            lo, hi = [], []
            for i, dd in enumerate([0, 2, 8, 10, 16]):
                for h in range(2):
                    c = 18 * hh + dd + 4 * h
                    off = (c >> 3) * 256 + (c & 7) * 2
                    if not (dd == 16 and h == 1):
                        (lo if h == 0 else hi).append("v_add_u32 v%d, %d, v11" % (192 + i, off))
            half_ops(k, lo, hi)
            e("s_nop 3")
            for t in range(2):
                d = DD + 16 * t
                e("v_add_f32 v%d, s42, v%d" % (d + 12, d + 11))
            for t in range(2):
                d = DD + 16 * t
                e("v_rcp_f32 v%d, v%d" % (d + 12, d + 12))
            for t in range(2):
                d = DD + 16 * t
                e("v_mov_b32 v%d, v%d" % (d + 13, d + 12))
            for t in range(2):
                d = DD + 16 * t
                for i in range(5):
                    e("v_pk_mul_f32 %s, %s, %s" % (vr(d + 2 * i, 2), vr(d + 2 * i, 2), vr(d + 12, 2)))
                    e("v_cvt_pk_bf16_f32 v%d, v%d, v%d" % (d + 2 * i, d + 2 * i, d + 2 * i + 1))
                    if i == 4:
                        e("s_mov_b32 exec_hi, 0")
                    e("ds_write_b32 v%d, v%d offset:%d" % (192 + i, d + 2 * i, t * 36864))
                    if i == 4:
                        e("s_mov_b32 exec_hi, -1")
        e("s_mul_i32 s40, s36, 18432")
        e("s_mul_i32 s41, s37, 9216")
        e("s_add_u32 s40, s40, s41")
        e("s_add_u32 s40, s40, %d" % OA_BASE)
        e("v_add_u32 v7, s40, v%d" % VL16)
    k.stamp(1)
    e("s_waitcnt vmcnt(0) lgkmcnt(0)")
    e("s_barrier")
    k.stamp(2)
    if kind == 'A':
        for i in range(9):
            e("ds_read_b128 %s, v7 offset:%d" % (vr(AF + 4 * i, 4), 1024 * i))
    l1 = "L_%s_k1" % name
    lj = "L_%s_kj" % name
    e("s_cmp_eq_u32 s37, 1")
    e("s_cbranch_scc1 %s" % l1)
    for kh in range(2):
        if kh == 1:
            k.lab(l1)
        def bread(i):
            bf = BF2[i & 1]
            sl = i + kh
            po = (sl >> 1) * 9216
            for t in range(4):
                e("ds_read_b128 %s, v%d offset:%d" % (vr(bf + 4 * t, 4), VB, po + (sl & 1) * 4096 + t * 1024))
            e("ds_read_b128 %s, v%d offset:%d" % (vr(bf + 16, 4), VB4, po + 8192 + (sl & 1) * 512))

        bread(0)
        for i in range(9):
            if i + 1 < 9:
                bread(i + 1)
                e("s_waitcnt lgkmcnt(5)")
            else:
                e("s_waitcnt lgkmcnt(0)")
            bf = BF2[i & 1]
            for t in range(5):
                e("v_mfma_f32_16x16x32_bf16 %s, %s, %s, %s" % (vr(ACC + 4 * t, 4), vr(bf + 4 * t, 4), vr(AF + 4 * i, 4), vr(ACC + 4 * t, 4)))
        k.stamp(4)
        e("s_barrier")
        e("s_mul_i32 s40, s36, 5120")
        e("v_add_u32 v7, s40, v%d" % VL16)
        if kh == 1:
            e("s_nop 7")
            for t in range(5):
                e("ds_write_b128 v7, %s offset:%d" % (vr(ACC + 4 * t, 4), 1024 * t))
            e("s_waitcnt lgkmcnt(0)")
            e("s_barrier")
            if not fused:
                e("s_endpgm")
        else:
            e("s_barrier")
            for t in range(5):
                e("ds_read_b128 %s, v7 offset:%d" % (vr(BF + 4 * t, 4), 1024 * t))
            e("s_waitcnt lgkmcnt(0)")
            for t in range(5):
                a = ACC + 4 * t
                x = XRES + 2 * t
                e("v_lshlrev_b32 v8, 16, v%d" % x)
                e("v_and_b32 v9, 0xffff0000, v%d" % x)
                e("v_lshlrev_b32 v10, 16, v%d" % (x + 1))
                e("v_and_b32 v11, 0xffff0000, v%d" % (x + 1))
                for r in range(4):
                    e("v_add_f32 v%d, v%d, v%d" % (a + r, a + r, BF + 4 * t + r))
                    e("v_add_f32 v%d, v%d, v%d" % (a + r, a + r, 8 + r))
                e("v_cvt_pk_bf16_f32 v%d, v%d, v%d" % (a, a, a + 1))
                e("v_cvt_pk_bf16_f32 v%d, v%d, v%d" % (a + 1, a + 2, a + 3))
                if xdst is None:
                    e("buffer_store_dwordx2 %s, v%d, s[24:27], 0 offen offset:%d" % (vr(a, 2), VD4 if t == 4 else VD, 32 * t))
                else:
                    e("s_mov_b32 s34, %d" % (1024 * t))
                    e("buffer_store_dwordx2 %s, v%d, s[24:27], s34 offen%s" % (vr(a, 2), VX4 if t == 4 else VX, SC))
            if xdst is not None:
                e("s_mov_b32 s42, 0x3f803f80")
                e("v_cmp_gt_u32 vcc, 2, v6")
                e("v_mov_b32 v8, 0")
                e("v_mov_b32 v9, 0")
                e("v_cndmask_b32 v%d, 0, v%d, vcc" % (ACC + 18, ACC + 16))
                e("v_cndmask_b32 v%d, 0, v%d, vcc" % (ACC + 19, ACC + 17))
                for t in range(5):
                    for i in range(2):
                        r = ACC + 4 * t + i + (2 if t == 4 else 0)
                        e("v_dot2_f32_bf16 v8, v%d, s42, v8" % r)
                        e("v_dot2_f32_bf16 v9, v%d, v%d, v9" % (r, r))
                e("s_nop 2")
                e("v_mov_b32 v10, v8")
                e("v_mov_b32 v11, v9")
                e("s_nop 1")
                e("v_permlane16_swap_b32 v10, v8")
                e("v_permlane16_swap_b32 v11, v9")
                e("s_nop 1")
                e("v_add_f32 v8, v8, v10")
                e("v_add_f32 v9, v9, v11")
                e("v_mov_b32 v10, v8")
                e("v_mov_b32 v11, v9")
                e("s_nop 1")
                e("v_permlane32_swap_b32 v10, v8")
                e("v_permlane32_swap_b32 v11, v9")
                e("s_nop 1")
                e("v_add_f32 v8, v8, v10")
                e("v_add_f32 v9, v9, v11")
                e("s_lshl_b32 s40, s38, 10")
                e("s_lshl_b32 s41, s30, 3")
                e("s_add_u32 s40, s40, s41")
                e("v_lshlrev_b32 v10, 6, v5")
                e("v_cmp_eq_u32 vcc, 0, v6")
                e("v_mov_b32 v11, 0x40000000")
                e("s_nop 0")
                e("v_cndmask_b32 v10, v11, v10, vcc")
                e("buffer_store_dwordx2 v[8:9], v10, s[56:59], s40 offen%s" % SC)
            if fused:
                e("s_waitcnt vmcnt(0)")
                e("s_branch %s" % lj)
                continue
            k.stamp(5)
            if STAMPS:
                e("s_waitcnt vmcnt(0)")
            k.stamp(6)
            k.dump()
            e("s_endpgm")
    if fused:
        k.lab(lj)
        e("s_barrier")
        k.srd(20, 4, FLAGS + fid * 2048, 2048)
        sk = k.newlab("sig")
        e("s_cmp_lg_u32 s35, 0")
        e("s_cbranch_scc1 %s" % sk)
        e("s_lshr_b32 s40, s31, 1")
        e("s_lshl_b32 s40, s40, 7")
        e("s_and_b32 s41, s31, 1")
        e("s_lshl_b32 s41, s41, 3")
        e("s_add_u32 s41, s41, s30")
        e("s_lshl_b32 s41, s41, 2")
        e("s_add_u32 s40, s40, s41")
        e("v_mov_b32 v8, 1")
        e("v_mov_b32 v9, 0")
        e("s_mov_b64 exec, 1")
        e("buffer_store_dword v8, v9, s[20:23], s40 offen sc1")
        e("s_mov_b64 exec, -1")
        k.lab(sk)
        k.endlab = end
        return k
    k.lab(end)
    e("s_endpgm")
    return k


def main():
    qa = gen_qkv('A')
    f1 = gen_qkv('B', gen_out("f1_kernel", 'A', X0F, X1, 0, fused=True, fid=0), [(58, X1), (59, 0)])
    f2 = gen_qkv('A', gen_out("f2_kernel", 'B', X1, X2, 0, fused=True, fid=1), [(58, X2), (59, KVACC + KVACC_L)])
    f3 = gen_qkv('B', gen_out("f3_kernel", 'A', X2, X3, 1, fused=True, fid=2), [(58, X3), (59, 0)])
    ks = [
        gen_prep(),
        gen_stub("qkv_a1_kernel", qa, [(58, X0F), (59, KVACC)]),
        qa,
        f1, f2, f3,
        gen_attn("attn_kernel"),
        gen_out("out_b2_kernel", 'B', X3, None, 1),
    ]
    byname = {k.name: k for k in ks}
    order = ["prep_kernel", "qkv_a1_kernel", "f1_kernel", "attn_kernel", "f2_kernel", "f3_kernel",
             "attn_kernel", "out_b2_kernel"]
    hdr = open("cdna_kernels/%s.s.ref" % NAME).read().split("; Override launch geometry")[0]
    out = hdr
    for n in order:
        k = byname[n]
        out += "; @launch kernel=%s grid=(%d,%d,%d) block=(%d,%d,%d) lds=%d\n" % ((n,) + k.grid + k.block + (k.lds,))
    out += '.amdgcn_target "amdgcn-amd-amdhsa--gfx950"\n.text\n'
    for k in ks:
        if getattr(k, "nodesc", False):
            out += ".p2align 8\n%s:\n" % k.name + "\n".join(k.L) + "\n"
        else:
            out += k.text()
    out += '.section .rodata,"a"\n'
    for k in ks:
        if not getattr(k, "nodesc", False):
            out += ".p2align 6\n" + k.desc()
    dst = "cdna_kernels/%s.s" % NAME
    if STAMPS:
        dst = OUTFILE
    open(dst, "w").write(out)


if __name__ == "__main__":
    if len(sys.argv) > 1 and sys.argv[1] == "stamps":
        STAMPS = True
        for a in sys.argv[2:]:
            if a.startswith("out="):
                OUTFILE = a[4:]
            elif a.startswith("wg="):
                STAMP_WG = int(a[3:])
            elif "=" in a:
                EXP[a.split("=")[0]] = a.split("=")[1]
            else:
                EXP[a] = True
    main()
```

```python
import sys, re

NAME = "interleave_layers__linear_attn_block__mha_block__prompt"

XB = 2048 * 576 * 2
X1 = 0x0
X2 = 0x240000
X3 = 0x480000
PQ = 0x6C0000
OB = 0x900000
QPI = 0xB40000
QHEAD = 64 * 1152
KVI = 0xF40000
KVHEAD = 64 * 2432
KVACC = 0x1400000
KVACC_L = 32 * 19 * 32 * 4
WFA = 0x2000000
WFB = 0x2240000
WF_SZ = 8 * 36 * 8 * 1024
STATS = 0x1500000
STATV = {}
WOA = 0x1840000
WOB = 0x1900000
WO_SZ = 8 * 81 * 1024
CS = 0x1480000
CS_MAT = 3 * 16 * 512
PQF = 0x1A00000
PQF_SZ = 64 * 32 * 1152
X0F = 0x1D00000
STATV.update({X0F: STATS, X1: STATS + 0x20000, X2: STATS + 0x40000, X3: STATS + 0x60000})
FLAGS = KVACC + 2 * KVACC_L
WS_SIZE = 0x2500000

LOG2E = 1.4426950408889634
QSCALE = (18.0 ** -0.5) * LOG2E

import struct
def f2u(x):
    return struct.unpack("<I", struct.pack("<f", x))[0]


EXP = {}
STAMPS = False
STAMP_WG = 0


class Kern:
    def __init__(self, name, vgpr, lds, grid, block):
        self.name = name
        self.vgpr = vgpr
        self.lds = lds
        self.grid = grid
        self.block = block
        self.L = []
        self.uid = 0

    def e(self, s):
        m = re.search(r"offset:(\d+)", s)
        if m:
            o = int(m.group(1))
            if s.startswith("buffer_"):
                assert o <= 4095, s
            elif s.startswith("ds_"):
                assert o <= 65535, s
        self.L.append("    " + s)

    def lab(self, s):
        self.L.append(s + ":")

    def newlab(self, p):
        self.uid += 1
        return "L_%s_%s%d" % (self.name, p, self.uid)

    def srd(self, d, b, off, size):
        if off:
            self.e("s_add_u32 s%d, s%d, 0x%x" % (d, b, off))
            self.e("s_addc_u32 s%d, s%d, 0" % (d + 1, b + 1))
        else:
            self.e("s_mov_b32 s%d, s%d" % (d, b))
            self.e("s_mov_b32 s%d, s%d" % (d + 1, b + 1))
        self.e("s_mov_b32 s%d, 0x%x" % (d + 2, size))
        self.e("s_mov_b32 s%d, 0x00020000" % (d + 3))

    def rstamp(self, i):
        if STAMPS:
            self.e("s_memrealtime s[%d:%d]" % (64 + 2 * i, 65 + 2 * i))
            self.nst = max(getattr(self, "nst", 0), i + 1)

    def stamp(self, i):
        if STAMPS:
            self.e("s_memtime s[%d:%d]" % (64 + 2 * i, 65 + 2 * i))
            self.nst = max(getattr(self, "nst", 0), i + 1)

    def dump(self):
        if STAMPS and getattr(self, "nst", 0):
            l = self.newlab("nd")
            self.e("s_cmp_lg_u32 s2, %d" % STAMP_WG)
            self.e("s_cbranch_scc1 %s" % l)
            self.e("s_load_dwordx2 s[60:61], s[0:1], %d" % KA_DBG)
            self.e("s_waitcnt lgkmcnt(0)")
            self.e("s_mov_b32 s62, 256")
            self.e("s_mov_b32 s63, 0x00020000")
            self.e("v_lshrrev_b32 v1, 6, v0")
            if EXP.get("hiwaves"):
                self.e("v_xor_b32 v1, 4, v1")
            self.e("v_lshlrev_b32 v1, 6, v1")
            if getattr(self, "endlab", None):
                self.e("v_add_u32 v1, 128, v1")
            for i in range(self.nst):
                self.e("v_mov_b32 v2, s%d" % (64 + 2 * i))
                self.e("buffer_store_dword v2, v1, s[60:63], 0 offen offset:%d" % (4 * i))
            self.lab(l)

    def text(self):
        if getattr(self, "stub", None):
            return (".globl %s\n.p2align 8\n.type %s,@function\n%s:\n" % (self.name, self.name, self.name)
                    + "".join("    %s\n" % x for x in self.stub))
        out = []
        out.append(".globl %s" % self.name)
        out.append(".p2align 8")
        out.append(".type %s,@function" % self.name)
        out.append("%s:" % self.name)
        out += self.L
        return "\n".join(out) + "\n"

    def desc(self):
        v = (self.vgpr + 3) // 4 * 4
        return """.amdhsa_kernel %s
  .amdhsa_next_free_vgpr %d
  .amdhsa_next_free_sgpr 96
  .amdhsa_accum_offset %d
  .amdhsa_group_segment_fixed_size 0
  .amdhsa_kernarg_size 72
  .amdhsa_user_sgpr_count 2
  .amdhsa_user_sgpr_kernarg_segment_ptr 1
  .amdhsa_system_sgpr_workgroup_id_x 1
.end_amdhsa_kernel
""" % (self.name, v, v)


def vr(a, n):
    return "v[%d:%d]" % (a, a + n - 1)


KA_AX, KA_AWQKV, KA_AWO, KA_BX, KA_BWQKV, KA_BWO, KA_OUT, KA_DBG, KA_WS = [8 * i for i in range(9)]


OUTFILE = 'st.s'
PB_ROW = 288
OB_ROW = 160


def gen_prep():
    NQ = 96
    NO = 96
    NZ = 0
    NX = 64
    GL = 64 * PB_ROW
    k = Kern("prep_kernel", 96, 3 * GL + 4096, (NQ + NO + NZ + NX, 1, 1), (768, 1, 1))
    e = k.e
    e("s_cmp_ge_u32 s2, %d" % (NQ + NO + NZ + NX))
    e("s_cbranch_scc1 L_prep_end")
    e("s_load_dwordx2 s[4:5], s[0:1], %d" % KA_WS)
    e("s_load_dwordx2 s[20:21], s[0:1], %d" % KA_AWQKV)
    e("s_load_dwordx2 s[22:23], s[0:1], %d" % KA_BWQKV)
    e("s_load_dwordx2 s[24:25], s[0:1], %d" % KA_AWO)
    e("s_load_dwordx2 s[26:27], s[0:1], %d" % KA_BWO)
    e("s_load_dwordx2 s[44:45], s[0:1], %d" % KA_AX)
    k.stamp(0)
    e("v_and_b32 v3, 63, v0")
    e("v_lshrrev_b32 v4, 6, v0")
    e("v_and_b32 v0, 255, v0")
    e("v_readfirstlane_b32 s35, v4")
    e("v_lshlrev_b32 v5, 4, v3")
    e("v_lshrrev_b32 v6, 4, v3")
    e("v_lshrrev_b32 v8, 2, v3")
    e("v_and_b32 v8, 3, v8")
    e("v_and_b32 v9, 3, v3")
    e("s_lshr_b32 s46, s35, 2")
    e("s_and_b32 s35, s35, 3")
    e("s_mul_i32 s47, s46, %d" % GL)
    e("s_waitcnt lgkmcnt(0)")
    k.srd(16, 4, 0, WS_SIZE)
    e("s_cmp_ge_u32 s2, %d" % (NQ + NO))
    e("s_cbranch_scc1 L_prep_misc")
    e("s_cmp_ge_u32 s2, %d" % NQ)
    e("s_cbranch_scc1 L_prep_wo")
    e("s_cmp_ge_u32 s2, 48")
    e("s_cselect_b32 s30, 1, 0")
    e("s_mul_i32 s31, s30, 48")
    e("s_sub_u32 s31, s2, s31")
    e("s_mul_i32 s32, s31, 21846")
    e("s_lshr_b32 s32, s32, 16")
    e("s_mul_i32 s33, s32, 3")
    e("s_sub_u32 s33, s31, s33")
    e("s_mul_i32 s48, s33, 6")
    e("s_lshl_b32 s49, s46, 1")
    e("s_add_u32 s48, s48, s49")
    e("s_cmp_eq_u32 s30, 0")
    e("s_cselect_b32 s8, s20, s22")
    e("s_cselect_b32 s9, s21, s23")
    e("s_mov_b32 s10, %d" % (576 * 3456))
    e("s_mov_b32 s11, 0x00020000")
    e("s_cselect_b32 s36, 1, 0")
    e("s_mul_i32 s37, s32, 72")
    e("s_mul_i32 s38, s48, %d" % (32 * 3456))
    e("s_add_u32 s37, s37, s38")
    for i in range(7):
        e("v_add_u32 v10, %d, v0" % (256 * i))
        if i == 6:
            e("v_min_u32 v10, 1727, v10")
        e("v_mul_u32_u24 v11, 9710, v10")
        e("v_lshrrev_b32 v11, 18, v11")
        e("v_mul_u32_u24 v12, 27, v11")
        e("v_sub_u32 v12, v10, v12")
        e("v_mul_u32_u24 v13, 57, v12")
        e("v_lshrrev_b32 v13, 9, v13")
        e("v_mul_u32_u24 v14, 9, v13")
        e("v_sub_u32 v14, v12, v14")
        e("v_add_u32 v13, s36, v13")
        e("v_cmp_eq_u32 vcc, 3, v13")
        e("s_nop 1")
        e("v_cndmask_b32_e64 v13, v13, 0, vcc")
        e("v_mul_u32_u24 v13, 1152, v13")
        e("v_mul_u32_u24 v15, 3456, v11")
        e("v_add3_u32 v15, v15, v13, s37")
        e("v_lshl_add_u32 v15, v14, 3, v15")
        e("buffer_load_dwordx2 %s, v15, s[8:11], 0 offen" % vr(32 + 2 * i, 2))
        e("v_mul_u32_u24 v15, %d, v11" % PB_ROW)
        e("v_lshl_add_u32 v15, v12, 3, v15")
        e("v_add_u32 v%d, s47, v15" % (20 + i))
    e("v_mov_b32 v28, 0")
    e("v_mov_b32 v29, 0")
    for i in range(2):
        e("v_add_u32 v10, %d, v0" % (256 * i))
        e("v_min_u32 v10, 319, v10")
        e("v_mul_u32_u24 v11, 13108, v10")
        e("v_lshrrev_b32 v11, 16, v11")
        e("v_mul_u32_u24 v12, 5, v11")
        e("v_sub_u32 v12, v10, v12")
        e("v_mul_u32_u24 v11, %d, v11" % PB_ROW)
        e("v_lshl_add_u32 v11, v12, 3, v11")
        e("v_add_u32 v11, s47, v11")
        e("ds_write_b64 v11, v[28:29] offset:216")
    e("v_lshrrev_b32 v7, 1, v6")
    e("v_lshl_add_u32 v7, v7, 3, v8")
    e("v_mul_u32_u24 v7, %d, v7" % PB_ROW)
    e("v_and_b32 v10, 1, v6")
    e("v_lshl_add_u32 v7, v10, 5, v7")
    e("v_lshl_add_u32 v7, v9, 3, v7")
    e("s_lshl_b32 s38, s35, 6")
    e("s_add_u32 s38, s38, s47")
    e("v_add_u32 v7, s38, v7")
    for i in range(4):
        e("v_mov_b32 v%d, 0x3f803f80" % (28 + i))
    e("s_mul_i32 s38, s32, 36")
    e("s_lshl_b32 s39, s48, 1")
    e("s_add_u32 s38, s38, s39")
    e("s_lshl_b32 s38, s38, 2")
    e("s_add_u32 s38, s38, s35")
    e("s_lshl_b32 s38, s38, 10")
    e("s_mul_i32 s39, s30, 0x%x" % (WFB - WFA))
    e("s_add_u32 s38, s38, s39")
    e("s_add_u32 s38, s38, 0x%x" % WFA)
    e("s_lshl_b32 s39, s33, 4")
    e("s_add_u32 s39, s39, s32")
    e("s_lshl_b32 s39, s39, 9")
    e("s_mul_i32 s40, s30, %d" % CS_MAT)
    e("s_add_u32 s39, s39, s40")
    e("s_add_u32 s39, s39, 0x%x" % CS)
    e("s_lshl_b32 s40, s46, 9")
    e("s_lshl_b32 s41, s35, 7")
    e("s_add_u32 s40, s40, s41")
    e("s_add_u32 s40, s40, %d" % (3 * GL))
    e("v_and_b32 v10, 31, v3")
    e("v_lshl_add_u32 v10, v10, 2, s40")
    k.stamp(1)
    e("s_waitcnt vmcnt(0)")
    k.stamp(2)
    for i in range(7):
        e("ds_write_b64 v%d, %s" % (20 + i, vr(32 + 2 * i, 2)))
    e("s_waitcnt lgkmcnt(0)")
    e("s_barrier")
    k.stamp(3)
    for ks in range(4):
        for hf in range(2):
            e("ds_read_b64_tr_b16 %s, v7 offset:%d" % (vr(32 + 4 * ks + 2 * hf, 2), (16 * ks + 4 * hf) * PB_ROW))
    e("s_waitcnt lgkmcnt(0)")
    for ks in range(4):
        c = "0" if ks == 0 else vr(48, 16)
        e("v_mfma_f32_32x32x16_bf16 %s, v[28:31], %s, %s" % (vr(48, 16), vr(32 + 4 * ks, 4), c))
        e("s_add_u32 s40, s38, %d" % (4096 * ks))
        e("buffer_store_dwordx4 %s, v5, s[16:19], s40 offen" % vr(32 + 4 * ks, 4))
    e("s_nop 7")
    e("s_nop 7")
    e("ds_write_b32 v10, v48")
    e("s_waitcnt lgkmcnt(0)")
    e("s_barrier")
    e("s_cmp_lg_u32 s46, 0")
    e("s_cbranch_scc1 L_prep_end")
    e("s_cmp_ge_u32 s35, 2")
    e("s_cbranch_scc1 L_prep_end")
    e("v_lshlrev_b32 v10, 2, v0")
    for i in range(3):
        e("ds_read_b32 v%d, v10 offset:%d" % (12 + i, 3 * GL + 512 * i))
    e("s_waitcnt lgkmcnt(0)")
    e("v_add_f32 v12, v12, v13")
    e("v_add_f32 v12, v12, v14")
    e("buffer_store_dword v12, v10, s[16:19], s39 offen")
    k.stamp(4)
    if STAMPS:
        e("s_waitcnt vmcnt(0)")
    k.stamp(5)
    k.dump()
    e("s_endpgm")
    k.lab("L_prep_wo")
    e("s_sub_u32 s29, s2, %d" % NQ)
    e("s_mul_i32 s29, s29, 3")
    e("s_add_u32 s29, s29, s46")
    e("s_cmp_ge_u32 s29, 144")
    e("s_cselect_b32 s30, 1, 0")
    e("s_mul_i32 s31, s30, 144")
    e("s_sub_u32 s31, s29, s31")
    e("s_mul_i32 s32, s31, 3641")
    e("s_lshr_b32 s32, s32, 16")
    e("s_mul_i32 s33, s32, 18")
    e("s_sub_u32 s33, s31, s33")
    e("s_cmp_eq_u32 s30, 0")
    e("s_cselect_b32 s8, s24, s26")
    e("s_cselect_b32 s9, s25, s27")
    e("s_mov_b32 s10, %d" % (576 * 1152))
    e("s_mov_b32 s11, 0x00020000")
    e("s_mul_i32 s37, s32, 144")
    e("s_mul_i32 s38, s33, %d" % (32 * 1152))
    e("s_add_u32 s37, s37, s38")
    for i in range(2):
        e("v_add_u32 v10, %d, v0" % (256 * i))
        if i == 1:
            e("v_min_u32 v10, 287, v10")
        e("v_mul_u32_u24 v11, 7282, v10")
        e("v_lshrrev_b32 v11, 16, v11")
        e("v_mul_u32_u24 v12, 9, v11")
        e("v_sub_u32 v12, v10, v12")
        e("v_mul_u32_u24 v15, 1152, v11")
        e("v_lshl_add_u32 v15, v12, 4, v15")
        e("v_add_u32 v15, s37, v15")
        e("buffer_load_dwordx4 %s, v15, s[8:11], 0 offen" % vr(32 + 4 * i, 4))
        e("v_mul_u32_u24 v15, %d, v11" % OB_ROW)
        e("v_lshrrev_b32 v13, 3, v11")
        e("v_lshl_add_u32 v15, v13, 7, v15")
        e("v_lshl_add_u32 v15, v12, 4, v15")
        e("v_add_u32 v%d, s47, v15" % (20 + i))
    e("s_waitcnt vmcnt(0)")
    for i in range(2):
        e("ds_write_b128 v%d, %s" % (20 + i, vr(32 + 4 * i, 4)))
    e("v_mul_u32_u24 v7, %d, v6" % (8 * OB_ROW + 128))
    e("v_mul_u32_u24 v10, %d, v8" % OB_ROW)
    e("v_lshl_add_u32 v10, v9, 3, v10")
    e("s_lshl_b32 s38, s35, 5")
    e("s_add_u32 s38, s38, s47")
    e("v_add3_u32 v7, v7, v10, s38")
    e("s_mul_i32 s38, s32, %d" % (81 * 1024))
    e("s_lshr_b32 s39, s33, 1")
    e("s_mul_i32 s39, s39, 9216")
    e("s_add_u32 s38, s38, s39")
    e("s_mul_i32 s39, s30, 0x%x" % (WOB - WOA))
    e("s_add_u32 s38, s38, s39")
    e("s_add_u32 s38, s38, 0x%x" % WOA)
    e("s_and_b32 s39, s33, 1")
    e("s_lshl_b32 s40, s39, 9")
    e("s_add_u32 s40, s40, s38")
    e("s_add_u32 s40, s40, 8192")
    e("s_lshl_b32 s39, s39, 12")
    e("s_add_u32 s38, s38, s39")
    e("s_lshl_b32 s39, s35, 10")
    e("s_add_u32 s38, s38, s39")
    e("v_and_b32 v10, 15, v3")
    e("v_lshlrev_b32 v11, 4, v10")
    e("v_lshl_add_u32 v11, v6, 7, v11")
    e("v_cmp_gt_u32 vcc, 8, v10")
    e("v_mov_b32 v12, 0x40000000")
    e("s_nop 0")
    e("v_cndmask_b32 v11, v12, v11, vcc")
    e("s_waitcnt lgkmcnt(0)")
    e("s_barrier")
    for q in range(2):
        for hf in range(2):
            e("ds_read_b64_tr_b16 %s, v7 offset:%d" % (vr(32 + 4 * q + 2 * hf, 2), hf * 4 * OB_ROW + 128 * q))
    e("s_waitcnt lgkmcnt(0)")
    e("buffer_store_dwordx4 %s, v5, s[16:19], s38 offen" % vr(32, 4))
    e("s_cmp_lg_u32 s35, 0")
    e("s_cbranch_scc1 L_prep_end")
    e("buffer_store_dwordx4 %s, v11, s[16:19], s40 offen" % vr(36, 4))
    e("s_endpgm")
    k.lab("L_prep_misc")
    e("s_sub_u32 s3, s2, %d" % (NQ + NO))
    e("s_cmp_eq_u32 s46, 0")
    e("s_cbranch_scc1 L_prep_x0")
    e("s_cmp_eq_u32 s46, 2")
    e("s_cbranch_scc1 L_prep_end")
    e("s_cmp_ge_u32 s3, 42")
    e("s_cbranch_scc1 L_prep_end")
    e("s_lshl_b32 s3, s3, 12")
    e("v_lshlrev_b32 v1, 4, v0")
    e("v_add_u32 v1, s3, v1")
    e("v_add_u32 v1, 0x%x, v1" % KVACC)
    for i in range(4):
        e("v_mov_b32 v%d, 0" % (4 + i))
    e("buffer_store_dwordx4 v[4:7], v1, s[16:19], 0 offen")
    e("s_endpgm")
    k.lab("L_prep_x0")

    e("s_mov_b32 s8, s44")
    e("s_mov_b32 s9, s45")
    e("s_mov_b32 s10, %d" % XB)
    e("s_mov_b32 s11, 0x00020000")
    e("s_mul_i32 s7, s3, 36864")
    e("s_add_u32 s6, s7, 0x%x" % X0F)
    e("s_mov_b32 s42, 0x3f803f80")
    e("v_and_b32 v1, 31, v3")
    e("v_lshrrev_b32 v2, 5, v3")
    e("s_lshl_b32 s28, s35, 1")
    e("v_add_u32 v2, s28, v2")
    e("v_mul_u32_u24 v4, 1152, v1")
    e("v_mul_u32_u24 v7, 144, v2")
    e("v_add_u32 v4, v4, v7")
    for i in range(9):
        e("buffer_load_dwordx4 %s, v4, s[8:11], s7 offen offset:%d" % (vr(32 + 4 * i, 4), 16 * i))
    e("v_mul_u32_u24 v7, 4608, v2")
    e("v_lshl_add_u32 v7, v1, 4, v7")
    e("v_lshlrev_b32 v10, 6, v1")
    e("v_lshl_add_u32 v10, v2, 3, v10")
    e("s_lshl_b32 s28, s3, 11")
    e("s_add_u32 s28, s28, 0x%x" % STATS)
    e("v_mov_b32 v8, 0")
    e("v_mov_b32 v9, 0")
    e("s_waitcnt vmcnt(0)")
    for i in range(9):
        e("s_add_u32 s7, s6, %d" % (512 * i))
        e("buffer_store_dwordx4 %s, v7, s[16:19], s7 offen" % vr(32 + 4 * i, 4))
        for q in range(4):
            e("v_dot2_f32_bf16 v8, v%d, s42, v8" % (32 + 4 * i + q))
            e("v_dot2_f32_bf16 v9, v%d, v%d, v9" % (32 + 4 * i + q, 32 + 4 * i + q))
    e("s_nop 2")
    e("buffer_store_dwordx2 v[8:9], v10, s[16:19], s28 offen")
    k.stamp(4)
    if STAMPS:
        e("s_waitcnt vmcnt(0)")
    k.stamp(5)
    k.dump()
    k.lab("L_prep_end")
    e("s_endpgm")
    return k


NB = 8
BSLOT = 16 * 1024
QCS_BASE = NB * BSLOT
QST_BASE = QCS_BASE + 1536
QPQ_BASE = 32768
QKV_LDS = QST_BASE + 1024
T_STRIDE = 272


def emit_phi(e, x, t1, t2):
    e("v_min_f32 v%d, 0, v%d" % (t1, x))
    e("v_mul_f32 v%d, s40, v%d" % (t1, t1))
    e("v_exp_f32 v%d, v%d" % (t1, t1))
    e("v_max_f32 v%d, 0, v%d" % (t2, x))
    e("v_add_f32 v%d, s41, v%d" % (t2, t2))
    e("v_add_f32 v%d, v%d, v%d" % (x, t1, t2))


def gen_stub(name, body, params):
    k = Kern(name, body.vgpr, body.lds, body.grid, body.block)
    k.stub = ["s_mov_b32 s%d, 0x%x" % (r, v) for r, v in params] + ["s_branch %s" % body.name]
    return k


def gen_qkv(kind, k=None, params=None, chain=None, kname=None):
    fused = k is not None
    name = "L_qkv%s" % kind
    if not fused:
        if kname:
            name = kname
        k = Kern(name, 184, QKV_LDS, (256, 1, 1), (512, 1, 1))
        if not kname:
            k.nodesc = True
    else:
        k.vgpr = max(k.vgpr, 184)
        k.lds = max(k.lds, QKV_LDS)
    SC = " sc1" if fused else ""
    e = k.e
    ACC = 16
    FR = [48, 72]
    VL16 = 100
    VA = [101, 102]
    VB = [103, 104]
    CSR = 105
    VCS = 106
    STR = 112
    EA = 128
    if fused:
        end = k.endlab
        for r, v in params:
            e("s_mov_b32 s%d, 0x%x" % (r, v))
    else:
        end = "L_%s_end" % name
        e("s_cmp_ge_u32 s2, 256")
        e("s_cbranch_scc1 %s" % end)
        e("s_load_dwordx2 s[4:5], s[0:1], %d" % KA_WS)
        k.stamp(0)
        if kname:
            for r, v in params:
                e("s_mov_b32 s%d, 0x%x" % (r, v))
    k.pqsc = " sc1" if chain is not None else ""
    e("s_and_b32 s28, s2, 7")
    e("s_lshr_b32 s29, s2, 3")
    e("s_lshr_b32 s31, s28, 1")
    e("s_lshl_b32 s31, s31, 2")
    e("s_lshr_b32 s32, s29, 3")
    e("s_add_u32 s31, s31, s32")
    e("s_and_b32 s30, s28, 1")
    e("s_lshl_b32 s30, s30, 3")
    e("s_and_b32 s32, s29, 7")
    e("s_add_u32 s30, s30, s32")
    e("v_and_b32 v3, 63, v0")
    e("v_lshrrev_b32 v4, 6, v0")
    e("v_and_b32 v5, 31, v3")
    e("v_readfirstlane_b32 s35, v4")
    e("v_lshrrev_b32 v6, 5, v3")
    e("v_lshlrev_b32 v%d, 4, v3" % VL16)
    e("s_lshl_b32 s52, s35, 10")
    e("s_mul_i32 s53, s30, %d" % (36 * 4096))
    e("s_add_u32 s53, s53, s52")
    e("s_lshl_b32 s50, s31, 2")
    e("s_lshr_b32 s51, s35, 1")
    e("s_add_u32 s50, s50, s51")
    e("s_mul_i32 s50, s50, 36864")
    e("s_and_b32 s51, s35, 1")
    e("s_lshl_b32 s51, s51, 10")
    e("s_add_u32 s50, s50, s51")
    e("s_and_b32 s36, s35, 3")
    e("s_lshr_b32 s37, s35, 2")
    for i in range(32):
        e("v_mov_b32 v%d, 0" % (ACC + i))
    e("s_lshl_b32 s34, s37, 12")
    e("v_add_u32 v%d, s34, v%d" % (VA[0], VL16))
    e("v_add_u32 v%d, 0x10000, v%d" % (VA[1], VA[0]))
    e("s_lshl_b32 s34, s36, 10")
    e("s_add_u32 s34, s34, 8192")
    e("v_add_u32 v%d, s34, v%d" % (VB[0], VL16))
    e("v_add_u32 v%d, 0x10000, v%d" % (VB[1], VB[0]))
    e("s_mov_b32 s40, 0x%x" % f2u(LOG2E))
    e("s_mov_b32 s41, 0x%x" % f2u(1e-6))
    e("s_waitcnt lgkmcnt(0)")
    k.stamp(2)
    e("s_add_u32 s8, s4, s58")
    e("s_addc_u32 s9, s5, 0")
    e("s_mov_b32 s10, %d" % XB)
    e("s_mov_b32 s11, 0x00020000")
    k.srd(12, 4, WFA if kind == 'A' else WFB, WF_SZ)
    k.srd(16, 4, 0, WS_SIZE)
    issued = []

    def group_ops(g):
        slot = (g % NB) * BSLOT
        return [(g, ["s_add_u32 m0, s52, %d" % slot, "s_nop 0",
                     "buffer_load_dwordx4 v%d, s[8:11], s50 offen%s lds" % (VL16, SC),
                     "s_add_u32 s50, s50, 2048"]),
                (g, ["s_add_u32 m0, s52, %d" % (slot + 8192), "s_nop 0",
                     "buffer_load_dwordx4 v%d, s[12:15], s53 offen lds" % VL16,
                     "s_add_u32 s53, s53, 8192"])]

    def emit_op(op):
        tag, lines = op
        for x in lines:
            e(x)
        if tag is not None:
            issued.append(tag)

    def wait_for(stage):
        last = max(i for i, t in enumerate(issued) if t <= stage)
        return len(issued) - 1 - last

    if fused:
        sk = k.newlab("nb")
        e("s_cmp_lg_u32 s35, 4")
        e("s_cbranch_scc1 %s" % sk)
        e("s_sub_u32 s34, s53, 4096")
        for g in range(NB):
            e("s_mov_b32 m0, %d" % ((g % NB) * BSLOT + 8192))
            e("s_nop 0")
            e("buffer_load_dwordx4 v%d, s[12:15], s34 offen lds" % VL16)
            e("s_add_u32 s34, s34, 8192")
        k.lab(sk)
        sk = k.newlab("nb")
        e("s_cmp_eq_u32 s35, 0")
        e("s_cselect_b32 s34, %d, 0" % (NB * 8192))
        e("s_add_u32 s53, s53, s34")
        e("s_cmp_eq_u32 s35, 0")
        e("s_cbranch_scc1 %s" % sk)
        for g in range(NB):
            emit_op(group_ops(g)[1])
        k.lab(sk)
    else:
        for g in range(3):
            for op in group_ops(g):
                emit_op(op)
    k.mem = []
    if kind == 'A':
        epi_A_pre(k, EA)
    else:
        epi_B_pre(k, EA)
    e("v_min_u32 v7, 383, v0")
    e("v_lshrrev_b32 v8, 7, v7")
    e("v_and_b32 v7, 127, v7")
    e("v_lshlrev_b32 v7, 2, v7")
    e("v_lshl_add_u32 v%d, v8, 13, v7" % VCS)
    e("v_lshl_add_u32 v107, v8, 9, v7")
    e("s_lshl_b32 s54, s30, 9")
    e("s_add_u32 s54, s54, 0x%x" % (CS + (0 if kind == 'A' else CS_MAT)))
    k.stamp(13)
    if fused:
        sk = k.newlab("nw")
        lp = k.newlab("poll")
        e("s_cmp_lg_u32 s35, 0")
        e("s_cbranch_scc1 %s" % sk)
        e("s_lshl_b32 s38, s31, 7")
        e("v_and_b32 v9, 15, v3")
        e("v_lshlrev_b32 v9, 2, v9")
        e("s_mov_b32 s39, 0")
        k.lab(lp)
        e("buffer_load_dword v8, v9, s[20:23], s38 offen sc1")
        e("s_waitcnt vmcnt(0)")
        e("v_cmp_ne_u32 vcc, 1, v8")
        e("s_add_u32 s39, s39, 1")
        e("s_nop 3")
        e("s_cbranch_vccz %s" % sk)
        e("s_sleep 1")
        e("s_cmp_lt_u32 s39, 0x400000")
        e("s_cbranch_scc1 %s" % lp)
        k.lab(sk)
        e("s_barrier")
        k.stamp(12)
        for g in range(NB):
            emit_op(group_ops(g)[0])
    e("s_waitcnt vmcnt(%d) lgkmcnt(0)" % wait_for(0))
    k.stamp(1)
    e("s_barrier")
    k.stamp(3)

    def fread_ops(s):
        f = FR[s & 1]
        slot = s % NB
        hi, so = slot >> 2, (slot & 3) * BSLOT
        ops = []
        for ks in range(2):
            ops.append((None, ["ds_read_b128 %s, v%d offset:%d" % (vr(f + 16 + 4 * ks, 4), VB[hi], so + ks * 4096)]))
            for a in range(2):
                ops.append((None, ["ds_read_b128 %s, v%d offset:%d" % (vr(f + 8 * a + 4 * ks, 4), VA[hi], so + a * 2048 + ks * 1024)]))
        return ops

    for op in fread_ops(0):
        emit_op(op)
    nextg = NB if fused else 3
    for s in range(18):
        fill = []
        if s + 1 <= 17:
            e("s_waitcnt vmcnt(%d) lgkmcnt(0)" % wait_for(s + 1))
            e("s_barrier")
            fill += fread_ops(s + 1)
            for _ in range(int(EXP.get("ng", 2))):
                if nextg <= 17 and nextg <= s + NB:
                    fill += group_ops(nextg)
                    nextg += 1
            if s == 10:
                fill.append((99, ["buffer_load_dword v%d, v%d, s[16:19], s54 offen" % (CSR, VCS)]))
        else:
            e("s_waitcnt lgkmcnt(0)")
        if s == 11:
            ns = k.newlab("ns")
            e("s_cmp_lt_u32 s35, 6")
            e("s_cbranch_scc1 %s" % ns)
            e("s_lshl_b32 s34, s31, 13")
            e("s_add_u32 s34, s34, 0x%x" % (STATV[dict(params)[58]] - 6 * 4096))
            e("v_lshlrev_b32 v7, 6, v0")
            for i in range(4):
                e("buffer_load_dwordx4 %s, v7, s[16:19], s34 offen offset:%d%s" % (vr(STR + 4 * i, 4), 16 * i, SC))
            k.lab(ns)
        if s % 3 == 0 and s > 0:
            k.stamp(6 + s // 3)
        f = FR[s & 1]
        nfill = -(-len(fill) // 4)
        for ks in range(2):
            for a in range(2):
                acc = ACC + 16 * a
                e("v_mfma_f32_32x32x16_bf16 %s, %s, %s, %s" % (vr(acc, 16), vr(f + 16 + 4 * ks, 4), vr(f + 8 * a + 4 * ks, 4), vr(acc, 16)))
                for _ in range(nfill):
                    if fill:
                        emit_op(fill.pop(0))
    k.stamp(4)
    e("s_waitcnt vmcnt(0)")
    e("ds_write_b32 v107, v%d offset:0" % CSR if False else "v_add_u32 v7, %d, v107" % QCS_BASE)
    e("ds_write_b32 v7, v%d" % CSR)
    ns = k.newlab("ns")
    e("s_cmp_lt_u32 s35, 6")
    e("s_cbranch_scc1 %s" % ns)
    for i in range(1, 8):
        e("v_add_f32 v%d, v%d, v%d" % (STR, STR, STR + 2 * i))
        e("v_add_f32 v%d, v%d, v%d" % (STR + 1, STR + 1, STR + 2 * i + 1))
    e("v_mul_f32 v%d, 0x%x, v%d" % (STR, f2u(1.0 / 576), STR))
    e("v_mul_f32 v%d, 0x%x, v%d" % (STR + 1, f2u(1.0 / 576), STR + 1))
    e("v_fma_f32 v%d, -v%d, v%d, v%d" % (STR + 1, STR, STR, STR + 1))
    e("v_max_f32 v%d, 0, v%d" % (STR + 1, STR + 1))
    e("v_add_f32 v%d, 0x%x, v%d" % (STR + 1, f2u(1e-5), STR + 1))
    e("v_rsq_f32 v%d, v%d" % (STR + 1, STR + 1))
    e("s_nop 0")
    e("v_mul_f32 v%d, v%d, v%d" % (STR, STR, STR + 1))
    e("v_lshlrev_b32 v7, 2, v0")
    e("v_add_u32 v7, %d, v7" % (QST_BASE - 6 * 256))
    e("ds_write_b32 v7, v%d" % (STR + 1))
    e("ds_write_b32 v7, v%d offset:512" % STR)
    k.lab(ns)
    e("s_waitcnt lgkmcnt(0)")
    e("s_barrier")
    RS = 100
    e("s_lshl_b32 s34, s37, 8")
    e("s_add_u32 s34, s34, %d" % QST_BASE)
    e("v_lshl_add_u32 v7, v5, 2, s34")
    for a in range(2):
        e("ds_read_b32 v%d, v7 offset:%d" % (RS + 2 * a, a * 128))
        e("ds_read_b32 v%d, v7 offset:%d" % (RS + 4 + 2 * a, 512 + a * 128))
    e("s_lshl_b32 s34, s36, 7")
    e("s_add_u32 s34, s34, %d" % QCS_BASE)
    e("v_lshl_add_u32 v8, v6, 4, s34")
    for q in range(4):
        for p in range(3):
            e("ds_read_b128 %s, v8 offset:%d" % (vr(52 + 16 * p + 4 * q, 4), 512 * p + 32 * q))
    e("s_waitcnt lgkmcnt(0)")
    for i in range(4):
        e("v_mov_b32 v%d, v%d" % (RS + 2 * i + 1, RS + 2 * i))
    for r in range(0, 16, 2):
        e("v_pk_add_f32 %s, %s, %s" % (vr(52 + r, 2), vr(52 + r, 2), vr(68 + r, 2)))
        e("v_pk_add_f32 %s, %s, %s" % (vr(52 + r, 2), vr(52 + r, 2), vr(84 + r, 2)))
    for a in range(2):
        for r in range(0, 16, 2):
            acc = ACC + 16 * a + r
            e("v_pk_mul_f32 v[10:11], %s, %s" % (vr(RS + 4 + 2 * a, 2), vr(52 + r, 2)))
            e("v_pk_fma_f32 %s, %s, %s, v[10:11] neg_lo:[0,0,1] neg_hi:[0,0,1]" % (vr(acc, 2), vr(acc, 2), vr(RS + 2 * a, 2)))
    if kind == 'A':
        epi_A(k, ACC, EA)
    else:
        epi_B(k, ACC, EA)
    if chain is not None:
        e("s_waitcnt vmcnt(0)")
        e("s_barrier")
        k.srd(20, 4, FLAGS + chain * 2048, 2048)
        sk = k.newlab("sig")
        e("s_cmp_lg_u32 s35, 0")
        e("s_cbranch_scc1 %s" % sk)
        e("s_lshl_b32 s40, s2, 2")
        e("v_mov_b32 v8, 1")
        e("v_mov_b32 v9, 0")
        e("s_mov_b64 exec, 1")
        e("buffer_store_dword v8, v9, s[20:23], s40 offen sc1")
        e("s_mov_b64 exec, -1")
        k.lab(sk)
        k.endlab = end
        return k
    k.stamp(5)
    if STAMPS:
        e("s_waitcnt vmcnt(0)")
    k.stamp(6)
    k.dump()
    k.lab(end)
    e("s_endpgm")
    return k


def sprinkle(k, n):
    for _ in range(n):
        if k.mem:
            for x in k.mem.pop(0):
                k.e(x)


def per_wave(k, fn, nw=8):
    e = k.e
    labs = [k.newlab("w") for _ in range(nw)]
    lj = k.newlab("wj")
    for w in range(1, nw):
        e("s_cmp_eq_u32 s35, %d" % w)
        e("s_cbranch_scc1 %s" % labs[w])
    for w in range(nw):
        k.lab(labs[w])
        fn(w)
        if w < nw - 1:
            e("s_branch %s" % lj)
    k.lab(lj)


def half_ops(k, lo, hi):
    for x in lo:
        k.e(x)
    k.e("s_mov_b32 exec_lo, 0")
    for x in hi:
        k.e(x)
    k.e("s_mov_b32 exec_lo, -1")


DUMMY = 98304


KV_ROW = 168


def epi_A_pre(k, EA):
    e = k.e
    e("v_mul_u32_u24 v12, %d, v5" % KV_ROW)
    e("v_lshlrev_b32 v13, 4, v5")
    e("v_lshlrev_b32 v14, 2, v5")

    def var(w):
        ct, rh = w & 3, w >> 2
        ops = [[], []]
        for q in range(4):
            for pr in range(2):
                i = 2 * q + pr
                for h in range(2):
                    vc = 32 * ct + 8 * q + 4 * h + 2 * pr
                    for a in range(2):
                        if vc < 72:
                            c = (64 * rh + 32 * a) * KV_ROW + (vc // 18) * 40 + (vc % 18) * 2
                            t = 12
                        elif vc < 108:
                            hl, d = (vc - 72) // 18, (vc - 72) % 18
                            sb = QPQ_BASE + (4 * hl + 2 * rh + a) * 2560
                            if d < 16:
                                c, t = sb + (d >> 3) * 512 + (d & 7) * 2, 13
                            else:
                                c, t = sb + 1024, 14
                        else:
                            c, t = DUMMY, 12
                        ops[h].append("v_add_u32 v%d, %d, v%d" % (EA + 2 * i + a, c, t))
                    isv = 36 <= vc < 72
                    ops[h].append("v_mov_b32 v%d, 0x%x" % (EA + 32 + i, 0 if isv else f2u(1.0)))
                    ops[h].append("v_mov_b32 v%d, 0x%x" % (EA + 44 + i, 0xff800000 if isv else 0))
        half_ops(k, ops[0], ops[1])
        if w < 2:
            e("v_lshrrev_b32 v7, 2, v3")
            e("v_and_b32 v7, 3, v7")
            e("v_lshl_add_u32 v7, v6, 3, v7")
            e("v_mul_u32_u24 v7, %d, v7" % KV_ROW)
            e("v_bfe_u32 v8, v3, 4, 1")
            e("v_lshl_add_u32 v7, v8, 5, v7")
            e("v_and_b32 v8, 3, v3")
            e("v_lshl_add_u32 v7, v8, 3, v7")
            e("v_add_u32 v%d, %d, v7" % (EA + 40, 40 * w))
            e("v_add_u32 v%d, %d, v7" % (EA + 41, 80 + 40 * w))
            e("v_cmp_gt_u32 vcc, 18, v5")
            e("v_lshlrev_b32 v10, 2, v5")
            e("v_lshl_add_u32 v10, v6, 9, v10")
            e("v_mov_b32 v9, 0x40000000")
            e("v_cndmask_b32 v%d, v9, v10, vcc" % (EA + 42))
            e("v_cmp_eq_u32 vcc, 0, v6")
            e("s_nop 1")
            e("v_cndmask_b32 v%d, v9, v%d, vcc" % (EA + 43, EA + 42))
        else:
            for i in range(4):
                e("v_mov_b32 v%d, 0x40000000" % (EA + 40 + i))

    per_wave(k, var)


def epi_A(k, ACC, EA):
    e = k.e
    e("v_mov_b32 v12, s40")
    e("v_mov_b32 v13, s40")
    e("v_mov_b32 v14, s41")
    e("v_mov_b32 v15, s41")
    for q in range(4):
        for pr in range(2):
            i = 2 * q + pr
            for a in range(2):
                acc = ACC + 16 * a + 4 * q + 2 * pr
                e("v_pk_mul_f32 v[10:11], %s, v[12:13]" % vr(acc, 2))
                e("v_min_f32 v10, 0, v10")
                e("v_min_f32 v11, 0, v11")
                e("v_exp_f32 v10, v10")
                e("v_exp_f32 v11, v11")
                e("v_max_f32 v%d, v%d, v%d" % (acc, acc, EA + 44 + i))
                e("v_max_f32 v%d, v%d, v%d" % (acc + 1, acc + 1, EA + 44 + i))
                e("v_pk_add_f32 v[10:11], v[10:11], v[14:15]")
                e("v_fmac_f32 v%d, v10, v%d" % (acc, EA + 32 + i))
                e("v_fmac_f32 v%d, v11, v%d" % (acc + 1, EA + 32 + i))
                e("v_cvt_pk_bf16_f32 v%d, v%d, v%d" % (acc, acc, acc + 1))
                e("ds_write_b32 v%d, v%d" % (EA + 2 * i + a, acc))
    e("v_lshrrev_b32 v10, 2, v0")
    e("v_mul_u32_u24 v10, %d, v10" % KV_ROW)
    e("v_and_b32 v11, 3, v0")
    e("v_mul_u32_u24 v11, 40, v11")
    e("v_add_u32 v10, v10, v11")
    e("v_mov_b32 v11, 0x3f80")
    e("ds_write_b32 v10, v11 offset:36")
    e("s_waitcnt lgkmcnt(0)")
    e("s_barrier")
    e("s_lshl_b32 s39, s31, 2")
    e("s_add_u32 s39, s39, s36")
    e("s_lshl_b32 s39, s39, 5")
    e("s_lshl_b32 s43, s30, 1")
    e("s_add_u32 s39, s39, s43")
    e("s_add_u32 s39, s39, s37")
    e("s_mul_i32 s39, s39, 1152")
    e("s_add_u32 s39, s39, 0x%x" % PQF)
    e("s_mul_i32 s38, s35, 2560")
    e("s_add_u32 s38, s38, %d" % QPQ_BASE)
    e("v_lshlrev_b32 v8, 4, v3")
    e("v_add_u32 v9, s38, v8")
    e("ds_read_b128 v[100:103], v9")
    e("ds_read_b128 v[104:107], v9 offset:1024")
    e("v_mov_b32 v10, 0x40000000")
    e("v_cmp_gt_u32 vcc, 8, v3")
    e("s_nop 1")
    e("v_cndmask_b32 v11, v10, v8, vcc")
    e("s_waitcnt lgkmcnt(0)")
    e("buffer_store_dwordx4 v[100:103], v8, s[16:19], s39 offen%s" % k.pqsc)
    e("buffer_store_dwordx4 v[104:107], v11, s[16:19], s39 offen offset:1024%s" % k.pqsc)
    lj = k.newlab("ej")
    e("s_cmp_ge_u32 s35, 2")
    e("s_cbranch_scc1 %s" % lj)
    for st in range(8):
        for hf in range(2):
            o = (16 * st + 4 * hf) * KV_ROW
            e("ds_read_b64_tr_b16 %s, v%d offset:%d" % (vr(16 + 8 * st + 2 * hf, 2), EA + 40, o))
            e("ds_read_b64_tr_b16 %s, v%d offset:%d" % (vr(20 + 8 * st + 2 * hf, 2), EA + 41, o))
    e("s_lshl_b32 s39, s30, 1")
    e("s_add_u32 s39, s39, s35")
    e("s_mul_i32 s39, s39, 2432")
    e("s_add_u32 s39, s39, s59")
    e("s_waitcnt lgkmcnt(0)")
    for st in range(8):
        c = "0" if st == 0 else vr(80, 16)
        e("v_mfma_f32_32x32x16_bf16 %s, %s, %s, %s" % (vr(80, 16), vr(20 + 8 * st, 4), vr(16 + 8 * st, 4), c))
    e("s_nop 7")
    e("s_nop 7")
    for r in range(11):
        ee = (r & 3) + 8 * (r >> 2)
        e("buffer_atomic_add_f32 v%d, v%d, s[16:19], s39 offen offset:%d" % (80 + r, EA + 42 if r < 8 else EA + 43, 128 * ee))
    k.lab(lj)


IMG_S = 2560
IMG_K = 8 * IMG_S
IMG_V = 16 * IMG_S
V_ROW = 72


def epi_B_pre(k, EA):
    e = k.e
    e("v_lshlrev_b32 v12, 4, v5")
    e("v_lshlrev_b32 v13, 2, v5")
    e("v_mul_u32_u24 v14, %d, v5" % V_ROW)

    def var(w):
        ct, rh = w & 3, w >> 2
        ops = [[], []]
        for q in range(4):
            for pr in range(2):
                i = 2 * q + pr
                for h in range(2):
                    vc = 32 * ct + 8 * q + 4 * h + 2 * pr
                    sc = 1.0
                    if vc >= 108:
                        c, t = DUMMY, 13
                    else:
                        seg, cc = vc // 36, vc % 36
                        hl, d = cc // 18, cc % 18
                        sb = (4 * hl + 2 * rh) * IMG_S
                        if seg == 2:
                            c, t = IMG_V + sb + d * 2, 14
                        else:
                            base = sb + (IMG_K if seg == 1 else 0)
                            if d < 16:
                                c, t = base + (d >> 3) * 512 + (d & 7) * 2, 12
                            else:
                                c, t = base + 1024, 13
                            if seg == 0:
                                sc = QSCALE
                    ops[h].append("v_add_u32 v%d, %d, v%d" % (EA + i, c, t))
                    ops[h].append("v_mov_b32 v%d, 0x%x" % (EA + 16 + 2 * i, f2u(sc)))
                    ops[h].append("v_mov_b32 v%d, 0x%x" % (EA + 17 + 2 * i, f2u(sc)))
        half_ops(k, ops[0], ops[1])

    per_wave(k, var)
    e("v_lshrrev_b32 v7, 2, v3")
    e("v_and_b32 v7, 3, v7")
    e("v_lshl_add_u32 v7, v6, 2, v7")
    e("v_mul_u32_u24 v7, %d, v7" % V_ROW)
    e("v_bfe_u32 v8, v3, 4, 1")
    e("v_lshl_add_u32 v7, v8, 5, v7")
    e("v_and_b32 v9, 3, v3")
    e("v_lshl_add_u32 v7, v9, 3, v7")
    e("s_mul_i32 s38, s35, %d" % IMG_S)
    e("s_add_u32 s38, s38, %d" % IMG_V)
    e("v_add_u32 v%d, s38, v7" % (EA + 8))
    e("v_mul_u32_u24 v7, 320, v6")
    e("v_lshl_add_u32 v7, v5, 4, v7")
    e("v_add_u32 v7, 1152, v7")
    e("v_cmp_gt_u32 vcc, 19, v5")
    e("v_mov_b32 v10, 0x40000000")
    e("s_nop 0")
    e("v_cndmask_b32 v%d, v10, v7, vcc" % (EA + 9))
    e("v_lshlrev_b32 v8, 4, v3")
    e("v_cmp_gt_u32 vcc, 8, v3")
    e("s_nop 1")
    e("v_cndmask_b32 v%d, v10, v8, vcc" % (EA + 10))


def epi_B(k, ACC, EA):
    e = k.e
    for q in range(4):
        for pr in range(2):
            i = 2 * q + pr
            for a in range(2):
                acc = ACC + 16 * a + 4 * q + 2 * pr
                e("v_pk_mul_f32 %s, %s, %s" % (vr(acc, 2), vr(acc, 2), vr(EA + 16 + 2 * i, 2)))
                e("v_cvt_pk_bf16_f32 v%d, v%d, v%d" % (acc, acc, acc + 1))
                e("ds_write_b32 v%d, v%d offset:%d" % (EA + i, acc, IMG_S * a))
    e("s_mul_i32 s38, s35, %d" % IMG_S)
    e("v_mul_u32_u24 v7, %d, v5" % V_ROW)
    e("v_add_u32 v7, s38, v7")
    e("v_mov_b32 v8, 0x3f80")
    e("ds_write_b32 v7, v8 offset:%d" % (IMG_V + 36))
    e("s_waitcnt lgkmcnt(0)")
    e("s_barrier")
    e("v_lshlrev_b32 v8, 4, v3")
    e("v_add_u32 v9, s38, v8")
    e("ds_read_b128 v[48:51], v9")
    e("ds_read_b128 v[52:55], v9 offset:1024")
    e("ds_read_b128 v[56:59], v9 offset:%d" % IMG_K)
    e("ds_read_b128 v[60:63], v9 offset:%d" % (IMG_K + 1024))
    for ab in range(2):
        for hf in range(2):
            e("ds_read_b64_tr_b16 %s, v%d offset:%d" % (vr(64 + 4 * ab + 2 * hf, 2), EA + 8, (16 * ab + 8 * hf) * V_ROW))
    e("s_lshl_b32 s43, s30, 1")
    e("s_add_u32 s43, s43, s37")
    e("s_lshl_b32 s38, s31, 2")
    e("s_add_u32 s38, s38, s36")
    e("s_mul_i32 s44, s43, %d" % QHEAD)
    e("s_mul_i32 s39, s38, 1152")
    e("s_add_u32 s44, s44, s39")
    e("s_add_u32 s44, s44, 0x%x" % QPI)
    e("s_mul_i32 s46, s43, %d" % KVHEAD)
    e("s_mul_i32 s39, s38, 2432")
    e("s_add_u32 s46, s46, s39")
    e("s_add_u32 s46, s46, 0x%x" % KVI)
    e("s_waitcnt lgkmcnt(0)")
    e("buffer_store_dwordx4 v[48:51], v8, s[16:19], s44 offen")
    e("buffer_store_dwordx4 v[52:55], v%d, s[16:19], s44 offen offset:1024" % (EA + 10))
    e("buffer_store_dwordx4 v[56:59], v8, s[16:19], s46 offen")
    e("buffer_store_dwordx4 v[60:63], v%d, s[16:19], s46 offen offset:1024" % (EA + 10))
    e("buffer_store_dwordx4 v[64:67], v%d, s[16:19], s46 offen" % (EA + 9))
    e("buffer_store_dwordx4 v[68:71], v%d, s[16:19], s46 offen offset:640" % (EA + 9))


def gen_attn(name):
    k = Kern(name, 120, KVHEAD, (256, 1, 1), (1024, 1, 1))
    e = k.e
    SA, SB = 16, 32
    P = 48
    O = 56
    CM = 72
    Q1, Q2 = 88, 92
    K1, K2 = 96, 100
    VVa, VVb = 104, 108
    vK1, vK2, vV = 112, 113, 114
    vK1b, vK2b, vVb = 115, 116, 117
    SEGS = [2, 6, 24]
    HALF = 32 * 2432
    end = "L_%s_end" % name
    e("s_cmp_ge_u32 s2, 256")
    e("s_cbranch_scc1 %s" % end)
    e("s_load_dwordx2 s[4:5], s[0:1], %d" % KA_WS)
    k.stamp(0)
    k.rstamp(4)
    e("s_and_b32 s30, s2, 7")
    e("s_lshr_b32 s31, s2, 3")
    e("s_and_b32 s32, s31, 3")
    e("s_lshl_b32 s30, s30, 2")
    e("s_add_u32 s30, s30, s32")
    e("s_lshr_b32 s31, s31, 2")
    e("v_lshrrev_b32 v4, 6, v0")
    e("v_and_b32 v3, 63, v0")
    e("v_readfirstlane_b32 s35, v4")
    e("s_mul_i32 s33, s30, %d" % KVHEAD)
    e("s_lshr_b32 s40, s35, 3")
    e("s_and_b32 s41, s35, 7")
    e("s_mul_i32 s42, s40, %d" % HALF)
    e("v_lshlrev_b32 v1, 4, v3")
    e("s_lshl_b32 s36, s31, 3")
    e("s_add_u32 s36, s36, s41")
    e("s_mul_i32 s37, s36, 1152")
    e("s_mul_i32 s38, s30, %d" % QHEAD)
    e("s_add_u32 s37, s37, s38")
    e("s_add_u32 s37, s37, 0x%x" % QPI)
    e("v_and_b32 v5, 31, v3")
    e("v_lshrrev_b32 v6, 5, v3")
    e("v_lshlrev_b32 v7, 2, v5")
    e("s_lshl_b32 s39, s41, 10")
    e("s_add_u32 s39, s39, s42")
    e("s_add_u32 s43, s42, %d" % (75 * 1024))
    e("s_waitcnt lgkmcnt(0)")
    e("s_add_u32 s8, s4, s33")
    e("s_addc_u32 s9, s5, 0")
    e("s_add_u32 s8, s8, 0x%x" % KVI)
    e("s_addc_u32 s9, s9, 0")
    e("s_mov_b32 s10, %d" % KVHEAD)
    e("s_mov_b32 s11, 0x00020000")
    k.srd(16, 4, 0, WS_SIZE)
    e("buffer_load_dwordx4 %s, v1, s[16:19], s37 offen" % vr(Q1, 4))
    e("buffer_load_dword v%d, v7, s[16:19], s37 offen offset:1024" % Q2)
    def dma(i):
        if i == 9:
            e("s_min_u32 s39, s39, s43")
        e("s_mov_b32 m0, s39")
        e("s_nop 0")
        e("buffer_load_dwordx4 v1, s[8:11], s39 offen lds")
        e("s_add_u32 s39, s39, 8192")

    dma(0)
    dma(1)
    e("v_add_u32 v%d, s42, v1" % vK1b)
    e("v_add_u32 v8, 1024, v7")
    e("v_add_u32 v%d, s42, v8" % vK2b)
    e("v_min_u32 v8, 18, v5")
    e("v_lshlrev_b32 v8, 4, v8")
    e("v_mul_u32_u24 v9, 320, v6")
    e("v_add3_u32 v8, v8, v9, s42")
    e("v_add_u32 v%d, 1152, v8" % vVb)
    for i in range(1, 4):
        e("v_mov_b32 v%d, 0" % (Q2 + i))
        e("v_mov_b32 v%d, 0" % (K2 + i))
    e("v_cmp_eq_u32 vcc, 0, v6")
    e("s_waitcnt vmcnt(2)")
    e("v_cndmask_b32 v%d, 0, v%d, vcc" % (Q2, Q2))
    e("s_mov_b32 s50, 0")

    def seg_wait(c):
        ntiles = sum(SEGS[:c + 1]) + 1
        need = min(-(-(ntiles * 2432) // 1024), 76)
        n = min((need - 1) // 8 + 1, 10)
        issued = 2 + min(sum(SEGS[:c]), 8)
        assert issued >= n
        return issued - n

    e("s_waitcnt vmcnt(%d)" % seg_wait(0))
    e("s_barrier")
    k.stamp(1)
    e("ds_read_b128 %s, v%d" % (vr(K1, 4), vK1b))
    e("ds_read_b32 v%d, v%d" % (K2, vK2b))
    e("s_waitcnt lgkmcnt(0)")
    e("v_mfma_f32_32x32x16_bf16 %s, %s, %s, 0" % (vr(SA, 16), vr(K1, 4), vr(Q1, 4)))
    e("v_mfma_f32_32x32x16_bf16 %s, %s, %s, %s" % (vr(SA, 16), vr(K2, 4), vr(Q2, 4), vr(SA, 16)))
    e("s_nop 7")
    e("s_nop 7")
    e("v_max3_f32 v10, v%d, v%d, v%d" % (SA, SA + 1, SA + 2))
    for i in range(3, 15, 2):
        e("v_max3_f32 v10, v10, v%d, v%d" % (SA + i, SA + i + 1))
    e("v_max_f32 v10, v10, v%d" % (SA + 15))
    run = "L_%s_run" % name
    k.lab(run)
    e("v_mov_b32 v11, v10")
    e("s_nop 1")
    e("v_permlane32_swap_b32 v11, v10")
    e("s_nop 1")
    e("v_max_f32 v10, v10, v11")
    e("v_sub_f32 v10, 0, v10")
    for i in range(16):
        e("v_mov_b32 v%d, v10" % (CM + i))
        e("v_mov_b32 v%d, 0" % (O + i))
    e("v_mov_b32 v%d, v%d" % (vK1, vK1b))
    e("v_mov_b32 v%d, v%d" % (vK2, vK2b))
    e("v_mov_b32 v%d, v%d" % (vV, vVb))
    e("ds_read_b128 %s, v%d" % (vr(K1, 4), vK1))
    e("ds_read_b32 v%d, v%d" % (K2, vK2))
    e("s_waitcnt lgkmcnt(0)")
    e("v_mfma_f32_32x32x16_bf16 %s, %s, %s, %s" % (vr(SA, 16), vr(K1, 4), vr(Q1, 4), vr(CM, 16)))
    e("v_mfma_f32_32x32x16_bf16 %s, %s, %s, %s" % (vr(SA, 16), vr(K2, 4), vr(Q2, 4), vr(SA, 16)))
    e("ds_read_b128 %s, v%d offset:2432" % (vr(K1, 4), vK1))
    e("ds_read_b32 v%d, v%d offset:2432" % (K2, vK2))
    e("ds_read_b128 %s, v%d" % (vr(VVa, 4), vV))
    e("ds_read_b128 %s, v%d offset:640" % (vr(VVb, 4), vV))
    e("s_nop 7")

    def body(t, Sc, Sn):
        o = 2432 * (t % 16)
        e("s_waitcnt lgkmcnt(2)")
        e("v_mfma_f32_32x32x16_bf16 %s, %s, %s, %s" % (vr(Sn, 16), vr(K1, 4), vr(Q1, 4), vr(CM, 16)))
        e("v_mfma_f32_32x32x16_bf16 %s, %s, %s, %s" % (vr(Sn, 16), vr(K2, 4), vr(Q2, 4), vr(Sn, 16)))
        e("ds_read_b128 %s, v%d offset:%d" % (vr(K1, 4), vK1, o + 2 * 2432))
        e("ds_read_b32 v%d, v%d offset:%d" % (K2, vK2, o + 2 * 2432))
        for i in range(16):
            e("v_exp_f32 v%d, v%d" % (Sc + i, Sc + i))
            if i & 1 and i >= 3:
                e("v_cvt_pk_bf16_f32 v%d, v%d, v%d" % (P + (i - 3) // 2, Sc + i - 3, Sc + i - 2))
        e("v_cvt_pk_bf16_f32 v%d, v%d, v%d" % (P + 7, Sc + 14, Sc + 15))
        e("s_waitcnt lgkmcnt(2)")
        e("v_mfma_f32_32x32x16_bf16 %s, %s, %s, %s" % (vr(O, 16), vr(VVa, 4), vr(P, 4), vr(O, 16)))
        e("v_mfma_f32_32x32x16_bf16 %s, %s, %s, %s" % (vr(O, 16), vr(VVb, 4), vr(P + 4, 4), vr(O, 16)))
        e("ds_read_b128 %s, v%d offset:%d" % (vr(VVa, 4), vV, o + 2432))
        e("ds_read_b128 %s, v%d offset:%d" % (vr(VVb, 4), vV, o + 2432 + 640))

    t = 0
    for c, nts in enumerate(SEGS):
        if c > 0:
            sk = k.newlab("sk")
            e("s_cmp_lg_u32 s50, 0")
            e("s_cbranch_scc1 %s" % sk)
            e("s_waitcnt vmcnt(%d)" % seg_wait(c))
            e("s_barrier")
            k.lab(sk)
        for i in range(nts):
            if t == 16:
                e("v_add_u32 v%d, %d, v%d" % (vK1, 16 * 2432, vK1))
                e("v_add_u32 v%d, %d, v%d" % (vK2, 16 * 2432, vK2))
                e("v_add_u32 v%d, %d, v%d" % (vV, 16 * 2432, vV))
            if t < 8:
                sk = k.newlab("sd")
                e("s_cmp_lg_u32 s50, 0")
                e("s_cbranch_scc1 %s" % sk)
                dma(t + 2)
                k.lab(sk)
            if t & 1:
                body(t, SB, SA)
            else:
                body(t, SA, SB)
            t += 1
    e("s_waitcnt lgkmcnt(0)")
    k.stamp(2)
    e("s_nop 7")
    e("s_nop 7")
    e("v_max3_f32 v10, |v%d|, |v%d|, |v%d|" % (O, O + 1, O + 2))
    for i in range(3, 11, 2):
        e("v_max3_f32 v10, v10, |v%d|, |v%d|" % (O + i, O + i + 1))
    e("v_max_f32 v10, v10, |v%d|" % (O + 11))
    e("v_add_f32 v11, v%d, v%d" % (O, O + 1))
    for i in range(2, 12):
        e("v_add_f32 v11, v11, v%d" % (O + i))
    e("v_mov_b32 v12, 0x%x" % f2u(2.0 ** (-100 if EXP.get("forcefb") else 100)))
    e("v_cmp_nlt_f32 vcc, v10, v12")
    e("v_cmp_u_f32 s[52:53], v11, v11")
    e("s_nop 3")
    e("s_or_b64 vcc, vcc, s[52:53]")
    e("s_cmp_lg_u32 s50, 0")
    fin = "L_%s_fin" % name
    e("s_cbranch_scc1 %s" % fin)
    e("s_cbranch_vccz %s" % fin)
    e("s_mov_b32 s50, 1")
    e("v_mov_b32 v%d, v%d" % (vK1, vK1b))
    e("v_mov_b32 v%d, v%d" % (vK2, vK2b))
    e("v_mov_b32 v10, 0xff800000")
    e("s_mov_b32 s51, 0")
    fl = "L_%s_fl" % name
    k.lab(fl)
    e("ds_read_b128 %s, v%d" % (vr(K1, 4), vK1))
    e("ds_read_b32 v%d, v%d" % (K2, vK2))
    e("s_waitcnt lgkmcnt(0)")
    e("v_mfma_f32_32x32x16_bf16 %s, %s, %s, 0" % (vr(SA, 16), vr(K1, 4), vr(Q1, 4)))
    e("v_mfma_f32_32x32x16_bf16 %s, %s, %s, %s" % (vr(SA, 16), vr(K2, 4), vr(Q2, 4), vr(SA, 16)))
    e("s_nop 7")
    e("s_nop 7")
    for i in range(0, 16, 2):
        e("v_max3_f32 v10, v10, v%d, v%d" % (SA + i, SA + i + 1))
    e("v_add_u32 v%d, 2432, v%d" % (vK1, vK1))
    e("v_add_u32 v%d, 2432, v%d" % (vK2, vK2))
    e("s_add_u32 s51, s51, 1")
    e("s_cmp_lt_u32 s51, 32")
    e("s_cbranch_scc1 %s" % fl)
    e("s_branch %s" % run)
    k.lab(fin)
    e("s_barrier")
    e("s_mul_i32 s37, s41, 4096")
    e("v_add_u32 v1, s37, v1")
    e("s_cmp_eq_u32 s40, 0")
    lo = "L_%s_lo" % name
    e("s_cbranch_scc1 %s" % lo)
    e("v_mov_b32 v%d, v%d" % (O + 10, CM))
    for i in range(3):
        e("ds_write_b128 v1, %s offset:%d" % (vr(O + 4 * i, 4), 1024 * i))
    e("s_waitcnt lgkmcnt(0)")
    e("s_barrier")
    e("s_endpgm")
    k.lab(lo)
    e("s_barrier")
    for i in range(3):
        e("ds_read_b128 %s, v1 offset:%d" % (vr(SA + 4 * i, 4), 1024 * i))
    e("s_waitcnt lgkmcnt(0)")
    e("v_min_f32 v10, v%d, v%d" % (CM, SA + 10))
    e("v_sub_f32 v11, v10, v%d" % CM)
    e("v_sub_f32 v12, v10, v%d" % (SA + 10))
    e("v_exp_f32 v11, v11")
    e("v_exp_f32 v12, v12")
    e("s_nop 0")
    for i in list(range(10)) + [11]:
        e("v_mul_f32 v%d, v11, v%d" % (O + i, O + i))
        e("v_fmac_f32 v%d, v12, v%d" % (O + i, SA + i))
    e("v_rcp_f32 v10, v%d" % (O + 11))
    e("s_nop 0")
    for i in range(10):
        e("v_mul_f32 v%d, v10, v%d" % (O + i, O + i))
    for i in range(5):
        e("v_cvt_pk_bf16_f32 v%d, v%d, v%d" % (O + i, O + 2 * i, O + 2 * i + 1))
    e("s_lshl_b32 s37, s36, 1")
    e("v_lshrrev_b32 v12, 4, v5")
    e("v_add_u32 v12, s37, v12")
    e("v_mul_u32_u24 v12, 18432, v12")
    e("v_and_b32 v13, 15, v5")
    e("v_lshl_add_u32 v12, v13, 4, v12")
    e("v_add_u32 v12, 0x%x, v12" % OB)
    e("s_mul_i32 s37, s30, 18")
    e("v_lshlrev_b32 v13, 2, v6")
    e("v_add_u32 v13, s37, v13")
    e("v_cmp_eq_u32 vcc, 0, v6")
    for i, dd in enumerate([0, 2, 8, 10, 16]):
        e("v_add_u32 v14, %d, v13" % dd)
        e("v_lshrrev_b32 v15, 3, v14")
        e("v_and_b32 v14, 7, v14")
        e("v_lshl_add_u32 v15, v15, 8, v12")
        e("v_lshl_add_u32 v15, v14, 1, v15")
        if dd == 16:
            e("v_mov_b32 v14, 0x40000000")
            e("v_cndmask_b32 v15, v14, v15, vcc")
        e("buffer_store_dword v%d, v15, s[16:19], 0 offen" % (O + i))
    k.stamp(3)
    k.rstamp(5)
    k.dump()
    k.lab(end)
    e("s_endpgm")
    return k


def gen_out(name, kind, xsrc, xdst, layer, fused=False, fid=0, k=None):
    OA_BASE = 81 * 1024
    lds = OA_BASE + (72 * 1024 if kind == 'A' else 0)
    chained = k is not None
    if chained:
        k.vgpr = max(k.vgpr, 216)
        k.lds = max(k.lds, lds)
        name = k.newlab("o")[2:]
    else:
        k = Kern(name, 216 if kind == 'A' else 136, lds, (256, 1, 1), (512, 1, 1))
    SC = " sc1" if fused else ""
    LSC = ""
    e = k.e
    ACC = 16
    XRES = 36
    AF = 48
    BF = 84
    BF2 = [84, 104]
    VL16 = 124 if kind == 'B' else 208
    VB = VL16 + 1
    VB4 = VL16 + 2
    VX = VL16 + 3
    VX4 = VL16 + 4
    VD = VL16 + 5
    VD4 = VL16 + 6
    if chained:
        end = k.endlab
    else:
        end = "L_%s_end" % name
        e("s_cmp_ge_u32 s2, 256")
        e("s_cbranch_scc1 %s" % end)
        e("s_load_dwordx2 s[4:5], s[0:1], %d" % KA_WS)
        if xdst is None:
            e("s_load_dwordx2 s[22:23], s[0:1], %d" % KA_OUT)
        k.stamp(0)
    e("s_and_b32 s28, s2, 7")
    e("s_lshr_b32 s29, s2, 3")
    e("s_and_b32 s30, s29, 7")
    e("s_lshr_b32 s31, s29, 3")
    e("s_lshl_b32 s28, s28, 2")
    e("s_add_u32 s31, s31, s28")
    e("v_lshrrev_b32 v4, 6, v0")
    e("v_and_b32 v3, 63, v0")
    e("v_readfirstlane_b32 s35, v4")
    e("v_and_b32 v5, 15, v3")
    e("v_lshrrev_b32 v6, 4, v3")
    e("v_lshlrev_b32 v%d, 4, v3" % VL16)
    e("s_and_b32 s36, s35, 3")
    e("s_lshr_b32 s37, s35, 2")
    e("s_lshl_b32 s38, s31, 2")
    e("s_add_u32 s38, s38, s36")
    e("s_mul_i32 s39, s38, 18432")
    e("s_mul_i32 s33, s30, %d" % (81 * 1024))
    e("s_lshl_b32 s52, s35, 10")
    e("s_waitcnt lgkmcnt(0)")
    k.srd(8, 4, xsrc, XB)
    k.srd(12, 4, WOA if kind == 'A' else WOB, WO_SZ)
    if xdst is None:
        k.srd(24, 22, 0, XB)
    else:
        k.srd(24, 4, xdst, XB)
    if kind == 'A':
        k.srd(16, 4, PQF, PQF_SZ)
        k.srd(44, 4, KVACC + layer * KVACC_L, KVACC_L)
    else:
        k.srd(16, 4, OB, XB)
    k.srd(56, 4, STATV.get(xdst, STATS), 2048 * 64)

    def wdma(lo, hi):
        for i in range(lo, hi):
            if 8 * i + 7 < 81:
                e("s_add_u32 m0, s52, %d" % (8192 * i))
                e("s_add_u32 s34, m0, s33")
            else:
                e("s_add_u32 s54, s52, %d" % (8192 * i))
                e("s_min_u32 m0, s54, %d" % (80 * 1024))
                e("s_add_u32 s34, m0, s33")
            e("buffer_load_dwordx4 v%d, s[12:15], s34 offen lds" % VL16)

    if chained:
        sk = k.newlab("nw")
        lp = k.newlab("poll")
        po = k.newlab("po")
        e("s_cmp_eq_u32 s35, 0")
        e("s_cbranch_scc1 %s" % po)
        wdma(0, 11)
        e("s_cmp_lg_u32 s35, 1")
        e("s_cbranch_scc1 %s" % sk)
        e("s_mov_b32 s52, 0")
        wdma(0, 11)
        e("s_branch %s" % sk)
        k.lab(po)
        e("s_mov_b32 s40, 0")
        k.lab(lp)
        e("buffer_load_dwordx4 v[8:11], v%d, s[20:23], 0 offen sc1" % VL16)
        e("s_waitcnt vmcnt(0)")
        e("v_and_b32 v8, v8, v9")
        e("v_and_b32 v10, v10, v11")
        e("v_and_b32 v8, v8, v10")
        e("v_cmp_ne_u32 vcc, 1, v8")
        e("s_add_u32 s40, s40, 1")
        e("s_nop 3")
        e("s_cbranch_vccz %s" % sk)
        e("s_sleep 1")
        e("s_cmp_lt_u32 s40, 0x400000")
        e("s_cbranch_scc1 %s" % lp)
        k.lab(sk)
        e("s_barrier")

    if kind == 'B':
        e("s_mul_i32 s40, s37, 9216")
        e("s_add_u32 s40, s40, s39")
        for i in range(9):
            e("buffer_load_dwordx4 %s, v%d, s[16:19], s40 offen offset:%d" % (vr(AF + 4 * i, 4), VL16, (1024 * i) % 4096))
            if i % 4 == 3:
                e("s_add_u32 s40, s40, 4096")
    else:
        KVR, PQR, DD = 48, 96, 160
        e("v_and_b32 v1, 31, v3")
        e("v_lshrrev_b32 v2, 5, v3")
        e("s_mul_i32 s40, s35, %d" % (4 * 2432))
        e("v_min_u32 v8, 18, v1")
        e("v_lshlrev_b32 v8, 7, v8")
        e("v_add_u32 v9, s40, v8")
        e("v_lshl_add_u32 v8, v2, 5, v9")
        e("v_lshlrev_b32 v10, 2, v1")
        e("s_lshl_b32 s41, s31, 6")
        e("s_lshl_b32 s42, s35, 2")
        e("s_add_u32 s41, s41, s42")
        e("s_mul_i32 s55, s41, 1152")
        for hh in range(4):
            for t in range(2):
                for i in range(1, 4):
                    e("v_mov_b32 v%d, 0" % (PQR + 16 * hh + 8 * t + 4 + i))

        def s1load(hh):
            e("s_mov_b32 s34, %d" % (hh * 2432))
            e("buffer_load_dwordx4 %s, v8, s[44:47], s34 offen%s" % (vr(KVR + 12 * hh, 4), LSC))
            e("buffer_load_dwordx4 %s, v8, s[44:47], s34 offen offset:16%s" % (vr(KVR + 12 * hh + 4, 4), LSC))
            e("buffer_load_dwordx2 %s, v9, s[44:47], s34 offen offset:64%s" % (vr(KVR + 12 * hh + 8, 2), LSC))
            for t in range(2):
                e("s_add_u32 s34, s55, %d" % (t * 32 * 1152 + hh * 1152))
                e("buffer_load_dwordx4 %s, v%d, s[16:19], s34 offen%s" % (vr(PQR + 16 * hh + 8 * t, 4), VL16, LSC))
                e("buffer_load_dword v%d, v10, s[16:19], s34 offen offset:1024%s" % (PQR + 16 * hh + 8 * t + 4, LSC))

        s1load(0)
        s1load(1)
    if kind == 'B':
        wdma(0, 11)
    e("s_lshr_b32 s40, s38, 1")
    e("s_mul_i32 s40, s40, 36864")
    e("s_and_b32 s41, s38, 1")
    e("s_lshl_b32 s41, s41, 8")
    e("s_add_u32 s40, s40, s41")
    e("s_mul_i32 s41, s30, 4608")
    e("s_add_u32 s40, s40, s41")
    e("v_lshrrev_b32 v7, 1, v6")
    e("v_lshlrev_b32 v7, 9, v7")
    e("v_lshl_add_u32 v7, v5, 4, v7")
    e("v_and_b32 v11, 1, v6")
    e("v_lshl_add_u32 v7, v11, 3, v7")
    e("v_add_u32 v%d, s40, v7" % VX)
    e("v_cmp_gt_u32 vcc, 2, v6")
    e("v_mov_b32 v11, 0x40000000")
    e("s_nop 0")
    e("v_cndmask_b32 v%d, v11, v%d, vcc" % (VX4, VX))
    if xdst is None:
        e("s_lshl_b32 s40, s38, 4")
        e("v_add_u32 v7, s40, v5")
        e("v_mul_u32_u24 v7, 1152, v7")
        e("v_lshl_add_u32 v7, v6, 3, v7")
        e("s_mul_i32 s40, s30, 144")
        e("v_add_u32 v%d, s40, v7" % VD)
        e("v_cndmask_b32 v%d, v11, v%d, vcc" % (VD4, VD))
    def xres():
        for t in range(5):
            e("s_mov_b32 s34, %d" % (1024 * t))
            e("buffer_load_dwordx2 %s, v%d, s[8:11], s34 offen%s" % (vr(XRES + 2 * t, 2), VX4 if t == 4 else VX, LSC))

    if kind == 'B':
        xres()
    e("s_mul_i32 s40, s37, %d" % (4 * 9216))
    e("v_add_u32 v%d, s40, v%d" % (VB, VL16))
    e("v_and_b32 v7, 7, v5")
    e("v_lshlrev_b32 v7, 4, v7")
    e("v_lshl_add_u32 v7, v6, 7, v7")
    e("v_add_u32 v%d, s40, v7" % VB4)
    for i in range(20):
        e("v_mov_b32 v%d, 0" % (ACC + i))
    if kind == 'A':
        e("s_mul_i32 s41, s35, 2304")
        e("s_add_u32 s41, s41, %d" % OA_BASE)
        e("v_lshrrev_b32 v11, 4, v1")
        e("v_mul_u32_u24 v11, 18432, v11")
        e("v_and_b32 v12, 15, v1")
        e("v_lshl_add_u32 v11, v12, 4, v11")
        e("v_add_u32 v11, s41, v11")
        e("s_mov_b32 s42, 0x%x" % f2u(1e-6))
        e("v_cmp_eq_u32 s[48:49], 0, v2")
        for hh in range(4):
            kv = KVR + 12 * hh
            k.stamp(7 + 2 * hh)
            e("s_waitcnt vmcnt(%d)" % ([7, 7, 7, 0] if chained else [7, 7, 7, 6])[hh])
            k.stamp(8 + 2 * hh)
            for i in range(5):
                e("v_cvt_pk_bf16_f32 v%d, v%d, v%d" % (kv + i, kv + 2 * i, kv + 2 * i + 1))
            for i in range(5, 8):
                e("v_mov_b32 v%d, 0" % (kv + i))
            for t in range(2):
                q2 = PQR + 16 * hh + 8 * t + 4
                e("v_cndmask_b32 v%d, 0, v%d, s[48:49]" % (q2, q2))
            e("s_nop 1")
            for t in range(2):
                q1 = PQR + 16 * hh + 8 * t
                e("v_mfma_f32_32x32x16_bf16 %s, %s, %s, 0" % (vr(DD + 16 * t, 16), vr(kv, 4), vr(q1, 4)))
                e("v_mfma_f32_32x32x16_bf16 %s, %s, %s, %s" % (vr(DD + 16 * t, 16), vr(kv + 4, 4), vr(q1 + 4, 4), vr(DD + 16 * t, 16)))
            if hh < 2:
                s1load(hh + 2)
            elif hh == 2:
                if not chained:
                    wdma(0, 6)
            else:
                if not chained:
                    wdma(6, 11)
                xres()
            lo, hi = [], []
            for i, dd in enumerate([0, 2, 8, 10, 16]):
                for h in range(2):
                    c = 18 * hh + dd + 4 * h
                    off = (c >> 3) * 256 + (c & 7) * 2
                    if not (dd == 16 and h == 1):
                        (lo if h == 0 else hi).append("v_add_u32 v%d, %d, v11" % (192 + i, off))
            half_ops(k, lo, hi)
            e("s_nop 3")
            for t in range(2):
                d = DD + 16 * t
                e("v_add_f32 v%d, s42, v%d" % (d + 12, d + 11))
            for t in range(2):
                d = DD + 16 * t
                e("v_rcp_f32 v%d, v%d" % (d + 12, d + 12))
            for t in range(2):
                d = DD + 16 * t
                e("v_mov_b32 v%d, v%d" % (d + 13, d + 12))
            for t in range(2):
                d = DD + 16 * t
                for i in range(5):
                    e("v_pk_mul_f32 %s, %s, %s" % (vr(d + 2 * i, 2), vr(d + 2 * i, 2), vr(d + 12, 2)))
                    e("v_cvt_pk_bf16_f32 v%d, v%d, v%d" % (d + 2 * i, d + 2 * i, d + 2 * i + 1))
                    if i == 4:
                        e("s_mov_b32 exec_hi, 0")
                    e("ds_write_b32 v%d, v%d offset:%d" % (192 + i, d + 2 * i, t * 36864))
                    if i == 4:
                        e("s_mov_b32 exec_hi, -1")
        e("s_mul_i32 s40, s36, 18432")
        e("s_mul_i32 s41, s37, 9216")
        e("s_add_u32 s40, s40, s41")
        e("s_add_u32 s40, s40, %d" % OA_BASE)
        e("v_add_u32 v7, s40, v%d" % VL16)
    k.stamp(1)
    e("s_waitcnt vmcnt(0) lgkmcnt(0)")
    e("s_barrier")
    k.stamp(2)
    if kind == 'A':
        for i in range(9):
            e("ds_read_b128 %s, v7 offset:%d" % (vr(AF + 4 * i, 4), 1024 * i))
    l1 = "L_%s_k1" % name
    lj = "L_%s_kj" % name
    e("s_cmp_eq_u32 s37, 1")
    e("s_cbranch_scc1 %s" % l1)
    for kh in range(2):
        if kh == 1:
            k.lab(l1)
        def bread(i):
            bf = BF2[i & 1]
            sl = i + kh
            po = (sl >> 1) * 9216
            for t in range(4):
                e("ds_read_b128 %s, v%d offset:%d" % (vr(bf + 4 * t, 4), VB, po + (sl & 1) * 4096 + t * 1024))
            e("ds_read_b128 %s, v%d offset:%d" % (vr(bf + 16, 4), VB4, po + 8192 + (sl & 1) * 512))

        bread(0)
        for i in range(9):
            if i + 1 < 9:
                bread(i + 1)
                e("s_waitcnt lgkmcnt(5)")
            else:
                e("s_waitcnt lgkmcnt(0)")
            bf = BF2[i & 1]
            for t in range(5):
                e("v_mfma_f32_16x16x32_bf16 %s, %s, %s, %s" % (vr(ACC + 4 * t, 4), vr(bf + 4 * t, 4), vr(AF + 4 * i, 4), vr(ACC + 4 * t, 4)))
        k.stamp(4)
        e("s_barrier")
        e("s_mul_i32 s40, s36, 5120")
        e("v_add_u32 v7, s40, v%d" % VL16)
        if kh == 1:
            e("s_nop 7")
            for t in range(5):
                e("ds_write_b128 v7, %s offset:%d" % (vr(ACC + 4 * t, 4), 1024 * t))
            e("s_waitcnt lgkmcnt(0)")
            e("s_barrier")
            if not fused:
                e("s_endpgm")
        else:
            e("s_barrier")
            for t in range(5):
                e("ds_read_b128 %s, v7 offset:%d" % (vr(BF + 4 * t, 4), 1024 * t))
            e("s_waitcnt lgkmcnt(0)")
            for t in range(5):
                a = ACC + 4 * t
                x = XRES + 2 * t
                e("v_lshlrev_b32 v8, 16, v%d" % x)
                e("v_and_b32 v9, 0xffff0000, v%d" % x)
                e("v_lshlrev_b32 v10, 16, v%d" % (x + 1))
                e("v_and_b32 v11, 0xffff0000, v%d" % (x + 1))
                for r in range(4):
                    e("v_add_f32 v%d, v%d, v%d" % (a + r, a + r, BF + 4 * t + r))
                    e("v_add_f32 v%d, v%d, v%d" % (a + r, a + r, 8 + r))
                e("v_cvt_pk_bf16_f32 v%d, v%d, v%d" % (a, a, a + 1))
                e("v_cvt_pk_bf16_f32 v%d, v%d, v%d" % (a + 1, a + 2, a + 3))
                if xdst is None:
                    e("buffer_store_dwordx2 %s, v%d, s[24:27], 0 offen offset:%d" % (vr(a, 2), VD4 if t == 4 else VD, 32 * t))
                else:
                    e("s_mov_b32 s34, %d" % (1024 * t))
                    e("buffer_store_dwordx2 %s, v%d, s[24:27], s34 offen%s" % (vr(a, 2), VX4 if t == 4 else VX, SC))
            if xdst is not None:
                e("s_mov_b32 s42, 0x3f803f80")
                e("v_cmp_gt_u32 vcc, 2, v6")
                e("v_mov_b32 v8, 0")
                e("v_mov_b32 v9, 0")
                e("v_cndmask_b32 v%d, 0, v%d, vcc" % (ACC + 18, ACC + 16))
                e("v_cndmask_b32 v%d, 0, v%d, vcc" % (ACC + 19, ACC + 17))
                for t in range(5):
                    for i in range(2):
                        r = ACC + 4 * t + i + (2 if t == 4 else 0)
                        e("v_dot2_f32_bf16 v8, v%d, s42, v8" % r)
                        e("v_dot2_f32_bf16 v9, v%d, v%d, v9" % (r, r))
                e("s_nop 2")
                e("v_mov_b32 v10, v8")
                e("v_mov_b32 v11, v9")
                e("s_nop 1")
                e("v_permlane16_swap_b32 v10, v8")
                e("v_permlane16_swap_b32 v11, v9")
                e("s_nop 1")
                e("v_add_f32 v8, v8, v10")
                e("v_add_f32 v9, v9, v11")
                e("v_mov_b32 v10, v8")
                e("v_mov_b32 v11, v9")
                e("s_nop 1")
                e("v_permlane32_swap_b32 v10, v8")
                e("v_permlane32_swap_b32 v11, v9")
                e("s_nop 1")
                e("v_add_f32 v8, v8, v10")
                e("v_add_f32 v9, v9, v11")
                e("s_lshl_b32 s40, s38, 10")
                e("s_lshl_b32 s41, s30, 3")
                e("s_add_u32 s40, s40, s41")
                e("v_lshlrev_b32 v10, 6, v5")
                e("v_cmp_eq_u32 vcc, 0, v6")
                e("v_mov_b32 v11, 0x40000000")
                e("s_nop 0")
                e("v_cndmask_b32 v10, v11, v10, vcc")
                e("buffer_store_dwordx2 v[8:9], v10, s[56:59], s40 offen%s" % SC)
            if fused:
                e("s_waitcnt vmcnt(0)")
                e("s_branch %s" % lj)
                continue
            k.stamp(5)
            if STAMPS:
                e("s_waitcnt vmcnt(0)")
            k.stamp(6)
            k.dump()
            e("s_endpgm")
    if fused:
        k.lab(lj)
        e("s_barrier")
        k.srd(20, 4, FLAGS + fid * 2048, 2048)
        sk = k.newlab("sig")
        e("s_cmp_lg_u32 s35, 0")
        e("s_cbranch_scc1 %s" % sk)
        e("s_lshr_b32 s40, s31, 1")
        e("s_lshl_b32 s40, s40, 7")
        e("s_and_b32 s41, s31, 1")
        e("s_lshl_b32 s41, s41, 3")
        e("s_add_u32 s41, s41, s30")
        e("s_lshl_b32 s41, s41, 2")
        e("s_add_u32 s40, s40, s41")
        e("v_mov_b32 v8, 1")
        e("v_mov_b32 v9, 0")
        e("s_mov_b64 exec, 1")
        e("buffer_store_dword v8, v9, s[20:23], s40 offen sc1")
        e("s_mov_b64 exec, -1")
        k.lab(sk)
        k.endlab = end
        return k
    k.lab(end)
    e("s_endpgm")
    return k


def main():
    fa = gen_qkv('A', params=[(58, X0F), (59, KVACC)], chain=0, kname="fa_kernel")
    fa = gen_out(None, 'A', X0F, X1, 0, fused=True, fid=1, k=fa)
    fa = gen_qkv('B', fa, [(58, X1), (59, 0)])
    fb = gen_out("fb_kernel", 'B', X1, X2, 0, fused=True, fid=2)
    fb = gen_qkv('A', fb, [(58, X2), (59, KVACC + KVACC_L)], chain=3)
    fb = gen_out(None, 'A', X2, X3, 1, fused=True, fid=4, k=fb)
    fb = gen_qkv('B', fb, [(58, X3), (59, 0)])
    ks = [
        gen_prep(),
        fa, fb,
        gen_attn("attn_kernel"),
        gen_out("out_b2_kernel", 'B', X3, None, 1),
    ]
    byname = {k.name: k for k in ks}
    order = ["prep_kernel", "fa_kernel", "attn_kernel", "fb_kernel", "attn_kernel", "out_b2_kernel"]
    hdr = open("cdna_kernels/%s.s.ref" % NAME).read().split("; Override launch geometry")[0]
    out = hdr
    for n in order:
        k = byname[n]
        out += "; @launch kernel=%s grid=(%d,%d,%d) block=(%d,%d,%d) lds=%d\n" % ((n,) + k.grid + k.block + (k.lds,))
    out += '.amdgcn_target "amdgcn-amd-amdhsa--gfx950"\n.text\n'
    for k in ks:
        if getattr(k, "nodesc", False):
            out += ".p2align 8\n%s:\n" % k.name + "\n".join(k.L) + "\n"
        else:
            out += k.text()
    out += '.section .rodata,"a"\n'
    for k in ks:
        if not getattr(k, "nodesc", False):
            out += ".p2align 6\n" + k.desc()
    dst = "cdna_kernels/%s.s" % NAME
    if STAMPS:
        dst = OUTFILE
    open(dst, "w").write(out)


if __name__ == "__main__":
    if len(sys.argv) > 1 and sys.argv[1] == "stamps":
        STAMPS = True
        for a in sys.argv[2:]:
            if a.startswith("out="):
                OUTFILE = a[4:]
            elif a.startswith("wg="):
                STAMP_WG = int(a[3:])
            elif "=" in a:
                EXP[a.split("=")[0]] = a.split("=")[1]
            else:
                EXP[a] = True
    main()
```

```python
import sys, re

NAME = "interleave_layers__linear_attn_block__mha_block__prompt"

XB = 2048 * 576 * 2
X1 = 0x0
X2 = 0x240000
X3 = 0x480000
PQ = 0x6C0000
OB = 0x900000
QPI = 0xB40000
QHEAD = 64 * 1152
KVI = 0xF40000
KVHEAD = 64 * 2432
KVACC = 0x1400000
KVACC_L = 32 * 19 * 32 * 4
WFA = 0x2000000
WFB = 0x2240000
WF_SZ = 8 * 36 * 8 * 1024
STATS = 0x1500000
STATV = {}
WOA = 0x1840000
WOB = 0x1900000
WO_SZ = 8 * 81 * 1024
CS = 0x1480000
CS_MAT = 3 * 16 * 512
PQF = 0x1A00000
PQF_SZ = 64 * 32 * 1152
X0F = 0x1D00000
STATV.update({X0F: STATS, X1: STATS + 0x20000, X2: STATS + 0x40000, X3: STATS + 0x60000})
FLAGS = KVACC + 2 * KVACC_L
WS_SIZE = 0x2500000

LOG2E = 1.4426950408889634
QSCALE = (18.0 ** -0.5) * LOG2E

import struct
def f2u(x):
    return struct.unpack("<I", struct.pack("<f", x))[0]


EXP = {}
STAMPS = False
STAMP_WG = 0


class Kern:
    def __init__(self, name, vgpr, lds, grid, block):
        self.name = name
        self.vgpr = vgpr
        self.lds = lds
        self.grid = grid
        self.block = block
        self.L = []
        self.uid = 0

    def e(self, s):
        m = re.search(r"offset:(\d+)", s)
        if m:
            o = int(m.group(1))
            if s.startswith("buffer_"):
                assert o <= 4095, s
            elif s.startswith("ds_"):
                assert o <= 65535, s
        self.L.append("    " + s)

    def lab(self, s):
        self.L.append(s + ":")

    def newlab(self, p):
        self.uid += 1
        return "L_%s_%s%d" % (self.name, p, self.uid)

    def srd(self, d, b, off, size):
        if off:
            self.e("s_add_u32 s%d, s%d, 0x%x" % (d, b, off))
            self.e("s_addc_u32 s%d, s%d, 0" % (d + 1, b + 1))
        else:
            self.e("s_mov_b32 s%d, s%d" % (d, b))
            self.e("s_mov_b32 s%d, s%d" % (d + 1, b + 1))
        self.e("s_mov_b32 s%d, 0x%x" % (d + 2, size))
        self.e("s_mov_b32 s%d, 0x00020000" % (d + 3))

    def rstamp(self, i):
        if STAMPS:
            self.e("s_memrealtime s[%d:%d]" % (64 + 2 * i, 65 + 2 * i))
            self.nst = max(getattr(self, "nst", 0), i + 1)

    def stamp(self, i):
        if STAMPS:
            self.e("s_memtime s[%d:%d]" % (64 + 2 * i, 65 + 2 * i))
            self.nst = max(getattr(self, "nst", 0), i + 1)

    def dump(self):
        if STAMPS and getattr(self, "nst", 0):
            l = self.newlab("nd")
            self.e("s_cmp_lg_u32 s2, %d" % STAMP_WG)
            self.e("s_cbranch_scc1 %s" % l)
            self.e("s_load_dwordx2 s[60:61], s[0:1], %d" % KA_DBG)
            self.e("s_waitcnt lgkmcnt(0)")
            self.e("s_mov_b32 s62, 256")
            self.e("s_mov_b32 s63, 0x00020000")
            self.e("v_lshrrev_b32 v1, 6, v0")
            if EXP.get("hiwaves"):
                self.e("v_xor_b32 v1, 4, v1")
            self.e("v_lshlrev_b32 v1, 6, v1")
            if getattr(self, "endlab", None):
                self.e("v_add_u32 v1, 128, v1")
            for i in range(self.nst):
                self.e("v_mov_b32 v2, s%d" % (64 + 2 * i))
                self.e("buffer_store_dword v2, v1, s[60:63], 0 offen offset:%d" % (4 * i))
            self.lab(l)

    def text(self):
        if getattr(self, "stub", None):
            return (".globl %s\n.p2align 8\n.type %s,@function\n%s:\n" % (self.name, self.name, self.name)
                    + "".join("    %s\n" % x for x in self.stub))
        out = []
        out.append(".globl %s" % self.name)
        out.append(".p2align 8")
        out.append(".type %s,@function" % self.name)
        out.append("%s:" % self.name)
        out += self.L
        return "\n".join(out) + "\n"

    def desc(self):
        v = (self.vgpr + 3) // 4 * 4
        return """.amdhsa_kernel %s
  .amdhsa_next_free_vgpr %d
  .amdhsa_next_free_sgpr 96
  .amdhsa_accum_offset %d
  .amdhsa_group_segment_fixed_size 0
  .amdhsa_kernarg_size 72
  .amdhsa_user_sgpr_count 2
  .amdhsa_user_sgpr_kernarg_segment_ptr 1
  .amdhsa_system_sgpr_workgroup_id_x 1
.end_amdhsa_kernel
""" % (self.name, v, v)


def vr(a, n):
    return "v[%d:%d]" % (a, a + n - 1)


KA_AX, KA_AWQKV, KA_AWO, KA_BX, KA_BWQKV, KA_BWO, KA_OUT, KA_DBG, KA_WS = [8 * i for i in range(9)]


OUTFILE = 'st.s'
PB_ROW = 288
OB_ROW = 160


def gen_prep():
    NQ = 96
    NO = 96
    NZ = 0
    NX = 64
    GL = 64 * PB_ROW
    k = Kern("prep_kernel", 96, 3 * GL + 4096, (NQ + NO + NZ + NX, 1, 1), (768, 1, 1))
    e = k.e
    e("s_cmp_ge_u32 s2, %d" % (NQ + NO + NZ + NX))
    e("s_cbranch_scc1 L_prep_end")
    e("s_load_dwordx2 s[4:5], s[0:1], %d" % KA_WS)
    e("s_load_dwordx2 s[20:21], s[0:1], %d" % KA_AWQKV)
    e("s_load_dwordx2 s[22:23], s[0:1], %d" % KA_BWQKV)
    e("s_load_dwordx2 s[24:25], s[0:1], %d" % KA_AWO)
    e("s_load_dwordx2 s[26:27], s[0:1], %d" % KA_BWO)
    e("s_load_dwordx2 s[44:45], s[0:1], %d" % KA_AX)
    k.stamp(0)
    e("v_and_b32 v3, 63, v0")
    e("v_lshrrev_b32 v4, 6, v0")
    e("v_and_b32 v0, 255, v0")
    e("v_readfirstlane_b32 s35, v4")
    e("v_lshlrev_b32 v5, 4, v3")
    e("v_lshrrev_b32 v6, 4, v3")
    e("v_lshrrev_b32 v8, 2, v3")
    e("v_and_b32 v8, 3, v8")
    e("v_and_b32 v9, 3, v3")
    e("s_lshr_b32 s46, s35, 2")
    e("s_and_b32 s35, s35, 3")
    e("s_mul_i32 s47, s46, %d" % GL)
    e("s_waitcnt lgkmcnt(0)")
    k.srd(16, 4, 0, WS_SIZE)
    e("s_cmp_ge_u32 s2, %d" % (NQ + NO))
    e("s_cbranch_scc1 L_prep_misc")
    e("s_cmp_ge_u32 s2, %d" % NQ)
    e("s_cbranch_scc1 L_prep_wo")
    e("s_cmp_ge_u32 s2, 48")
    e("s_cselect_b32 s30, 1, 0")
    e("s_mul_i32 s31, s30, 48")
    e("s_sub_u32 s31, s2, s31")
    e("s_mul_i32 s32, s31, 21846")
    e("s_lshr_b32 s32, s32, 16")
    e("s_mul_i32 s33, s32, 3")
    e("s_sub_u32 s33, s31, s33")
    e("s_mul_i32 s48, s33, 6")
    e("s_lshl_b32 s49, s46, 1")
    e("s_add_u32 s48, s48, s49")
    e("s_cmp_eq_u32 s30, 0")
    e("s_cselect_b32 s8, s20, s22")
    e("s_cselect_b32 s9, s21, s23")
    e("s_mov_b32 s10, %d" % (576 * 3456))
    e("s_mov_b32 s11, 0x00020000")
    e("s_cselect_b32 s36, 1, 0")
    e("s_mul_i32 s37, s32, 72")
    e("s_mul_i32 s38, s48, %d" % (32 * 3456))
    e("s_add_u32 s37, s37, s38")
    for i in range(7):
        e("v_add_u32 v10, %d, v0" % (256 * i))
        if i == 6:
            e("v_min_u32 v10, 1727, v10")
        e("v_mul_u32_u24 v11, 9710, v10")
        e("v_lshrrev_b32 v11, 18, v11")
        e("v_mul_u32_u24 v12, 27, v11")
        e("v_sub_u32 v12, v10, v12")
        e("v_mul_u32_u24 v13, 57, v12")
        e("v_lshrrev_b32 v13, 9, v13")
        e("v_mul_u32_u24 v14, 9, v13")
        e("v_sub_u32 v14, v12, v14")
        e("v_add_u32 v13, s36, v13")
        e("v_cmp_eq_u32 vcc, 3, v13")
        e("s_nop 1")
        e("v_cndmask_b32_e64 v13, v13, 0, vcc")
        e("v_mul_u32_u24 v13, 1152, v13")
        e("v_mul_u32_u24 v15, 3456, v11")
        e("v_add3_u32 v15, v15, v13, s37")
        e("v_lshl_add_u32 v15, v14, 3, v15")
        e("buffer_load_dwordx2 %s, v15, s[8:11], 0 offen" % vr(32 + 2 * i, 2))
        e("v_mul_u32_u24 v15, %d, v11" % PB_ROW)
        e("v_lshl_add_u32 v15, v12, 3, v15")
        e("v_add_u32 v%d, s47, v15" % (20 + i))
    e("v_mov_b32 v28, 0")
    e("v_mov_b32 v29, 0")
    for i in range(2):
        e("v_add_u32 v10, %d, v0" % (256 * i))
        e("v_min_u32 v10, 319, v10")
        e("v_mul_u32_u24 v11, 13108, v10")
        e("v_lshrrev_b32 v11, 16, v11")
        e("v_mul_u32_u24 v12, 5, v11")
        e("v_sub_u32 v12, v10, v12")
        e("v_mul_u32_u24 v11, %d, v11" % PB_ROW)
        e("v_lshl_add_u32 v11, v12, 3, v11")
        e("v_add_u32 v11, s47, v11")
        e("ds_write_b64 v11, v[28:29] offset:216")
    e("v_lshrrev_b32 v7, 1, v6")
    e("v_lshl_add_u32 v7, v7, 3, v8")
    e("v_mul_u32_u24 v7, %d, v7" % PB_ROW)
    e("v_and_b32 v10, 1, v6")
    e("v_lshl_add_u32 v7, v10, 5, v7")
    e("v_lshl_add_u32 v7, v9, 3, v7")
    e("s_lshl_b32 s38, s35, 6")
    e("s_add_u32 s38, s38, s47")
    e("v_add_u32 v7, s38, v7")
    for i in range(4):
        e("v_mov_b32 v%d, 0x3f803f80" % (28 + i))
    e("s_mul_i32 s38, s32, 36")
    e("s_lshl_b32 s39, s48, 1")
    e("s_add_u32 s38, s38, s39")
    e("s_lshl_b32 s38, s38, 2")
    e("s_add_u32 s38, s38, s35")
    e("s_lshl_b32 s38, s38, 10")
    e("s_mul_i32 s39, s30, 0x%x" % (WFB - WFA))
    e("s_add_u32 s38, s38, s39")
    e("s_add_u32 s38, s38, 0x%x" % WFA)
    e("s_lshl_b32 s39, s33, 4")
    e("s_add_u32 s39, s39, s32")
    e("s_lshl_b32 s39, s39, 9")
    e("s_mul_i32 s40, s30, %d" % CS_MAT)
    e("s_add_u32 s39, s39, s40")
    e("s_add_u32 s39, s39, 0x%x" % CS)
    e("s_lshl_b32 s40, s46, 9")
    e("s_lshl_b32 s41, s35, 7")
    e("s_add_u32 s40, s40, s41")
    e("s_add_u32 s40, s40, %d" % (3 * GL))
    e("v_and_b32 v10, 31, v3")
    e("v_lshl_add_u32 v10, v10, 2, s40")
    k.stamp(1)
    e("s_waitcnt vmcnt(0)")
    k.stamp(2)
    for i in range(7):
        e("ds_write_b64 v%d, %s" % (20 + i, vr(32 + 2 * i, 2)))
    e("s_waitcnt lgkmcnt(0)")
    e("s_barrier")
    k.stamp(3)
    for ks in range(4):
        for hf in range(2):
            e("ds_read_b64_tr_b16 %s, v7 offset:%d" % (vr(32 + 4 * ks + 2 * hf, 2), (16 * ks + 4 * hf) * PB_ROW))
    e("s_waitcnt lgkmcnt(0)")
    for ks in range(4):
        c = "0" if ks == 0 else vr(48, 16)
        e("v_mfma_f32_32x32x16_bf16 %s, v[28:31], %s, %s" % (vr(48, 16), vr(32 + 4 * ks, 4), c))
        e("s_add_u32 s40, s38, %d" % (4096 * ks))
        e("buffer_store_dwordx4 %s, v5, s[16:19], s40 offen" % vr(32 + 4 * ks, 4))
    e("s_nop 7")
    e("s_nop 7")
    e("ds_write_b32 v10, v48")
    e("s_waitcnt lgkmcnt(0)")
    e("s_barrier")
    e("s_cmp_lg_u32 s46, 0")
    e("s_cbranch_scc1 L_prep_end")
    e("s_cmp_ge_u32 s35, 2")
    e("s_cbranch_scc1 L_prep_end")
    e("v_lshlrev_b32 v10, 2, v0")
    for i in range(3):
        e("ds_read_b32 v%d, v10 offset:%d" % (12 + i, 3 * GL + 512 * i))
    e("s_waitcnt lgkmcnt(0)")
    e("v_add_f32 v12, v12, v13")
    e("v_add_f32 v12, v12, v14")
    e("buffer_store_dword v12, v10, s[16:19], s39 offen")
    k.stamp(4)
    if STAMPS:
        e("s_waitcnt vmcnt(0)")
    k.stamp(5)
    k.dump()
    e("s_endpgm")
    k.lab("L_prep_wo")
    e("s_sub_u32 s29, s2, %d" % NQ)
    e("s_mul_i32 s29, s29, 3")
    e("s_add_u32 s29, s29, s46")
    e("s_cmp_ge_u32 s29, 144")
    e("s_cselect_b32 s30, 1, 0")
    e("s_mul_i32 s31, s30, 144")
    e("s_sub_u32 s31, s29, s31")
    e("s_mul_i32 s32, s31, 3641")
    e("s_lshr_b32 s32, s32, 16")
    e("s_mul_i32 s33, s32, 18")
    e("s_sub_u32 s33, s31, s33")
    e("s_cmp_eq_u32 s30, 0")
    e("s_cselect_b32 s8, s24, s26")
    e("s_cselect_b32 s9, s25, s27")
    e("s_mov_b32 s10, %d" % (576 * 1152))
    e("s_mov_b32 s11, 0x00020000")
    e("s_mul_i32 s37, s32, 144")
    e("s_mul_i32 s38, s33, %d" % (32 * 1152))
    e("s_add_u32 s37, s37, s38")
    for i in range(2):
        e("v_add_u32 v10, %d, v0" % (256 * i))
        if i == 1:
            e("v_min_u32 v10, 287, v10")
        e("v_mul_u32_u24 v11, 7282, v10")
        e("v_lshrrev_b32 v11, 16, v11")
        e("v_mul_u32_u24 v12, 9, v11")
        e("v_sub_u32 v12, v10, v12")
        e("v_mul_u32_u24 v15, 1152, v11")
        e("v_lshl_add_u32 v15, v12, 4, v15")
        e("v_add_u32 v15, s37, v15")
        e("buffer_load_dwordx4 %s, v15, s[8:11], 0 offen" % vr(32 + 4 * i, 4))
        e("v_mul_u32_u24 v15, %d, v11" % OB_ROW)
        e("v_lshrrev_b32 v13, 3, v11")
        e("v_lshl_add_u32 v15, v13, 7, v15")
        e("v_lshl_add_u32 v15, v12, 4, v15")
        e("v_add_u32 v%d, s47, v15" % (20 + i))
    e("s_waitcnt vmcnt(0)")
    for i in range(2):
        e("ds_write_b128 v%d, %s" % (20 + i, vr(32 + 4 * i, 4)))
    e("v_mul_u32_u24 v7, %d, v6" % (8 * OB_ROW + 128))
    e("v_mul_u32_u24 v10, %d, v8" % OB_ROW)
    e("v_lshl_add_u32 v10, v9, 3, v10")
    e("s_lshl_b32 s38, s35, 5")
    e("s_add_u32 s38, s38, s47")
    e("v_add3_u32 v7, v7, v10, s38")
    e("s_mul_i32 s38, s32, %d" % (81 * 1024))
    e("s_lshr_b32 s39, s33, 1")
    e("s_mul_i32 s39, s39, 9216")
    e("s_add_u32 s38, s38, s39")
    e("s_mul_i32 s39, s30, 0x%x" % (WOB - WOA))
    e("s_add_u32 s38, s38, s39")
    e("s_add_u32 s38, s38, 0x%x" % WOA)
    e("s_and_b32 s39, s33, 1")
    e("s_lshl_b32 s40, s39, 9")
    e("s_add_u32 s40, s40, s38")
    e("s_add_u32 s40, s40, 8192")
    e("s_lshl_b32 s39, s39, 12")
    e("s_add_u32 s38, s38, s39")
    e("s_lshl_b32 s39, s35, 10")
    e("s_add_u32 s38, s38, s39")
    e("v_and_b32 v10, 15, v3")
    e("v_lshlrev_b32 v11, 4, v10")
    e("v_lshl_add_u32 v11, v6, 7, v11")
    e("v_cmp_gt_u32 vcc, 8, v10")
    e("v_mov_b32 v12, 0x40000000")
    e("s_nop 0")
    e("v_cndmask_b32 v11, v12, v11, vcc")
    e("s_waitcnt lgkmcnt(0)")
    e("s_barrier")
    for q in range(2):
        for hf in range(2):
            e("ds_read_b64_tr_b16 %s, v7 offset:%d" % (vr(32 + 4 * q + 2 * hf, 2), hf * 4 * OB_ROW + 128 * q))
    e("s_waitcnt lgkmcnt(0)")
    e("buffer_store_dwordx4 %s, v5, s[16:19], s38 offen" % vr(32, 4))
    e("s_cmp_lg_u32 s35, 0")
    e("s_cbranch_scc1 L_prep_end")
    e("buffer_store_dwordx4 %s, v11, s[16:19], s40 offen" % vr(36, 4))
    e("s_endpgm")
    k.lab("L_prep_misc")
    e("s_sub_u32 s3, s2, %d" % (NQ + NO))
    e("s_cmp_eq_u32 s46, 0")
    e("s_cbranch_scc1 L_prep_x0")
    e("s_cmp_eq_u32 s46, 2")
    e("s_cbranch_scc1 L_prep_end")
    e("s_cmp_ge_u32 s3, 42")
    e("s_cbranch_scc1 L_prep_end")
    e("s_lshl_b32 s3, s3, 12")
    e("v_lshlrev_b32 v1, 4, v0")
    e("v_add_u32 v1, s3, v1")
    e("v_add_u32 v1, 0x%x, v1" % KVACC)
    for i in range(4):
        e("v_mov_b32 v%d, 0" % (4 + i))
    e("buffer_store_dwordx4 v[4:7], v1, s[16:19], 0 offen")
    e("s_endpgm")
    k.lab("L_prep_x0")

    e("s_mov_b32 s8, s44")
    e("s_mov_b32 s9, s45")
    e("s_mov_b32 s10, %d" % XB)
    e("s_mov_b32 s11, 0x00020000")
    e("s_mul_i32 s7, s3, 36864")
    e("s_add_u32 s6, s7, 0x%x" % X0F)
    e("s_mov_b32 s42, 0x3f803f80")
    e("v_and_b32 v1, 31, v3")
    e("v_lshrrev_b32 v2, 5, v3")
    e("s_lshl_b32 s28, s35, 1")
    e("v_add_u32 v2, s28, v2")
    e("v_mul_u32_u24 v4, 1152, v1")
    e("v_mul_u32_u24 v7, 144, v2")
    e("v_add_u32 v4, v4, v7")
    for i in range(9):
        e("buffer_load_dwordx4 %s, v4, s[8:11], s7 offen offset:%d" % (vr(32 + 4 * i, 4), 16 * i))
    e("v_mul_u32_u24 v7, 4608, v2")
    e("v_lshl_add_u32 v7, v1, 4, v7")
    e("v_lshlrev_b32 v10, 6, v1")
    e("v_lshl_add_u32 v10, v2, 3, v10")
    e("s_lshl_b32 s28, s3, 11")
    e("s_add_u32 s28, s28, 0x%x" % STATS)
    e("v_mov_b32 v8, 0")
    e("v_mov_b32 v9, 0")
    e("s_waitcnt vmcnt(0)")
    for i in range(9):
        e("s_add_u32 s7, s6, %d" % (512 * i))
        e("buffer_store_dwordx4 %s, v7, s[16:19], s7 offen" % vr(32 + 4 * i, 4))
        for q in range(4):
            e("v_dot2_f32_bf16 v8, v%d, s42, v8" % (32 + 4 * i + q))
            e("v_dot2_f32_bf16 v9, v%d, v%d, v9" % (32 + 4 * i + q, 32 + 4 * i + q))
    e("s_nop 2")
    e("buffer_store_dwordx2 v[8:9], v10, s[16:19], s28 offen")
    k.stamp(4)
    if STAMPS:
        e("s_waitcnt vmcnt(0)")
    k.stamp(5)
    k.dump()
    k.lab("L_prep_end")
    e("s_endpgm")
    return k


NB = 8
BSLOT = 16 * 1024
QCS_BASE = NB * BSLOT
QST_BASE = QCS_BASE + 1536
QPQ_BASE = 32768
QKV_LDS = QST_BASE + 1024
T_STRIDE = 272


def emit_phi(e, x, t1, t2):
    e("v_min_f32 v%d, 0, v%d" % (t1, x))
    e("v_mul_f32 v%d, s40, v%d" % (t1, t1))
    e("v_exp_f32 v%d, v%d" % (t1, t1))
    e("v_max_f32 v%d, 0, v%d" % (t2, x))
    e("v_add_f32 v%d, s41, v%d" % (t2, t2))
    e("v_add_f32 v%d, v%d, v%d" % (x, t1, t2))


def emit_signal(k, fid, line_sgpr, word_sgpr):
    e = k.e
    e("s_waitcnt vmcnt(0)")
    e("s_barrier")
    k.srd(20, 4, FLAGS + fid * 2048, 2048)
    sk = k.newlab("sig")
    e("s_cmp_lg_u32 s35, 0")
    e("s_cbranch_scc1 %s" % sk)
    e("s_lshl_b32 s40, %s, 7" % line_sgpr)
    e("s_lshl_b32 s41, %s, 2" % word_sgpr)
    e("s_add_u32 s40, s40, s41")
    e("v_mov_b32 v8, 1")
    e("v_mov_b32 v9, 0")
    e("s_mov_b64 exec, 1")
    e("buffer_store_dword v8, v9, s[20:23], s40 offen sc1")
    e("s_mov_b64 exec, -1")
    k.lab(sk)


def emit_poll(k, line_sgpr, nflags, done):
    e = k.e
    lp = k.newlab("poll")
    e("s_lshl_b32 s60, %s, 7" % line_sgpr)
    e("v_and_b32 v9, %d, v3" % (nflags - 1))
    e("v_lshlrev_b32 v9, 2, v9")
    e("s_mov_b32 s61, 0")
    k.lab(lp)
    e("buffer_load_dword v8, v9, s[20:23], s60 offen sc1")
    e("s_waitcnt vmcnt(0)")
    e("v_cmp_ne_u32 vcc, 1, v8")
    e("s_add_u32 s61, s61, 1")
    e("s_nop 3")
    e("s_cbranch_vccz %s" % done)
    e("s_sleep 1")
    e("s_cmp_lt_u32 s61, 0x400000")
    e("s_cbranch_scc1 %s" % lp)


def gen_stub(name, body, params):
    k = Kern(name, body.vgpr, body.lds, body.grid, body.block)
    k.stub = ["s_mov_b32 s%d, 0x%x" % (r, v) for r, v in params] + ["s_branch %s" % body.name]
    return k


def gen_qkv(kind, k=None, params=None, chain=None, kname=None):
    fused = k is not None
    name = "L_qkv%s" % kind
    if not fused:
        if kname:
            name = kname
        k = Kern(name, 184, QKV_LDS, (256, 1, 1), (512, 1, 1))
        if not kname:
            k.nodesc = True
    else:
        k.vgpr = max(k.vgpr, 184)
        k.lds = max(k.lds, QKV_LDS)
    SC = " sc1" if fused else ""
    e = k.e
    ACC = 16
    FR = [48, 72]
    VL16 = 100
    VA = [101, 102]
    VB = [103, 104]
    CSR = 105
    VCS = 106
    STR = 112
    EA = 128
    if fused:
        end = k.endlab
        for r, v in params:
            e("s_mov_b32 s%d, 0x%x" % (r, v))
    else:
        end = "L_%s_end" % name
        e("s_cmp_ge_u32 s2, 256")
        e("s_cbranch_scc1 %s" % end)
        e("s_load_dwordx2 s[4:5], s[0:1], %d" % KA_WS)
        k.stamp(0)
        if kname:
            for r, v in params:
                e("s_mov_b32 s%d, 0x%x" % (r, v))
    k.pqsc = " sc1" if chain is not None else ""
    e("s_and_b32 s28, s2, 7")
    e("s_lshr_b32 s29, s2, 3")
    e("s_lshr_b32 s31, s28, 1")
    e("s_lshl_b32 s31, s31, 2")
    e("s_lshr_b32 s32, s29, 3")
    e("s_add_u32 s31, s31, s32")
    e("s_and_b32 s30, s28, 1")
    e("s_lshl_b32 s30, s30, 3")
    e("s_and_b32 s32, s29, 7")
    e("s_add_u32 s30, s30, s32")
    e("v_and_b32 v3, 63, v0")
    e("v_lshrrev_b32 v4, 6, v0")
    e("v_and_b32 v5, 31, v3")
    e("v_readfirstlane_b32 s35, v4")
    e("v_lshrrev_b32 v6, 5, v3")
    e("v_lshlrev_b32 v%d, 4, v3" % VL16)
    e("s_lshl_b32 s52, s35, 10")
    e("s_mul_i32 s53, s30, %d" % (36 * 4096))
    e("s_add_u32 s53, s53, s52")
    e("s_lshl_b32 s50, s31, 2")
    e("s_lshr_b32 s51, s35, 1")
    e("s_add_u32 s50, s50, s51")
    e("s_mul_i32 s50, s50, 36864")
    e("s_and_b32 s51, s35, 1")
    e("s_lshl_b32 s51, s51, 10")
    e("s_add_u32 s50, s50, s51")
    e("s_and_b32 s36, s35, 3")
    e("s_lshr_b32 s37, s35, 2")
    for i in range(32):
        e("v_mov_b32 v%d, 0" % (ACC + i))
    e("s_lshl_b32 s34, s37, 12")
    e("v_add_u32 v%d, s34, v%d" % (VA[0], VL16))
    e("v_add_u32 v%d, 0x10000, v%d" % (VA[1], VA[0]))
    e("s_lshl_b32 s34, s36, 10")
    e("s_add_u32 s34, s34, 8192")
    e("v_add_u32 v%d, s34, v%d" % (VB[0], VL16))
    e("v_add_u32 v%d, 0x10000, v%d" % (VB[1], VB[0]))
    e("s_mov_b32 s40, 0x%x" % f2u(LOG2E))
    e("s_mov_b32 s41, 0x%x" % f2u(1e-6))
    e("s_waitcnt lgkmcnt(0)")
    k.stamp(2)
    e("s_add_u32 s8, s4, s58")
    e("s_addc_u32 s9, s5, 0")
    e("s_mov_b32 s10, %d" % XB)
    e("s_mov_b32 s11, 0x00020000")
    k.srd(12, 4, WFA if kind == 'A' else WFB, WF_SZ)
    k.srd(16, 4, 0, WS_SIZE)
    issued = []

    def group_ops(g):
        slot = (g % NB) * BSLOT
        return [(g, ["s_add_u32 m0, s52, %d" % slot, "s_nop 0",
                     "buffer_load_dwordx4 v%d, s[8:11], s50 offen%s lds" % (VL16, SC),
                     "s_add_u32 s50, s50, 2048"]),
                (g, ["s_add_u32 m0, s52, %d" % (slot + 8192), "s_nop 0",
                     "buffer_load_dwordx4 v%d, s[12:15], s53 offen lds" % VL16,
                     "s_add_u32 s53, s53, 8192"])]

    def emit_op(op):
        tag, lines = op
        for x in lines:
            e(x)
        if tag is not None:
            issued.append(tag)

    def wait_for(stage):
        last = max(i for i, t in enumerate(issued) if t <= stage)
        return len(issued) - 1 - last

    if fused:
        sk = k.newlab("nb")
        e("s_cmp_lg_u32 s35, 4")
        e("s_cbranch_scc1 %s" % sk)
        e("s_sub_u32 s34, s53, 4096")
        for g in range(NB):
            e("s_mov_b32 m0, %d" % ((g % NB) * BSLOT + 8192))
            e("s_nop 0")
            e("buffer_load_dwordx4 v%d, s[12:15], s34 offen lds" % VL16)
            e("s_add_u32 s34, s34, 8192")
        k.lab(sk)
        sk = k.newlab("nb")
        e("s_cmp_eq_u32 s35, 0")
        e("s_cselect_b32 s34, %d, 0" % (NB * 8192))
        e("s_add_u32 s53, s53, s34")
        e("s_cmp_eq_u32 s35, 0")
        e("s_cbranch_scc1 %s" % sk)
        for g in range(NB):
            emit_op(group_ops(g)[1])
        k.lab(sk)
    else:
        for g in range(3):
            for op in group_ops(g):
                emit_op(op)
    k.mem = []
    if kind == 'A':
        epi_A_pre(k, EA)
    else:
        epi_B_pre(k, EA)
    e("v_min_u32 v7, 383, v0")
    e("v_lshrrev_b32 v8, 7, v7")
    e("v_and_b32 v7, 127, v7")
    e("v_lshlrev_b32 v7, 2, v7")
    e("v_lshl_add_u32 v%d, v8, 13, v7" % VCS)
    e("v_lshl_add_u32 v107, v8, 9, v7")
    e("s_lshl_b32 s54, s30, 9")
    e("s_add_u32 s54, s54, 0x%x" % (CS + (0 if kind == 'A' else CS_MAT)))
    k.stamp(13)
    if fused:
        sk = k.newlab("nw")
        lp = k.newlab("poll")
        e("s_cmp_lg_u32 s35, 0")
        e("s_cbranch_scc1 %s" % sk)
        e("s_lshl_b32 s38, s31, 7")
        e("v_and_b32 v9, 15, v3")
        e("v_lshlrev_b32 v9, 2, v9")
        e("s_mov_b32 s39, 0")
        k.lab(lp)
        e("buffer_load_dword v8, v9, s[20:23], s38 offen sc1")
        e("s_waitcnt vmcnt(0)")
        e("v_cmp_ne_u32 vcc, 1, v8")
        e("s_add_u32 s39, s39, 1")
        e("s_nop 3")
        e("s_cbranch_vccz %s" % sk)
        e("s_sleep 1")
        e("s_cmp_lt_u32 s39, 0x400000")
        e("s_cbranch_scc1 %s" % lp)
        k.lab(sk)
        e("s_barrier")
        k.stamp(12)
        for g in range(NB):
            emit_op(group_ops(g)[0])
    e("s_waitcnt vmcnt(%d) lgkmcnt(0)" % wait_for(0))
    k.stamp(1)
    e("s_barrier")
    k.stamp(3)

    def fread_ops(s):
        f = FR[s & 1]
        slot = s % NB
        hi, so = slot >> 2, (slot & 3) * BSLOT
        ops = []
        for ks in range(2):
            ops.append((None, ["ds_read_b128 %s, v%d offset:%d" % (vr(f + 16 + 4 * ks, 4), VB[hi], so + ks * 4096)]))
            for a in range(2):
                ops.append((None, ["ds_read_b128 %s, v%d offset:%d" % (vr(f + 8 * a + 4 * ks, 4), VA[hi], so + a * 2048 + ks * 1024)]))
        return ops

    for op in fread_ops(0):
        emit_op(op)
    nextg = NB if fused else 3
    for s in range(18):
        fill = []
        if s + 1 <= 17:
            e("s_waitcnt vmcnt(%d) lgkmcnt(0)" % wait_for(s + 1))
            e("s_barrier")
            fill += fread_ops(s + 1)
            for _ in range(int(EXP.get("ng", 2))):
                if nextg <= 17 and nextg <= s + NB:
                    fill += group_ops(nextg)
                    nextg += 1
            if s == 10:
                fill.append((99, ["buffer_load_dword v%d, v%d, s[16:19], s54 offen" % (CSR, VCS)]))
        else:
            e("s_waitcnt lgkmcnt(0)")
        if s == 11:
            ns = k.newlab("ns")
            e("s_cmp_lt_u32 s35, 6")
            e("s_cbranch_scc1 %s" % ns)
            e("s_lshl_b32 s34, s31, 13")
            e("s_add_u32 s34, s34, 0x%x" % (STATV[dict(params)[58]] - 6 * 4096))
            e("v_lshlrev_b32 v7, 6, v0")
            for i in range(4):
                e("buffer_load_dwordx4 %s, v7, s[16:19], s34 offen offset:%d%s" % (vr(STR + 4 * i, 4), 16 * i, SC))
            k.lab(ns)
        if s % 3 == 0 and s > 0:
            k.stamp(6 + s // 3)
        f = FR[s & 1]
        nfill = -(-len(fill) // 4)
        for ks in range(2):
            for a in range(2):
                acc = ACC + 16 * a
                e("v_mfma_f32_32x32x16_bf16 %s, %s, %s, %s" % (vr(acc, 16), vr(f + 16 + 4 * ks, 4), vr(f + 8 * a + 4 * ks, 4), vr(acc, 16)))
                for _ in range(nfill):
                    if fill:
                        emit_op(fill.pop(0))
    k.stamp(4)
    e("s_waitcnt vmcnt(0)")
    e("ds_write_b32 v107, v%d offset:0" % CSR if False else "v_add_u32 v7, %d, v107" % QCS_BASE)
    e("ds_write_b32 v7, v%d" % CSR)
    ns = k.newlab("ns")
    e("s_cmp_lt_u32 s35, 6")
    e("s_cbranch_scc1 %s" % ns)
    for i in range(1, 8):
        e("v_add_f32 v%d, v%d, v%d" % (STR, STR, STR + 2 * i))
        e("v_add_f32 v%d, v%d, v%d" % (STR + 1, STR + 1, STR + 2 * i + 1))
    e("v_mul_f32 v%d, 0x%x, v%d" % (STR, f2u(1.0 / 576), STR))
    e("v_mul_f32 v%d, 0x%x, v%d" % (STR + 1, f2u(1.0 / 576), STR + 1))
    e("v_fma_f32 v%d, -v%d, v%d, v%d" % (STR + 1, STR, STR, STR + 1))
    e("v_max_f32 v%d, 0, v%d" % (STR + 1, STR + 1))
    e("v_add_f32 v%d, 0x%x, v%d" % (STR + 1, f2u(1e-5), STR + 1))
    e("v_rsq_f32 v%d, v%d" % (STR + 1, STR + 1))
    e("s_nop 0")
    e("v_mul_f32 v%d, v%d, v%d" % (STR, STR, STR + 1))
    e("v_lshlrev_b32 v7, 2, v0")
    e("v_add_u32 v7, %d, v7" % (QST_BASE - 6 * 256))
    e("ds_write_b32 v7, v%d" % (STR + 1))
    e("ds_write_b32 v7, v%d offset:512" % STR)
    k.lab(ns)
    e("s_waitcnt lgkmcnt(0)")
    e("s_barrier")
    RS = 100
    e("s_lshl_b32 s34, s37, 8")
    e("s_add_u32 s34, s34, %d" % QST_BASE)
    e("v_lshl_add_u32 v7, v5, 2, s34")
    for a in range(2):
        e("ds_read_b32 v%d, v7 offset:%d" % (RS + 2 * a, a * 128))
        e("ds_read_b32 v%d, v7 offset:%d" % (RS + 4 + 2 * a, 512 + a * 128))
    e("s_lshl_b32 s34, s36, 7")
    e("s_add_u32 s34, s34, %d" % QCS_BASE)
    e("v_lshl_add_u32 v8, v6, 4, s34")
    for q in range(4):
        for p in range(3):
            e("ds_read_b128 %s, v8 offset:%d" % (vr(52 + 16 * p + 4 * q, 4), 512 * p + 32 * q))
    e("s_waitcnt lgkmcnt(0)")
    for i in range(4):
        e("v_mov_b32 v%d, v%d" % (RS + 2 * i + 1, RS + 2 * i))
    for r in range(0, 16, 2):
        e("v_pk_add_f32 %s, %s, %s" % (vr(52 + r, 2), vr(52 + r, 2), vr(68 + r, 2)))
        e("v_pk_add_f32 %s, %s, %s" % (vr(52 + r, 2), vr(52 + r, 2), vr(84 + r, 2)))
    for a in range(2):
        for r in range(0, 16, 2):
            acc = ACC + 16 * a + r
            e("v_pk_mul_f32 v[10:11], %s, %s" % (vr(RS + 4 + 2 * a, 2), vr(52 + r, 2)))
            e("v_pk_fma_f32 %s, %s, %s, v[10:11] neg_lo:[0,0,1] neg_hi:[0,0,1]" % (vr(acc, 2), vr(acc, 2), vr(RS + 2 * a, 2)))
    if kind == 'A':
        epi_A(k, ACC, EA)
    else:
        epi_B(k, ACC, EA)
    if chain is not None:
        emit_signal(k, chain, "s30", "s31")
        k.endlab = end
        return k
    k.stamp(5)
    if STAMPS:
        e("s_waitcnt vmcnt(0)")
    k.stamp(6)
    k.dump()
    k.lab(end)
    e("s_endpgm")
    return k


def sprinkle(k, n):
    for _ in range(n):
        if k.mem:
            for x in k.mem.pop(0):
                k.e(x)


def per_wave(k, fn, nw=8):
    e = k.e
    labs = [k.newlab("w") for _ in range(nw)]
    lj = k.newlab("wj")
    for w in range(1, nw):
        e("s_cmp_eq_u32 s35, %d" % w)
        e("s_cbranch_scc1 %s" % labs[w])
    for w in range(nw):
        k.lab(labs[w])
        fn(w)
        if w < nw - 1:
            e("s_branch %s" % lj)
    k.lab(lj)


def half_ops(k, lo, hi):
    for x in lo:
        k.e(x)
    k.e("s_mov_b32 exec_lo, 0")
    for x in hi:
        k.e(x)
    k.e("s_mov_b32 exec_lo, -1")


DUMMY = 98304


KV_ROW = 168


def epi_A_pre(k, EA):
    e = k.e
    e("v_mul_u32_u24 v12, %d, v5" % KV_ROW)
    e("v_lshlrev_b32 v13, 4, v5")
    e("v_lshlrev_b32 v14, 2, v5")

    def var(w):
        ct, rh = w & 3, w >> 2
        ops = [[], []]
        for q in range(4):
            for pr in range(2):
                i = 2 * q + pr
                for h in range(2):
                    vc = 32 * ct + 8 * q + 4 * h + 2 * pr
                    for a in range(2):
                        if vc < 72:
                            c = (64 * rh + 32 * a) * KV_ROW + (vc // 18) * 40 + (vc % 18) * 2
                            t = 12
                        elif vc < 108:
                            hl, d = (vc - 72) // 18, (vc - 72) % 18
                            sb = QPQ_BASE + (4 * hl + 2 * rh + a) * 2560
                            if d < 16:
                                c, t = sb + (d >> 3) * 512 + (d & 7) * 2, 13
                            else:
                                c, t = sb + 1024, 14
                        else:
                            c, t = DUMMY, 12
                        ops[h].append("v_add_u32 v%d, %d, v%d" % (EA + 2 * i + a, c, t))
                    isv = 36 <= vc < 72
                    ops[h].append("v_mov_b32 v%d, 0x%x" % (EA + 32 + i, 0 if isv else f2u(1.0)))
                    ops[h].append("v_mov_b32 v%d, 0x%x" % (EA + 44 + i, 0xff800000 if isv else 0))
        half_ops(k, ops[0], ops[1])
        if w < 2:
            e("v_lshrrev_b32 v7, 2, v3")
            e("v_and_b32 v7, 3, v7")
            e("v_lshl_add_u32 v7, v6, 3, v7")
            e("v_mul_u32_u24 v7, %d, v7" % KV_ROW)
            e("v_bfe_u32 v8, v3, 4, 1")
            e("v_lshl_add_u32 v7, v8, 5, v7")
            e("v_and_b32 v8, 3, v3")
            e("v_lshl_add_u32 v7, v8, 3, v7")
            e("v_add_u32 v%d, %d, v7" % (EA + 40, 40 * w))
            e("v_add_u32 v%d, %d, v7" % (EA + 41, 80 + 40 * w))
            e("v_cmp_gt_u32 vcc, 18, v5")
            e("v_lshlrev_b32 v10, 2, v5")
            e("v_lshl_add_u32 v10, v6, 9, v10")
            e("v_mov_b32 v9, 0x40000000")
            e("v_cndmask_b32 v%d, v9, v10, vcc" % (EA + 42))
            e("v_cmp_eq_u32 vcc, 0, v6")
            e("s_nop 1")
            e("v_cndmask_b32 v%d, v9, v%d, vcc" % (EA + 43, EA + 42))
        else:
            for i in range(4):
                e("v_mov_b32 v%d, 0x40000000" % (EA + 40 + i))

    per_wave(k, var)


def epi_A(k, ACC, EA):
    e = k.e
    e("v_mov_b32 v12, s40")
    e("v_mov_b32 v13, s40")
    e("v_mov_b32 v14, s41")
    e("v_mov_b32 v15, s41")
    for q in range(4):
        for pr in range(2):
            i = 2 * q + pr
            for a in range(2):
                acc = ACC + 16 * a + 4 * q + 2 * pr
                e("v_pk_mul_f32 v[10:11], %s, v[12:13]" % vr(acc, 2))
                e("v_min_f32 v10, 0, v10")
                e("v_min_f32 v11, 0, v11")
                e("v_exp_f32 v10, v10")
                e("v_exp_f32 v11, v11")
                e("v_max_f32 v%d, v%d, v%d" % (acc, acc, EA + 44 + i))
                e("v_max_f32 v%d, v%d, v%d" % (acc + 1, acc + 1, EA + 44 + i))
                e("v_pk_add_f32 v[10:11], v[10:11], v[14:15]")
                e("v_fmac_f32 v%d, v10, v%d" % (acc, EA + 32 + i))
                e("v_fmac_f32 v%d, v11, v%d" % (acc + 1, EA + 32 + i))
                e("v_cvt_pk_bf16_f32 v%d, v%d, v%d" % (acc, acc, acc + 1))
                e("ds_write_b32 v%d, v%d" % (EA + 2 * i + a, acc))
    e("v_lshrrev_b32 v10, 2, v0")
    e("v_mul_u32_u24 v10, %d, v10" % KV_ROW)
    e("v_and_b32 v11, 3, v0")
    e("v_mul_u32_u24 v11, 40, v11")
    e("v_add_u32 v10, v10, v11")
    e("v_mov_b32 v11, 0x3f80")
    e("ds_write_b32 v10, v11 offset:36")
    e("s_waitcnt lgkmcnt(0)")
    e("s_barrier")
    e("s_lshl_b32 s39, s31, 2")
    e("s_add_u32 s39, s39, s36")
    e("s_lshl_b32 s39, s39, 5")
    e("s_lshl_b32 s43, s30, 1")
    e("s_add_u32 s39, s39, s43")
    e("s_add_u32 s39, s39, s37")
    e("s_mul_i32 s39, s39, 1152")
    e("s_add_u32 s39, s39, 0x%x" % PQF)
    e("s_mul_i32 s38, s35, 2560")
    e("s_add_u32 s38, s38, %d" % QPQ_BASE)
    e("v_lshlrev_b32 v8, 4, v3")
    e("v_add_u32 v9, s38, v8")
    e("ds_read_b128 v[100:103], v9")
    e("ds_read_b128 v[104:107], v9 offset:1024")
    e("v_mov_b32 v10, 0x40000000")
    e("v_cmp_gt_u32 vcc, 8, v3")
    e("s_nop 1")
    e("v_cndmask_b32 v11, v10, v8, vcc")
    e("s_waitcnt lgkmcnt(0)")
    e("buffer_store_dwordx4 v[100:103], v8, s[16:19], s39 offen%s" % k.pqsc)
    e("buffer_store_dwordx4 v[104:107], v11, s[16:19], s39 offen offset:1024%s" % k.pqsc)
    lj = k.newlab("ej")
    e("s_cmp_ge_u32 s35, 2")
    e("s_cbranch_scc1 %s" % lj)
    for st in range(8):
        for hf in range(2):
            o = (16 * st + 4 * hf) * KV_ROW
            e("ds_read_b64_tr_b16 %s, v%d offset:%d" % (vr(16 + 8 * st + 2 * hf, 2), EA + 40, o))
            e("ds_read_b64_tr_b16 %s, v%d offset:%d" % (vr(20 + 8 * st + 2 * hf, 2), EA + 41, o))
    e("s_lshl_b32 s39, s30, 1")
    e("s_add_u32 s39, s39, s35")
    e("s_mul_i32 s39, s39, 2432")
    e("s_add_u32 s39, s39, s59")
    e("s_waitcnt lgkmcnt(0)")
    for st in range(8):
        c = "0" if st == 0 else vr(80, 16)
        e("v_mfma_f32_32x32x16_bf16 %s, %s, %s, %s" % (vr(80, 16), vr(20 + 8 * st, 4), vr(16 + 8 * st, 4), c))
    e("s_nop 7")
    e("s_nop 7")
    for r in range(11):
        ee = (r & 3) + 8 * (r >> 2)
        e("buffer_atomic_add_f32 v%d, v%d, s[16:19], s39 offen offset:%d" % (80 + r, EA + 42 if r < 8 else EA + 43, 128 * ee))
    k.lab(lj)


IMG_S = 2560
IMG_K = 8 * IMG_S
IMG_V = 16 * IMG_S
V_ROW = 72


def epi_B_pre(k, EA):
    e = k.e
    e("v_lshlrev_b32 v12, 4, v5")
    e("v_lshlrev_b32 v13, 2, v5")
    e("v_mul_u32_u24 v14, %d, v5" % V_ROW)

    def var(w):
        ct, rh = w & 3, w >> 2
        ops = [[], []]
        for q in range(4):
            for pr in range(2):
                i = 2 * q + pr
                for h in range(2):
                    vc = 32 * ct + 8 * q + 4 * h + 2 * pr
                    sc = 1.0
                    if vc >= 108:
                        c, t = DUMMY, 13
                    else:
                        seg, cc = vc // 36, vc % 36
                        hl, d = cc // 18, cc % 18
                        sb = (4 * hl + 2 * rh) * IMG_S
                        if seg == 2:
                            c, t = IMG_V + sb + d * 2, 14
                        else:
                            base = sb + (IMG_K if seg == 1 else 0)
                            if d < 16:
                                c, t = base + (d >> 3) * 512 + (d & 7) * 2, 12
                            else:
                                c, t = base + 1024, 13
                            if seg == 0:
                                sc = QSCALE
                    ops[h].append("v_add_u32 v%d, %d, v%d" % (EA + i, c, t))
                    ops[h].append("v_mov_b32 v%d, 0x%x" % (EA + 16 + 2 * i, f2u(sc)))
                    ops[h].append("v_mov_b32 v%d, 0x%x" % (EA + 17 + 2 * i, f2u(sc)))
        half_ops(k, ops[0], ops[1])

    per_wave(k, var)
    e("v_lshrrev_b32 v7, 2, v3")
    e("v_and_b32 v7, 3, v7")
    e("v_lshl_add_u32 v7, v6, 2, v7")
    e("v_mul_u32_u24 v7, %d, v7" % V_ROW)
    e("v_bfe_u32 v8, v3, 4, 1")
    e("v_lshl_add_u32 v7, v8, 5, v7")
    e("v_and_b32 v9, 3, v3")
    e("v_lshl_add_u32 v7, v9, 3, v7")
    e("s_mul_i32 s38, s35, %d" % IMG_S)
    e("s_add_u32 s38, s38, %d" % IMG_V)
    e("v_add_u32 v%d, s38, v7" % (EA + 8))
    e("v_mul_u32_u24 v7, 320, v6")
    e("v_lshl_add_u32 v7, v5, 4, v7")
    e("v_add_u32 v7, 1152, v7")
    e("v_cmp_gt_u32 vcc, 19, v5")
    e("v_mov_b32 v10, 0x40000000")
    e("s_nop 0")
    e("v_cndmask_b32 v%d, v10, v7, vcc" % (EA + 9))
    e("v_lshlrev_b32 v8, 4, v3")
    e("v_cmp_gt_u32 vcc, 8, v3")
    e("s_nop 1")
    e("v_cndmask_b32 v%d, v10, v8, vcc" % (EA + 10))


def epi_B(k, ACC, EA):
    e = k.e
    for q in range(4):
        for pr in range(2):
            i = 2 * q + pr
            for a in range(2):
                acc = ACC + 16 * a + 4 * q + 2 * pr
                e("v_pk_mul_f32 %s, %s, %s" % (vr(acc, 2), vr(acc, 2), vr(EA + 16 + 2 * i, 2)))
                e("v_cvt_pk_bf16_f32 v%d, v%d, v%d" % (acc, acc, acc + 1))
                e("ds_write_b32 v%d, v%d offset:%d" % (EA + i, acc, IMG_S * a))
    e("s_mul_i32 s38, s35, %d" % IMG_S)
    e("v_mul_u32_u24 v7, %d, v5" % V_ROW)
    e("v_add_u32 v7, s38, v7")
    e("v_mov_b32 v8, 0x3f80")
    e("ds_write_b32 v7, v8 offset:%d" % (IMG_V + 36))
    e("s_waitcnt lgkmcnt(0)")
    e("s_barrier")
    e("v_lshlrev_b32 v8, 4, v3")
    e("v_add_u32 v9, s38, v8")
    e("ds_read_b128 v[48:51], v9")
    e("ds_read_b128 v[52:55], v9 offset:1024")
    e("ds_read_b128 v[56:59], v9 offset:%d" % IMG_K)
    e("ds_read_b128 v[60:63], v9 offset:%d" % (IMG_K + 1024))
    for ab in range(2):
        for hf in range(2):
            e("ds_read_b64_tr_b16 %s, v%d offset:%d" % (vr(64 + 4 * ab + 2 * hf, 2), EA + 8, (16 * ab + 8 * hf) * V_ROW))
    e("s_lshl_b32 s43, s30, 1")
    e("s_add_u32 s43, s43, s37")
    e("s_lshl_b32 s38, s31, 2")
    e("s_add_u32 s38, s38, s36")
    e("s_mul_i32 s44, s43, %d" % QHEAD)
    e("s_mul_i32 s39, s38, 1152")
    e("s_add_u32 s44, s44, s39")
    e("s_add_u32 s44, s44, 0x%x" % QPI)
    e("s_mul_i32 s46, s43, %d" % KVHEAD)
    e("s_mul_i32 s39, s38, 2432")
    e("s_add_u32 s46, s46, s39")
    e("s_add_u32 s46, s46, 0x%x" % KVI)
    e("s_waitcnt lgkmcnt(0)")
    sc = k.pqsc
    e("buffer_store_dwordx4 v[48:51], v8, s[16:19], s44 offen" + sc)
    e("buffer_store_dwordx4 v[52:55], v%d, s[16:19], s44 offen offset:1024" % (EA + 10) + sc)
    e("buffer_store_dwordx4 v[56:59], v8, s[16:19], s46 offen" + sc)
    e("buffer_store_dwordx4 v[60:63], v%d, s[16:19], s46 offen offset:1024" % (EA + 10) + sc)
    e("buffer_store_dwordx4 v[64:67], v%d, s[16:19], s46 offen" % (EA + 9) + sc)
    e("buffer_store_dwordx4 v[68:71], v%d, s[16:19], s46 offen offset:640" % (EA + 9) + sc)


def gen_attn(name):
    k = Kern(name, 120, KVHEAD, (256, 1, 1), (1024, 1, 1))
    e = k.e
    SA, SB = 16, 32
    P = 48
    O = 56
    CM = 72
    Q1, Q2 = 88, 92
    K1, K2 = 96, 100
    VVa, VVb = 104, 108
    vK1, vK2, vV = 112, 113, 114
    vK1b, vK2b, vVb = 115, 116, 117
    SEGS = [2, 6, 24]
    HALF = 32 * 2432
    end = "L_%s_end" % name
    e("s_cmp_ge_u32 s2, 256")
    e("s_cbranch_scc1 %s" % end)
    e("s_load_dwordx2 s[4:5], s[0:1], %d" % KA_WS)
    k.stamp(0)
    k.rstamp(4)
    e("s_and_b32 s30, s2, 7")
    e("s_lshr_b32 s31, s2, 3")
    e("s_and_b32 s32, s31, 3")
    e("s_lshl_b32 s30, s30, 2")
    e("s_add_u32 s30, s30, s32")
    e("s_lshr_b32 s31, s31, 2")
    e("v_lshrrev_b32 v4, 6, v0")
    e("v_and_b32 v3, 63, v0")
    e("v_readfirstlane_b32 s35, v4")
    e("s_mul_i32 s33, s30, %d" % KVHEAD)
    e("s_lshr_b32 s40, s35, 3")
    e("s_and_b32 s41, s35, 7")
    e("s_mul_i32 s42, s40, %d" % HALF)
    e("v_lshlrev_b32 v1, 4, v3")
    e("s_lshl_b32 s36, s31, 3")
    e("s_add_u32 s36, s36, s41")
    e("s_mul_i32 s37, s36, 1152")
    e("s_mul_i32 s38, s30, %d" % QHEAD)
    e("s_add_u32 s37, s37, s38")
    e("s_add_u32 s37, s37, 0x%x" % QPI)
    e("v_and_b32 v5, 31, v3")
    e("v_lshrrev_b32 v6, 5, v3")
    e("v_lshlrev_b32 v7, 2, v5")
    e("s_lshl_b32 s39, s41, 10")
    e("s_add_u32 s39, s39, s42")
    e("s_add_u32 s43, s42, %d" % (75 * 1024))
    e("s_waitcnt lgkmcnt(0)")
    e("s_add_u32 s8, s4, s33")
    e("s_addc_u32 s9, s5, 0")
    e("s_add_u32 s8, s8, 0x%x" % KVI)
    e("s_addc_u32 s9, s9, 0")
    e("s_mov_b32 s10, %d" % KVHEAD)
    e("s_mov_b32 s11, 0x00020000")
    k.srd(16, 4, 0, WS_SIZE)
    e("buffer_load_dwordx4 %s, v1, s[16:19], s37 offen" % vr(Q1, 4))
    e("buffer_load_dword v%d, v7, s[16:19], s37 offen offset:1024" % Q2)
    def dma(i):
        if i == 9:
            e("s_min_u32 s39, s39, s43")
        e("s_mov_b32 m0, s39")
        e("s_nop 0")
        e("buffer_load_dwordx4 v1, s[8:11], s39 offen lds")
        e("s_add_u32 s39, s39, 8192")

    dma(0)
    dma(1)
    e("v_add_u32 v%d, s42, v1" % vK1b)
    e("v_add_u32 v8, 1024, v7")
    e("v_add_u32 v%d, s42, v8" % vK2b)
    e("v_min_u32 v8, 18, v5")
    e("v_lshlrev_b32 v8, 4, v8")
    e("v_mul_u32_u24 v9, 320, v6")
    e("v_add3_u32 v8, v8, v9, s42")
    e("v_add_u32 v%d, 1152, v8" % vVb)
    for i in range(1, 4):
        e("v_mov_b32 v%d, 0" % (Q2 + i))
        e("v_mov_b32 v%d, 0" % (K2 + i))
    e("v_cmp_eq_u32 vcc, 0, v6")
    e("s_waitcnt vmcnt(2)")
    e("v_cndmask_b32 v%d, 0, v%d, vcc" % (Q2, Q2))
    e("s_mov_b32 s50, 0")

    def seg_wait(c):
        ntiles = sum(SEGS[:c + 1]) + 1
        need = min(-(-(ntiles * 2432) // 1024), 76)
        n = min((need - 1) // 8 + 1, 10)
        issued = 2 + min(sum(SEGS[:c]), 8)
        assert issued >= n
        return issued - n

    e("s_waitcnt vmcnt(%d)" % seg_wait(0))
    e("s_barrier")
    k.stamp(1)
    e("ds_read_b128 %s, v%d" % (vr(K1, 4), vK1b))
    e("ds_read_b32 v%d, v%d" % (K2, vK2b))
    e("s_waitcnt lgkmcnt(0)")
    e("v_mfma_f32_32x32x16_bf16 %s, %s, %s, 0" % (vr(SA, 16), vr(K1, 4), vr(Q1, 4)))
    e("v_mfma_f32_32x32x16_bf16 %s, %s, %s, %s" % (vr(SA, 16), vr(K2, 4), vr(Q2, 4), vr(SA, 16)))
    e("s_nop 7")
    e("s_nop 7")
    e("v_max3_f32 v10, v%d, v%d, v%d" % (SA, SA + 1, SA + 2))
    for i in range(3, 15, 2):
        e("v_max3_f32 v10, v10, v%d, v%d" % (SA + i, SA + i + 1))
    e("v_max_f32 v10, v10, v%d" % (SA + 15))
    run = "L_%s_run" % name
    k.lab(run)
    e("v_mov_b32 v11, v10")
    e("s_nop 1")
    e("v_permlane32_swap_b32 v11, v10")
    e("s_nop 1")
    e("v_max_f32 v10, v10, v11")
    e("v_sub_f32 v10, 0, v10")
    for i in range(16):
        e("v_mov_b32 v%d, v10" % (CM + i))
        e("v_mov_b32 v%d, 0" % (O + i))
    e("v_mov_b32 v%d, v%d" % (vK1, vK1b))
    e("v_mov_b32 v%d, v%d" % (vK2, vK2b))
    e("v_mov_b32 v%d, v%d" % (vV, vVb))
    e("ds_read_b128 %s, v%d" % (vr(K1, 4), vK1))
    e("ds_read_b32 v%d, v%d" % (K2, vK2))
    e("s_waitcnt lgkmcnt(0)")
    e("v_mfma_f32_32x32x16_bf16 %s, %s, %s, %s" % (vr(SA, 16), vr(K1, 4), vr(Q1, 4), vr(CM, 16)))
    e("v_mfma_f32_32x32x16_bf16 %s, %s, %s, %s" % (vr(SA, 16), vr(K2, 4), vr(Q2, 4), vr(SA, 16)))
    e("ds_read_b128 %s, v%d offset:2432" % (vr(K1, 4), vK1))
    e("ds_read_b32 v%d, v%d offset:2432" % (K2, vK2))
    e("ds_read_b128 %s, v%d" % (vr(VVa, 4), vV))
    e("ds_read_b128 %s, v%d offset:640" % (vr(VVb, 4), vV))
    e("s_nop 7")

    def body(t, Sc, Sn):
        o = 2432 * (t % 16)
        e("s_waitcnt lgkmcnt(2)")
        e("v_mfma_f32_32x32x16_bf16 %s, %s, %s, %s" % (vr(Sn, 16), vr(K1, 4), vr(Q1, 4), vr(CM, 16)))
        e("v_mfma_f32_32x32x16_bf16 %s, %s, %s, %s" % (vr(Sn, 16), vr(K2, 4), vr(Q2, 4), vr(Sn, 16)))
        e("ds_read_b128 %s, v%d offset:%d" % (vr(K1, 4), vK1, o + 2 * 2432))
        e("ds_read_b32 v%d, v%d offset:%d" % (K2, vK2, o + 2 * 2432))
        for i in range(16):
            e("v_exp_f32 v%d, v%d" % (Sc + i, Sc + i))
            if i & 1 and i >= 3:
                e("v_cvt_pk_bf16_f32 v%d, v%d, v%d" % (P + (i - 3) // 2, Sc + i - 3, Sc + i - 2))
        e("v_cvt_pk_bf16_f32 v%d, v%d, v%d" % (P + 7, Sc + 14, Sc + 15))
        e("s_waitcnt lgkmcnt(2)")
        e("v_mfma_f32_32x32x16_bf16 %s, %s, %s, %s" % (vr(O, 16), vr(VVa, 4), vr(P, 4), vr(O, 16)))
        e("v_mfma_f32_32x32x16_bf16 %s, %s, %s, %s" % (vr(O, 16), vr(VVb, 4), vr(P + 4, 4), vr(O, 16)))
        e("ds_read_b128 %s, v%d offset:%d" % (vr(VVa, 4), vV, o + 2432))
        e("ds_read_b128 %s, v%d offset:%d" % (vr(VVb, 4), vV, o + 2432 + 640))

    t = 0
    for c, nts in enumerate(SEGS):
        if c > 0:
            sk = k.newlab("sk")
            e("s_cmp_lg_u32 s50, 0")
            e("s_cbranch_scc1 %s" % sk)
            e("s_waitcnt vmcnt(%d)" % seg_wait(c))
            e("s_barrier")
            k.lab(sk)
        for i in range(nts):
            if t == 16:
                e("v_add_u32 v%d, %d, v%d" % (vK1, 16 * 2432, vK1))
                e("v_add_u32 v%d, %d, v%d" % (vK2, 16 * 2432, vK2))
                e("v_add_u32 v%d, %d, v%d" % (vV, 16 * 2432, vV))
            if t < 8:
                sk = k.newlab("sd")
                e("s_cmp_lg_u32 s50, 0")
                e("s_cbranch_scc1 %s" % sk)
                dma(t + 2)
                k.lab(sk)
            if t & 1:
                body(t, SB, SA)
            else:
                body(t, SA, SB)
            t += 1
    e("s_waitcnt lgkmcnt(0)")
    k.stamp(2)
    e("s_nop 7")
    e("s_nop 7")
    e("v_max3_f32 v10, |v%d|, |v%d|, |v%d|" % (O, O + 1, O + 2))
    for i in range(3, 11, 2):
        e("v_max3_f32 v10, v10, |v%d|, |v%d|" % (O + i, O + i + 1))
    e("v_max_f32 v10, v10, |v%d|" % (O + 11))
    e("v_add_f32 v11, v%d, v%d" % (O, O + 1))
    for i in range(2, 12):
        e("v_add_f32 v11, v11, v%d" % (O + i))
    e("v_mov_b32 v12, 0x%x" % f2u(2.0 ** (-100 if EXP.get("forcefb") else 100)))
    e("v_cmp_nlt_f32 vcc, v10, v12")
    e("v_cmp_u_f32 s[52:53], v11, v11")
    e("s_nop 3")
    e("s_or_b64 vcc, vcc, s[52:53]")
    e("s_cmp_lg_u32 s50, 0")
    fin = "L_%s_fin" % name
    e("s_cbranch_scc1 %s" % fin)
    e("s_cbranch_vccz %s" % fin)
    e("s_mov_b32 s50, 1")
    e("v_mov_b32 v%d, v%d" % (vK1, vK1b))
    e("v_mov_b32 v%d, v%d" % (vK2, vK2b))
    e("v_mov_b32 v10, 0xff800000")
    e("s_mov_b32 s51, 0")
    fl = "L_%s_fl" % name
    k.lab(fl)
    e("ds_read_b128 %s, v%d" % (vr(K1, 4), vK1))
    e("ds_read_b32 v%d, v%d" % (K2, vK2))
    e("s_waitcnt lgkmcnt(0)")
    e("v_mfma_f32_32x32x16_bf16 %s, %s, %s, 0" % (vr(SA, 16), vr(K1, 4), vr(Q1, 4)))
    e("v_mfma_f32_32x32x16_bf16 %s, %s, %s, %s" % (vr(SA, 16), vr(K2, 4), vr(Q2, 4), vr(SA, 16)))
    e("s_nop 7")
    e("s_nop 7")
    for i in range(0, 16, 2):
        e("v_max3_f32 v10, v10, v%d, v%d" % (SA + i, SA + i + 1))
    e("v_add_u32 v%d, 2432, v%d" % (vK1, vK1))
    e("v_add_u32 v%d, 2432, v%d" % (vK2, vK2))
    e("s_add_u32 s51, s51, 1")
    e("s_cmp_lt_u32 s51, 32")
    e("s_cbranch_scc1 %s" % fl)
    e("s_branch %s" % run)
    k.lab(fin)
    e("s_barrier")
    e("s_mul_i32 s37, s41, 4096")
    e("v_add_u32 v1, s37, v1")
    e("s_cmp_eq_u32 s40, 0")
    lo = "L_%s_lo" % name
    e("s_cbranch_scc1 %s" % lo)
    e("v_mov_b32 v%d, v%d" % (O + 10, CM))
    for i in range(3):
        e("ds_write_b128 v1, %s offset:%d" % (vr(O + 4 * i, 4), 1024 * i))
    e("s_waitcnt lgkmcnt(0)")
    e("s_barrier")
    e("s_endpgm")
    k.lab(lo)
    e("s_barrier")
    for i in range(3):
        e("ds_read_b128 %s, v1 offset:%d" % (vr(SA + 4 * i, 4), 1024 * i))
    e("s_waitcnt lgkmcnt(0)")
    e("v_min_f32 v10, v%d, v%d" % (CM, SA + 10))
    e("v_sub_f32 v11, v10, v%d" % CM)
    e("v_sub_f32 v12, v10, v%d" % (SA + 10))
    e("v_exp_f32 v11, v11")
    e("v_exp_f32 v12, v12")
    e("s_nop 0")
    for i in list(range(10)) + [11]:
        e("v_mul_f32 v%d, v11, v%d" % (O + i, O + i))
        e("v_fmac_f32 v%d, v12, v%d" % (O + i, SA + i))
    e("v_rcp_f32 v10, v%d" % (O + 11))
    e("s_nop 0")
    for i in range(10):
        e("v_mul_f32 v%d, v10, v%d" % (O + i, O + i))
    for i in range(5):
        e("v_cvt_pk_bf16_f32 v%d, v%d, v%d" % (O + i, O + 2 * i, O + 2 * i + 1))
    e("s_lshl_b32 s37, s36, 1")
    e("v_lshrrev_b32 v12, 4, v5")
    e("v_add_u32 v12, s37, v12")
    e("v_mul_u32_u24 v12, 18432, v12")
    e("v_and_b32 v13, 15, v5")
    e("v_lshl_add_u32 v12, v13, 4, v12")
    e("v_add_u32 v12, 0x%x, v12" % OB)
    e("s_mul_i32 s37, s30, 18")
    e("v_lshlrev_b32 v13, 2, v6")
    e("v_add_u32 v13, s37, v13")
    e("v_cmp_eq_u32 vcc, 0, v6")
    for i, dd in enumerate([0, 2, 8, 10, 16]):
        e("v_add_u32 v14, %d, v13" % dd)
        e("v_lshrrev_b32 v15, 3, v14")
        e("v_and_b32 v14, 7, v14")
        e("v_lshl_add_u32 v15, v15, 8, v12")
        e("v_lshl_add_u32 v15, v14, 1, v15")
        if dd == 16:
            e("v_mov_b32 v14, 0x40000000")
            e("v_cndmask_b32 v15, v14, v15, vcc")
        e("buffer_store_dword v%d, v15, s[16:19], 0 offen" % (O + i))
    k.stamp(3)
    k.rstamp(5)
    k.dump()
    k.lab(end)
    e("s_endpgm")
    return k


def gen_attn8(name, k=None, out_fid=None):
    chained = k is not None
    if chained:
        k.vgpr = max(k.vgpr, 200)
        k.lds = max(k.lds, KVHEAD)
        name = k.newlab("a")[2:]
    else:
        k = Kern(name, 200, KVHEAD, (256, 1, 1), (512, 1, 1))
    e = k.e
    S = [[16, 32], [48, 64]]
    P = [80, 88]
    O = [96, 112]
    CM = [128, 144]
    Q1 = [160, 168]
    Q2 = [164, 172]
    K1, K2 = 176, 180
    VVa, VVb = 184, 188
    vK1, vK2, vV = 192, 193, 194
    vK1b, vK2b, vVb = 195, 196, 197
    SEGS = [2, 6, 24]
    HALF = 32 * 2432
    NP = 19
    if chained:
        end = k.endlab
    else:
        end = "L_%s_end" % name
        e("s_cmp_ge_u32 s2, 256")
        e("s_cbranch_scc1 %s" % end)
        e("s_load_dwordx2 s[4:5], s[0:1], %d" % KA_WS)
        k.stamp(0)
        k.rstamp(4)
    e("s_and_b32 s30, s2, 7")
    e("s_lshr_b32 s31, s2, 3")
    e("s_and_b32 s32, s31, 3")
    e("s_lshl_b32 s30, s30, 2")
    e("s_add_u32 s30, s30, s32")
    e("s_lshr_b32 s31, s31, 2")
    e("v_lshrrev_b32 v4, 6, v0")
    e("v_and_b32 v3, 63, v0")
    e("v_readfirstlane_b32 s35, v4")
    e("s_mul_i32 s33, s30, %d" % KVHEAD)
    e("s_lshr_b32 s40, s35, 2")
    e("s_and_b32 s41, s35, 3")
    e("s_mul_i32 s42, s40, %d" % HALF)
    e("v_lshlrev_b32 v1, 4, v3")
    e("s_lshl_b32 s36, s31, 3")
    e("s_lshl_b32 s37, s41, 1")
    e("s_add_u32 s36, s36, s37")
    e("s_mul_i32 s37, s36, 1152")
    e("s_mul_i32 s38, s30, %d" % QHEAD)
    e("s_add_u32 s37, s37, s38")
    e("s_add_u32 s37, s37, 0x%x" % QPI)
    e("v_and_b32 v5, 31, v3")
    e("v_lshrrev_b32 v6, 5, v3")
    e("v_lshlrev_b32 v7, 2, v5")
    e("s_lshl_b32 s39, s41, 10")
    e("s_add_u32 s39, s39, s42")
    e("s_waitcnt lgkmcnt(0)")
    e("s_add_u32 s8, s4, s33")
    e("s_addc_u32 s9, s5, 0")
    e("s_add_u32 s8, s8, 0x%x" % KVI)
    e("s_addc_u32 s9, s9, 0")
    e("s_mov_b32 s10, %d" % KVHEAD)
    e("s_mov_b32 s11, 0x00020000")
    k.srd(16, 4, 0, WS_SIZE)
    if chained:
        sk = k.newlab("nw")
        e("s_cmp_lg_u32 s35, 0")
        e("s_cbranch_scc1 %s" % sk)
        e("s_lshr_b32 s43, s30, 1")
        emit_poll(k, "s43", 16, sk)
        k.lab(sk)
        e("s_barrier")
    for t in range(2):
        e("buffer_load_dwordx4 %s, v1, s[16:19], s37 offen offset:%d" % (vr(Q1[t], 4), 1152 * t))
        e("buffer_load_dword v%d, v7, s[16:19], s37 offen offset:%d" % (Q2[t], 1024 + 1152 * t))

    def dma():
        e("s_mov_b32 m0, s39")
        e("s_nop 0")
        e("buffer_load_dwordx4 v1, s[8:11], s39 offen lds")
        e("s_add_u32 s39, s39, 4096")

    for i in range(3):
        dma()
    e("v_add_u32 v%d, s42, v1" % vK1b)
    e("v_add_u32 v8, 1024, v7")
    e("v_add_u32 v%d, s42, v8" % vK2b)
    e("v_min_u32 v8, 18, v5")
    e("v_lshlrev_b32 v8, 4, v8")
    e("v_mul_u32_u24 v9, 320, v6")
    e("v_add3_u32 v8, v8, v9, s42")
    e("v_add_u32 v%d, 1152, v8" % vVb)
    for i in range(1, 4):
        e("v_mov_b32 v%d, 0" % (Q2[0] + i))
        e("v_mov_b32 v%d, 0" % (Q2[1] + i))
        e("v_mov_b32 v%d, 0" % (K2 + i))
    e("v_cmp_eq_u32 vcc, 0, v6")
    e("s_waitcnt vmcnt(3)")
    for t in range(2):
        e("v_cndmask_b32 v%d, 0, v%d, vcc" % (Q2[t], Q2[t]))
    e("s_mov_b32 s50, 0")

    def issued_before(tile):
        return min(3 + 2 * tile, NP)

    def seg_wait(c):
        ntiles = sum(SEGS[:c + 1]) + 1
        need = min(-(-(ntiles * 2432) // 1024), 76)
        n = min((need - 1) // 4 + 1, NP)
        issued = issued_before(sum(SEGS[:c]))
        assert issued >= n, (c, issued, n)
        return issued - n

    e("s_waitcnt vmcnt(%d)" % seg_wait(0))
    e("s_barrier")
    k.stamp(1)
    e("ds_read_b128 %s, v%d" % (vr(K1, 4), vK1b))
    e("ds_read_b32 v%d, v%d" % (K2, vK2b))
    e("s_waitcnt lgkmcnt(0)")
    for t in range(2):
        e("v_mfma_f32_32x32x16_bf16 %s, %s, %s, 0" % (vr(S[t][0], 16), vr(K1, 4), vr(Q1[t], 4)))
        e("v_mfma_f32_32x32x16_bf16 %s, %s, %s, %s" % (vr(S[t][0], 16), vr(K2, 4), vr(Q2[t], 4), vr(S[t][0], 16)))
    e("s_nop 7")
    e("s_nop 7")
    for t in range(2):
        sa = S[t][0]
        e("v_max3_f32 v%d, v%d, v%d, v%d" % (10 + t, sa, sa + 1, sa + 2))
        for i in range(3, 15, 2):
            e("v_max3_f32 v%d, v%d, v%d, v%d" % (10 + t, 10 + t, sa + i, sa + i + 1))
        e("v_max_f32 v%d, v%d, v%d" % (10 + t, 10 + t, sa + 15))
    run = "L_%s_run" % name
    k.lab(run)
    for t in range(2):
        e("v_mov_b32 v%d, v%d" % (12 + t, 10 + t))
    e("s_nop 1")
    for t in range(2):
        e("v_permlane32_swap_b32 v%d, v%d" % (12 + t, 10 + t))
    e("s_nop 1")
    for t in range(2):
        e("v_max_f32 v%d, v%d, v%d" % (10 + t, 10 + t, 12 + t))
        e("v_sub_f32 v%d, 0, v%d" % (10 + t, 10 + t))
        for i in range(16):
            e("v_mov_b32 v%d, v%d" % (CM[t] + i, 10 + t))
            e("v_mov_b32 v%d, 0" % (O[t] + i))
    e("v_mov_b32 v%d, v%d" % (vK1, vK1b))
    e("v_mov_b32 v%d, v%d" % (vK2, vK2b))
    e("v_mov_b32 v%d, v%d" % (vV, vVb))
    e("ds_read_b128 %s, v%d" % (vr(K1, 4), vK1))
    e("ds_read_b32 v%d, v%d" % (K2, vK2))
    e("s_waitcnt lgkmcnt(0)")
    for t in range(2):
        e("v_mfma_f32_32x32x16_bf16 %s, %s, %s, %s" % (vr(S[t][0], 16), vr(K1, 4), vr(Q1[t], 4), vr(CM[t], 16)))
        e("v_mfma_f32_32x32x16_bf16 %s, %s, %s, %s" % (vr(S[t][0], 16), vr(K2, 4), vr(Q2[t], 4), vr(S[t][0], 16)))
    e("ds_read_b128 %s, v%d offset:2432" % (vr(K1, 4), vK1))
    e("ds_read_b32 v%d, v%d offset:2432" % (K2, vK2))
    e("ds_read_b128 %s, v%d" % (vr(VVa, 4), vV))
    e("ds_read_b128 %s, v%d offset:640" % (vr(VVb, 4), vV))
    e("s_nop 7")

    def expcvt(Sc, Pt):
        for i in range(16):
            e("v_exp_f32 v%d, v%d" % (Sc + i, Sc + i))
            if i & 1 and i >= 3:
                e("v_cvt_pk_bf16_f32 v%d, v%d, v%d" % (Pt + (i - 3) // 2, Sc + i - 3, Sc + i - 2))
        e("v_cvt_pk_bf16_f32 v%d, v%d, v%d" % (Pt + 7, Sc + 14, Sc + 15))

    def body(tl):
        c, n = tl & 1, 1 - (tl & 1)
        o = 2432 * (tl % 16)
        e("s_waitcnt lgkmcnt(2)")
        for t in range(2):
            e("v_mfma_f32_32x32x16_bf16 %s, %s, %s, %s" % (vr(S[t][n], 16), vr(K1, 4), vr(Q1[t], 4), vr(CM[t], 16)))
            e("v_mfma_f32_32x32x16_bf16 %s, %s, %s, %s" % (vr(S[t][n], 16), vr(K2, 4), vr(Q2[t], 4), vr(S[t][n], 16)))
        e("ds_read_b128 %s, v%d offset:%d" % (vr(K1, 4), vK1, o + 2 * 2432))
        e("ds_read_b32 v%d, v%d offset:%d" % (K2, vK2, o + 2 * 2432))
        expcvt(S[0][c], P[0])
        e("s_waitcnt lgkmcnt(2)")
        e("v_mfma_f32_32x32x16_bf16 %s, %s, %s, %s" % (vr(O[0], 16), vr(VVa, 4), vr(P[0], 4), vr(O[0], 16)))
        e("v_mfma_f32_32x32x16_bf16 %s, %s, %s, %s" % (vr(O[0], 16), vr(VVb, 4), vr(P[0] + 4, 4), vr(O[0], 16)))
        expcvt(S[1][c], P[1])
        e("s_nop 0")
        e("v_mfma_f32_32x32x16_bf16 %s, %s, %s, %s" % (vr(O[1], 16), vr(VVa, 4), vr(P[1], 4), vr(O[1], 16)))
        e("v_mfma_f32_32x32x16_bf16 %s, %s, %s, %s" % (vr(O[1], 16), vr(VVb, 4), vr(P[1] + 4, 4), vr(O[1], 16)))
        e("ds_read_b128 %s, v%d offset:%d" % (vr(VVa, 4), vV, o + 2432))
        e("ds_read_b128 %s, v%d offset:%d" % (vr(VVb, 4), vV, o + 2432 + 640))

    tl = 0
    for c, nts in enumerate(SEGS):
        if c > 0:
            sk = k.newlab("sk")
            e("s_cmp_lg_u32 s50, 0")
            e("s_cbranch_scc1 %s" % sk)
            e("s_waitcnt vmcnt(%d)" % seg_wait(c))
            e("s_barrier")
            k.lab(sk)
        for i in range(nts):
            if tl == 16:
                e("v_add_u32 v%d, %d, v%d" % (vK1, 16 * 2432, vK1))
                e("v_add_u32 v%d, %d, v%d" % (vK2, 16 * 2432, vK2))
                e("v_add_u32 v%d, %d, v%d" % (vV, 16 * 2432, vV))
            nd = issued_before(tl + 1) - issued_before(tl)
            if nd:
                sk = k.newlab("sd")
                e("s_cmp_lg_u32 s50, 0")
                e("s_cbranch_scc1 %s" % sk)
                for _ in range(nd):
                    dma()
                k.lab(sk)
            body(tl)
            tl += 1
    e("s_waitcnt lgkmcnt(0)")
    k.stamp(2)
    e("s_nop 7")
    e("s_nop 7")
    e("v_mov_b32 v10, 0")
    e("v_mov_b32 v11, 0")
    for t in range(2):
        for i in range(0, 12, 2):
            e("v_max3_f32 v10, v10, |v%d|, |v%d|" % (O[t] + i, O[t] + i + 1))
        for i in range(12):
            e("v_add_f32 v11, v11, v%d" % (O[t] + i))
    e("v_mov_b32 v12, 0x%x" % f2u(2.0 ** (-100 if EXP.get("forcefb") else 100)))
    e("v_cmp_nlt_f32 vcc, v10, v12")
    e("v_cmp_u_f32 s[52:53], v11, v11")
    e("s_nop 3")
    e("s_or_b64 vcc, vcc, s[52:53]")
    e("s_cmp_lg_u32 s50, 0")
    fin = "L_%s_fin" % name
    e("s_cbranch_scc1 %s" % fin)
    e("s_cbranch_vccz %s" % fin)
    e("s_mov_b32 s50, 1")
    e("v_mov_b32 v%d, v%d" % (vK1, vK1b))
    e("v_mov_b32 v%d, v%d" % (vK2, vK2b))
    e("v_mov_b32 v10, 0xff800000")
    e("v_mov_b32 v11, 0xff800000")
    e("s_mov_b32 s51, 0")
    fl = "L_%s_fl" % name
    k.lab(fl)
    e("ds_read_b128 %s, v%d" % (vr(K1, 4), vK1))
    e("ds_read_b32 v%d, v%d" % (K2, vK2))
    e("s_waitcnt lgkmcnt(0)")
    for t in range(2):
        e("v_mfma_f32_32x32x16_bf16 %s, %s, %s, 0" % (vr(S[t][0], 16), vr(K1, 4), vr(Q1[t], 4)))
        e("v_mfma_f32_32x32x16_bf16 %s, %s, %s, %s" % (vr(S[t][0], 16), vr(K2, 4), vr(Q2[t], 4), vr(S[t][0], 16)))
    e("s_nop 7")
    e("s_nop 7")
    for t in range(2):
        for i in range(0, 16, 2):
            e("v_max3_f32 v%d, v%d, v%d, v%d" % (10 + t, 10 + t, S[t][0] + i, S[t][0] + i + 1))
    e("v_add_u32 v%d, 2432, v%d" % (vK1, vK1))
    e("v_add_u32 v%d, 2432, v%d" % (vK2, vK2))
    e("s_add_u32 s51, s51, 1")
    e("s_cmp_lt_u32 s51, 32")
    e("s_cbranch_scc1 %s" % fl)
    e("s_branch %s" % run)
    k.lab(fin)
    e("s_barrier")
    e("s_mul_i32 s37, s35, 4096")
    e("v_add_u32 v2, s37, v1")
    e("s_xor_b32 s38, s35, 4")
    e("s_mul_i32 s38, s38, 4096")
    e("v_add_u32 v1, s38, v1")
    lo = "L_%s_lo" % name
    jn = "L_%s_jn" % name
    e("s_cmp_eq_u32 s40, 0")
    e("s_cbranch_scc1 %s" % lo)
    e("v_mov_b32 v%d, v%d" % (O[0] + 10, CM[0]))
    for i in range(3):
        e("ds_write_b128 v2, %s offset:%d" % (vr(O[0] + 4 * i, 4), 1024 * i))
    for i in range(12):
        e("v_mov_b32 v%d, v%d" % (O[0] + i, O[1] + i))
    e("v_mov_b32 v%d, v%d" % (CM[0], CM[1]))
    e("s_add_u32 s36, s36, 1")
    e("s_branch %s" % jn)
    k.lab(lo)
    e("v_mov_b32 v%d, v%d" % (O[1] + 10, CM[1]))
    for i in range(3):
        e("ds_write_b128 v2, %s offset:%d" % (vr(O[1] + 4 * i, 4), 1024 * i))
    k.lab(jn)
    e("s_waitcnt lgkmcnt(0)")
    e("s_barrier")
    SA = 16
    OO = O[0]
    for i in range(3):
        e("ds_read_b128 %s, v1 offset:%d" % (vr(SA + 4 * i, 4), 1024 * i))
    e("s_waitcnt lgkmcnt(0)")
    e("v_min_f32 v10, v%d, v%d" % (CM[0], SA + 10))
    e("v_sub_f32 v11, v10, v%d" % CM[0])
    e("v_sub_f32 v12, v10, v%d" % (SA + 10))
    e("v_exp_f32 v11, v11")
    e("v_exp_f32 v12, v12")
    e("s_nop 0")
    for i in list(range(10)) + [11]:
        e("v_mul_f32 v%d, v11, v%d" % (OO + i, OO + i))
        e("v_fmac_f32 v%d, v12, v%d" % (OO + i, SA + i))
    e("v_rcp_f32 v10, v%d" % (OO + 11))
    e("s_nop 0")
    for i in range(10):
        e("v_mul_f32 v%d, v10, v%d" % (OO + i, OO + i))
    for i in range(5):
        e("v_cvt_pk_bf16_f32 v%d, v%d, v%d" % (OO + i, OO + 2 * i, OO + 2 * i + 1))
    e("s_lshl_b32 s37, s36, 1")
    e("v_lshrrev_b32 v12, 4, v5")
    e("v_add_u32 v12, s37, v12")
    e("v_mul_u32_u24 v12, 18432, v12")
    e("v_and_b32 v13, 15, v5")
    e("v_lshl_add_u32 v12, v13, 4, v12")
    e("v_add_u32 v12, 0x%x, v12" % OB)
    e("s_mul_i32 s37, s30, 18")
    e("v_lshlrev_b32 v13, 2, v6")
    e("v_add_u32 v13, s37, v13")
    e("v_cmp_eq_u32 vcc, 0, v6")
    for i, dd in enumerate([0, 2, 8, 10, 16]):
        e("v_add_u32 v14, %d, v13" % dd)
        e("v_lshrrev_b32 v15, 3, v14")
        e("v_and_b32 v14, 7, v14")
        e("v_lshl_add_u32 v15, v15, 8, v12")
        e("v_lshl_add_u32 v15, v14, 1, v15")
        if dd == 16:
            e("v_mov_b32 v14, 0x40000000")
            e("v_cndmask_b32 v15, v14, v15, vcc")
        e("buffer_store_dword v%d, v15, s[16:19], 0 offen%s" % (OO + i, " sc1" if out_fid is not None else ""))
    if out_fid is not None:
        emit_signal(k, out_fid, "s31", "s30")
        k.endlab = end
        return k
    k.stamp(3)
    k.rstamp(5)
    k.dump()
    k.lab(end)
    e("s_endpgm")
    return k


def gen_out(name, kind, xsrc, xdst, layer, fused=False, fid=0, k=None):
    OA_BASE = 81 * 1024
    lds = OA_BASE + (72 * 1024 if kind == 'A' else 0)
    chained = k is not None
    if chained:
        k.vgpr = max(k.vgpr, 216 if kind == 'A' else 136)
        k.lds = max(k.lds, lds)
        name = k.newlab("o")[2:]
    else:
        k = Kern(name, 216 if kind == 'A' else 136, lds, (256, 1, 1), (512, 1, 1))
    SC = " sc1" if fused else ""
    LSC = ""
    e = k.e
    ACC = 16
    XRES = 36
    AF = 48
    BF = 84
    BF2 = [84, 104]
    VL16 = 124 if kind == 'B' else 208
    VB = VL16 + 1
    VB4 = VL16 + 2
    VX = VL16 + 3
    VX4 = VL16 + 4
    VD = VL16 + 5
    VD4 = VL16 + 6
    if chained:
        end = k.endlab
    else:
        end = "L_%s_end" % name
        e("s_cmp_ge_u32 s2, 256")
        e("s_cbranch_scc1 %s" % end)
        e("s_load_dwordx2 s[4:5], s[0:1], %d" % KA_WS)
        k.stamp(0)
    if xdst is None:
        e("s_load_dwordx2 s[6:7], s[0:1], %d" % KA_OUT)
    e("s_and_b32 s28, s2, 7")
    e("s_lshr_b32 s29, s2, 3")
    e("s_and_b32 s30, s29, 7")
    e("s_lshr_b32 s31, s29, 3")
    e("s_lshl_b32 s28, s28, 2")
    e("s_add_u32 s31, s31, s28")
    e("v_lshrrev_b32 v4, 6, v0")
    e("v_and_b32 v3, 63, v0")
    e("v_readfirstlane_b32 s35, v4")
    e("v_and_b32 v5, 15, v3")
    e("v_lshrrev_b32 v6, 4, v3")
    e("v_lshlrev_b32 v%d, 4, v3" % VL16)
    e("s_and_b32 s36, s35, 3")
    e("s_lshr_b32 s37, s35, 2")
    e("s_lshl_b32 s38, s31, 2")
    e("s_add_u32 s38, s38, s36")
    e("s_mul_i32 s39, s38, 18432")
    e("s_mul_i32 s33, s30, %d" % (81 * 1024))
    e("s_lshl_b32 s52, s35, 10")
    e("s_waitcnt lgkmcnt(0)")
    k.srd(8, 4, xsrc, XB)
    k.srd(12, 4, WOA if kind == 'A' else WOB, WO_SZ)
    if xdst is None:
        k.srd(24, 6, 0, XB)
    else:
        k.srd(24, 4, xdst, XB)
    if kind == 'A':
        k.srd(16, 4, PQF, PQF_SZ)
        k.srd(44, 4, KVACC + layer * KVACC_L, KVACC_L)
    else:
        k.srd(16, 4, OB, XB)
    k.srd(56, 4, STATV.get(xdst, STATS), 2048 * 64)

    def wdma(lo, hi):
        for i in range(lo, hi):
            if 8 * i + 7 < 81:
                e("s_add_u32 m0, s52, %d" % (8192 * i))
                e("s_add_u32 s34, m0, s33")
            else:
                e("s_add_u32 s54, s52, %d" % (8192 * i))
                e("s_min_u32 m0, s54, %d" % (80 * 1024))
                e("s_add_u32 s34, m0, s33")
            e("buffer_load_dwordx4 v%d, s[12:15], s34 offen lds" % VL16)

    if chained:
        sk = k.newlab("nw")
        po = k.newlab("po")
        e("s_cmp_eq_u32 s35, 0")
        e("s_cbranch_scc1 %s" % po)
        wdma(0, 11)
        e("s_cmp_lg_u32 s35, 1")
        e("s_cbranch_scc1 %s" % sk)
        e("s_mov_b32 s52, 0")
        wdma(0, 11)
        e("s_branch %s" % sk)
        k.lab(po)
        e("s_lshr_b32 s43, s31, 2")
        emit_poll(k, "s43", 32, sk)
        k.lab(sk)
        e("s_barrier")

    if kind == 'B':
        e("s_mul_i32 s40, s37, 9216")
        e("s_add_u32 s40, s40, s39")
        for i in range(9):
            e("buffer_load_dwordx4 %s, v%d, s[16:19], s40 offen offset:%d" % (vr(AF + 4 * i, 4), VL16, (1024 * i) % 4096))
            if i % 4 == 3:
                e("s_add_u32 s40, s40, 4096")
    else:
        KVR, PQR, DD = 48, 96, 160
        e("v_and_b32 v1, 31, v3")
        e("v_lshrrev_b32 v2, 5, v3")
        e("s_mul_i32 s40, s35, %d" % (4 * 2432))
        e("v_min_u32 v8, 18, v1")
        e("v_lshlrev_b32 v8, 7, v8")
        e("v_add_u32 v9, s40, v8")
        e("v_lshl_add_u32 v8, v2, 5, v9")
        e("v_lshlrev_b32 v10, 2, v1")
        e("s_lshl_b32 s41, s31, 6")
        e("s_lshl_b32 s42, s35, 2")
        e("s_add_u32 s41, s41, s42")
        e("s_mul_i32 s55, s41, 1152")
        for hh in range(4):
            for t in range(2):
                for i in range(1, 4):
                    e("v_mov_b32 v%d, 0" % (PQR + 16 * hh + 8 * t + 4 + i))

        def s1load(hh):
            e("s_mov_b32 s34, %d" % (hh * 2432))
            e("buffer_load_dwordx4 %s, v8, s[44:47], s34 offen%s" % (vr(KVR + 12 * hh, 4), LSC))
            e("buffer_load_dwordx4 %s, v8, s[44:47], s34 offen offset:16%s" % (vr(KVR + 12 * hh + 4, 4), LSC))
            e("buffer_load_dwordx2 %s, v9, s[44:47], s34 offen offset:64%s" % (vr(KVR + 12 * hh + 8, 2), LSC))
            for t in range(2):
                e("s_add_u32 s34, s55, %d" % (t * 32 * 1152 + hh * 1152))
                e("buffer_load_dwordx4 %s, v%d, s[16:19], s34 offen%s" % (vr(PQR + 16 * hh + 8 * t, 4), VL16, LSC))
                e("buffer_load_dword v%d, v10, s[16:19], s34 offen offset:1024%s" % (PQR + 16 * hh + 8 * t + 4, LSC))

        s1load(0)
        s1load(1)
    if kind == 'B' and not chained:
        wdma(0, 11)
    e("s_lshr_b32 s40, s38, 1")
    e("s_mul_i32 s40, s40, 36864")
    e("s_and_b32 s41, s38, 1")
    e("s_lshl_b32 s41, s41, 8")
    e("s_add_u32 s40, s40, s41")
    e("s_mul_i32 s41, s30, 4608")
    e("s_add_u32 s40, s40, s41")
    e("v_lshrrev_b32 v7, 1, v6")
    e("v_lshlrev_b32 v7, 9, v7")
    e("v_lshl_add_u32 v7, v5, 4, v7")
    e("v_and_b32 v11, 1, v6")
    e("v_lshl_add_u32 v7, v11, 3, v7")
    e("v_add_u32 v%d, s40, v7" % VX)
    e("v_cmp_gt_u32 vcc, 2, v6")
    e("v_mov_b32 v11, 0x40000000")
    e("s_nop 0")
    e("v_cndmask_b32 v%d, v11, v%d, vcc" % (VX4, VX))
    if xdst is None:
        e("s_lshl_b32 s40, s38, 4")
        e("v_add_u32 v7, s40, v5")
        e("v_mul_u32_u24 v7, 1152, v7")
        e("v_lshl_add_u32 v7, v6, 3, v7")
        e("s_mul_i32 s40, s30, 144")
        e("v_add_u32 v%d, s40, v7" % VD)
        e("v_cndmask_b32 v%d, v11, v%d, vcc" % (VD4, VD))
    def xres():
        for t in range(5):
            e("s_mov_b32 s34, %d" % (1024 * t))
            e("buffer_load_dwordx2 %s, v%d, s[8:11], s34 offen%s" % (vr(XRES + 2 * t, 2), VX4 if t == 4 else VX, LSC))

    if kind == 'B':
        xres()
    e("s_mul_i32 s40, s37, %d" % (4 * 9216))
    e("v_add_u32 v%d, s40, v%d" % (VB, VL16))
    e("v_and_b32 v7, 7, v5")
    e("v_lshlrev_b32 v7, 4, v7")
    e("v_lshl_add_u32 v7, v6, 7, v7")
    e("v_add_u32 v%d, s40, v7" % VB4)
    for i in range(20):
        e("v_mov_b32 v%d, 0" % (ACC + i))
    if kind == 'A':
        e("s_mul_i32 s41, s35, 2304")
        e("s_add_u32 s41, s41, %d" % OA_BASE)
        e("v_lshrrev_b32 v11, 4, v1")
        e("v_mul_u32_u24 v11, 18432, v11")
        e("v_and_b32 v12, 15, v1")
        e("v_lshl_add_u32 v11, v12, 4, v11")
        e("v_add_u32 v11, s41, v11")
        e("s_mov_b32 s42, 0x%x" % f2u(1e-6))
        e("v_cmp_eq_u32 s[48:49], 0, v2")
        for hh in range(4):
            kv = KVR + 12 * hh
            k.stamp(7 + 2 * hh)
            e("s_waitcnt vmcnt(%d)" % ([7, 7, 7, 0] if chained else [7, 7, 7, 6])[hh])
            k.stamp(8 + 2 * hh)
            for i in range(5):
                e("v_cvt_pk_bf16_f32 v%d, v%d, v%d" % (kv + i, kv + 2 * i, kv + 2 * i + 1))
            for i in range(5, 8):
                e("v_mov_b32 v%d, 0" % (kv + i))
            for t in range(2):
                q2 = PQR + 16 * hh + 8 * t + 4
                e("v_cndmask_b32 v%d, 0, v%d, s[48:49]" % (q2, q2))
            e("s_nop 1")
            for t in range(2):
                q1 = PQR + 16 * hh + 8 * t
                e("v_mfma_f32_32x32x16_bf16 %s, %s, %s, 0" % (vr(DD + 16 * t, 16), vr(kv, 4), vr(q1, 4)))
                e("v_mfma_f32_32x32x16_bf16 %s, %s, %s, %s" % (vr(DD + 16 * t, 16), vr(kv + 4, 4), vr(q1 + 4, 4), vr(DD + 16 * t, 16)))
            if hh < 2:
                s1load(hh + 2)
            elif hh == 2:
                if not chained:
                    wdma(0, 6)
            else:
                if not chained:
                    wdma(6, 11)
                xres()
            lo, hi = [], []
            for i, dd in enumerate([0, 2, 8, 10, 16]):
                for h in range(2):
                    c = 18 * hh + dd + 4 * h
                    off = (c >> 3) * 256 + (c & 7) * 2
                    if not (dd == 16 and h == 1):
                        (lo if h == 0 else hi).append("v_add_u32 v%d, %d, v11" % (192 + i, off))
            half_ops(k, lo, hi)
            e("s_nop 3")
            for t in range(2):
                d = DD + 16 * t
                e("v_add_f32 v%d, s42, v%d" % (d + 12, d + 11))
            for t in range(2):
                d = DD + 16 * t
                e("v_rcp_f32 v%d, v%d" % (d + 12, d + 12))
            for t in range(2):
                d = DD + 16 * t
                e("v_mov_b32 v%d, v%d" % (d + 13, d + 12))
            for t in range(2):
                d = DD + 16 * t
                for i in range(5):
                    e("v_pk_mul_f32 %s, %s, %s" % (vr(d + 2 * i, 2), vr(d + 2 * i, 2), vr(d + 12, 2)))
                    e("v_cvt_pk_bf16_f32 v%d, v%d, v%d" % (d + 2 * i, d + 2 * i, d + 2 * i + 1))
                    if i == 4:
                        e("s_mov_b32 exec_hi, 0")
                    e("ds_write_b32 v%d, v%d offset:%d" % (192 + i, d + 2 * i, t * 36864))
                    if i == 4:
                        e("s_mov_b32 exec_hi, -1")
        e("s_mul_i32 s40, s36, 18432")
        e("s_mul_i32 s41, s37, 9216")
        e("s_add_u32 s40, s40, s41")
        e("s_add_u32 s40, s40, %d" % OA_BASE)
        e("v_add_u32 v7, s40, v%d" % VL16)
    k.stamp(1)
    e("s_waitcnt vmcnt(0) lgkmcnt(0)")
    e("s_barrier")
    k.stamp(2)
    if kind == 'A':
        for i in range(9):
            e("ds_read_b128 %s, v7 offset:%d" % (vr(AF + 4 * i, 4), 1024 * i))
    l1 = "L_%s_k1" % name
    lj = "L_%s_kj" % name
    e("s_cmp_eq_u32 s37, 1")
    e("s_cbranch_scc1 %s" % l1)
    for kh in range(2):
        if kh == 1:
            k.lab(l1)
        def bread(i):
            bf = BF2[i & 1]
            sl = i + kh
            po = (sl >> 1) * 9216
            for t in range(4):
                e("ds_read_b128 %s, v%d offset:%d" % (vr(bf + 4 * t, 4), VB, po + (sl & 1) * 4096 + t * 1024))
            e("ds_read_b128 %s, v%d offset:%d" % (vr(bf + 16, 4), VB4, po + 8192 + (sl & 1) * 512))

        bread(0)
        for i in range(9):
            if i + 1 < 9:
                bread(i + 1)
                e("s_waitcnt lgkmcnt(5)")
            else:
                e("s_waitcnt lgkmcnt(0)")
            bf = BF2[i & 1]
            for t in range(5):
                e("v_mfma_f32_16x16x32_bf16 %s, %s, %s, %s" % (vr(ACC + 4 * t, 4), vr(bf + 4 * t, 4), vr(AF + 4 * i, 4), vr(ACC + 4 * t, 4)))
        k.stamp(4)
        e("s_barrier")
        e("s_mul_i32 s40, s36, 5120")
        e("v_add_u32 v7, s40, v%d" % VL16)
        if kh == 1:
            e("s_nop 7")
            for t in range(5):
                e("ds_write_b128 v7, %s offset:%d" % (vr(ACC + 4 * t, 4), 1024 * t))
            e("s_waitcnt lgkmcnt(0)")
            e("s_barrier")
            if not fused:
                e("s_endpgm")
        else:
            e("s_barrier")
            for t in range(5):
                e("ds_read_b128 %s, v7 offset:%d" % (vr(BF + 4 * t, 4), 1024 * t))
            e("s_waitcnt lgkmcnt(0)")
            for t in range(5):
                a = ACC + 4 * t
                x = XRES + 2 * t
                e("v_lshlrev_b32 v8, 16, v%d" % x)
                e("v_and_b32 v9, 0xffff0000, v%d" % x)
                e("v_lshlrev_b32 v10, 16, v%d" % (x + 1))
                e("v_and_b32 v11, 0xffff0000, v%d" % (x + 1))
                for r in range(4):
                    e("v_add_f32 v%d, v%d, v%d" % (a + r, a + r, BF + 4 * t + r))
                    e("v_add_f32 v%d, v%d, v%d" % (a + r, a + r, 8 + r))
                e("v_cvt_pk_bf16_f32 v%d, v%d, v%d" % (a, a, a + 1))
                e("v_cvt_pk_bf16_f32 v%d, v%d, v%d" % (a + 1, a + 2, a + 3))
                if xdst is None:
                    e("buffer_store_dwordx2 %s, v%d, s[24:27], 0 offen offset:%d" % (vr(a, 2), VD4 if t == 4 else VD, 32 * t))
                else:
                    e("s_mov_b32 s34, %d" % (1024 * t))
                    e("buffer_store_dwordx2 %s, v%d, s[24:27], s34 offen%s" % (vr(a, 2), VX4 if t == 4 else VX, SC))
            if xdst is not None:
                e("s_mov_b32 s42, 0x3f803f80")
                e("v_cmp_gt_u32 vcc, 2, v6")
                e("v_mov_b32 v8, 0")
                e("v_mov_b32 v9, 0")
                e("v_cndmask_b32 v%d, 0, v%d, vcc" % (ACC + 18, ACC + 16))
                e("v_cndmask_b32 v%d, 0, v%d, vcc" % (ACC + 19, ACC + 17))
                for t in range(5):
                    for i in range(2):
                        r = ACC + 4 * t + i + (2 if t == 4 else 0)
                        e("v_dot2_f32_bf16 v8, v%d, s42, v8" % r)
                        e("v_dot2_f32_bf16 v9, v%d, v%d, v9" % (r, r))
                e("s_nop 2")
                e("v_mov_b32 v10, v8")
                e("v_mov_b32 v11, v9")
                e("s_nop 1")
                e("v_permlane16_swap_b32 v10, v8")
                e("v_permlane16_swap_b32 v11, v9")
                e("s_nop 1")
                e("v_add_f32 v8, v8, v10")
                e("v_add_f32 v9, v9, v11")
                e("v_mov_b32 v10, v8")
                e("v_mov_b32 v11, v9")
                e("s_nop 1")
                e("v_permlane32_swap_b32 v10, v8")
                e("v_permlane32_swap_b32 v11, v9")
                e("s_nop 1")
                e("v_add_f32 v8, v8, v10")
                e("v_add_f32 v9, v9, v11")
                e("s_lshl_b32 s40, s38, 10")
                e("s_lshl_b32 s41, s30, 3")
                e("s_add_u32 s40, s40, s41")
                e("v_lshlrev_b32 v10, 6, v5")
                e("v_cmp_eq_u32 vcc, 0, v6")
                e("v_mov_b32 v11, 0x40000000")
                e("s_nop 0")
                e("v_cndmask_b32 v10, v11, v10, vcc")
                e("buffer_store_dwordx2 v[8:9], v10, s[56:59], s40 offen%s" % SC)
            if fused:
                e("s_waitcnt vmcnt(0)")
                e("s_branch %s" % lj)
                continue
            k.stamp(5)
            if STAMPS:
                e("s_waitcnt vmcnt(0)")
            k.stamp(6)
            k.dump()
            e("s_endpgm")
    if fused:
        k.lab(lj)
        e("s_barrier")
        k.srd(20, 4, FLAGS + fid * 2048, 2048)
        sk = k.newlab("sig")
        e("s_cmp_lg_u32 s35, 0")
        e("s_cbranch_scc1 %s" % sk)
        e("s_lshr_b32 s40, s31, 1")
        e("s_lshl_b32 s40, s40, 7")
        e("s_and_b32 s41, s31, 1")
        e("s_lshl_b32 s41, s41, 3")
        e("s_add_u32 s41, s41, s30")
        e("s_lshl_b32 s41, s41, 2")
        e("s_add_u32 s40, s40, s41")
        e("v_mov_b32 v8, 1")
        e("v_mov_b32 v9, 0")
        e("s_mov_b64 exec, 1")
        e("buffer_store_dword v8, v9, s[20:23], s40 offen sc1")
        e("s_mov_b64 exec, -1")
        k.lab(sk)
        k.endlab = end
        return k
    k.lab(end)
    e("s_endpgm")
    return k


ATTN8 = True


def main():
    qa = gen_qkv('A', params=[(58, X0F), (59, KVACC)], kname="qkv_a1_kernel")
    f1 = gen_qkv('B', gen_out("f1_kernel", 'A', X0F, X1, 0, fused=True, fid=0), [(58, X1), (59, 0)])
    f2 = gen_qkv('A', gen_out("f2_kernel", 'B', X1, X2, 0, fused=True, fid=1), [(58, X2), (59, KVACC + KVACC_L)])
    f3 = gen_qkv('B', gen_out("f3_kernel", 'A', X2, X3, 1, fused=True, fid=2), [(58, X3), (59, 0)])
    ks = [
        gen_prep(),
        qa, f1, f2, f3,
        gen_attn("attn_kernel"),
        gen_out("out_b2_kernel", 'B', X3, None, 1),
    ]
    byname = {k.name: k for k in ks}
    order = ["prep_kernel", "qkv_a1_kernel", "f1_kernel", "attn_kernel", "f2_kernel", "f3_kernel",
             "attn_kernel", "out_b2_kernel"]
    hdr = open("cdna_kernels/%s.s.ref" % NAME).read().split("; Override launch geometry")[0]
    out = hdr
    for n in order:
        k = byname[n]
        out += "; @launch kernel=%s grid=(%d,%d,%d) block=(%d,%d,%d) lds=%d\n" % ((n,) + k.grid + k.block + (k.lds,))
    out += '.amdgcn_target "amdgcn-amd-amdhsa--gfx950"\n.text\n'
    for k in ks:
        if getattr(k, "nodesc", False):
            out += ".p2align 8\n%s:\n" % k.name + "\n".join(k.L) + "\n"
        else:
            out += k.text()
    out += '.section .rodata,"a"\n'
    for k in ks:
        if not getattr(k, "nodesc", False):
            out += ".p2align 6\n" + k.desc()
    dst = "cdna_kernels/%s.s" % NAME
    if STAMPS:
        dst = OUTFILE
    open(dst, "w").write(out)


if __name__ == "__main__":
    if len(sys.argv) > 1 and sys.argv[1] == "stamps":
        STAMPS = True
        for a in sys.argv[2:]:
            if a.startswith("out="):
                OUTFILE = a[4:]
            elif a.startswith("wg="):
                STAMP_WG = int(a[3:])
            elif "=" in a:
                EXP[a.split("=")[0]] = a.split("=")[1]
            else:
                EXP[a] = True
    main()
```

```python
import sys, re

NAME = "interleave_layers__linear_attn_block__mha_block__prompt"

XB = 2048 * 576 * 2
X1 = 0x0
X2 = 0x240000
X3 = 0x480000
PQ = 0x6C0000
OB = 0x900000
QPI = 0xB40000
QHEAD = 64 * 1152
KVI = 0xF40000
KVHEAD = 64 * 2432
KVACC = 0x1400000
KVACC_L = 32 * 19 * 32 * 4
WFA = 0x2000000
WFB = 0x2240000
WF_SZ = 8 * 36 * 8 * 1024
STATS = 0x1500000
STATV = {}
WOA = 0x1840000
WOB = 0x1900000
WO_SZ = 8 * 81 * 1024
CS = 0x1480000
CS_MAT = 3 * 16 * 512
PQF = 0x1A00000
PQF_SZ = 64 * 32 * 1152
X0F = 0x1D00000
STATV.update({X0F: STATS, X1: STATS + 0x20000, X2: STATS + 0x40000, X3: STATS + 0x60000})
FLAGS = KVACC + 2 * KVACC_L
WS_SIZE = 0x2500000

LOG2E = 1.4426950408889634
QSCALE = (18.0 ** -0.5) * LOG2E

import struct
def f2u(x):
    return struct.unpack("<I", struct.pack("<f", x))[0]


EXP = {}
STAMPS = False
STAMP_WG = 0


class Kern:
    def __init__(self, name, vgpr, lds, grid, block):
        self.name = name
        self.vgpr = vgpr
        self.lds = lds
        self.grid = grid
        self.block = block
        self.L = []
        self.uid = 0

    def e(self, s):
        m = re.search(r"offset:(\d+)", s)
        if m:
            o = int(m.group(1))
            if s.startswith("buffer_"):
                assert o <= 4095, s
            elif s.startswith("ds_"):
                assert o <= 65535, s
        self.L.append("    " + s)

    def lab(self, s):
        self.L.append(s + ":")

    def newlab(self, p):
        self.uid += 1
        return "L_%s_%s%d" % (self.name, p, self.uid)

    def srd(self, d, b, off, size):
        if off:
            self.e("s_add_u32 s%d, s%d, 0x%x" % (d, b, off))
            self.e("s_addc_u32 s%d, s%d, 0" % (d + 1, b + 1))
        else:
            self.e("s_mov_b32 s%d, s%d" % (d, b))
            self.e("s_mov_b32 s%d, s%d" % (d + 1, b + 1))
        self.e("s_mov_b32 s%d, 0x%x" % (d + 2, size))
        self.e("s_mov_b32 s%d, 0x00020000" % (d + 3))

    def rstamp(self, i):
        if STAMPS:
            self.e("s_memrealtime s[%d:%d]" % (64 + 2 * i, 65 + 2 * i))
            self.nst = max(getattr(self, "nst", 0), i + 1)

    def stamp(self, i):
        if STAMPS:
            self.e("s_memtime s[%d:%d]" % (64 + 2 * i, 65 + 2 * i))
            self.nst = max(getattr(self, "nst", 0), i + 1)

    def dump(self):
        if STAMPS and getattr(self, "nst", 0):
            l = self.newlab("nd")
            self.e("s_cmp_lg_u32 s2, %d" % STAMP_WG)
            self.e("s_cbranch_scc1 %s" % l)
            self.e("s_load_dwordx2 s[60:61], s[0:1], %d" % KA_DBG)
            self.e("s_waitcnt lgkmcnt(0)")
            self.e("s_mov_b32 s62, 256")
            self.e("s_mov_b32 s63, 0x00020000")
            self.e("v_lshrrev_b32 v1, 6, v0")
            if EXP.get("hiwaves"):
                self.e("v_xor_b32 v1, 4, v1")
            self.e("v_lshlrev_b32 v1, 6, v1")
            if getattr(self, "endlab", None):
                self.e("v_add_u32 v1, 128, v1")
            for i in range(self.nst):
                self.e("v_mov_b32 v2, s%d" % (64 + 2 * i))
                self.e("buffer_store_dword v2, v1, s[60:63], 0 offen offset:%d" % (4 * i))
            self.lab(l)

    def text(self):
        if getattr(self, "stub", None):
            return (".globl %s\n.p2align 8\n.type %s,@function\n%s:\n" % (self.name, self.name, self.name)
                    + "".join("    %s\n" % x for x in self.stub))
        out = []
        out.append(".globl %s" % self.name)
        out.append(".p2align 8")
        out.append(".type %s,@function" % self.name)
        out.append("%s:" % self.name)
        out += self.L
        return "\n".join(out) + "\n"

    def desc(self):
        v = (self.vgpr + 3) // 4 * 4
        return """.amdhsa_kernel %s
  .amdhsa_next_free_vgpr %d
  .amdhsa_next_free_sgpr 96
  .amdhsa_accum_offset %d
  .amdhsa_group_segment_fixed_size 0
  .amdhsa_kernarg_size 72
  .amdhsa_user_sgpr_count 2
  .amdhsa_user_sgpr_kernarg_segment_ptr 1
  .amdhsa_system_sgpr_workgroup_id_x 1
.end_amdhsa_kernel
""" % (self.name, v, v)


def vr(a, n):
    return "v[%d:%d]" % (a, a + n - 1)


KA_AX, KA_AWQKV, KA_AWO, KA_BX, KA_BWQKV, KA_BWO, KA_OUT, KA_DBG, KA_WS = [8 * i for i in range(9)]


OUTFILE = 'st.s'
PB_ROW = 288
OB_ROW = 160


def gen_prep():
    NQ = 96
    NO = 96
    NZ = 0
    NX = 64
    GL = 64 * PB_ROW
    k = Kern("prep_kernel", 96, 3 * GL + 4096, (NQ + NO + NZ + NX, 1, 1), (768, 1, 1))
    e = k.e
    e("s_cmp_ge_u32 s2, %d" % (NQ + NO + NZ + NX))
    e("s_cbranch_scc1 L_prep_end")
    e("s_load_dwordx2 s[4:5], s[0:1], %d" % KA_WS)
    e("s_load_dwordx2 s[20:21], s[0:1], %d" % KA_AWQKV)
    e("s_load_dwordx2 s[22:23], s[0:1], %d" % KA_BWQKV)
    e("s_load_dwordx2 s[24:25], s[0:1], %d" % KA_AWO)
    e("s_load_dwordx2 s[26:27], s[0:1], %d" % KA_BWO)
    e("s_load_dwordx2 s[44:45], s[0:1], %d" % KA_AX)
    k.stamp(0)
    e("v_and_b32 v3, 63, v0")
    e("v_lshrrev_b32 v4, 6, v0")
    e("v_and_b32 v0, 255, v0")
    e("v_readfirstlane_b32 s35, v4")
    e("v_lshlrev_b32 v5, 4, v3")
    e("v_lshrrev_b32 v6, 4, v3")
    e("v_lshrrev_b32 v8, 2, v3")
    e("v_and_b32 v8, 3, v8")
    e("v_and_b32 v9, 3, v3")
    e("s_lshr_b32 s46, s35, 2")
    e("s_and_b32 s35, s35, 3")
    e("s_mul_i32 s47, s46, %d" % GL)
    e("s_waitcnt lgkmcnt(0)")
    k.srd(16, 4, 0, WS_SIZE)
    e("s_cmp_ge_u32 s2, %d" % (NQ + NO))
    e("s_cbranch_scc1 L_prep_misc")
    e("s_cmp_ge_u32 s2, %d" % NQ)
    e("s_cbranch_scc1 L_prep_wo")
    e("s_cmp_ge_u32 s2, 48")
    e("s_cselect_b32 s30, 1, 0")
    e("s_mul_i32 s31, s30, 48")
    e("s_sub_u32 s31, s2, s31")
    e("s_mul_i32 s32, s31, 21846")
    e("s_lshr_b32 s32, s32, 16")
    e("s_mul_i32 s33, s32, 3")
    e("s_sub_u32 s33, s31, s33")
    e("s_mul_i32 s48, s33, 6")
    e("s_lshl_b32 s49, s46, 1")
    e("s_add_u32 s48, s48, s49")
    e("s_cmp_eq_u32 s30, 0")
    e("s_cselect_b32 s8, s20, s22")
    e("s_cselect_b32 s9, s21, s23")
    e("s_mov_b32 s10, %d" % (576 * 3456))
    e("s_mov_b32 s11, 0x00020000")
    e("s_cselect_b32 s36, 1, 0")
    e("s_mul_i32 s37, s32, 72")
    e("s_mul_i32 s38, s48, %d" % (32 * 3456))
    e("s_add_u32 s37, s37, s38")
    for i in range(7):
        e("v_add_u32 v10, %d, v0" % (256 * i))
        if i == 6:
            e("v_min_u32 v10, 1727, v10")
        e("v_mul_u32_u24 v11, 9710, v10")
        e("v_lshrrev_b32 v11, 18, v11")
        e("v_mul_u32_u24 v12, 27, v11")
        e("v_sub_u32 v12, v10, v12")
        e("v_mul_u32_u24 v13, 57, v12")
        e("v_lshrrev_b32 v13, 9, v13")
        e("v_mul_u32_u24 v14, 9, v13")
        e("v_sub_u32 v14, v12, v14")
        e("v_add_u32 v13, s36, v13")
        e("v_cmp_eq_u32 vcc, 3, v13")
        e("s_nop 1")
        e("v_cndmask_b32_e64 v13, v13, 0, vcc")
        e("v_mul_u32_u24 v13, 1152, v13")
        e("v_mul_u32_u24 v15, 3456, v11")
        e("v_add3_u32 v15, v15, v13, s37")
        e("v_lshl_add_u32 v15, v14, 3, v15")
        e("buffer_load_dwordx2 %s, v15, s[8:11], 0 offen" % vr(32 + 2 * i, 2))
        e("v_mul_u32_u24 v15, %d, v11" % PB_ROW)
        e("v_lshl_add_u32 v15, v12, 3, v15")
        e("v_add_u32 v%d, s47, v15" % (20 + i))
    e("v_mov_b32 v28, 0")
    e("v_mov_b32 v29, 0")
    for i in range(2):
        e("v_add_u32 v10, %d, v0" % (256 * i))
        e("v_min_u32 v10, 319, v10")
        e("v_mul_u32_u24 v11, 13108, v10")
        e("v_lshrrev_b32 v11, 16, v11")
        e("v_mul_u32_u24 v12, 5, v11")
        e("v_sub_u32 v12, v10, v12")
        e("v_mul_u32_u24 v11, %d, v11" % PB_ROW)
        e("v_lshl_add_u32 v11, v12, 3, v11")
        e("v_add_u32 v11, s47, v11")
        e("ds_write_b64 v11, v[28:29] offset:216")
    e("v_lshrrev_b32 v7, 1, v6")
    e("v_lshl_add_u32 v7, v7, 3, v8")
    e("v_mul_u32_u24 v7, %d, v7" % PB_ROW)
    e("v_and_b32 v10, 1, v6")
    e("v_lshl_add_u32 v7, v10, 5, v7")
    e("v_lshl_add_u32 v7, v9, 3, v7")
    e("s_lshl_b32 s38, s35, 6")
    e("s_add_u32 s38, s38, s47")
    e("v_add_u32 v7, s38, v7")
    for i in range(4):
        e("v_mov_b32 v%d, 0x3f803f80" % (28 + i))
    e("s_mul_i32 s38, s32, 36")
    e("s_lshl_b32 s39, s48, 1")
    e("s_add_u32 s38, s38, s39")
    e("s_lshl_b32 s38, s38, 2")
    e("s_add_u32 s38, s38, s35")
    e("s_lshl_b32 s38, s38, 10")
    e("s_mul_i32 s39, s30, 0x%x" % (WFB - WFA))
    e("s_add_u32 s38, s38, s39")
    e("s_add_u32 s38, s38, 0x%x" % WFA)
    e("s_lshl_b32 s39, s33, 4")
    e("s_add_u32 s39, s39, s32")
    e("s_lshl_b32 s39, s39, 9")
    e("s_mul_i32 s40, s30, %d" % CS_MAT)
    e("s_add_u32 s39, s39, s40")
    e("s_add_u32 s39, s39, 0x%x" % CS)
    e("s_lshl_b32 s40, s46, 9")
    e("s_lshl_b32 s41, s35, 7")
    e("s_add_u32 s40, s40, s41")
    e("s_add_u32 s40, s40, %d" % (3 * GL))
    e("v_and_b32 v10, 31, v3")
    e("v_lshl_add_u32 v10, v10, 2, s40")
    k.stamp(1)
    e("s_waitcnt vmcnt(0)")
    k.stamp(2)
    for i in range(7):
        e("ds_write_b64 v%d, %s" % (20 + i, vr(32 + 2 * i, 2)))
    e("s_waitcnt lgkmcnt(0)")
    e("s_barrier")
    k.stamp(3)
    for ks in range(4):
        for hf in range(2):
            e("ds_read_b64_tr_b16 %s, v7 offset:%d" % (vr(32 + 4 * ks + 2 * hf, 2), (16 * ks + 4 * hf) * PB_ROW))
    e("s_waitcnt lgkmcnt(0)")
    for ks in range(4):
        c = "0" if ks == 0 else vr(48, 16)
        e("v_mfma_f32_32x32x16_bf16 %s, v[28:31], %s, %s" % (vr(48, 16), vr(32 + 4 * ks, 4), c))
        e("s_add_u32 s40, s38, %d" % (4096 * ks))
        e("buffer_store_dwordx4 %s, v5, s[16:19], s40 offen" % vr(32 + 4 * ks, 4))
    e("s_nop 7")
    e("s_nop 7")
    e("ds_write_b32 v10, v48")
    e("s_waitcnt lgkmcnt(0)")
    e("s_barrier")
    e("s_cmp_lg_u32 s46, 0")
    e("s_cbranch_scc1 L_prep_end")
    e("s_cmp_ge_u32 s35, 2")
    e("s_cbranch_scc1 L_prep_end")
    e("v_lshlrev_b32 v10, 2, v0")
    for i in range(3):
        e("ds_read_b32 v%d, v10 offset:%d" % (12 + i, 3 * GL + 512 * i))
    e("s_waitcnt lgkmcnt(0)")
    e("v_add_f32 v12, v12, v13")
    e("v_add_f32 v12, v12, v14")
    e("buffer_store_dword v12, v10, s[16:19], s39 offen")
    k.stamp(4)
    if STAMPS:
        e("s_waitcnt vmcnt(0)")
    k.stamp(5)
    k.dump()
    e("s_endpgm")
    k.lab("L_prep_wo")
    e("s_sub_u32 s29, s2, %d" % NQ)
    e("s_mul_i32 s29, s29, 3")
    e("s_add_u32 s29, s29, s46")
    e("s_cmp_ge_u32 s29, 144")
    e("s_cselect_b32 s30, 1, 0")
    e("s_mul_i32 s31, s30, 144")
    e("s_sub_u32 s31, s29, s31")
    e("s_mul_i32 s32, s31, 3641")
    e("s_lshr_b32 s32, s32, 16")
    e("s_mul_i32 s33, s32, 18")
    e("s_sub_u32 s33, s31, s33")
    e("s_cmp_eq_u32 s30, 0")
    e("s_cselect_b32 s8, s24, s26")
    e("s_cselect_b32 s9, s25, s27")
    e("s_mov_b32 s10, %d" % (576 * 1152))
    e("s_mov_b32 s11, 0x00020000")
    e("s_mul_i32 s37, s32, 144")
    e("s_mul_i32 s38, s33, %d" % (32 * 1152))
    e("s_add_u32 s37, s37, s38")
    for i in range(2):
        e("v_add_u32 v10, %d, v0" % (256 * i))
        if i == 1:
            e("v_min_u32 v10, 287, v10")
        e("v_mul_u32_u24 v11, 7282, v10")
        e("v_lshrrev_b32 v11, 16, v11")
        e("v_mul_u32_u24 v12, 9, v11")
        e("v_sub_u32 v12, v10, v12")
        e("v_mul_u32_u24 v15, 1152, v11")
        e("v_lshl_add_u32 v15, v12, 4, v15")
        e("v_add_u32 v15, s37, v15")
        e("buffer_load_dwordx4 %s, v15, s[8:11], 0 offen" % vr(32 + 4 * i, 4))
        e("v_mul_u32_u24 v15, %d, v11" % OB_ROW)
        e("v_lshrrev_b32 v13, 3, v11")
        e("v_lshl_add_u32 v15, v13, 7, v15")
        e("v_lshl_add_u32 v15, v12, 4, v15")
        e("v_add_u32 v%d, s47, v15" % (20 + i))
    e("s_waitcnt vmcnt(0)")
    for i in range(2):
        e("ds_write_b128 v%d, %s" % (20 + i, vr(32 + 4 * i, 4)))
    e("v_mul_u32_u24 v7, %d, v6" % (8 * OB_ROW + 128))
    e("v_mul_u32_u24 v10, %d, v8" % OB_ROW)
    e("v_lshl_add_u32 v10, v9, 3, v10")
    e("s_lshl_b32 s38, s35, 5")
    e("s_add_u32 s38, s38, s47")
    e("v_add3_u32 v7, v7, v10, s38")
    e("s_mul_i32 s38, s32, %d" % (81 * 1024))
    e("s_lshr_b32 s39, s33, 1")
    e("s_mul_i32 s39, s39, 9216")
    e("s_add_u32 s38, s38, s39")
    e("s_mul_i32 s39, s30, 0x%x" % (WOB - WOA))
    e("s_add_u32 s38, s38, s39")
    e("s_add_u32 s38, s38, 0x%x" % WOA)
    e("s_and_b32 s39, s33, 1")
    e("s_lshl_b32 s40, s39, 9")
    e("s_add_u32 s40, s40, s38")
    e("s_add_u32 s40, s40, 8192")
    e("s_lshl_b32 s39, s39, 12")
    e("s_add_u32 s38, s38, s39")
    e("s_lshl_b32 s39, s35, 10")
    e("s_add_u32 s38, s38, s39")
    e("v_and_b32 v10, 15, v3")
    e("v_lshlrev_b32 v11, 4, v10")
    e("v_lshl_add_u32 v11, v6, 7, v11")
    e("v_cmp_gt_u32 vcc, 8, v10")
    e("v_mov_b32 v12, 0x40000000")
    e("s_nop 0")
    e("v_cndmask_b32 v11, v12, v11, vcc")
    e("s_waitcnt lgkmcnt(0)")
    e("s_barrier")
    for q in range(2):
        for hf in range(2):
            e("ds_read_b64_tr_b16 %s, v7 offset:%d" % (vr(32 + 4 * q + 2 * hf, 2), hf * 4 * OB_ROW + 128 * q))
    e("s_waitcnt lgkmcnt(0)")
    e("buffer_store_dwordx4 %s, v5, s[16:19], s38 offen" % vr(32, 4))
    e("s_cmp_lg_u32 s35, 0")
    e("s_cbranch_scc1 L_prep_end")
    e("buffer_store_dwordx4 %s, v11, s[16:19], s40 offen" % vr(36, 4))
    e("s_endpgm")
    k.lab("L_prep_misc")
    e("s_sub_u32 s3, s2, %d" % (NQ + NO))
    e("s_cmp_eq_u32 s46, 0")
    e("s_cbranch_scc1 L_prep_x0")
    e("s_cmp_eq_u32 s46, 2")
    e("s_cbranch_scc1 L_prep_end")
    e("s_cmp_ge_u32 s3, 42")
    e("s_cbranch_scc1 L_prep_end")
    e("s_lshl_b32 s3, s3, 12")
    e("v_lshlrev_b32 v1, 4, v0")
    e("v_add_u32 v1, s3, v1")
    e("v_add_u32 v1, 0x%x, v1" % KVACC)
    for i in range(4):
        e("v_mov_b32 v%d, 0" % (4 + i))
    e("buffer_store_dwordx4 v[4:7], v1, s[16:19], 0 offen")
    e("s_endpgm")
    k.lab("L_prep_x0")

    e("s_mov_b32 s8, s44")
    e("s_mov_b32 s9, s45")
    e("s_mov_b32 s10, %d" % XB)
    e("s_mov_b32 s11, 0x00020000")
    e("s_mul_i32 s7, s3, 36864")
    e("s_add_u32 s6, s7, 0x%x" % X0F)
    e("s_mov_b32 s42, 0x3f803f80")
    e("v_and_b32 v1, 31, v3")
    e("v_lshrrev_b32 v2, 5, v3")
    e("s_lshl_b32 s28, s35, 1")
    e("v_add_u32 v2, s28, v2")
    e("v_mul_u32_u24 v4, 1152, v1")
    e("v_mul_u32_u24 v7, 144, v2")
    e("v_add_u32 v4, v4, v7")
    for i in range(9):
        e("buffer_load_dwordx4 %s, v4, s[8:11], s7 offen offset:%d" % (vr(32 + 4 * i, 4), 16 * i))
    e("v_mul_u32_u24 v7, 4608, v2")
    e("v_lshl_add_u32 v7, v1, 4, v7")
    e("v_lshlrev_b32 v10, 6, v1")
    e("v_lshl_add_u32 v10, v2, 3, v10")
    e("s_lshl_b32 s28, s3, 11")
    e("s_add_u32 s28, s28, 0x%x" % STATS)
    e("v_mov_b32 v8, 0")
    e("v_mov_b32 v9, 0")
    e("s_waitcnt vmcnt(0)")
    for i in range(9):
        e("s_add_u32 s7, s6, %d" % (512 * i))
        e("buffer_store_dwordx4 %s, v7, s[16:19], s7 offen" % vr(32 + 4 * i, 4))
        for q in range(4):
            e("v_dot2_f32_bf16 v8, v%d, s42, v8" % (32 + 4 * i + q))
            e("v_dot2_f32_bf16 v9, v%d, v%d, v9" % (32 + 4 * i + q, 32 + 4 * i + q))
    e("s_nop 2")
    e("buffer_store_dwordx2 v[8:9], v10, s[16:19], s28 offen")
    k.stamp(4)
    if STAMPS:
        e("s_waitcnt vmcnt(0)")
    k.stamp(5)
    k.dump()
    k.lab("L_prep_end")
    e("s_endpgm")
    return k


NB = 8
BSLOT = 16 * 1024
QCS_BASE = NB * BSLOT
QST_BASE = QCS_BASE + 1536
QPQ_BASE = 32768
QKV_LDS = QST_BASE + 1024
T_STRIDE = 272


def emit_phi(e, x, t1, t2):
    e("v_min_f32 v%d, 0, v%d" % (t1, x))
    e("v_mul_f32 v%d, s40, v%d" % (t1, t1))
    e("v_exp_f32 v%d, v%d" % (t1, t1))
    e("v_max_f32 v%d, 0, v%d" % (t2, x))
    e("v_add_f32 v%d, s41, v%d" % (t2, t2))
    e("v_add_f32 v%d, v%d, v%d" % (x, t1, t2))


def emit_signal(k, fid, line_sgpr, word_sgpr):
    e = k.e
    e("s_waitcnt vmcnt(0)")
    e("s_barrier")
    k.srd(20, 4, FLAGS + fid * 2048, 2048)
    sk = k.newlab("sig")
    e("s_cmp_lg_u32 s35, 0")
    e("s_cbranch_scc1 %s" % sk)
    e("s_lshl_b32 s40, %s, 7" % line_sgpr)
    e("s_lshl_b32 s41, %s, 2" % word_sgpr)
    e("s_add_u32 s40, s40, s41")
    e("v_mov_b32 v8, 1")
    e("v_mov_b32 v9, 0")
    e("s_mov_b64 exec, 1")
    e("buffer_store_dword v8, v9, s[20:23], s40 offen sc1")
    e("s_mov_b64 exec, -1")
    k.lab(sk)


def emit_poll(k, line_sgpr, nflags, done):
    e = k.e
    lp = k.newlab("poll")
    e("s_lshl_b32 s60, %s, 7" % line_sgpr)
    e("v_and_b32 v9, %d, v3" % (nflags - 1))
    e("v_lshlrev_b32 v9, 2, v9")
    e("s_mov_b32 s61, 0")
    k.lab(lp)
    e("buffer_load_dword v8, v9, s[20:23], s60 offen sc1")
    e("s_waitcnt vmcnt(0)")
    e("v_cmp_ne_u32 vcc, 1, v8")
    e("s_add_u32 s61, s61, 1")
    e("s_nop 3")
    e("s_cbranch_vccz %s" % done)
    e("s_sleep 1")
    e("s_cmp_lt_u32 s61, 0x400000")
    e("s_cbranch_scc1 %s" % lp)


def gen_stub(name, body, params):
    k = Kern(name, body.vgpr, body.lds, body.grid, body.block)
    k.stub = ["s_mov_b32 s%d, 0x%x" % (r, v) for r, v in params] + ["s_branch %s" % body.name]
    return k


def gen_qkv(kind, k=None, params=None, chain=None, kname=None):
    fused = k is not None
    name = "L_qkv%s" % kind
    if not fused:
        if kname:
            name = kname
        k = Kern(name, 184, QKV_LDS, (256, 1, 1), (512, 1, 1))
        if not kname:
            k.nodesc = True
    else:
        k.vgpr = max(k.vgpr, 184)
        k.lds = max(k.lds, QKV_LDS)
    SC = " sc1" if fused else ""
    e = k.e
    ACC = 16
    FR = [48, 72]
    VL16 = 100
    VA = [101, 102]
    VB = [103, 104]
    CSR = 105
    VCS = 106
    STR = 112
    EA = 128
    if fused:
        end = k.endlab
        for r, v in params:
            e("s_mov_b32 s%d, 0x%x" % (r, v))
    else:
        end = "L_%s_end" % name
        e("s_cmp_ge_u32 s2, 256")
        e("s_cbranch_scc1 %s" % end)
        e("s_load_dwordx2 s[4:5], s[0:1], %d" % KA_WS)
        k.stamp(0)
        if kname:
            for r, v in params:
                e("s_mov_b32 s%d, 0x%x" % (r, v))
    k.pqsc = " sc1" if chain is not None else ""
    e("s_and_b32 s28, s2, 7")
    e("s_lshr_b32 s29, s2, 3")
    e("s_lshr_b32 s31, s28, 1")
    e("s_lshl_b32 s31, s31, 2")
    e("s_lshr_b32 s32, s29, 3")
    e("s_add_u32 s31, s31, s32")
    e("s_and_b32 s30, s28, 1")
    e("s_lshl_b32 s30, s30, 3")
    e("s_and_b32 s32, s29, 7")
    e("s_add_u32 s30, s30, s32")
    e("v_and_b32 v3, 63, v0")
    e("v_lshrrev_b32 v4, 6, v0")
    e("v_and_b32 v5, 31, v3")
    e("v_readfirstlane_b32 s35, v4")
    e("v_lshrrev_b32 v6, 5, v3")
    e("v_lshlrev_b32 v%d, 4, v3" % VL16)
    e("s_lshl_b32 s52, s35, 10")
    e("s_mul_i32 s53, s30, %d" % (36 * 4096))
    e("s_add_u32 s53, s53, s52")
    e("s_lshl_b32 s50, s31, 2")
    e("s_lshr_b32 s51, s35, 1")
    e("s_add_u32 s50, s50, s51")
    e("s_mul_i32 s50, s50, 36864")
    e("s_and_b32 s51, s35, 1")
    e("s_lshl_b32 s51, s51, 10")
    e("s_add_u32 s50, s50, s51")
    e("s_and_b32 s36, s35, 3")
    e("s_lshr_b32 s37, s35, 2")
    for i in range(32):
        e("v_mov_b32 v%d, 0" % (ACC + i))
    e("s_lshl_b32 s34, s37, 12")
    e("v_add_u32 v%d, s34, v%d" % (VA[0], VL16))
    e("v_add_u32 v%d, 0x10000, v%d" % (VA[1], VA[0]))
    e("s_lshl_b32 s34, s36, 10")
    e("s_add_u32 s34, s34, 8192")
    e("v_add_u32 v%d, s34, v%d" % (VB[0], VL16))
    e("v_add_u32 v%d, 0x10000, v%d" % (VB[1], VB[0]))
    e("s_mov_b32 s40, 0x%x" % f2u(LOG2E))
    e("s_mov_b32 s41, 0x%x" % f2u(1e-6))
    e("s_waitcnt lgkmcnt(0)")
    k.stamp(2)
    e("s_add_u32 s8, s4, s58")
    e("s_addc_u32 s9, s5, 0")
    e("s_mov_b32 s10, %d" % XB)
    e("s_mov_b32 s11, 0x00020000")
    k.srd(12, 4, WFA if kind == 'A' else WFB, WF_SZ)
    k.srd(16, 4, 0, WS_SIZE)
    issued = []

    def group_ops(g):
        slot = (g % NB) * BSLOT
        return [(g, ["s_add_u32 m0, s52, %d" % slot, "s_nop 0",
                     "buffer_load_dwordx4 v%d, s[8:11], s50 offen%s lds" % (VL16, SC),
                     "s_add_u32 s50, s50, 2048"]),
                (g, ["s_add_u32 m0, s52, %d" % (slot + 8192), "s_nop 0",
                     "buffer_load_dwordx4 v%d, s[12:15], s53 offen lds" % VL16,
                     "s_add_u32 s53, s53, 8192"])]

    def emit_op(op):
        tag, lines = op
        for x in lines:
            e(x)
        if tag is not None:
            issued.append(tag)

    def wait_for(stage):
        last = max(i for i, t in enumerate(issued) if t <= stage)
        return len(issued) - 1 - last

    if fused:
        sk = k.newlab("nb")
        e("s_cmp_lg_u32 s35, 4")
        e("s_cbranch_scc1 %s" % sk)
        e("s_sub_u32 s34, s53, 4096")
        for g in range(NB):
            e("s_mov_b32 m0, %d" % ((g % NB) * BSLOT + 8192))
            e("s_nop 0")
            e("buffer_load_dwordx4 v%d, s[12:15], s34 offen lds" % VL16)
            e("s_add_u32 s34, s34, 8192")
        k.lab(sk)
        sk = k.newlab("nb")
        e("s_cmp_eq_u32 s35, 0")
        e("s_cselect_b32 s34, %d, 0" % (NB * 8192))
        e("s_add_u32 s53, s53, s34")
        e("s_cmp_eq_u32 s35, 0")
        e("s_cbranch_scc1 %s" % sk)
        for g in range(NB):
            emit_op(group_ops(g)[1])
        k.lab(sk)
    else:
        for g in range(3):
            for op in group_ops(g):
                emit_op(op)
    k.mem = []
    if kind == 'A':
        epi_A_pre(k, EA)
    else:
        epi_B_pre(k, EA)
    e("v_min_u32 v7, 383, v0")
    e("v_lshrrev_b32 v8, 7, v7")
    e("v_and_b32 v7, 127, v7")
    e("v_lshlrev_b32 v7, 2, v7")
    e("v_lshl_add_u32 v%d, v8, 13, v7" % VCS)
    e("v_lshl_add_u32 v107, v8, 9, v7")
    e("s_lshl_b32 s54, s30, 9")
    e("s_add_u32 s54, s54, 0x%x" % (CS + (0 if kind == 'A' else CS_MAT)))
    k.stamp(13)
    if fused:
        sk = k.newlab("nw")
        lp = k.newlab("poll")
        e("s_cmp_lg_u32 s35, 0")
        e("s_cbranch_scc1 %s" % sk)
        e("s_lshl_b32 s38, s31, 7")
        e("v_and_b32 v9, 15, v3")
        e("v_lshlrev_b32 v9, 2, v9")
        e("s_mov_b32 s39, 0")
        k.lab(lp)
        e("buffer_load_dword v8, v9, s[20:23], s38 offen sc1")
        e("s_waitcnt vmcnt(0)")
        e("v_cmp_ne_u32 vcc, 1, v8")
        e("s_add_u32 s39, s39, 1")
        e("s_nop 3")
        e("s_cbranch_vccz %s" % sk)
        e("s_sleep 1")
        e("s_cmp_lt_u32 s39, 0x400000")
        e("s_cbranch_scc1 %s" % lp)
        k.lab(sk)
        e("s_barrier")
        k.stamp(12)
        for g in range(NB):
            emit_op(group_ops(g)[0])
    e("s_waitcnt vmcnt(%d) lgkmcnt(0)" % wait_for(0))
    k.stamp(1)
    e("s_barrier")
    k.stamp(3)

    def fread_ops(s):
        f = FR[s & 1]
        slot = s % NB
        hi, so = slot >> 2, (slot & 3) * BSLOT
        ops = []
        for ks in range(2):
            ops.append((None, ["ds_read_b128 %s, v%d offset:%d" % (vr(f + 16 + 4 * ks, 4), VB[hi], so + ks * 4096)]))
            for a in range(2):
                ops.append((None, ["ds_read_b128 %s, v%d offset:%d" % (vr(f + 8 * a + 4 * ks, 4), VA[hi], so + a * 2048 + ks * 1024)]))
        return ops

    for op in fread_ops(0):
        emit_op(op)
    nextg = NB if fused else 3
    for s in range(18):
        fill = []
        if s + 1 <= 17:
            e("s_waitcnt vmcnt(%d) lgkmcnt(0)" % wait_for(s + 1))
            e("s_barrier")
            fill += fread_ops(s + 1)
            for _ in range(int(EXP.get("ng", 2))):
                if nextg <= 17 and nextg <= s + NB:
                    fill += group_ops(nextg)
                    nextg += 1
            if s == 10:
                fill.append((99, ["buffer_load_dword v%d, v%d, s[16:19], s54 offen" % (CSR, VCS)]))
        else:
            e("s_waitcnt lgkmcnt(0)")
        if s == 11:
            ns = k.newlab("ns")
            e("s_cmp_lt_u32 s35, 6")
            e("s_cbranch_scc1 %s" % ns)
            e("s_lshl_b32 s34, s31, 13")
            e("s_add_u32 s34, s34, 0x%x" % (STATV[dict(params)[58]] - 6 * 4096))
            e("v_lshlrev_b32 v7, 6, v0")
            for i in range(4):
                e("buffer_load_dwordx4 %s, v7, s[16:19], s34 offen offset:%d%s" % (vr(STR + 4 * i, 4), 16 * i, SC))
            k.lab(ns)
        if s % 3 == 0 and s > 0:
            k.stamp(6 + s // 3)
        f = FR[s & 1]
        nfill = -(-len(fill) // 4)
        for ks in range(2):
            for a in range(2):
                acc = ACC + 16 * a
                e("v_mfma_f32_32x32x16_bf16 %s, %s, %s, %s" % (vr(acc, 16), vr(f + 16 + 4 * ks, 4), vr(f + 8 * a + 4 * ks, 4), vr(acc, 16)))
                for _ in range(nfill):
                    if fill:
                        emit_op(fill.pop(0))
    k.stamp(4)
    e("s_waitcnt vmcnt(0)")
    e("ds_write_b32 v107, v%d offset:0" % CSR if False else "v_add_u32 v7, %d, v107" % QCS_BASE)
    e("ds_write_b32 v7, v%d" % CSR)
    ns = k.newlab("ns")
    e("s_cmp_lt_u32 s35, 6")
    e("s_cbranch_scc1 %s" % ns)
    for i in range(1, 8):
        e("v_add_f32 v%d, v%d, v%d" % (STR, STR, STR + 2 * i))
        e("v_add_f32 v%d, v%d, v%d" % (STR + 1, STR + 1, STR + 2 * i + 1))
    e("v_mul_f32 v%d, 0x%x, v%d" % (STR, f2u(1.0 / 576), STR))
    e("v_mul_f32 v%d, 0x%x, v%d" % (STR + 1, f2u(1.0 / 576), STR + 1))
    e("v_fma_f32 v%d, -v%d, v%d, v%d" % (STR + 1, STR, STR, STR + 1))
    e("v_max_f32 v%d, 0, v%d" % (STR + 1, STR + 1))
    e("v_add_f32 v%d, 0x%x, v%d" % (STR + 1, f2u(1e-5), STR + 1))
    e("v_rsq_f32 v%d, v%d" % (STR + 1, STR + 1))
    e("s_nop 0")
    e("v_mul_f32 v%d, v%d, v%d" % (STR, STR, STR + 1))
    e("v_lshlrev_b32 v7, 2, v0")
    e("v_add_u32 v7, %d, v7" % (QST_BASE - 6 * 256))
    e("ds_write_b32 v7, v%d" % (STR + 1))
    e("ds_write_b32 v7, v%d offset:512" % STR)
    k.lab(ns)
    e("s_waitcnt lgkmcnt(0)")
    e("s_barrier")
    RS = 100
    e("s_lshl_b32 s34, s37, 8")
    e("s_add_u32 s34, s34, %d" % QST_BASE)
    e("v_lshl_add_u32 v7, v5, 2, s34")
    for a in range(2):
        e("ds_read_b32 v%d, v7 offset:%d" % (RS + 2 * a, a * 128))
        e("ds_read_b32 v%d, v7 offset:%d" % (RS + 4 + 2 * a, 512 + a * 128))
    e("s_lshl_b32 s34, s36, 7")
    e("s_add_u32 s34, s34, %d" % QCS_BASE)
    e("v_lshl_add_u32 v8, v6, 4, s34")
    for q in range(4):
        for p in range(3):
            e("ds_read_b128 %s, v8 offset:%d" % (vr(52 + 16 * p + 4 * q, 4), 512 * p + 32 * q))
    e("s_waitcnt lgkmcnt(0)")
    for i in range(4):
        e("v_mov_b32 v%d, v%d" % (RS + 2 * i + 1, RS + 2 * i))
    for r in range(0, 16, 2):
        e("v_pk_add_f32 %s, %s, %s" % (vr(52 + r, 2), vr(52 + r, 2), vr(68 + r, 2)))
        e("v_pk_add_f32 %s, %s, %s" % (vr(52 + r, 2), vr(52 + r, 2), vr(84 + r, 2)))
    for a in range(2):
        for r in range(0, 16, 2):
            acc = ACC + 16 * a + r
            e("v_pk_mul_f32 v[10:11], %s, %s" % (vr(RS + 4 + 2 * a, 2), vr(52 + r, 2)))
            e("v_pk_fma_f32 %s, %s, %s, v[10:11] neg_lo:[0,0,1] neg_hi:[0,0,1]" % (vr(acc, 2), vr(acc, 2), vr(RS + 2 * a, 2)))
    if kind == 'A':
        epi_A(k, ACC, EA)
    else:
        epi_B(k, ACC, EA)
    if chain is not None:
        emit_signal(k, chain, "s30", "s31")
        k.endlab = end
        return k
    k.stamp(5)
    if STAMPS:
        e("s_waitcnt vmcnt(0)")
    k.stamp(6)
    k.dump()
    k.lab(end)
    e("s_endpgm")
    return k


def sprinkle(k, n):
    for _ in range(n):
        if k.mem:
            for x in k.mem.pop(0):
                k.e(x)


def per_wave(k, fn, nw=8):
    e = k.e
    labs = [k.newlab("w") for _ in range(nw)]
    lj = k.newlab("wj")
    for w in range(1, nw):
        e("s_cmp_eq_u32 s35, %d" % w)
        e("s_cbranch_scc1 %s" % labs[w])
    for w in range(nw):
        k.lab(labs[w])
        fn(w)
        if w < nw - 1:
            e("s_branch %s" % lj)
    k.lab(lj)


def half_ops(k, lo, hi):
    for x in lo:
        k.e(x)
    k.e("s_mov_b32 exec_lo, 0")
    for x in hi:
        k.e(x)
    k.e("s_mov_b32 exec_lo, -1")


DUMMY = 98304


KV_ROW = 168


def epi_A_pre(k, EA):
    e = k.e
    e("v_mul_u32_u24 v12, %d, v5" % KV_ROW)
    e("v_lshlrev_b32 v13, 4, v5")
    e("v_lshlrev_b32 v14, 2, v5")

    def var(w):
        ct, rh = w & 3, w >> 2
        ops = [[], []]
        for q in range(4):
            for pr in range(2):
                i = 2 * q + pr
                for h in range(2):
                    vc = 32 * ct + 8 * q + 4 * h + 2 * pr
                    for a in range(2):
                        if vc < 72:
                            c = (64 * rh + 32 * a) * KV_ROW + (vc // 18) * 40 + (vc % 18) * 2
                            t = 12
                        elif vc < 108:
                            hl, d = (vc - 72) // 18, (vc - 72) % 18
                            sb = QPQ_BASE + (4 * hl + 2 * rh + a) * 2560
                            if d < 16:
                                c, t = sb + (d >> 3) * 512 + (d & 7) * 2, 13
                            else:
                                c, t = sb + 1024, 14
                        else:
                            c, t = DUMMY, 12
                        ops[h].append("v_add_u32 v%d, %d, v%d" % (EA + 2 * i + a, c, t))
                    isv = 36 <= vc < 72
                    ops[h].append("v_mov_b32 v%d, 0x%x" % (EA + 32 + i, 0 if isv else f2u(1.0)))
                    ops[h].append("v_mov_b32 v%d, 0x%x" % (EA + 44 + i, 0xff800000 if isv else 0))
        half_ops(k, ops[0], ops[1])
        if w < 2:
            e("v_lshrrev_b32 v7, 2, v3")
            e("v_and_b32 v7, 3, v7")
            e("v_lshl_add_u32 v7, v6, 3, v7")
            e("v_mul_u32_u24 v7, %d, v7" % KV_ROW)
            e("v_bfe_u32 v8, v3, 4, 1")
            e("v_lshl_add_u32 v7, v8, 5, v7")
            e("v_and_b32 v8, 3, v3")
            e("v_lshl_add_u32 v7, v8, 3, v7")
            e("v_add_u32 v%d, %d, v7" % (EA + 40, 40 * w))
            e("v_add_u32 v%d, %d, v7" % (EA + 41, 80 + 40 * w))
            e("v_cmp_gt_u32 vcc, 18, v5")
            e("v_lshlrev_b32 v10, 2, v5")
            e("v_lshl_add_u32 v10, v6, 9, v10")
            e("v_mov_b32 v9, 0x40000000")
            e("v_cndmask_b32 v%d, v9, v10, vcc" % (EA + 42))
            e("v_cmp_eq_u32 vcc, 0, v6")
            e("s_nop 1")
            e("v_cndmask_b32 v%d, v9, v%d, vcc" % (EA + 43, EA + 42))
        else:
            for i in range(4):
                e("v_mov_b32 v%d, 0x40000000" % (EA + 40 + i))

    per_wave(k, var)


def epi_A(k, ACC, EA):
    e = k.e
    e("v_mov_b32 v12, s40")
    e("v_mov_b32 v13, s40")
    e("v_mov_b32 v14, s41")
    e("v_mov_b32 v15, s41")
    for q in range(4):
        for pr in range(2):
            i = 2 * q + pr
            for a in range(2):
                acc = ACC + 16 * a + 4 * q + 2 * pr
                e("v_pk_mul_f32 v[10:11], %s, v[12:13]" % vr(acc, 2))
                e("v_min_f32 v10, 0, v10")
                e("v_min_f32 v11, 0, v11")
                e("v_exp_f32 v10, v10")
                e("v_exp_f32 v11, v11")
                e("v_max_f32 v%d, v%d, v%d" % (acc, acc, EA + 44 + i))
                e("v_max_f32 v%d, v%d, v%d" % (acc + 1, acc + 1, EA + 44 + i))
                e("v_pk_add_f32 v[10:11], v[10:11], v[14:15]")
                e("v_fmac_f32 v%d, v10, v%d" % (acc, EA + 32 + i))
                e("v_fmac_f32 v%d, v11, v%d" % (acc + 1, EA + 32 + i))
                e("v_cvt_pk_bf16_f32 v%d, v%d, v%d" % (acc, acc, acc + 1))
                e("ds_write_b32 v%d, v%d" % (EA + 2 * i + a, acc))
    e("v_lshrrev_b32 v10, 2, v0")
    e("v_mul_u32_u24 v10, %d, v10" % KV_ROW)
    e("v_and_b32 v11, 3, v0")
    e("v_mul_u32_u24 v11, 40, v11")
    e("v_add_u32 v10, v10, v11")
    e("v_mov_b32 v11, 0x3f80")
    e("ds_write_b32 v10, v11 offset:36")
    e("s_waitcnt lgkmcnt(0)")
    e("s_barrier")
    e("s_lshl_b32 s39, s31, 2")
    e("s_add_u32 s39, s39, s36")
    e("s_lshl_b32 s39, s39, 5")
    e("s_lshl_b32 s43, s30, 1")
    e("s_add_u32 s39, s39, s43")
    e("s_add_u32 s39, s39, s37")
    e("s_mul_i32 s39, s39, 1152")
    e("s_add_u32 s39, s39, 0x%x" % PQF)
    e("s_mul_i32 s38, s35, 2560")
    e("s_add_u32 s38, s38, %d" % QPQ_BASE)
    e("v_lshlrev_b32 v8, 4, v3")
    e("v_add_u32 v9, s38, v8")
    e("ds_read_b128 v[100:103], v9")
    e("ds_read_b128 v[104:107], v9 offset:1024")
    e("v_mov_b32 v10, 0x40000000")
    e("v_cmp_gt_u32 vcc, 8, v3")
    e("s_nop 1")
    e("v_cndmask_b32 v11, v10, v8, vcc")
    e("s_waitcnt lgkmcnt(0)")
    e("buffer_store_dwordx4 v[100:103], v8, s[16:19], s39 offen%s" % k.pqsc)
    e("buffer_store_dwordx4 v[104:107], v11, s[16:19], s39 offen offset:1024%s" % k.pqsc)
    lj = k.newlab("ej")
    e("s_cmp_ge_u32 s35, 2")
    e("s_cbranch_scc1 %s" % lj)
    for st in range(8):
        for hf in range(2):
            o = (16 * st + 4 * hf) * KV_ROW
            e("ds_read_b64_tr_b16 %s, v%d offset:%d" % (vr(16 + 8 * st + 2 * hf, 2), EA + 40, o))
            e("ds_read_b64_tr_b16 %s, v%d offset:%d" % (vr(20 + 8 * st + 2 * hf, 2), EA + 41, o))
    e("s_lshl_b32 s39, s30, 1")
    e("s_add_u32 s39, s39, s35")
    e("s_mul_i32 s39, s39, 2432")
    e("s_add_u32 s39, s39, s59")
    e("s_waitcnt lgkmcnt(0)")
    for st in range(8):
        c = "0" if st == 0 else vr(80, 16)
        e("v_mfma_f32_32x32x16_bf16 %s, %s, %s, %s" % (vr(80, 16), vr(20 + 8 * st, 4), vr(16 + 8 * st, 4), c))
    e("s_nop 7")
    e("s_nop 7")
    for r in range(11):
        ee = (r & 3) + 8 * (r >> 2)
        e("buffer_atomic_add_f32 v%d, v%d, s[16:19], s39 offen offset:%d" % (80 + r, EA + 42 if r < 8 else EA + 43, 128 * ee))
    k.lab(lj)


IMG_S = 2560
IMG_K = 8 * IMG_S
IMG_V = 16 * IMG_S
V_ROW = 72


def epi_B_pre(k, EA):
    e = k.e
    e("v_lshlrev_b32 v12, 4, v5")
    e("v_lshlrev_b32 v13, 2, v5")
    e("v_mul_u32_u24 v14, %d, v5" % V_ROW)

    def var(w):
        ct, rh = w & 3, w >> 2
        ops = [[], []]
        for q in range(4):
            for pr in range(2):
                i = 2 * q + pr
                for h in range(2):
                    vc = 32 * ct + 8 * q + 4 * h + 2 * pr
                    sc = 1.0
                    if vc >= 108:
                        c, t = DUMMY, 13
                    else:
                        seg, cc = vc // 36, vc % 36
                        hl, d = cc // 18, cc % 18
                        sb = (4 * hl + 2 * rh) * IMG_S
                        if seg == 2:
                            c, t = IMG_V + sb + d * 2, 14
                        else:
                            base = sb + (IMG_K if seg == 1 else 0)
                            if d < 16:
                                c, t = base + (d >> 3) * 512 + (d & 7) * 2, 12
                            else:
                                c, t = base + 1024, 13
                            if seg == 0:
                                sc = QSCALE
                    ops[h].append("v_add_u32 v%d, %d, v%d" % (EA + i, c, t))
                    ops[h].append("v_mov_b32 v%d, 0x%x" % (EA + 16 + 2 * i, f2u(sc)))
                    ops[h].append("v_mov_b32 v%d, 0x%x" % (EA + 17 + 2 * i, f2u(sc)))
        half_ops(k, ops[0], ops[1])

    per_wave(k, var)
    e("v_lshrrev_b32 v7, 2, v3")
    e("v_and_b32 v7, 3, v7")
    e("v_lshl_add_u32 v7, v6, 2, v7")
    e("v_mul_u32_u24 v7, %d, v7" % V_ROW)
    e("v_bfe_u32 v8, v3, 4, 1")
    e("v_lshl_add_u32 v7, v8, 5, v7")
    e("v_and_b32 v9, 3, v3")
    e("v_lshl_add_u32 v7, v9, 3, v7")
    e("s_mul_i32 s38, s35, %d" % IMG_S)
    e("s_add_u32 s38, s38, %d" % IMG_V)
    e("v_add_u32 v%d, s38, v7" % (EA + 8))
    e("v_mul_u32_u24 v7, 320, v6")
    e("v_lshl_add_u32 v7, v5, 4, v7")
    e("v_add_u32 v7, 1152, v7")
    e("v_cmp_gt_u32 vcc, 19, v5")
    e("v_mov_b32 v10, 0x40000000")
    e("s_nop 0")
    e("v_cndmask_b32 v%d, v10, v7, vcc" % (EA + 9))
    e("v_lshlrev_b32 v8, 4, v3")
    e("v_cmp_gt_u32 vcc, 8, v3")
    e("s_nop 1")
    e("v_cndmask_b32 v%d, v10, v8, vcc" % (EA + 10))


def epi_B(k, ACC, EA):
    e = k.e
    for q in range(4):
        for pr in range(2):
            i = 2 * q + pr
            for a in range(2):
                acc = ACC + 16 * a + 4 * q + 2 * pr
                e("v_pk_mul_f32 %s, %s, %s" % (vr(acc, 2), vr(acc, 2), vr(EA + 16 + 2 * i, 2)))
                e("v_cvt_pk_bf16_f32 v%d, v%d, v%d" % (acc, acc, acc + 1))
                e("ds_write_b32 v%d, v%d offset:%d" % (EA + i, acc, IMG_S * a))
    e("s_mul_i32 s38, s35, %d" % IMG_S)
    e("v_mul_u32_u24 v7, %d, v5" % V_ROW)
    e("v_add_u32 v7, s38, v7")
    e("v_mov_b32 v8, 0x3f80")
    e("ds_write_b32 v7, v8 offset:%d" % (IMG_V + 36))
    e("s_waitcnt lgkmcnt(0)")
    e("s_barrier")
    e("v_lshlrev_b32 v8, 4, v3")
    e("v_add_u32 v9, s38, v8")
    e("ds_read_b128 v[48:51], v9")
    e("ds_read_b128 v[52:55], v9 offset:1024")
    e("ds_read_b128 v[56:59], v9 offset:%d" % IMG_K)
    e("ds_read_b128 v[60:63], v9 offset:%d" % (IMG_K + 1024))
    for ab in range(2):
        for hf in range(2):
            e("ds_read_b64_tr_b16 %s, v%d offset:%d" % (vr(64 + 4 * ab + 2 * hf, 2), EA + 8, (16 * ab + 8 * hf) * V_ROW))
    e("s_lshl_b32 s43, s30, 1")
    e("s_add_u32 s43, s43, s37")
    e("s_lshl_b32 s38, s31, 2")
    e("s_add_u32 s38, s38, s36")
    e("s_mul_i32 s44, s43, %d" % QHEAD)
    e("s_mul_i32 s39, s38, 1152")
    e("s_add_u32 s44, s44, s39")
    e("s_add_u32 s44, s44, 0x%x" % QPI)
    e("s_mul_i32 s46, s43, %d" % KVHEAD)
    e("s_mul_i32 s39, s38, 2432")
    e("s_add_u32 s46, s46, s39")
    e("s_add_u32 s46, s46, 0x%x" % KVI)
    e("s_waitcnt lgkmcnt(0)")
    sc = k.pqsc
    e("buffer_store_dwordx4 v[48:51], v8, s[16:19], s44 offen" + sc)
    e("buffer_store_dwordx4 v[52:55], v%d, s[16:19], s44 offen offset:1024" % (EA + 10) + sc)
    e("buffer_store_dwordx4 v[56:59], v8, s[16:19], s46 offen" + sc)
    e("buffer_store_dwordx4 v[60:63], v%d, s[16:19], s46 offen offset:1024" % (EA + 10) + sc)
    e("buffer_store_dwordx4 v[64:67], v%d, s[16:19], s46 offen" % (EA + 9) + sc)
    e("buffer_store_dwordx4 v[68:71], v%d, s[16:19], s46 offen offset:640" % (EA + 9) + sc)


def gen_attn(name):
    k = Kern(name, 120, KVHEAD, (256, 1, 1), (1024, 1, 1))
    e = k.e
    SA, SB = 16, 32
    P = 48
    O = 56
    CM = 72
    Q1, Q2 = 88, 92
    K1, K2 = 96, 100
    VVa, VVb = 104, 108
    vK1, vK2, vV = 112, 113, 114
    vK1b, vK2b, vVb = 115, 116, 117
    SEGS = [2, 6, 24]
    HALF = 32 * 2432
    end = "L_%s_end" % name
    e("s_cmp_ge_u32 s2, 256")
    e("s_cbranch_scc1 %s" % end)
    e("s_load_dwordx2 s[4:5], s[0:1], %d" % KA_WS)
    k.stamp(0)
    k.rstamp(4)
    e("s_and_b32 s30, s2, 7")
    e("s_lshr_b32 s31, s2, 3")
    e("s_and_b32 s32, s31, 3")
    e("s_lshl_b32 s30, s30, 2")
    e("s_add_u32 s30, s30, s32")
    e("s_lshr_b32 s31, s31, 2")
    e("v_lshrrev_b32 v4, 6, v0")
    e("v_and_b32 v3, 63, v0")
    e("v_readfirstlane_b32 s35, v4")
    e("s_mul_i32 s33, s30, %d" % KVHEAD)
    e("s_lshr_b32 s40, s35, 3")
    e("s_and_b32 s41, s35, 7")
    e("s_mul_i32 s42, s40, %d" % HALF)
    e("v_lshlrev_b32 v1, 4, v3")
    e("s_lshl_b32 s36, s31, 3")
    e("s_add_u32 s36, s36, s41")
    e("s_mul_i32 s37, s36, 1152")
    e("s_mul_i32 s38, s30, %d" % QHEAD)
    e("s_add_u32 s37, s37, s38")
    e("s_add_u32 s37, s37, 0x%x" % QPI)
    e("v_and_b32 v5, 31, v3")
    e("v_lshrrev_b32 v6, 5, v3")
    e("v_lshlrev_b32 v7, 2, v5")
    e("s_lshl_b32 s39, s41, 10")
    e("s_add_u32 s39, s39, s42")
    e("s_add_u32 s43, s42, %d" % (75 * 1024))
    e("s_waitcnt lgkmcnt(0)")
    e("s_add_u32 s8, s4, s33")
    e("s_addc_u32 s9, s5, 0")
    e("s_add_u32 s8, s8, 0x%x" % KVI)
    e("s_addc_u32 s9, s9, 0")
    e("s_mov_b32 s10, %d" % KVHEAD)
    e("s_mov_b32 s11, 0x00020000")
    k.srd(16, 4, 0, WS_SIZE)
    e("buffer_load_dwordx4 %s, v1, s[16:19], s37 offen" % vr(Q1, 4))
    e("buffer_load_dword v%d, v7, s[16:19], s37 offen offset:1024" % Q2)
    def dma(i):
        if i == 9:
            e("s_min_u32 s39, s39, s43")
        e("s_mov_b32 m0, s39")
        e("s_nop 0")
        e("buffer_load_dwordx4 v1, s[8:11], s39 offen lds")
        e("s_add_u32 s39, s39, 8192")

    dma(0)
    dma(1)
    e("v_add_u32 v%d, s42, v1" % vK1b)
    e("v_add_u32 v8, 1024, v7")
    e("v_add_u32 v%d, s42, v8" % vK2b)
    e("v_min_u32 v8, 18, v5")
    e("v_lshlrev_b32 v8, 4, v8")
    e("v_mul_u32_u24 v9, 320, v6")
    e("v_add3_u32 v8, v8, v9, s42")
    e("v_add_u32 v%d, 1152, v8" % vVb)
    for i in range(1, 4):
        e("v_mov_b32 v%d, 0" % (Q2 + i))
        e("v_mov_b32 v%d, 0" % (K2 + i))
    e("v_cmp_eq_u32 vcc, 0, v6")
    e("s_waitcnt vmcnt(2)")
    e("v_cndmask_b32 v%d, 0, v%d, vcc" % (Q2, Q2))
    e("s_mov_b32 s50, 0")

    def seg_wait(c):
        ntiles = sum(SEGS[:c + 1]) + 1
        need = min(-(-(ntiles * 2432) // 1024), 76)
        n = min((need - 1) // 8 + 1, 10)
        issued = 2 + min(sum(SEGS[:c]), 8)
        assert issued >= n
        return issued - n

    e("s_waitcnt vmcnt(%d)" % seg_wait(0))
    e("s_barrier")
    k.stamp(1)
    e("ds_read_b128 %s, v%d" % (vr(K1, 4), vK1b))
    e("ds_read_b32 v%d, v%d" % (K2, vK2b))
    e("s_waitcnt lgkmcnt(0)")
    e("v_mfma_f32_32x32x16_bf16 %s, %s, %s, 0" % (vr(SA, 16), vr(K1, 4), vr(Q1, 4)))
    e("v_mfma_f32_32x32x16_bf16 %s, %s, %s, %s" % (vr(SA, 16), vr(K2, 4), vr(Q2, 4), vr(SA, 16)))
    e("s_nop 7")
    e("s_nop 7")
    e("v_max3_f32 v10, v%d, v%d, v%d" % (SA, SA + 1, SA + 2))
    for i in range(3, 15, 2):
        e("v_max3_f32 v10, v10, v%d, v%d" % (SA + i, SA + i + 1))
    e("v_max_f32 v10, v10, v%d" % (SA + 15))
    run = "L_%s_run" % name
    k.lab(run)
    e("v_mov_b32 v11, v10")
    e("s_nop 1")
    e("v_permlane32_swap_b32 v11, v10")
    e("s_nop 1")
    e("v_max_f32 v10, v10, v11")
    e("v_sub_f32 v10, 0, v10")
    for i in range(16):
        e("v_mov_b32 v%d, v10" % (CM + i))
        e("v_mov_b32 v%d, 0" % (O + i))
    e("v_mov_b32 v%d, v%d" % (vK1, vK1b))
    e("v_mov_b32 v%d, v%d" % (vK2, vK2b))
    e("v_mov_b32 v%d, v%d" % (vV, vVb))
    e("ds_read_b128 %s, v%d" % (vr(K1, 4), vK1))
    e("ds_read_b32 v%d, v%d" % (K2, vK2))
    e("s_waitcnt lgkmcnt(0)")
    e("v_mfma_f32_32x32x16_bf16 %s, %s, %s, %s" % (vr(SA, 16), vr(K1, 4), vr(Q1, 4), vr(CM, 16)))
    e("v_mfma_f32_32x32x16_bf16 %s, %s, %s, %s" % (vr(SA, 16), vr(K2, 4), vr(Q2, 4), vr(SA, 16)))
    e("ds_read_b128 %s, v%d offset:2432" % (vr(K1, 4), vK1))
    e("ds_read_b32 v%d, v%d offset:2432" % (K2, vK2))
    e("ds_read_b128 %s, v%d" % (vr(VVa, 4), vV))
    e("ds_read_b128 %s, v%d offset:640" % (vr(VVb, 4), vV))
    e("s_nop 7")

    def body(t, Sc, Sn):
        o = 2432 * (t % 16)
        e("s_waitcnt lgkmcnt(2)")
        e("v_mfma_f32_32x32x16_bf16 %s, %s, %s, %s" % (vr(Sn, 16), vr(K1, 4), vr(Q1, 4), vr(CM, 16)))
        e("v_mfma_f32_32x32x16_bf16 %s, %s, %s, %s" % (vr(Sn, 16), vr(K2, 4), vr(Q2, 4), vr(Sn, 16)))
        e("ds_read_b128 %s, v%d offset:%d" % (vr(K1, 4), vK1, o + 2 * 2432))
        e("ds_read_b32 v%d, v%d offset:%d" % (K2, vK2, o + 2 * 2432))
        for i in range(16):
            e("v_exp_f32 v%d, v%d" % (Sc + i, Sc + i))
            if i & 1 and i >= 3:
                e("v_cvt_pk_bf16_f32 v%d, v%d, v%d" % (P + (i - 3) // 2, Sc + i - 3, Sc + i - 2))
        e("v_cvt_pk_bf16_f32 v%d, v%d, v%d" % (P + 7, Sc + 14, Sc + 15))
        e("s_waitcnt lgkmcnt(2)")
        e("v_mfma_f32_32x32x16_bf16 %s, %s, %s, %s" % (vr(O, 16), vr(VVa, 4), vr(P, 4), vr(O, 16)))
        e("v_mfma_f32_32x32x16_bf16 %s, %s, %s, %s" % (vr(O, 16), vr(VVb, 4), vr(P + 4, 4), vr(O, 16)))
        e("ds_read_b128 %s, v%d offset:%d" % (vr(VVa, 4), vV, o + 2432))
        e("ds_read_b128 %s, v%d offset:%d" % (vr(VVb, 4), vV, o + 2432 + 640))

    t = 0
    for c, nts in enumerate(SEGS):
        if c > 0:
            sk = k.newlab("sk")
            e("s_cmp_lg_u32 s50, 0")
            e("s_cbranch_scc1 %s" % sk)
            e("s_waitcnt vmcnt(%d)" % seg_wait(c))
            e("s_barrier")
            k.lab(sk)
        if c == 2:
            for _ in range(int(EXP.get("pad", 0))):
                e("s_nop 0")
        for i in range(nts):
            if t == 16:
                e("v_add_u32 v%d, %d, v%d" % (vK1, 16 * 2432, vK1))
                e("v_add_u32 v%d, %d, v%d" % (vK2, 16 * 2432, vK2))
                e("v_add_u32 v%d, %d, v%d" % (vV, 16 * 2432, vV))
            if t < 8:
                sk = k.newlab("sd")
                e("s_cmp_lg_u32 s50, 0")
                e("s_cbranch_scc1 %s" % sk)
                dma(t + 2)
                k.lab(sk)
            if t & 1:
                body(t, SB, SA)
            else:
                body(t, SA, SB)
            t += 1
    e("s_waitcnt lgkmcnt(0)")
    k.stamp(2)
    e("s_nop 7")
    e("s_nop 7")
    e("v_max3_f32 v10, |v%d|, |v%d|, |v%d|" % (O, O + 1, O + 2))
    for i in range(3, 11, 2):
        e("v_max3_f32 v10, v10, |v%d|, |v%d|" % (O + i, O + i + 1))
    e("v_max_f32 v10, v10, |v%d|" % (O + 11))
    e("v_add_f32 v11, v%d, v%d" % (O, O + 1))
    for i in range(2, 12):
        e("v_add_f32 v11, v11, v%d" % (O + i))
    e("v_mov_b32 v12, 0x%x" % f2u(2.0 ** (-100 if EXP.get("forcefb") else 100)))
    e("v_cmp_nlt_f32 vcc, v10, v12")
    e("v_cmp_u_f32 s[52:53], v11, v11")
    e("s_nop 3")
    e("s_or_b64 vcc, vcc, s[52:53]")
    e("s_cmp_lg_u32 s50, 0")
    fin = "L_%s_fin" % name
    e("s_cbranch_scc1 %s" % fin)
    e("s_cbranch_vccz %s" % fin)
    e("s_mov_b32 s50, 1")
    e("v_mov_b32 v%d, v%d" % (vK1, vK1b))
    e("v_mov_b32 v%d, v%d" % (vK2, vK2b))
    e("v_mov_b32 v10, 0xff800000")
    e("s_mov_b32 s51, 0")
    fl = "L_%s_fl" % name
    k.lab(fl)
    e("ds_read_b128 %s, v%d" % (vr(K1, 4), vK1))
    e("ds_read_b32 v%d, v%d" % (K2, vK2))
    e("s_waitcnt lgkmcnt(0)")
    e("v_mfma_f32_32x32x16_bf16 %s, %s, %s, 0" % (vr(SA, 16), vr(K1, 4), vr(Q1, 4)))
    e("v_mfma_f32_32x32x16_bf16 %s, %s, %s, %s" % (vr(SA, 16), vr(K2, 4), vr(Q2, 4), vr(SA, 16)))
    e("s_nop 7")
    e("s_nop 7")
    for i in range(0, 16, 2):
        e("v_max3_f32 v10, v10, v%d, v%d" % (SA + i, SA + i + 1))
    e("v_add_u32 v%d, 2432, v%d" % (vK1, vK1))
    e("v_add_u32 v%d, 2432, v%d" % (vK2, vK2))
    e("s_add_u32 s51, s51, 1")
    e("s_cmp_lt_u32 s51, 32")
    e("s_cbranch_scc1 %s" % fl)
    e("s_branch %s" % run)
    k.lab(fin)
    e("s_barrier")
    e("s_mul_i32 s37, s41, 4096")
    e("v_add_u32 v1, s37, v1")
    e("s_cmp_eq_u32 s40, 0")
    lo = "L_%s_lo" % name
    e("s_cbranch_scc1 %s" % lo)
    e("v_mov_b32 v%d, v%d" % (O + 10, CM))
    for i in range(3):
        e("ds_write_b128 v1, %s offset:%d" % (vr(O + 4 * i, 4), 1024 * i))
    e("s_waitcnt lgkmcnt(0)")
    e("s_barrier")
    e("s_endpgm")
    k.lab(lo)
    e("s_barrier")
    for i in range(3):
        e("ds_read_b128 %s, v1 offset:%d" % (vr(SA + 4 * i, 4), 1024 * i))
    e("s_waitcnt lgkmcnt(0)")
    e("v_min_f32 v10, v%d, v%d" % (CM, SA + 10))
    e("v_sub_f32 v11, v10, v%d" % CM)
    e("v_sub_f32 v12, v10, v%d" % (SA + 10))
    e("v_exp_f32 v11, v11")
    e("v_exp_f32 v12, v12")
    e("s_nop 0")
    for i in list(range(10)) + [11]:
        e("v_mul_f32 v%d, v11, v%d" % (O + i, O + i))
        e("v_fmac_f32 v%d, v12, v%d" % (O + i, SA + i))
    e("v_rcp_f32 v10, v%d" % (O + 11))
    e("s_nop 0")
    for i in range(10):
        e("v_mul_f32 v%d, v10, v%d" % (O + i, O + i))
    for i in range(5):
        e("v_cvt_pk_bf16_f32 v%d, v%d, v%d" % (O + i, O + 2 * i, O + 2 * i + 1))
    e("s_lshl_b32 s37, s36, 1")
    e("v_lshrrev_b32 v12, 4, v5")
    e("v_add_u32 v12, s37, v12")
    e("v_mul_u32_u24 v12, 18432, v12")
    e("v_and_b32 v13, 15, v5")
    e("v_lshl_add_u32 v12, v13, 4, v12")
    e("v_add_u32 v12, 0x%x, v12" % OB)
    e("s_mul_i32 s37, s30, 18")
    e("v_lshlrev_b32 v13, 2, v6")
    e("v_add_u32 v13, s37, v13")
    e("v_cmp_eq_u32 vcc, 0, v6")
    for i, dd in enumerate([0, 2, 8, 10, 16]):
        e("v_add_u32 v14, %d, v13" % dd)
        e("v_lshrrev_b32 v15, 3, v14")
        e("v_and_b32 v14, 7, v14")
        e("v_lshl_add_u32 v15, v15, 8, v12")
        e("v_lshl_add_u32 v15, v14, 1, v15")
        if dd == 16:
            e("v_mov_b32 v14, 0x40000000")
            e("v_cndmask_b32 v15, v14, v15, vcc")
        e("buffer_store_dword v%d, v15, s[16:19], 0 offen" % (O + i))
    k.stamp(3)
    k.rstamp(5)
    k.dump()
    k.lab(end)
    e("s_endpgm")
    return k


def gen_attn8(name, k=None, out_fid=None):
    chained = k is not None
    if chained:
        k.vgpr = max(k.vgpr, 200)
        k.lds = max(k.lds, KVHEAD)
        name = k.newlab("a")[2:]
    else:
        k = Kern(name, 200, KVHEAD, (256, 1, 1), (512, 1, 1))
    e = k.e
    S = [[16, 32], [48, 64]]
    P = [80, 88]
    O = [96, 112]
    CM = [128, 144]
    Q1 = [160, 168]
    Q2 = [164, 172]
    K1, K2 = 176, 180
    VVa, VVb = 184, 188
    vK1, vK2, vV = 192, 193, 194
    vK1b, vK2b, vVb = 195, 196, 197
    SEGS = [2, 6, 24]
    HALF = 32 * 2432
    NP = 19
    if chained:
        end = k.endlab
    else:
        end = "L_%s_end" % name
        e("s_cmp_ge_u32 s2, 256")
        e("s_cbranch_scc1 %s" % end)
        e("s_load_dwordx2 s[4:5], s[0:1], %d" % KA_WS)
        k.stamp(0)
        k.rstamp(4)
    e("s_and_b32 s30, s2, 7")
    e("s_lshr_b32 s31, s2, 3")
    e("s_and_b32 s32, s31, 3")
    e("s_lshl_b32 s30, s30, 2")
    e("s_add_u32 s30, s30, s32")
    e("s_lshr_b32 s31, s31, 2")
    e("v_lshrrev_b32 v4, 6, v0")
    e("v_and_b32 v3, 63, v0")
    e("v_readfirstlane_b32 s35, v4")
    e("s_mul_i32 s33, s30, %d" % KVHEAD)
    e("s_lshr_b32 s40, s35, 2")
    e("s_and_b32 s41, s35, 3")
    e("s_mul_i32 s42, s40, %d" % HALF)
    e("v_lshlrev_b32 v1, 4, v3")
    e("s_lshl_b32 s36, s31, 3")
    e("s_lshl_b32 s37, s41, 1")
    e("s_add_u32 s36, s36, s37")
    e("s_mul_i32 s37, s36, 1152")
    e("s_mul_i32 s38, s30, %d" % QHEAD)
    e("s_add_u32 s37, s37, s38")
    e("s_add_u32 s37, s37, 0x%x" % QPI)
    e("v_and_b32 v5, 31, v3")
    e("v_lshrrev_b32 v6, 5, v3")
    e("v_lshlrev_b32 v7, 2, v5")
    e("s_lshl_b32 s39, s41, 10")
    e("s_add_u32 s39, s39, s42")
    e("s_waitcnt lgkmcnt(0)")
    e("s_add_u32 s8, s4, s33")
    e("s_addc_u32 s9, s5, 0")
    e("s_add_u32 s8, s8, 0x%x" % KVI)
    e("s_addc_u32 s9, s9, 0")
    e("s_mov_b32 s10, %d" % KVHEAD)
    e("s_mov_b32 s11, 0x00020000")
    k.srd(16, 4, 0, WS_SIZE)
    if chained:
        sk = k.newlab("nw")
        e("s_cmp_lg_u32 s35, 0")
        e("s_cbranch_scc1 %s" % sk)
        e("s_lshr_b32 s43, s30, 1")
        emit_poll(k, "s43", 16, sk)
        k.lab(sk)
        e("s_barrier")
    for t in range(2):
        e("buffer_load_dwordx4 %s, v1, s[16:19], s37 offen offset:%d" % (vr(Q1[t], 4), 1152 * t))
        e("buffer_load_dword v%d, v7, s[16:19], s37 offen offset:%d" % (Q2[t], 1024 + 1152 * t))

    def dma():
        e("s_mov_b32 m0, s39")
        e("s_nop 0")
        e("buffer_load_dwordx4 v1, s[8:11], s39 offen lds")
        e("s_add_u32 s39, s39, 4096")

    for i in range(3):
        dma()
    e("v_add_u32 v%d, s42, v1" % vK1b)
    e("v_add_u32 v8, 1024, v7")
    e("v_add_u32 v%d, s42, v8" % vK2b)
    e("v_min_u32 v8, 18, v5")
    e("v_lshlrev_b32 v8, 4, v8")
    e("v_mul_u32_u24 v9, 320, v6")
    e("v_add3_u32 v8, v8, v9, s42")
    e("v_add_u32 v%d, 1152, v8" % vVb)
    for i in range(1, 4):
        e("v_mov_b32 v%d, 0" % (Q2[0] + i))
        e("v_mov_b32 v%d, 0" % (Q2[1] + i))
        e("v_mov_b32 v%d, 0" % (K2 + i))
    e("v_cmp_eq_u32 vcc, 0, v6")
    e("s_waitcnt vmcnt(3)")
    for t in range(2):
        e("v_cndmask_b32 v%d, 0, v%d, vcc" % (Q2[t], Q2[t]))
    e("s_mov_b32 s50, 0")

    def issued_before(tile):
        return min(3 + 2 * tile, NP)

    def seg_wait(c):
        ntiles = sum(SEGS[:c + 1]) + 1
        need = min(-(-(ntiles * 2432) // 1024), 76)
        n = min((need - 1) // 4 + 1, NP)
        issued = issued_before(sum(SEGS[:c]))
        assert issued >= n, (c, issued, n)
        return issued - n

    e("s_waitcnt vmcnt(%d)" % seg_wait(0))
    e("s_barrier")
    k.stamp(1)
    e("ds_read_b128 %s, v%d" % (vr(K1, 4), vK1b))
    e("ds_read_b32 v%d, v%d" % (K2, vK2b))
    e("s_waitcnt lgkmcnt(0)")
    for t in range(2):
        e("v_mfma_f32_32x32x16_bf16 %s, %s, %s, 0" % (vr(S[t][0], 16), vr(K1, 4), vr(Q1[t], 4)))
        e("v_mfma_f32_32x32x16_bf16 %s, %s, %s, %s" % (vr(S[t][0], 16), vr(K2, 4), vr(Q2[t], 4), vr(S[t][0], 16)))
    e("s_nop 7")
    e("s_nop 7")
    for t in range(2):
        sa = S[t][0]
        e("v_max3_f32 v%d, v%d, v%d, v%d" % (10 + t, sa, sa + 1, sa + 2))
        for i in range(3, 15, 2):
            e("v_max3_f32 v%d, v%d, v%d, v%d" % (10 + t, 10 + t, sa + i, sa + i + 1))
        e("v_max_f32 v%d, v%d, v%d" % (10 + t, 10 + t, sa + 15))
    run = "L_%s_run" % name
    k.lab(run)
    for t in range(2):
        e("v_mov_b32 v%d, v%d" % (12 + t, 10 + t))
    e("s_nop 1")
    for t in range(2):
        e("v_permlane32_swap_b32 v%d, v%d" % (12 + t, 10 + t))
    e("s_nop 1")
    for t in range(2):
        e("v_max_f32 v%d, v%d, v%d" % (10 + t, 10 + t, 12 + t))
        e("v_sub_f32 v%d, 0, v%d" % (10 + t, 10 + t))
        for i in range(16):
            e("v_mov_b32 v%d, v%d" % (CM[t] + i, 10 + t))
            e("v_mov_b32 v%d, 0" % (O[t] + i))
    e("v_mov_b32 v%d, v%d" % (vK1, vK1b))
    e("v_mov_b32 v%d, v%d" % (vK2, vK2b))
    e("v_mov_b32 v%d, v%d" % (vV, vVb))
    e("ds_read_b128 %s, v%d" % (vr(K1, 4), vK1))
    e("ds_read_b32 v%d, v%d" % (K2, vK2))
    e("s_waitcnt lgkmcnt(0)")
    for t in range(2):
        e("v_mfma_f32_32x32x16_bf16 %s, %s, %s, %s" % (vr(S[t][0], 16), vr(K1, 4), vr(Q1[t], 4), vr(CM[t], 16)))
        e("v_mfma_f32_32x32x16_bf16 %s, %s, %s, %s" % (vr(S[t][0], 16), vr(K2, 4), vr(Q2[t], 4), vr(S[t][0], 16)))
    e("ds_read_b128 %s, v%d offset:2432" % (vr(K1, 4), vK1))
    e("ds_read_b32 v%d, v%d offset:2432" % (K2, vK2))
    e("ds_read_b128 %s, v%d" % (vr(VVa, 4), vV))
    e("ds_read_b128 %s, v%d offset:640" % (vr(VVb, 4), vV))
    e("s_nop 7")

    def expcvt(Sc, Pt):
        for i in range(16):
            e("v_exp_f32 v%d, v%d" % (Sc + i, Sc + i))
            if i & 1 and i >= 3:
                e("v_cvt_pk_bf16_f32 v%d, v%d, v%d" % (Pt + (i - 3) // 2, Sc + i - 3, Sc + i - 2))
        e("v_cvt_pk_bf16_f32 v%d, v%d, v%d" % (Pt + 7, Sc + 14, Sc + 15))

    def body(tl):
        c, n = tl & 1, 1 - (tl & 1)
        o = 2432 * (tl % 16)
        e("s_waitcnt lgkmcnt(2)")
        for t in range(2):
            e("v_mfma_f32_32x32x16_bf16 %s, %s, %s, %s" % (vr(S[t][n], 16), vr(K1, 4), vr(Q1[t], 4), vr(CM[t], 16)))
            e("v_mfma_f32_32x32x16_bf16 %s, %s, %s, %s" % (vr(S[t][n], 16), vr(K2, 4), vr(Q2[t], 4), vr(S[t][n], 16)))
        e("ds_read_b128 %s, v%d offset:%d" % (vr(K1, 4), vK1, o + 2 * 2432))
        e("ds_read_b32 v%d, v%d offset:%d" % (K2, vK2, o + 2 * 2432))
        expcvt(S[0][c], P[0])
        e("s_waitcnt lgkmcnt(2)")
        e("v_mfma_f32_32x32x16_bf16 %s, %s, %s, %s" % (vr(O[0], 16), vr(VVa, 4), vr(P[0], 4), vr(O[0], 16)))
        e("v_mfma_f32_32x32x16_bf16 %s, %s, %s, %s" % (vr(O[0], 16), vr(VVb, 4), vr(P[0] + 4, 4), vr(O[0], 16)))
        expcvt(S[1][c], P[1])
        e("s_nop 0")
        e("v_mfma_f32_32x32x16_bf16 %s, %s, %s, %s" % (vr(O[1], 16), vr(VVa, 4), vr(P[1], 4), vr(O[1], 16)))
        e("v_mfma_f32_32x32x16_bf16 %s, %s, %s, %s" % (vr(O[1], 16), vr(VVb, 4), vr(P[1] + 4, 4), vr(O[1], 16)))
        e("ds_read_b128 %s, v%d offset:%d" % (vr(VVa, 4), vV, o + 2432))
        e("ds_read_b128 %s, v%d offset:%d" % (vr(VVb, 4), vV, o + 2432 + 640))

    tl = 0
    for c, nts in enumerate(SEGS):
        if c > 0:
            sk = k.newlab("sk")
            e("s_cmp_lg_u32 s50, 0")
            e("s_cbranch_scc1 %s" % sk)
            e("s_waitcnt vmcnt(%d)" % seg_wait(c))
            e("s_barrier")
            k.lab(sk)
        for i in range(nts):
            if tl == 16:
                e("v_add_u32 v%d, %d, v%d" % (vK1, 16 * 2432, vK1))
                e("v_add_u32 v%d, %d, v%d" % (vK2, 16 * 2432, vK2))
                e("v_add_u32 v%d, %d, v%d" % (vV, 16 * 2432, vV))
            nd = issued_before(tl + 1) - issued_before(tl)
            if nd:
                sk = k.newlab("sd")
                e("s_cmp_lg_u32 s50, 0")
                e("s_cbranch_scc1 %s" % sk)
                for _ in range(nd):
                    dma()
                k.lab(sk)
            body(tl)
            tl += 1
    e("s_waitcnt lgkmcnt(0)")
    k.stamp(2)
    e("s_nop 7")
    e("s_nop 7")
    e("v_mov_b32 v10, 0")
    e("v_mov_b32 v11, 0")
    for t in range(2):
        for i in range(0, 12, 2):
            e("v_max3_f32 v10, v10, |v%d|, |v%d|" % (O[t] + i, O[t] + i + 1))
        for i in range(12):
            e("v_add_f32 v11, v11, v%d" % (O[t] + i))
    e("v_mov_b32 v12, 0x%x" % f2u(2.0 ** (-100 if EXP.get("forcefb") else 100)))
    e("v_cmp_nlt_f32 vcc, v10, v12")
    e("v_cmp_u_f32 s[52:53], v11, v11")
    e("s_nop 3")
    e("s_or_b64 vcc, vcc, s[52:53]")
    e("s_cmp_lg_u32 s50, 0")
    fin = "L_%s_fin" % name
    e("s_cbranch_scc1 %s" % fin)
    e("s_cbranch_vccz %s" % fin)
    e("s_mov_b32 s50, 1")
    e("v_mov_b32 v%d, v%d" % (vK1, vK1b))
    e("v_mov_b32 v%d, v%d" % (vK2, vK2b))
    e("v_mov_b32 v10, 0xff800000")
    e("v_mov_b32 v11, 0xff800000")
    e("s_mov_b32 s51, 0")
    fl = "L_%s_fl" % name
    k.lab(fl)
    e("ds_read_b128 %s, v%d" % (vr(K1, 4), vK1))
    e("ds_read_b32 v%d, v%d" % (K2, vK2))
    e("s_waitcnt lgkmcnt(0)")
    for t in range(2):
        e("v_mfma_f32_32x32x16_bf16 %s, %s, %s, 0" % (vr(S[t][0], 16), vr(K1, 4), vr(Q1[t], 4)))
        e("v_mfma_f32_32x32x16_bf16 %s, %s, %s, %s" % (vr(S[t][0], 16), vr(K2, 4), vr(Q2[t], 4), vr(S[t][0], 16)))
    e("s_nop 7")
    e("s_nop 7")
    for t in range(2):
        for i in range(0, 16, 2):
            e("v_max3_f32 v%d, v%d, v%d, v%d" % (10 + t, 10 + t, S[t][0] + i, S[t][0] + i + 1))
    e("v_add_u32 v%d, 2432, v%d" % (vK1, vK1))
    e("v_add_u32 v%d, 2432, v%d" % (vK2, vK2))
    e("s_add_u32 s51, s51, 1")
    e("s_cmp_lt_u32 s51, 32")
    e("s_cbranch_scc1 %s" % fl)
    e("s_branch %s" % run)
    k.lab(fin)
    e("s_barrier")
    e("s_mul_i32 s37, s35, 4096")
    e("v_add_u32 v2, s37, v1")
    e("s_xor_b32 s38, s35, 4")
    e("s_mul_i32 s38, s38, 4096")
    e("v_add_u32 v1, s38, v1")
    lo = "L_%s_lo" % name
    jn = "L_%s_jn" % name
    e("s_cmp_eq_u32 s40, 0")
    e("s_cbranch_scc1 %s" % lo)
    e("v_mov_b32 v%d, v%d" % (O[0] + 10, CM[0]))
    for i in range(3):
        e("ds_write_b128 v2, %s offset:%d" % (vr(O[0] + 4 * i, 4), 1024 * i))
    for i in range(12):
        e("v_mov_b32 v%d, v%d" % (O[0] + i, O[1] + i))
    e("v_mov_b32 v%d, v%d" % (CM[0], CM[1]))
    e("s_add_u32 s36, s36, 1")
    e("s_branch %s" % jn)
    k.lab(lo)
    e("v_mov_b32 v%d, v%d" % (O[1] + 10, CM[1]))
    for i in range(3):
        e("ds_write_b128 v2, %s offset:%d" % (vr(O[1] + 4 * i, 4), 1024 * i))
    k.lab(jn)
    e("s_waitcnt lgkmcnt(0)")
    e("s_barrier")
    SA = 16
    OO = O[0]
    for i in range(3):
        e("ds_read_b128 %s, v1 offset:%d" % (vr(SA + 4 * i, 4), 1024 * i))
    e("s_waitcnt lgkmcnt(0)")
    e("v_min_f32 v10, v%d, v%d" % (CM[0], SA + 10))
    e("v_sub_f32 v11, v10, v%d" % CM[0])
    e("v_sub_f32 v12, v10, v%d" % (SA + 10))
    e("v_exp_f32 v11, v11")
    e("v_exp_f32 v12, v12")
    e("s_nop 0")
    for i in list(range(10)) + [11]:
        e("v_mul_f32 v%d, v11, v%d" % (OO + i, OO + i))
        e("v_fmac_f32 v%d, v12, v%d" % (OO + i, SA + i))
    e("v_rcp_f32 v10, v%d" % (OO + 11))
    e("s_nop 0")
    for i in range(10):
        e("v_mul_f32 v%d, v10, v%d" % (OO + i, OO + i))
    for i in range(5):
        e("v_cvt_pk_bf16_f32 v%d, v%d, v%d" % (OO + i, OO + 2 * i, OO + 2 * i + 1))
    e("s_lshl_b32 s37, s36, 1")
    e("v_lshrrev_b32 v12, 4, v5")
    e("v_add_u32 v12, s37, v12")
    e("v_mul_u32_u24 v12, 18432, v12")
    e("v_and_b32 v13, 15, v5")
    e("v_lshl_add_u32 v12, v13, 4, v12")
    e("v_add_u32 v12, 0x%x, v12" % OB)
    e("s_mul_i32 s37, s30, 18")
    e("v_lshlrev_b32 v13, 2, v6")
    e("v_add_u32 v13, s37, v13")
    e("v_cmp_eq_u32 vcc, 0, v6")
    for i, dd in enumerate([0, 2, 8, 10, 16]):
        e("v_add_u32 v14, %d, v13" % dd)
        e("v_lshrrev_b32 v15, 3, v14")
        e("v_and_b32 v14, 7, v14")
        e("v_lshl_add_u32 v15, v15, 8, v12")
        e("v_lshl_add_u32 v15, v14, 1, v15")
        if dd == 16:
            e("v_mov_b32 v14, 0x40000000")
            e("v_cndmask_b32 v15, v14, v15, vcc")
        e("buffer_store_dword v%d, v15, s[16:19], 0 offen%s" % (OO + i, " sc1" if out_fid is not None else ""))
    if out_fid is not None:
        emit_signal(k, out_fid, "s31", "s30")
        k.endlab = end
        return k
    k.stamp(3)
    k.rstamp(5)
    k.dump()
    k.lab(end)
    e("s_endpgm")
    return k


def gen_out(name, kind, xsrc, xdst, layer, fused=False, fid=0, k=None):
    OA_BASE = 81 * 1024
    lds = OA_BASE + (72 * 1024 if kind == 'A' else 0)
    chained = k is not None
    if chained:
        k.vgpr = max(k.vgpr, 216 if kind == 'A' else 136)
        k.lds = max(k.lds, lds)
        name = k.newlab("o")[2:]
    else:
        k = Kern(name, 216 if kind == 'A' else 136, lds, (256, 1, 1), (512, 1, 1))
    SC = " sc1" if fused else ""
    LSC = ""
    e = k.e
    ACC = 16
    XRES = 36
    AF = 48
    BF = 84
    BF2 = [84, 104]
    VL16 = 124 if kind == 'B' else 208
    VB = VL16 + 1
    VB4 = VL16 + 2
    VX = VL16 + 3
    VX4 = VL16 + 4
    VD = VL16 + 5
    VD4 = VL16 + 6
    if chained:
        end = k.endlab
    else:
        end = "L_%s_end" % name
        e("s_cmp_ge_u32 s2, 256")
        e("s_cbranch_scc1 %s" % end)
        e("s_load_dwordx2 s[4:5], s[0:1], %d" % KA_WS)
        k.stamp(0)
    if xdst is None:
        e("s_load_dwordx2 s[6:7], s[0:1], %d" % KA_OUT)
    e("s_and_b32 s28, s2, 7")
    e("s_lshr_b32 s29, s2, 3")
    e("s_and_b32 s30, s29, 7")
    e("s_lshr_b32 s31, s29, 3")
    e("s_lshl_b32 s28, s28, 2")
    e("s_add_u32 s31, s31, s28")
    e("v_lshrrev_b32 v4, 6, v0")
    e("v_and_b32 v3, 63, v0")
    e("v_readfirstlane_b32 s35, v4")
    e("v_and_b32 v5, 15, v3")
    e("v_lshrrev_b32 v6, 4, v3")
    e("v_lshlrev_b32 v%d, 4, v3" % VL16)
    e("s_and_b32 s36, s35, 3")
    e("s_lshr_b32 s37, s35, 2")
    e("s_lshl_b32 s38, s31, 2")
    e("s_add_u32 s38, s38, s36")
    e("s_mul_i32 s39, s38, 18432")
    e("s_mul_i32 s33, s30, %d" % (81 * 1024))
    e("s_lshl_b32 s52, s35, 10")
    e("s_waitcnt lgkmcnt(0)")
    k.srd(8, 4, xsrc, XB)
    k.srd(12, 4, WOA if kind == 'A' else WOB, WO_SZ)
    if xdst is None:
        k.srd(24, 6, 0, XB)
    else:
        k.srd(24, 4, xdst, XB)
    if kind == 'A':
        k.srd(16, 4, PQF, PQF_SZ)
        k.srd(44, 4, KVACC + layer * KVACC_L, KVACC_L)
    else:
        k.srd(16, 4, OB, XB)
    k.srd(56, 4, STATV.get(xdst, STATS), 2048 * 64)

    def wdma(lo, hi):
        for i in range(lo, hi):
            if 8 * i + 7 < 81:
                e("s_add_u32 m0, s52, %d" % (8192 * i))
                e("s_add_u32 s34, m0, s33")
            else:
                e("s_add_u32 s54, s52, %d" % (8192 * i))
                e("s_min_u32 m0, s54, %d" % (80 * 1024))
                e("s_add_u32 s34, m0, s33")
            e("buffer_load_dwordx4 v%d, s[12:15], s34 offen lds" % VL16)

    if chained:
        sk = k.newlab("nw")
        po = k.newlab("po")
        e("s_cmp_eq_u32 s35, 0")
        e("s_cbranch_scc1 %s" % po)
        wdma(0, 11)
        e("s_cmp_lg_u32 s35, 1")
        e("s_cbranch_scc1 %s" % sk)
        e("s_mov_b32 s52, 0")
        wdma(0, 11)
        e("s_branch %s" % sk)
        k.lab(po)
        e("s_lshr_b32 s43, s31, 2")
        emit_poll(k, "s43", 32, sk)
        k.lab(sk)
        e("s_barrier")

    if kind == 'B':
        e("s_mul_i32 s40, s37, 9216")
        e("s_add_u32 s40, s40, s39")
        for i in range(9):
            e("buffer_load_dwordx4 %s, v%d, s[16:19], s40 offen offset:%d" % (vr(AF + 4 * i, 4), VL16, (1024 * i) % 4096))
            if i % 4 == 3:
                e("s_add_u32 s40, s40, 4096")
    else:
        KVR, PQR, DD = 48, 96, 160
        e("v_and_b32 v1, 31, v3")
        e("v_lshrrev_b32 v2, 5, v3")
        e("s_mul_i32 s40, s35, %d" % (4 * 2432))
        e("v_min_u32 v8, 18, v1")
        e("v_lshlrev_b32 v8, 7, v8")
        e("v_add_u32 v9, s40, v8")
        e("v_lshl_add_u32 v8, v2, 5, v9")
        e("v_lshlrev_b32 v10, 2, v1")
        e("s_lshl_b32 s41, s31, 6")
        e("s_lshl_b32 s42, s35, 2")
        e("s_add_u32 s41, s41, s42")
        e("s_mul_i32 s55, s41, 1152")
        for hh in range(4):
            for t in range(2):
                for i in range(1, 4):
                    e("v_mov_b32 v%d, 0" % (PQR + 16 * hh + 8 * t + 4 + i))

        def s1load(hh):
            e("s_mov_b32 s34, %d" % (hh * 2432))
            e("buffer_load_dwordx4 %s, v8, s[44:47], s34 offen%s" % (vr(KVR + 12 * hh, 4), LSC))
            e("buffer_load_dwordx4 %s, v8, s[44:47], s34 offen offset:16%s" % (vr(KVR + 12 * hh + 4, 4), LSC))
            e("buffer_load_dwordx2 %s, v9, s[44:47], s34 offen offset:64%s" % (vr(KVR + 12 * hh + 8, 2), LSC))
            for t in range(2):
                e("s_add_u32 s34, s55, %d" % (t * 32 * 1152 + hh * 1152))
                e("buffer_load_dwordx4 %s, v%d, s[16:19], s34 offen%s" % (vr(PQR + 16 * hh + 8 * t, 4), VL16, LSC))
                e("buffer_load_dword v%d, v10, s[16:19], s34 offen offset:1024%s" % (PQR + 16 * hh + 8 * t + 4, LSC))

        s1load(0)
        s1load(1)
    if kind == 'B' and not chained:
        wdma(0, 11)
    e("s_lshr_b32 s40, s38, 1")
    e("s_mul_i32 s40, s40, 36864")
    e("s_and_b32 s41, s38, 1")
    e("s_lshl_b32 s41, s41, 8")
    e("s_add_u32 s40, s40, s41")
    e("s_mul_i32 s41, s30, 4608")
    e("s_add_u32 s40, s40, s41")
    e("v_lshrrev_b32 v7, 1, v6")
    e("v_lshlrev_b32 v7, 9, v7")
    e("v_lshl_add_u32 v7, v5, 4, v7")
    e("v_and_b32 v11, 1, v6")
    e("v_lshl_add_u32 v7, v11, 3, v7")
    e("v_add_u32 v%d, s40, v7" % VX)
    e("v_cmp_gt_u32 vcc, 2, v6")
    e("v_mov_b32 v11, 0x40000000")
    e("s_nop 0")
    e("v_cndmask_b32 v%d, v11, v%d, vcc" % (VX4, VX))
    if xdst is None:
        e("s_lshl_b32 s40, s38, 4")
        e("v_add_u32 v7, s40, v5")
        e("v_mul_u32_u24 v7, 1152, v7")
        e("v_lshl_add_u32 v7, v6, 3, v7")
        e("s_mul_i32 s40, s30, 144")
        e("v_add_u32 v%d, s40, v7" % VD)
        e("v_cndmask_b32 v%d, v11, v%d, vcc" % (VD4, VD))
    def xres():
        for t in range(5):
            e("s_mov_b32 s34, %d" % (1024 * t))
            e("buffer_load_dwordx2 %s, v%d, s[8:11], s34 offen%s" % (vr(XRES + 2 * t, 2), VX4 if t == 4 else VX, LSC))

    if kind == 'B':
        xres()
    e("s_mul_i32 s40, s37, %d" % (4 * 9216))
    e("v_add_u32 v%d, s40, v%d" % (VB, VL16))
    e("v_and_b32 v7, 7, v5")
    e("v_lshlrev_b32 v7, 4, v7")
    e("v_lshl_add_u32 v7, v6, 7, v7")
    e("v_add_u32 v%d, s40, v7" % VB4)
    for i in range(20):
        e("v_mov_b32 v%d, 0" % (ACC + i))
    if kind == 'A':
        e("s_mul_i32 s41, s35, 2304")
        e("s_add_u32 s41, s41, %d" % OA_BASE)
        e("v_lshrrev_b32 v11, 4, v1")
        e("v_mul_u32_u24 v11, 18432, v11")
        e("v_and_b32 v12, 15, v1")
        e("v_lshl_add_u32 v11, v12, 4, v11")
        e("v_add_u32 v11, s41, v11")
        e("s_mov_b32 s42, 0x%x" % f2u(1e-6))
        e("v_cmp_eq_u32 s[48:49], 0, v2")
        for hh in range(4):
            kv = KVR + 12 * hh
            k.stamp(7 + 2 * hh)
            e("s_waitcnt vmcnt(%d)" % ([7, 7, 7, 0] if chained else [7, 7, 7, 6])[hh])
            k.stamp(8 + 2 * hh)
            for i in range(5):
                e("v_cvt_pk_bf16_f32 v%d, v%d, v%d" % (kv + i, kv + 2 * i, kv + 2 * i + 1))
            for i in range(5, 8):
                e("v_mov_b32 v%d, 0" % (kv + i))
            for t in range(2):
                q2 = PQR + 16 * hh + 8 * t + 4
                e("v_cndmask_b32 v%d, 0, v%d, s[48:49]" % (q2, q2))
            e("s_nop 1")
            for t in range(2):
                q1 = PQR + 16 * hh + 8 * t
                e("v_mfma_f32_32x32x16_bf16 %s, %s, %s, 0" % (vr(DD + 16 * t, 16), vr(kv, 4), vr(q1, 4)))
                e("v_mfma_f32_32x32x16_bf16 %s, %s, %s, %s" % (vr(DD + 16 * t, 16), vr(kv + 4, 4), vr(q1 + 4, 4), vr(DD + 16 * t, 16)))
            if hh < 2:
                s1load(hh + 2)
            elif hh == 2:
                if not chained:
                    wdma(0, 6)
            else:
                if not chained:
                    wdma(6, 11)
                xres()
            lo, hi = [], []
            for i, dd in enumerate([0, 2, 8, 10, 16]):
                for h in range(2):
                    c = 18 * hh + dd + 4 * h
                    off = (c >> 3) * 256 + (c & 7) * 2
                    if not (dd == 16 and h == 1):
                        (lo if h == 0 else hi).append("v_add_u32 v%d, %d, v11" % (192 + i, off))
            half_ops(k, lo, hi)
            e("s_nop 3")
            for t in range(2):
                d = DD + 16 * t
                e("v_add_f32 v%d, s42, v%d" % (d + 12, d + 11))
            for t in range(2):
                d = DD + 16 * t
                e("v_rcp_f32 v%d, v%d" % (d + 12, d + 12))
            for t in range(2):
                d = DD + 16 * t
                e("v_mov_b32 v%d, v%d" % (d + 13, d + 12))
            for t in range(2):
                d = DD + 16 * t
                for i in range(5):
                    e("v_pk_mul_f32 %s, %s, %s" % (vr(d + 2 * i, 2), vr(d + 2 * i, 2), vr(d + 12, 2)))
                    e("v_cvt_pk_bf16_f32 v%d, v%d, v%d" % (d + 2 * i, d + 2 * i, d + 2 * i + 1))
                    if i == 4:
                        e("s_mov_b32 exec_hi, 0")
                    e("ds_write_b32 v%d, v%d offset:%d" % (192 + i, d + 2 * i, t * 36864))
                    if i == 4:
                        e("s_mov_b32 exec_hi, -1")
        e("s_mul_i32 s40, s36, 18432")
        e("s_mul_i32 s41, s37, 9216")
        e("s_add_u32 s40, s40, s41")
        e("s_add_u32 s40, s40, %d" % OA_BASE)
        e("v_add_u32 v7, s40, v%d" % VL16)
    k.stamp(1)
    e("s_waitcnt vmcnt(0) lgkmcnt(0)")
    e("s_barrier")
    k.stamp(2)
    if kind == 'A':
        for i in range(9):
            e("ds_read_b128 %s, v7 offset:%d" % (vr(AF + 4 * i, 4), 1024 * i))
    l1 = "L_%s_k1" % name
    lj = "L_%s_kj" % name
    e("s_cmp_eq_u32 s37, 1")
    e("s_cbranch_scc1 %s" % l1)
    for kh in range(2):
        if kh == 1:
            k.lab(l1)
        def bread(i):
            bf = BF2[i & 1]
            sl = i + kh
            po = (sl >> 1) * 9216
            for t in range(4):
                e("ds_read_b128 %s, v%d offset:%d" % (vr(bf + 4 * t, 4), VB, po + (sl & 1) * 4096 + t * 1024))
            e("ds_read_b128 %s, v%d offset:%d" % (vr(bf + 16, 4), VB4, po + 8192 + (sl & 1) * 512))

        bread(0)
        for i in range(9):
            if i + 1 < 9:
                bread(i + 1)
                e("s_waitcnt lgkmcnt(5)")
            else:
                e("s_waitcnt lgkmcnt(0)")
            bf = BF2[i & 1]
            for t in range(5):
                e("v_mfma_f32_16x16x32_bf16 %s, %s, %s, %s" % (vr(ACC + 4 * t, 4), vr(bf + 4 * t, 4), vr(AF + 4 * i, 4), vr(ACC + 4 * t, 4)))
        k.stamp(4)
        e("s_barrier")
        e("s_mul_i32 s40, s36, 5120")
        e("v_add_u32 v7, s40, v%d" % VL16)
        if kh == 1:
            e("s_nop 7")
            for t in range(5):
                e("ds_write_b128 v7, %s offset:%d" % (vr(ACC + 4 * t, 4), 1024 * t))
            e("s_waitcnt lgkmcnt(0)")
            e("s_barrier")
            if not fused:
                e("s_endpgm")
        else:
            e("s_barrier")
            for t in range(5):
                e("ds_read_b128 %s, v7 offset:%d" % (vr(BF + 4 * t, 4), 1024 * t))
            e("s_waitcnt lgkmcnt(0)")
            for t in range(5):
                a = ACC + 4 * t
                x = XRES + 2 * t
                e("v_lshlrev_b32 v8, 16, v%d" % x)
                e("v_and_b32 v9, 0xffff0000, v%d" % x)
                e("v_lshlrev_b32 v10, 16, v%d" % (x + 1))
                e("v_and_b32 v11, 0xffff0000, v%d" % (x + 1))
                for r in range(4):
                    e("v_add_f32 v%d, v%d, v%d" % (a + r, a + r, BF + 4 * t + r))
                    e("v_add_f32 v%d, v%d, v%d" % (a + r, a + r, 8 + r))
                e("v_cvt_pk_bf16_f32 v%d, v%d, v%d" % (a, a, a + 1))
                e("v_cvt_pk_bf16_f32 v%d, v%d, v%d" % (a + 1, a + 2, a + 3))
                if xdst is None:
                    e("buffer_store_dwordx2 %s, v%d, s[24:27], 0 offen offset:%d" % (vr(a, 2), VD4 if t == 4 else VD, 32 * t))
                else:
                    e("s_mov_b32 s34, %d" % (1024 * t))
                    e("buffer_store_dwordx2 %s, v%d, s[24:27], s34 offen%s" % (vr(a, 2), VX4 if t == 4 else VX, SC))
            if xdst is not None:
                e("s_mov_b32 s42, 0x3f803f80")
                e("v_cmp_gt_u32 vcc, 2, v6")
                e("v_mov_b32 v8, 0")
                e("v_mov_b32 v9, 0")
                e("v_cndmask_b32 v%d, 0, v%d, vcc" % (ACC + 18, ACC + 16))
                e("v_cndmask_b32 v%d, 0, v%d, vcc" % (ACC + 19, ACC + 17))
                for t in range(5):
                    for i in range(2):
                        r = ACC + 4 * t + i + (2 if t == 4 else 0)
                        e("v_dot2_f32_bf16 v8, v%d, s42, v8" % r)
                        e("v_dot2_f32_bf16 v9, v%d, v%d, v9" % (r, r))
                e("s_nop 2")
                e("v_mov_b32 v10, v8")
                e("v_mov_b32 v11, v9")
                e("s_nop 1")
                e("v_permlane16_swap_b32 v10, v8")
                e("v_permlane16_swap_b32 v11, v9")
                e("s_nop 1")
                e("v_add_f32 v8, v8, v10")
                e("v_add_f32 v9, v9, v11")
                e("v_mov_b32 v10, v8")
                e("v_mov_b32 v11, v9")
                e("s_nop 1")
                e("v_permlane32_swap_b32 v10, v8")
                e("v_permlane32_swap_b32 v11, v9")
                e("s_nop 1")
                e("v_add_f32 v8, v8, v10")
                e("v_add_f32 v9, v9, v11")
                e("s_lshl_b32 s40, s38, 10")
                e("s_lshl_b32 s41, s30, 3")
                e("s_add_u32 s40, s40, s41")
                e("v_lshlrev_b32 v10, 6, v5")
                e("v_cmp_eq_u32 vcc, 0, v6")
                e("v_mov_b32 v11, 0x40000000")
                e("s_nop 0")
                e("v_cndmask_b32 v10, v11, v10, vcc")
                e("buffer_store_dwordx2 v[8:9], v10, s[56:59], s40 offen%s" % SC)
            if fused:
                e("s_waitcnt vmcnt(0)")
                e("s_branch %s" % lj)
                continue
            k.stamp(5)
            if STAMPS:
                e("s_waitcnt vmcnt(0)")
            k.stamp(6)
            k.dump()
            e("s_endpgm")
    if fused:
        k.lab(lj)
        e("s_barrier")
        k.srd(20, 4, FLAGS + fid * 2048, 2048)
        sk = k.newlab("sig")
        e("s_cmp_lg_u32 s35, 0")
        e("s_cbranch_scc1 %s" % sk)
        e("s_lshr_b32 s40, s31, 1")
        e("s_lshl_b32 s40, s40, 7")
        e("s_and_b32 s41, s31, 1")
        e("s_lshl_b32 s41, s41, 3")
        e("s_add_u32 s41, s41, s30")
        e("s_lshl_b32 s41, s41, 2")
        e("s_add_u32 s40, s40, s41")
        e("v_mov_b32 v8, 1")
        e("v_mov_b32 v9, 0")
        e("s_mov_b64 exec, 1")
        e("buffer_store_dword v8, v9, s[20:23], s40 offen sc1")
        e("s_mov_b64 exec, -1")
        k.lab(sk)
        k.endlab = end
        return k
    k.lab(end)
    e("s_endpgm")
    return k


ATTN8 = True


def main():
    ks = [
        gen_prep(),
        gen_qkv('A', params=[(58, X0F), (59, KVACC)], kname="qkv_a1_kernel"),
        gen_out("out_a1_kernel", 'A', X0F, X1, 0),
        gen_qkv('B', params=[(58, X1), (59, 0)], kname="qkv_b1_kernel"),
        gen_attn("attn_kernel"),
        gen_out("out_b1_kernel", 'B', X1, X2, 0),
        gen_qkv('A', params=[(58, X2), (59, KVACC + KVACC_L)], kname="qkv_a2_kernel"),
        gen_out("out_a2_kernel", 'A', X2, X3, 1),
        gen_qkv('B', params=[(58, X3), (59, 0)], kname="qkv_b2_kernel"),
        gen_out("out_b2_kernel", 'B', X3, None, 1),
    ]
    byname = {k.name: k for k in ks}
    order = ["prep_kernel", "qkv_a1_kernel", "out_a1_kernel", "qkv_b1_kernel", "attn_kernel", "out_b1_kernel",
             "qkv_a2_kernel", "out_a2_kernel", "qkv_b2_kernel", "attn_kernel", "out_b2_kernel"]
    hdr = open("cdna_kernels/%s.s.ref" % NAME).read().split("; Override launch geometry")[0]
    out = hdr
    for n in order:
        k = byname[n]
        out += "; @launch kernel=%s grid=(%d,%d,%d) block=(%d,%d,%d) lds=%d\n" % ((n,) + k.grid + k.block + (k.lds,))
    out += '.amdgcn_target "amdgcn-amd-amdhsa--gfx950"\n.text\n'
    for k in ks:
        if getattr(k, "nodesc", False):
            out += ".p2align 8\n%s:\n" % k.name + "\n".join(k.L) + "\n"
        else:
            out += k.text()
    out += '.section .rodata,"a"\n'
    for k in ks:
        if not getattr(k, "nodesc", False):
            out += ".p2align 6\n" + k.desc()
    dst = "cdna_kernels/%s.s" % NAME
    if STAMPS:
        dst = OUTFILE
    open(dst, "w").write(out)


if __name__ == "__main__":
    if len(sys.argv) > 1 and sys.argv[1] == "stamps":
        STAMPS = True
        for a in sys.argv[2:]:
            if a.startswith("out="):
                OUTFILE = a[4:]
            elif a.startswith("wg="):
                STAMP_WG = int(a[3:])
            elif "=" in a:
                EXP[a.split("=")[0]] = a.split("=")[1]
            else:
                EXP[a] = True
    main()
```

```python
import sys, re

NAME = "interleave_layers__linear_attn_block__mha_block__prompt"

XB = 2048 * 576 * 2
X1 = 0x0
X2 = 0x240000
X3 = 0x480000
PQ = 0x6C0000
OB = 0x900000
QPI = 0xB40000
QHEAD = 64 * 1152
KVI = 0xF40000
KVHEAD = 64 * 2432
KVACC = 0x1400000
KVACC_L = 32 * 19 * 32 * 4
WFA = 0x2000000
WFB = 0x2240000
WF_SZ = 8 * 36 * 8 * 1024
STATS = 0x1500000
STATV = {}
WOA = 0x1840000
WOB = 0x1900000
WO_SZ = 8 * 81 * 1024
CS = 0x1480000
CS_MAT = 3 * 16 * 512
PQF = 0x1A00000
PQF_SZ = 64 * 32 * 1152
X0F = 0x1D00000
STATV.update({X0F: STATS, X1: STATS + 0x20000, X2: STATS + 0x40000, X3: STATS + 0x60000})
FLAGS = KVACC + 2 * KVACC_L
WS_SIZE = 0x2500000

LOG2E = 1.4426950408889634
QSCALE = (18.0 ** -0.5) * LOG2E

import struct
def f2u(x):
    return struct.unpack("<I", struct.pack("<f", x))[0]


EXP = {}
STAMPS = False
STAMP_WG = 0


class Kern:
    def __init__(self, name, vgpr, lds, grid, block):
        self.name = name
        self.vgpr = vgpr
        self.lds = lds
        self.grid = grid
        self.block = block
        self.L = []
        self.uid = 0

    def e(self, s):
        m = re.search(r"offset:(\d+)", s)
        if m:
            o = int(m.group(1))
            if s.startswith("buffer_"):
                assert o <= 4095, s
            elif s.startswith("ds_"):
                assert o <= 65535, s
        self.L.append("    " + s)

    def lab(self, s):
        self.L.append(s + ":")

    def newlab(self, p):
        self.uid += 1
        return "L_%s_%s%d" % (self.name, p, self.uid)

    def srd(self, d, b, off, size):
        if off:
            self.e("s_add_u32 s%d, s%d, 0x%x" % (d, b, off))
            self.e("s_addc_u32 s%d, s%d, 0" % (d + 1, b + 1))
        else:
            self.e("s_mov_b32 s%d, s%d" % (d, b))
            self.e("s_mov_b32 s%d, s%d" % (d + 1, b + 1))
        self.e("s_mov_b32 s%d, 0x%x" % (d + 2, size))
        self.e("s_mov_b32 s%d, 0x00020000" % (d + 3))

    def rstamp(self, i):
        if STAMPS:
            self.e("s_memrealtime s[%d:%d]" % (64 + 2 * i, 65 + 2 * i))
            self.nst = max(getattr(self, "nst", 0), i + 1)

    def stamp(self, i):
        if STAMPS:
            self.e("s_memtime s[%d:%d]" % (64 + 2 * i, 65 + 2 * i))
            self.nst = max(getattr(self, "nst", 0), i + 1)

    def dump(self):
        if STAMPS and getattr(self, "nst", 0):
            l = self.newlab("nd")
            self.e("s_cmp_lg_u32 s2, %d" % STAMP_WG)
            self.e("s_cbranch_scc1 %s" % l)
            self.e("s_load_dwordx2 s[60:61], s[0:1], %d" % KA_DBG)
            self.e("s_waitcnt lgkmcnt(0)")
            self.e("s_mov_b32 s62, 256")
            self.e("s_mov_b32 s63, 0x00020000")
            self.e("v_lshrrev_b32 v1, 6, v0")
            if EXP.get("hiwaves"):
                self.e("v_xor_b32 v1, 4, v1")
            self.e("v_lshlrev_b32 v1, 6, v1")
            if getattr(self, "endlab", None):
                self.e("v_add_u32 v1, 128, v1")
            for i in range(self.nst):
                self.e("v_mov_b32 v2, s%d" % (64 + 2 * i))
                self.e("buffer_store_dword v2, v1, s[60:63], 0 offen offset:%d" % (4 * i))
            self.lab(l)

    def text(self):
        if getattr(self, "stub", None):
            return (".globl %s\n.p2align 8\n.type %s,@function\n%s:\n" % (self.name, self.name, self.name)
                    + "".join("    %s\n" % x for x in self.stub))
        out = []
        out.append(".globl %s" % self.name)
        out.append(".p2align 8")
        out.append(".type %s,@function" % self.name)
        out.append("%s:" % self.name)
        out += self.L
        return "\n".join(out) + "\n"

    def desc(self):
        v = (self.vgpr + 3) // 4 * 4
        return """.amdhsa_kernel %s
  .amdhsa_next_free_vgpr %d
  .amdhsa_next_free_sgpr 96
  .amdhsa_accum_offset %d
  .amdhsa_group_segment_fixed_size 0
  .amdhsa_kernarg_size 72
  .amdhsa_user_sgpr_count 2
  .amdhsa_user_sgpr_kernarg_segment_ptr 1
  .amdhsa_system_sgpr_workgroup_id_x 1
.end_amdhsa_kernel
""" % (self.name, v, v)


def vr(a, n):
    return "v[%d:%d]" % (a, a + n - 1)


KA_AX, KA_AWQKV, KA_AWO, KA_BX, KA_BWQKV, KA_BWO, KA_OUT, KA_DBG, KA_WS = [8 * i for i in range(9)]


OUTFILE = 'st.s'
PB_ROW = 288
OB_ROW = 160


def gen_prep():
    NQ = 96
    NO = 96
    NZ = 0
    NX = 64
    GL = 64 * PB_ROW
    k = Kern("prep_kernel", 96, 3 * GL + 4096, (NQ + NO + NZ + NX, 1, 1), (768, 1, 1))
    e = k.e
    e("s_cmp_ge_u32 s2, %d" % (NQ + NO + NZ + NX))
    e("s_cbranch_scc1 L_prep_end")
    e("s_load_dwordx2 s[4:5], s[0:1], %d" % KA_WS)
    e("s_load_dwordx2 s[20:21], s[0:1], %d" % KA_AWQKV)
    e("s_load_dwordx2 s[22:23], s[0:1], %d" % KA_BWQKV)
    e("s_load_dwordx2 s[24:25], s[0:1], %d" % KA_AWO)
    e("s_load_dwordx2 s[26:27], s[0:1], %d" % KA_BWO)
    e("s_load_dwordx2 s[44:45], s[0:1], %d" % KA_AX)
    k.stamp(0)
    e("v_and_b32 v3, 63, v0")
    e("v_lshrrev_b32 v4, 6, v0")
    e("v_and_b32 v0, 255, v0")
    e("v_readfirstlane_b32 s35, v4")
    e("v_lshlrev_b32 v5, 4, v3")
    e("v_lshrrev_b32 v6, 4, v3")
    e("v_lshrrev_b32 v8, 2, v3")
    e("v_and_b32 v8, 3, v8")
    e("v_and_b32 v9, 3, v3")
    e("s_lshr_b32 s46, s35, 2")
    e("s_and_b32 s35, s35, 3")
    e("s_mul_i32 s47, s46, %d" % GL)
    e("s_waitcnt lgkmcnt(0)")
    k.srd(16, 4, 0, WS_SIZE)
    e("s_cmp_ge_u32 s2, %d" % (NQ + NO))
    e("s_cbranch_scc1 L_prep_misc")
    e("s_cmp_ge_u32 s2, %d" % NQ)
    e("s_cbranch_scc1 L_prep_wo")
    e("s_cmp_ge_u32 s2, 48")
    e("s_cselect_b32 s30, 1, 0")
    e("s_mul_i32 s31, s30, 48")
    e("s_sub_u32 s31, s2, s31")
    e("s_mul_i32 s32, s31, 21846")
    e("s_lshr_b32 s32, s32, 16")
    e("s_mul_i32 s33, s32, 3")
    e("s_sub_u32 s33, s31, s33")
    e("s_mul_i32 s48, s33, 6")
    e("s_lshl_b32 s49, s46, 1")
    e("s_add_u32 s48, s48, s49")
    e("s_cmp_eq_u32 s30, 0")
    e("s_cselect_b32 s8, s20, s22")
    e("s_cselect_b32 s9, s21, s23")
    e("s_mov_b32 s10, %d" % (576 * 3456))
    e("s_mov_b32 s11, 0x00020000")
    e("s_cselect_b32 s36, 1, 0")
    e("s_mul_i32 s37, s32, 72")
    e("s_mul_i32 s38, s48, %d" % (32 * 3456))
    e("s_add_u32 s37, s37, s38")
    for i in range(7):
        e("v_add_u32 v10, %d, v0" % (256 * i))
        if i == 6:
            e("v_min_u32 v10, 1727, v10")
        e("v_mul_u32_u24 v11, 9710, v10")
        e("v_lshrrev_b32 v11, 18, v11")
        e("v_mul_u32_u24 v12, 27, v11")
        e("v_sub_u32 v12, v10, v12")
        e("v_mul_u32_u24 v13, 57, v12")
        e("v_lshrrev_b32 v13, 9, v13")
        e("v_mul_u32_u24 v14, 9, v13")
        e("v_sub_u32 v14, v12, v14")
        e("v_add_u32 v13, s36, v13")
        e("v_cmp_eq_u32 vcc, 3, v13")
        e("s_nop 1")
        e("v_cndmask_b32_e64 v13, v13, 0, vcc")
        e("v_mul_u32_u24 v13, 1152, v13")
        e("v_mul_u32_u24 v15, 3456, v11")
        e("v_add3_u32 v15, v15, v13, s37")
        e("v_lshl_add_u32 v15, v14, 3, v15")
        e("buffer_load_dwordx2 %s, v15, s[8:11], 0 offen" % vr(32 + 2 * i, 2))
        e("v_mul_u32_u24 v15, %d, v11" % PB_ROW)
        e("v_lshl_add_u32 v15, v12, 3, v15")
        e("v_add_u32 v%d, s47, v15" % (20 + i))
    e("v_mov_b32 v28, 0")
    e("v_mov_b32 v29, 0")
    for i in range(2):
        e("v_add_u32 v10, %d, v0" % (256 * i))
        e("v_min_u32 v10, 319, v10")
        e("v_mul_u32_u24 v11, 13108, v10")
        e("v_lshrrev_b32 v11, 16, v11")
        e("v_mul_u32_u24 v12, 5, v11")
        e("v_sub_u32 v12, v10, v12")
        e("v_mul_u32_u24 v11, %d, v11" % PB_ROW)
        e("v_lshl_add_u32 v11, v12, 3, v11")
        e("v_add_u32 v11, s47, v11")
        e("ds_write_b64 v11, v[28:29] offset:216")
    e("v_lshrrev_b32 v7, 1, v6")
    e("v_lshl_add_u32 v7, v7, 3, v8")
    e("v_mul_u32_u24 v7, %d, v7" % PB_ROW)
    e("v_and_b32 v10, 1, v6")
    e("v_lshl_add_u32 v7, v10, 5, v7")
    e("v_lshl_add_u32 v7, v9, 3, v7")
    e("s_lshl_b32 s38, s35, 6")
    e("s_add_u32 s38, s38, s47")
    e("v_add_u32 v7, s38, v7")
    for i in range(4):
        e("v_mov_b32 v%d, 0x3f803f80" % (28 + i))
    e("s_mul_i32 s38, s32, 36")
    e("s_lshl_b32 s39, s48, 1")
    e("s_add_u32 s38, s38, s39")
    e("s_lshl_b32 s38, s38, 2")
    e("s_add_u32 s38, s38, s35")
    e("s_lshl_b32 s38, s38, 10")
    e("s_mul_i32 s39, s30, 0x%x" % (WFB - WFA))
    e("s_add_u32 s38, s38, s39")
    e("s_add_u32 s38, s38, 0x%x" % WFA)
    e("s_lshl_b32 s39, s33, 4")
    e("s_add_u32 s39, s39, s32")
    e("s_lshl_b32 s39, s39, 9")
    e("s_mul_i32 s40, s30, %d" % CS_MAT)
    e("s_add_u32 s39, s39, s40")
    e("s_add_u32 s39, s39, 0x%x" % CS)
    e("s_lshl_b32 s40, s46, 9")
    e("s_lshl_b32 s41, s35, 7")
    e("s_add_u32 s40, s40, s41")
    e("s_add_u32 s40, s40, %d" % (3 * GL))
    e("v_and_b32 v10, 31, v3")
    e("v_lshl_add_u32 v10, v10, 2, s40")
    k.stamp(1)
    e("s_waitcnt vmcnt(0)")
    k.stamp(2)
    for i in range(7):
        e("ds_write_b64 v%d, %s" % (20 + i, vr(32 + 2 * i, 2)))
    e("s_waitcnt lgkmcnt(0)")
    e("s_barrier")
    k.stamp(3)
    for ks in range(4):
        for hf in range(2):
            e("ds_read_b64_tr_b16 %s, v7 offset:%d" % (vr(32 + 4 * ks + 2 * hf, 2), (16 * ks + 4 * hf) * PB_ROW))
    e("s_waitcnt lgkmcnt(0)")
    for ks in range(4):
        c = "0" if ks == 0 else vr(48, 16)
        e("v_mfma_f32_32x32x16_bf16 %s, v[28:31], %s, %s" % (vr(48, 16), vr(32 + 4 * ks, 4), c))
        e("s_add_u32 s40, s38, %d" % (4096 * ks))
        e("buffer_store_dwordx4 %s, v5, s[16:19], s40 offen" % vr(32 + 4 * ks, 4))
    e("s_nop 7")
    e("s_nop 7")
    e("ds_write_b32 v10, v48")
    e("s_waitcnt lgkmcnt(0)")
    e("s_barrier")
    e("s_cmp_lg_u32 s46, 0")
    e("s_cbranch_scc1 L_prep_end")
    e("s_cmp_ge_u32 s35, 2")
    e("s_cbranch_scc1 L_prep_end")
    e("v_lshlrev_b32 v10, 2, v0")
    for i in range(3):
        e("ds_read_b32 v%d, v10 offset:%d" % (12 + i, 3 * GL + 512 * i))
    e("s_waitcnt lgkmcnt(0)")
    e("v_add_f32 v12, v12, v13")
    e("v_add_f32 v12, v12, v14")
    e("buffer_store_dword v12, v10, s[16:19], s39 offen")
    k.stamp(4)
    if STAMPS:
        e("s_waitcnt vmcnt(0)")
    k.stamp(5)
    k.dump()
    e("s_endpgm")
    k.lab("L_prep_wo")
    e("s_sub_u32 s29, s2, %d" % NQ)
    e("s_mul_i32 s29, s29, 3")
    e("s_add_u32 s29, s29, s46")
    e("s_cmp_ge_u32 s29, 144")
    e("s_cselect_b32 s30, 1, 0")
    e("s_mul_i32 s31, s30, 144")
    e("s_sub_u32 s31, s29, s31")
    e("s_mul_i32 s32, s31, 3641")
    e("s_lshr_b32 s32, s32, 16")
    e("s_mul_i32 s33, s32, 18")
    e("s_sub_u32 s33, s31, s33")
    e("s_cmp_eq_u32 s30, 0")
    e("s_cselect_b32 s8, s24, s26")
    e("s_cselect_b32 s9, s25, s27")
    e("s_mov_b32 s10, %d" % (576 * 1152))
    e("s_mov_b32 s11, 0x00020000")
    e("s_mul_i32 s37, s32, 144")
    e("s_mul_i32 s38, s33, %d" % (32 * 1152))
    e("s_add_u32 s37, s37, s38")
    for i in range(2):
        e("v_add_u32 v10, %d, v0" % (256 * i))
        if i == 1:
            e("v_min_u32 v10, 287, v10")
        e("v_mul_u32_u24 v11, 7282, v10")
        e("v_lshrrev_b32 v11, 16, v11")
        e("v_mul_u32_u24 v12, 9, v11")
        e("v_sub_u32 v12, v10, v12")
        e("v_mul_u32_u24 v15, 1152, v11")
        e("v_lshl_add_u32 v15, v12, 4, v15")
        e("v_add_u32 v15, s37, v15")
        e("buffer_load_dwordx4 %s, v15, s[8:11], 0 offen" % vr(32 + 4 * i, 4))
        e("v_mul_u32_u24 v15, %d, v11" % OB_ROW)
        e("v_lshrrev_b32 v13, 3, v11")
        e("v_lshl_add_u32 v15, v13, 7, v15")
        e("v_lshl_add_u32 v15, v12, 4, v15")
        e("v_add_u32 v%d, s47, v15" % (20 + i))
    e("s_waitcnt vmcnt(0)")
    for i in range(2):
        e("ds_write_b128 v%d, %s" % (20 + i, vr(32 + 4 * i, 4)))
    e("v_mul_u32_u24 v7, %d, v6" % (8 * OB_ROW + 128))
    e("v_mul_u32_u24 v10, %d, v8" % OB_ROW)
    e("v_lshl_add_u32 v10, v9, 3, v10")
    e("s_lshl_b32 s38, s35, 5")
    e("s_add_u32 s38, s38, s47")
    e("v_add3_u32 v7, v7, v10, s38")
    e("s_mul_i32 s38, s32, %d" % (81 * 1024))
    e("s_lshr_b32 s39, s33, 1")
    e("s_mul_i32 s39, s39, 9216")
    e("s_add_u32 s38, s38, s39")
    e("s_mul_i32 s39, s30, 0x%x" % (WOB - WOA))
    e("s_add_u32 s38, s38, s39")
    e("s_add_u32 s38, s38, 0x%x" % WOA)
    e("s_and_b32 s39, s33, 1")
    e("s_lshl_b32 s40, s39, 9")
    e("s_add_u32 s40, s40, s38")
    e("s_add_u32 s40, s40, 8192")
    e("s_lshl_b32 s39, s39, 12")
    e("s_add_u32 s38, s38, s39")
    e("s_lshl_b32 s39, s35, 10")
    e("s_add_u32 s38, s38, s39")
    e("v_and_b32 v10, 15, v3")
    e("v_lshlrev_b32 v11, 4, v10")
    e("v_lshl_add_u32 v11, v6, 7, v11")
    e("v_cmp_gt_u32 vcc, 8, v10")
    e("v_mov_b32 v12, 0x40000000")
    e("s_nop 0")
    e("v_cndmask_b32 v11, v12, v11, vcc")
    e("s_waitcnt lgkmcnt(0)")
    e("s_barrier")
    for q in range(2):
        for hf in range(2):
            e("ds_read_b64_tr_b16 %s, v7 offset:%d" % (vr(32 + 4 * q + 2 * hf, 2), hf * 4 * OB_ROW + 128 * q))
    e("s_waitcnt lgkmcnt(0)")
    e("buffer_store_dwordx4 %s, v5, s[16:19], s38 offen" % vr(32, 4))
    e("s_cmp_lg_u32 s35, 0")
    e("s_cbranch_scc1 L_prep_end")
    e("buffer_store_dwordx4 %s, v11, s[16:19], s40 offen" % vr(36, 4))
    e("s_endpgm")
    k.lab("L_prep_misc")
    e("s_sub_u32 s3, s2, %d" % (NQ + NO))
    e("s_cmp_eq_u32 s46, 0")
    e("s_cbranch_scc1 L_prep_x0")
    e("s_cmp_eq_u32 s46, 2")
    e("s_cbranch_scc1 L_prep_end")
    e("s_cmp_ge_u32 s3, 42")
    e("s_cbranch_scc1 L_prep_end")
    e("s_lshl_b32 s3, s3, 12")
    e("v_lshlrev_b32 v1, 4, v0")
    e("v_add_u32 v1, s3, v1")
    e("v_add_u32 v1, 0x%x, v1" % KVACC)
    for i in range(4):
        e("v_mov_b32 v%d, 0" % (4 + i))
    e("buffer_store_dwordx4 v[4:7], v1, s[16:19], 0 offen")
    e("s_endpgm")
    k.lab("L_prep_x0")

    e("s_mov_b32 s8, s44")
    e("s_mov_b32 s9, s45")
    e("s_mov_b32 s10, %d" % XB)
    e("s_mov_b32 s11, 0x00020000")
    e("s_mul_i32 s7, s3, 36864")
    e("s_add_u32 s6, s7, 0x%x" % X0F)
    e("s_mov_b32 s42, 0x3f803f80")
    e("v_and_b32 v1, 31, v3")
    e("v_lshrrev_b32 v2, 5, v3")
    e("s_lshl_b32 s28, s35, 1")
    e("v_add_u32 v2, s28, v2")
    e("v_mul_u32_u24 v4, 1152, v1")
    e("v_mul_u32_u24 v7, 144, v2")
    e("v_add_u32 v4, v4, v7")
    for i in range(9):
        e("buffer_load_dwordx4 %s, v4, s[8:11], s7 offen offset:%d" % (vr(32 + 4 * i, 4), 16 * i))
    e("v_mul_u32_u24 v7, 4608, v2")
    e("v_lshl_add_u32 v7, v1, 4, v7")
    e("v_lshlrev_b32 v10, 6, v1")
    e("v_lshl_add_u32 v10, v2, 3, v10")
    e("s_lshl_b32 s28, s3, 11")
    e("s_add_u32 s28, s28, 0x%x" % STATS)
    e("v_mov_b32 v8, 0")
    e("v_mov_b32 v9, 0")
    e("s_waitcnt vmcnt(0)")
    for i in range(9):
        e("s_add_u32 s7, s6, %d" % (512 * i))
        e("buffer_store_dwordx4 %s, v7, s[16:19], s7 offen" % vr(32 + 4 * i, 4))
        for q in range(4):
            e("v_dot2_f32_bf16 v8, v%d, s42, v8" % (32 + 4 * i + q))
            e("v_dot2_f32_bf16 v9, v%d, v%d, v9" % (32 + 4 * i + q, 32 + 4 * i + q))
    e("s_nop 2")
    e("buffer_store_dwordx2 v[8:9], v10, s[16:19], s28 offen")
    k.stamp(4)
    if STAMPS:
        e("s_waitcnt vmcnt(0)")
    k.stamp(5)
    k.dump()
    k.lab("L_prep_end")
    e("s_endpgm")
    return k


NB = 8
BSLOT = 16 * 1024
QCS_BASE = NB * BSLOT
QST_BASE = QCS_BASE + 1536
QPQ_BASE = 32768
QKV_LDS = QST_BASE + 1024
T_STRIDE = 272


def emit_phi(e, x, t1, t2):
    e("v_min_f32 v%d, 0, v%d" % (t1, x))
    e("v_mul_f32 v%d, s40, v%d" % (t1, t1))
    e("v_exp_f32 v%d, v%d" % (t1, t1))
    e("v_max_f32 v%d, 0, v%d" % (t2, x))
    e("v_add_f32 v%d, s41, v%d" % (t2, t2))
    e("v_add_f32 v%d, v%d, v%d" % (x, t1, t2))


def emit_signal(k, fid, line_sgpr, word_sgpr):
    e = k.e
    e("s_waitcnt vmcnt(0)")
    e("s_barrier")
    k.srd(20, 4, FLAGS + fid * 2048, 2048)
    sk = k.newlab("sig")
    e("s_cmp_lg_u32 s35, 0")
    e("s_cbranch_scc1 %s" % sk)
    e("s_lshl_b32 s40, %s, 7" % line_sgpr)
    e("s_lshl_b32 s41, %s, 2" % word_sgpr)
    e("s_add_u32 s40, s40, s41")
    e("v_mov_b32 v8, 1")
    e("v_mov_b32 v9, 0")
    e("s_mov_b64 exec, 1")
    e("buffer_store_dword v8, v9, s[20:23], s40 offen sc1")
    e("s_mov_b64 exec, -1")
    k.lab(sk)


def emit_poll(k, line_sgpr, nflags, done):
    e = k.e
    lp = k.newlab("poll")
    e("s_lshl_b32 s60, %s, 7" % line_sgpr)
    e("v_and_b32 v9, %d, v3" % (nflags - 1))
    e("v_lshlrev_b32 v9, 2, v9")
    e("s_mov_b32 s61, 0")
    k.lab(lp)
    e("buffer_load_dword v8, v9, s[20:23], s60 offen sc1")
    e("s_waitcnt vmcnt(0)")
    e("v_cmp_ne_u32 vcc, 1, v8")
    e("s_add_u32 s61, s61, 1")
    e("s_nop 3")
    e("s_cbranch_vccz %s" % done)
    e("s_sleep 1")
    e("s_cmp_lt_u32 s61, 0x400000")
    e("s_cbranch_scc1 %s" % lp)


def gen_stub(name, body, params):
    k = Kern(name, body.vgpr, body.lds, body.grid, body.block)
    k.stub = ["s_mov_b32 s%d, 0x%x" % (r, v) for r, v in params] + ["s_branch %s" % body.name]
    return k


def gen_qkv(kind, k=None, params=None, chain=None, kname=None):
    fused = k is not None
    name = "L_qkv%s" % kind
    if not fused:
        if kname:
            name = kname
        k = Kern(name, 184, QKV_LDS, (256, 1, 1), (512, 1, 1))
        if not kname:
            k.nodesc = True
    else:
        k.vgpr = max(k.vgpr, 184)
        k.lds = max(k.lds, QKV_LDS)
    SC = " sc1" if fused else ""
    e = k.e
    ACC = 16
    FR = [48, 72]
    VL16 = 100
    VA = [101, 102]
    VB = [103, 104]
    CSR = 105
    VCS = 106
    STR = 112
    EA = 128
    if fused:
        end = k.endlab
        for r, v in params:
            e("s_mov_b32 s%d, 0x%x" % (r, v))
    else:
        end = "L_%s_end" % name
        e("s_cmp_ge_u32 s2, 256")
        e("s_cbranch_scc1 %s" % end)
        e("s_load_dwordx2 s[4:5], s[0:1], %d" % KA_WS)
        k.stamp(0)
        if kname:
            for r, v in params:
                e("s_mov_b32 s%d, 0x%x" % (r, v))
    k.pqsc = " sc1" if chain is not None else ""
    e("s_and_b32 s28, s2, 7")
    e("s_lshr_b32 s29, s2, 3")
    e("s_lshr_b32 s31, s28, 1")
    e("s_lshl_b32 s31, s31, 2")
    e("s_lshr_b32 s32, s29, 3")
    e("s_add_u32 s31, s31, s32")
    e("s_and_b32 s30, s28, 1")
    e("s_lshl_b32 s30, s30, 3")
    e("s_and_b32 s32, s29, 7")
    e("s_add_u32 s30, s30, s32")
    e("v_and_b32 v3, 63, v0")
    e("v_lshrrev_b32 v4, 6, v0")
    e("v_and_b32 v5, 31, v3")
    e("v_readfirstlane_b32 s35, v4")
    e("v_lshrrev_b32 v6, 5, v3")
    e("v_lshlrev_b32 v%d, 4, v3" % VL16)
    e("s_lshl_b32 s52, s35, 10")
    e("s_mul_i32 s53, s30, %d" % (36 * 4096))
    e("s_add_u32 s53, s53, s52")
    e("s_lshl_b32 s50, s31, 2")
    e("s_lshr_b32 s51, s35, 1")
    e("s_add_u32 s50, s50, s51")
    e("s_mul_i32 s50, s50, 36864")
    e("s_and_b32 s51, s35, 1")
    e("s_lshl_b32 s51, s51, 10")
    e("s_add_u32 s50, s50, s51")
    e("s_and_b32 s36, s35, 3")
    e("s_lshr_b32 s37, s35, 2")
    for i in range(32):
        e("v_mov_b32 v%d, 0" % (ACC + i))
    e("s_lshl_b32 s34, s37, 12")
    e("v_add_u32 v%d, s34, v%d" % (VA[0], VL16))
    e("v_add_u32 v%d, 0x10000, v%d" % (VA[1], VA[0]))
    e("s_lshl_b32 s34, s36, 10")
    e("s_add_u32 s34, s34, 8192")
    e("v_add_u32 v%d, s34, v%d" % (VB[0], VL16))
    e("v_add_u32 v%d, 0x10000, v%d" % (VB[1], VB[0]))
    e("s_mov_b32 s40, 0x%x" % f2u(LOG2E))
    e("s_mov_b32 s41, 0x%x" % f2u(1e-6))
    e("s_waitcnt lgkmcnt(0)")
    k.stamp(2)
    e("s_add_u32 s8, s4, s58")
    e("s_addc_u32 s9, s5, 0")
    e("s_mov_b32 s10, %d" % XB)
    e("s_mov_b32 s11, 0x00020000")
    k.srd(12, 4, WFA if kind == 'A' else WFB, WF_SZ)
    k.srd(16, 4, 0, WS_SIZE)
    issued = []

    def group_ops(g):
        slot = (g % NB) * BSLOT
        return [(g, ["s_add_u32 m0, s52, %d" % slot, "s_nop 0",
                     "buffer_load_dwordx4 v%d, s[8:11], s50 offen%s lds" % (VL16, SC),
                     "s_add_u32 s50, s50, 2048"]),
                (g, ["s_add_u32 m0, s52, %d" % (slot + 8192), "s_nop 0",
                     "buffer_load_dwordx4 v%d, s[12:15], s53 offen lds" % VL16,
                     "s_add_u32 s53, s53, 8192"])]

    def emit_op(op):
        tag, lines = op
        for x in lines:
            e(x)
        if tag is not None:
            issued.append(tag)

    def wait_for(stage):
        last = max(i for i, t in enumerate(issued) if t <= stage)
        return len(issued) - 1 - last

    if fused:
        sk = k.newlab("nb")
        e("s_cmp_lg_u32 s35, 4")
        e("s_cbranch_scc1 %s" % sk)
        e("s_sub_u32 s34, s53, 4096")
        for g in range(NB):
            e("s_mov_b32 m0, %d" % ((g % NB) * BSLOT + 8192))
            e("s_nop 0")
            e("buffer_load_dwordx4 v%d, s[12:15], s34 offen lds" % VL16)
            e("s_add_u32 s34, s34, 8192")
        k.lab(sk)
        sk = k.newlab("nb")
        e("s_cmp_eq_u32 s35, 0")
        e("s_cselect_b32 s34, %d, 0" % (NB * 8192))
        e("s_add_u32 s53, s53, s34")
        e("s_cmp_eq_u32 s35, 0")
        e("s_cbranch_scc1 %s" % sk)
        for g in range(NB):
            emit_op(group_ops(g)[1])
        k.lab(sk)
    else:
        for g in range(3):
            for op in group_ops(g):
                emit_op(op)
    k.mem = []
    if kind == 'A':
        epi_A_pre(k, EA)
    else:
        epi_B_pre(k, EA)
    e("v_min_u32 v7, 383, v0")
    e("v_lshrrev_b32 v8, 7, v7")
    e("v_and_b32 v7, 127, v7")
    e("v_lshlrev_b32 v7, 2, v7")
    e("v_lshl_add_u32 v%d, v8, 13, v7" % VCS)
    e("v_lshl_add_u32 v107, v8, 9, v7")
    e("s_lshl_b32 s54, s30, 9")
    e("s_add_u32 s54, s54, 0x%x" % (CS + (0 if kind == 'A' else CS_MAT)))
    k.stamp(13)
    if fused:
        sk = k.newlab("nw")
        lp = k.newlab("poll")
        e("s_cmp_lg_u32 s35, 0")
        e("s_cbranch_scc1 %s" % sk)
        e("s_lshl_b32 s38, s31, 7")
        e("v_and_b32 v9, 15, v3")
        e("v_lshlrev_b32 v9, 2, v9")
        e("s_mov_b32 s39, 0")
        k.lab(lp)
        e("buffer_load_dword v8, v9, s[20:23], s38 offen sc1")
        e("s_waitcnt vmcnt(0)")
        e("v_cmp_ne_u32 vcc, 1, v8")
        e("s_add_u32 s39, s39, 1")
        e("s_nop 3")
        e("s_cbranch_vccz %s" % sk)
        e("s_sleep 1")
        e("s_cmp_lt_u32 s39, 0x400000")
        e("s_cbranch_scc1 %s" % lp)
        k.lab(sk)
        e("s_barrier")
        k.stamp(12)
        for g in range(NB):
            emit_op(group_ops(g)[0])
    e("s_waitcnt vmcnt(%d) lgkmcnt(0)" % wait_for(0))
    k.stamp(1)
    e("s_barrier")
    k.stamp(3)

    def fread_ops(s):
        f = FR[s & 1]
        slot = s % NB
        hi, so = slot >> 2, (slot & 3) * BSLOT
        ops = []
        for ks in range(2):
            ops.append((None, ["ds_read_b128 %s, v%d offset:%d" % (vr(f + 16 + 4 * ks, 4), VB[hi], so + ks * 4096)]))
            for a in range(2):
                ops.append((None, ["ds_read_b128 %s, v%d offset:%d" % (vr(f + 8 * a + 4 * ks, 4), VA[hi], so + a * 2048 + ks * 1024)]))
        return ops

    for op in fread_ops(0):
        emit_op(op)
    nextg = NB if fused else 3
    for s in range(18):
        fill = []
        if s + 1 <= 17:
            e("s_waitcnt vmcnt(%d) lgkmcnt(0)" % wait_for(s + 1))
            e("s_barrier")
            fill += fread_ops(s + 1)
            for _ in range(int(EXP.get("ng", 2))):
                if nextg <= 17 and nextg <= s + NB:
                    fill += group_ops(nextg)
                    nextg += 1
            if s == 10:
                fill.append((99, ["buffer_load_dword v%d, v%d, s[16:19], s54 offen" % (CSR, VCS)]))
        else:
            e("s_waitcnt lgkmcnt(0)")
        if s == 11:
            ns = k.newlab("ns")
            e("s_cmp_lt_u32 s35, 6")
            e("s_cbranch_scc1 %s" % ns)
            e("s_lshl_b32 s34, s31, 13")
            e("s_add_u32 s34, s34, 0x%x" % (STATV[dict(params)[58]] - 6 * 4096))
            e("v_lshlrev_b32 v7, 6, v0")
            for i in range(4):
                e("buffer_load_dwordx4 %s, v7, s[16:19], s34 offen offset:%d%s" % (vr(STR + 4 * i, 4), 16 * i, SC))
            k.lab(ns)
        if s % 3 == 0 and s > 0:
            k.stamp(6 + s // 3)
        f = FR[s & 1]
        nfill = -(-len(fill) // 4)
        for ks in range(2):
            for a in range(2):
                acc = ACC + 16 * a
                e("v_mfma_f32_32x32x16_bf16 %s, %s, %s, %s" % (vr(acc, 16), vr(f + 16 + 4 * ks, 4), vr(f + 8 * a + 4 * ks, 4), vr(acc, 16)))
                for _ in range(nfill):
                    if fill:
                        emit_op(fill.pop(0))
    k.stamp(4)
    e("s_waitcnt vmcnt(0)")
    e("ds_write_b32 v107, v%d offset:0" % CSR if False else "v_add_u32 v7, %d, v107" % QCS_BASE)
    e("ds_write_b32 v7, v%d" % CSR)
    ns = k.newlab("ns")
    e("s_cmp_lt_u32 s35, 6")
    e("s_cbranch_scc1 %s" % ns)
    for i in range(1, 8):
        e("v_add_f32 v%d, v%d, v%d" % (STR, STR, STR + 2 * i))
        e("v_add_f32 v%d, v%d, v%d" % (STR + 1, STR + 1, STR + 2 * i + 1))
    e("v_mul_f32 v%d, 0x%x, v%d" % (STR, f2u(1.0 / 576), STR))
    e("v_mul_f32 v%d, 0x%x, v%d" % (STR + 1, f2u(1.0 / 576), STR + 1))
    e("v_fma_f32 v%d, -v%d, v%d, v%d" % (STR + 1, STR, STR, STR + 1))
    e("v_max_f32 v%d, 0, v%d" % (STR + 1, STR + 1))
    e("v_add_f32 v%d, 0x%x, v%d" % (STR + 1, f2u(1e-5), STR + 1))
    e("v_rsq_f32 v%d, v%d" % (STR + 1, STR + 1))
    e("s_nop 0")
    e("v_mul_f32 v%d, v%d, v%d" % (STR, STR, STR + 1))
    e("v_lshlrev_b32 v7, 2, v0")
    e("v_add_u32 v7, %d, v7" % (QST_BASE - 6 * 256))
    e("ds_write_b32 v7, v%d" % (STR + 1))
    e("ds_write_b32 v7, v%d offset:512" % STR)
    k.lab(ns)
    e("s_waitcnt lgkmcnt(0)")
    e("s_barrier")
    RS = 100
    e("s_lshl_b32 s34, s37, 8")
    e("s_add_u32 s34, s34, %d" % QST_BASE)
    e("v_lshl_add_u32 v7, v5, 2, s34")
    for a in range(2):
        e("ds_read_b32 v%d, v7 offset:%d" % (RS + 2 * a, a * 128))
        e("ds_read_b32 v%d, v7 offset:%d" % (RS + 4 + 2 * a, 512 + a * 128))
    e("s_lshl_b32 s34, s36, 7")
    e("s_add_u32 s34, s34, %d" % QCS_BASE)
    e("v_lshl_add_u32 v8, v6, 4, s34")
    for q in range(4):
        for p in range(3):
            e("ds_read_b128 %s, v8 offset:%d" % (vr(52 + 16 * p + 4 * q, 4), 512 * p + 32 * q))
    e("s_waitcnt lgkmcnt(0)")
    for i in range(4):
        e("v_mov_b32 v%d, v%d" % (RS + 2 * i + 1, RS + 2 * i))
    for r in range(0, 16, 2):
        e("v_pk_add_f32 %s, %s, %s" % (vr(52 + r, 2), vr(52 + r, 2), vr(68 + r, 2)))
        e("v_pk_add_f32 %s, %s, %s" % (vr(52 + r, 2), vr(52 + r, 2), vr(84 + r, 2)))
    for a in range(2):
        for r in range(0, 16, 2):
            acc = ACC + 16 * a + r
            e("v_pk_mul_f32 v[10:11], %s, %s" % (vr(RS + 4 + 2 * a, 2), vr(52 + r, 2)))
            e("v_pk_fma_f32 %s, %s, %s, v[10:11] neg_lo:[0,0,1] neg_hi:[0,0,1]" % (vr(acc, 2), vr(acc, 2), vr(RS + 2 * a, 2)))
    if kind == 'A':
        epi_A(k, ACC, EA)
    else:
        epi_B(k, ACC, EA)
    if chain is not None:
        emit_signal(k, chain, "s30", "s31")
        k.endlab = end
        return k
    k.stamp(5)
    if STAMPS:
        e("s_waitcnt vmcnt(0)")
    k.stamp(6)
    k.dump()
    k.lab(end)
    e("s_endpgm")
    return k


def sprinkle(k, n):
    for _ in range(n):
        if k.mem:
            for x in k.mem.pop(0):
                k.e(x)


def per_wave(k, fn, nw=8):
    e = k.e
    labs = [k.newlab("w") for _ in range(nw)]
    lj = k.newlab("wj")
    for w in range(1, nw):
        e("s_cmp_eq_u32 s35, %d" % w)
        e("s_cbranch_scc1 %s" % labs[w])
    for w in range(nw):
        k.lab(labs[w])
        fn(w)
        if w < nw - 1:
            e("s_branch %s" % lj)
    k.lab(lj)


def half_ops(k, lo, hi):
    for x in lo:
        k.e(x)
    k.e("s_mov_b32 exec_lo, 0")
    for x in hi:
        k.e(x)
    k.e("s_mov_b32 exec_lo, -1")


DUMMY = 98304


KV_ROW = 168


def epi_A_pre(k, EA):
    e = k.e
    e("v_mul_u32_u24 v12, %d, v5" % KV_ROW)
    e("v_lshlrev_b32 v13, 4, v5")
    e("v_lshlrev_b32 v14, 2, v5")

    def var(w):
        ct, rh = w & 3, w >> 2
        ops = [[], []]
        for q in range(4):
            for pr in range(2):
                i = 2 * q + pr
                for h in range(2):
                    vc = 32 * ct + 8 * q + 4 * h + 2 * pr
                    for a in range(2):
                        if vc < 72:
                            c = (64 * rh + 32 * a) * KV_ROW + (vc // 18) * 40 + (vc % 18) * 2
                            t = 12
                        elif vc < 108:
                            hl, d = (vc - 72) // 18, (vc - 72) % 18
                            sb = QPQ_BASE + (4 * hl + 2 * rh + a) * 2560
                            if d < 16:
                                c, t = sb + (d >> 3) * 512 + (d & 7) * 2, 13
                            else:
                                c, t = sb + 1024, 14
                        else:
                            c, t = DUMMY, 12
                        ops[h].append("v_add_u32 v%d, %d, v%d" % (EA + 2 * i + a, c, t))
                    isv = 36 <= vc < 72
                    ops[h].append("v_mov_b32 v%d, 0x%x" % (EA + 32 + i, 0 if isv else f2u(1.0)))
                    ops[h].append("v_mov_b32 v%d, 0x%x" % (EA + 44 + i, 0xff800000 if isv else 0))
        half_ops(k, ops[0], ops[1])
        if w < 2:
            e("v_lshrrev_b32 v7, 2, v3")
            e("v_and_b32 v7, 3, v7")
            e("v_lshl_add_u32 v7, v6, 3, v7")
            e("v_mul_u32_u24 v7, %d, v7" % KV_ROW)
            e("v_bfe_u32 v8, v3, 4, 1")
            e("v_lshl_add_u32 v7, v8, 5, v7")
            e("v_and_b32 v8, 3, v3")
            e("v_lshl_add_u32 v7, v8, 3, v7")
            e("v_add_u32 v%d, %d, v7" % (EA + 40, 40 * w))
            e("v_add_u32 v%d, %d, v7" % (EA + 41, 80 + 40 * w))
            e("v_cmp_gt_u32 vcc, 18, v5")
            e("v_lshlrev_b32 v10, 2, v5")
            e("v_lshl_add_u32 v10, v6, 9, v10")
            e("v_mov_b32 v9, 0x40000000")
            e("v_cndmask_b32 v%d, v9, v10, vcc" % (EA + 42))
            e("v_cmp_eq_u32 vcc, 0, v6")
            e("s_nop 1")
            e("v_cndmask_b32 v%d, v9, v%d, vcc" % (EA + 43, EA + 42))
        else:
            for i in range(4):
                e("v_mov_b32 v%d, 0x40000000" % (EA + 40 + i))

    per_wave(k, var)


def epi_A(k, ACC, EA):
    e = k.e
    e("v_mov_b32 v12, s40")
    e("v_mov_b32 v13, s40")
    e("v_mov_b32 v14, s41")
    e("v_mov_b32 v15, s41")
    for q in range(4):
        for pr in range(2):
            i = 2 * q + pr
            for a in range(2):
                acc = ACC + 16 * a + 4 * q + 2 * pr
                e("v_pk_mul_f32 v[10:11], %s, v[12:13]" % vr(acc, 2))
                e("v_min_f32 v10, 0, v10")
                e("v_min_f32 v11, 0, v11")
                e("v_exp_f32 v10, v10")
                e("v_exp_f32 v11, v11")
                e("v_max_f32 v%d, v%d, v%d" % (acc, acc, EA + 44 + i))
                e("v_max_f32 v%d, v%d, v%d" % (acc + 1, acc + 1, EA + 44 + i))
                e("v_pk_add_f32 v[10:11], v[10:11], v[14:15]")
                e("v_fmac_f32 v%d, v10, v%d" % (acc, EA + 32 + i))
                e("v_fmac_f32 v%d, v11, v%d" % (acc + 1, EA + 32 + i))
                e("v_cvt_pk_bf16_f32 v%d, v%d, v%d" % (acc, acc, acc + 1))
                e("ds_write_b32 v%d, v%d" % (EA + 2 * i + a, acc))
    e("v_lshrrev_b32 v10, 2, v0")
    e("v_mul_u32_u24 v10, %d, v10" % KV_ROW)
    e("v_and_b32 v11, 3, v0")
    e("v_mul_u32_u24 v11, 40, v11")
    e("v_add_u32 v10, v10, v11")
    e("v_mov_b32 v11, 0x3f80")
    e("ds_write_b32 v10, v11 offset:36")
    e("s_waitcnt lgkmcnt(0)")
    e("s_barrier")
    e("s_lshl_b32 s39, s31, 2")
    e("s_add_u32 s39, s39, s36")
    e("s_lshl_b32 s39, s39, 5")
    e("s_lshl_b32 s43, s30, 1")
    e("s_add_u32 s39, s39, s43")
    e("s_add_u32 s39, s39, s37")
    e("s_mul_i32 s39, s39, 1152")
    e("s_add_u32 s39, s39, 0x%x" % PQF)
    e("s_mul_i32 s38, s35, 2560")
    e("s_add_u32 s38, s38, %d" % QPQ_BASE)
    e("v_lshlrev_b32 v8, 4, v3")
    e("v_add_u32 v9, s38, v8")
    e("ds_read_b128 v[100:103], v9")
    e("ds_read_b128 v[104:107], v9 offset:1024")
    e("v_mov_b32 v10, 0x40000000")
    e("v_cmp_gt_u32 vcc, 8, v3")
    e("s_nop 1")
    e("v_cndmask_b32 v11, v10, v8, vcc")
    e("s_waitcnt lgkmcnt(0)")
    e("buffer_store_dwordx4 v[100:103], v8, s[16:19], s39 offen%s" % k.pqsc)
    e("buffer_store_dwordx4 v[104:107], v11, s[16:19], s39 offen offset:1024%s" % k.pqsc)
    lj = k.newlab("ej")
    e("s_cmp_ge_u32 s35, 2")
    e("s_cbranch_scc1 %s" % lj)
    for st in range(8):
        for hf in range(2):
            o = (16 * st + 4 * hf) * KV_ROW
            e("ds_read_b64_tr_b16 %s, v%d offset:%d" % (vr(16 + 8 * st + 2 * hf, 2), EA + 40, o))
            e("ds_read_b64_tr_b16 %s, v%d offset:%d" % (vr(20 + 8 * st + 2 * hf, 2), EA + 41, o))
    e("s_lshl_b32 s39, s30, 1")
    e("s_add_u32 s39, s39, s35")
    e("s_mul_i32 s39, s39, 2432")
    e("s_add_u32 s39, s39, s59")
    e("s_waitcnt lgkmcnt(0)")
    for st in range(8):
        c = "0" if st == 0 else vr(80, 16)
        e("v_mfma_f32_32x32x16_bf16 %s, %s, %s, %s" % (vr(80, 16), vr(20 + 8 * st, 4), vr(16 + 8 * st, 4), c))
    e("s_nop 7")
    e("s_nop 7")
    for r in range(11):
        ee = (r & 3) + 8 * (r >> 2)
        e("buffer_atomic_add_f32 v%d, v%d, s[16:19], s39 offen offset:%d" % (80 + r, EA + 42 if r < 8 else EA + 43, 128 * ee))
    k.lab(lj)


IMG_S = 2560
IMG_K = 8 * IMG_S
IMG_V = 16 * IMG_S
V_ROW = 72


def epi_B_pre(k, EA):
    e = k.e
    e("v_lshlrev_b32 v12, 4, v5")
    e("v_lshlrev_b32 v13, 2, v5")
    e("v_mul_u32_u24 v14, %d, v5" % V_ROW)

    def var(w):
        ct, rh = w & 3, w >> 2
        ops = [[], []]
        for q in range(4):
            for pr in range(2):
                i = 2 * q + pr
                for h in range(2):
                    vc = 32 * ct + 8 * q + 4 * h + 2 * pr
                    sc = 1.0
                    if vc >= 108:
                        c, t = DUMMY, 13
                    else:
                        seg, cc = vc // 36, vc % 36
                        hl, d = cc // 18, cc % 18
                        sb = (4 * hl + 2 * rh) * IMG_S
                        if seg == 2:
                            c, t = IMG_V + sb + d * 2, 14
                        else:
                            base = sb + (IMG_K if seg == 1 else 0)
                            if d < 16:
                                c, t = base + (d >> 3) * 512 + (d & 7) * 2, 12
                            else:
                                c, t = base + 1024, 13
                            if seg == 0:
                                sc = QSCALE
                    ops[h].append("v_add_u32 v%d, %d, v%d" % (EA + i, c, t))
                    ops[h].append("v_mov_b32 v%d, 0x%x" % (EA + 16 + 2 * i, f2u(sc)))
                    ops[h].append("v_mov_b32 v%d, 0x%x" % (EA + 17 + 2 * i, f2u(sc)))
        half_ops(k, ops[0], ops[1])

    per_wave(k, var)
    e("v_lshrrev_b32 v7, 2, v3")
    e("v_and_b32 v7, 3, v7")
    e("v_lshl_add_u32 v7, v6, 2, v7")
    e("v_mul_u32_u24 v7, %d, v7" % V_ROW)
    e("v_bfe_u32 v8, v3, 4, 1")
    e("v_lshl_add_u32 v7, v8, 5, v7")
    e("v_and_b32 v9, 3, v3")
    e("v_lshl_add_u32 v7, v9, 3, v7")
    e("s_mul_i32 s38, s35, %d" % IMG_S)
    e("s_add_u32 s38, s38, %d" % IMG_V)
    e("v_add_u32 v%d, s38, v7" % (EA + 8))
    e("v_mul_u32_u24 v7, 320, v6")
    e("v_lshl_add_u32 v7, v5, 4, v7")
    e("v_add_u32 v7, 1152, v7")
    e("v_cmp_gt_u32 vcc, 19, v5")
    e("v_mov_b32 v10, 0x40000000")
    e("s_nop 0")
    e("v_cndmask_b32 v%d, v10, v7, vcc" % (EA + 9))
    e("v_lshlrev_b32 v8, 4, v3")
    e("v_cmp_gt_u32 vcc, 8, v3")
    e("s_nop 1")
    e("v_cndmask_b32 v%d, v10, v8, vcc" % (EA + 10))


def epi_B(k, ACC, EA):
    e = k.e
    for q in range(4):
        for pr in range(2):
            i = 2 * q + pr
            for a in range(2):
                acc = ACC + 16 * a + 4 * q + 2 * pr
                e("v_pk_mul_f32 %s, %s, %s" % (vr(acc, 2), vr(acc, 2), vr(EA + 16 + 2 * i, 2)))
                e("v_cvt_pk_bf16_f32 v%d, v%d, v%d" % (acc, acc, acc + 1))
                e("ds_write_b32 v%d, v%d offset:%d" % (EA + i, acc, IMG_S * a))
    e("s_mul_i32 s38, s35, %d" % IMG_S)
    e("v_mul_u32_u24 v7, %d, v5" % V_ROW)
    e("v_add_u32 v7, s38, v7")
    e("v_mov_b32 v8, 0x3f80")
    e("ds_write_b32 v7, v8 offset:%d" % (IMG_V + 36))
    e("s_waitcnt lgkmcnt(0)")
    e("s_barrier")
    e("v_lshlrev_b32 v8, 4, v3")
    e("v_add_u32 v9, s38, v8")
    e("ds_read_b128 v[48:51], v9")
    e("ds_read_b128 v[52:55], v9 offset:1024")
    e("ds_read_b128 v[56:59], v9 offset:%d" % IMG_K)
    e("ds_read_b128 v[60:63], v9 offset:%d" % (IMG_K + 1024))
    for ab in range(2):
        for hf in range(2):
            e("ds_read_b64_tr_b16 %s, v%d offset:%d" % (vr(64 + 4 * ab + 2 * hf, 2), EA + 8, (16 * ab + 8 * hf) * V_ROW))
    e("s_lshl_b32 s43, s30, 1")
    e("s_add_u32 s43, s43, s37")
    e("s_lshl_b32 s38, s31, 2")
    e("s_add_u32 s38, s38, s36")
    e("s_mul_i32 s44, s43, %d" % QHEAD)
    e("s_mul_i32 s39, s38, 1152")
    e("s_add_u32 s44, s44, s39")
    e("s_add_u32 s44, s44, 0x%x" % QPI)
    e("s_mul_i32 s46, s43, %d" % KVHEAD)
    e("s_mul_i32 s39, s38, 2432")
    e("s_add_u32 s46, s46, s39")
    e("s_add_u32 s46, s46, 0x%x" % KVI)
    e("s_waitcnt lgkmcnt(0)")
    sc = k.pqsc
    e("buffer_store_dwordx4 v[48:51], v8, s[16:19], s44 offen" + sc)
    e("buffer_store_dwordx4 v[52:55], v%d, s[16:19], s44 offen offset:1024" % (EA + 10) + sc)
    e("buffer_store_dwordx4 v[56:59], v8, s[16:19], s46 offen" + sc)
    e("buffer_store_dwordx4 v[60:63], v%d, s[16:19], s46 offen offset:1024" % (EA + 10) + sc)
    e("buffer_store_dwordx4 v[64:67], v%d, s[16:19], s46 offen" % (EA + 9) + sc)
    e("buffer_store_dwordx4 v[68:71], v%d, s[16:19], s46 offen offset:640" % (EA + 9) + sc)


def gen_attn(name):
    k = Kern(name, 120, KVHEAD, (256, 1, 1), (1024, 1, 1))
    e = k.e
    SA, SB = 16, 32
    P = 48
    O = 56
    CM = 72
    Q1, Q2 = 88, 92
    K1, K2 = 96, 100
    VVa, VVb = 104, 108
    vK1, vK2, vV = 112, 113, 114
    vK1b, vK2b, vVb = 115, 116, 117
    SEGS = [2, 6, 24]
    HALF = 32 * 2432
    end = "L_%s_end" % name
    e("s_cmp_ge_u32 s2, 256")
    e("s_cbranch_scc1 %s" % end)
    e("s_load_dwordx2 s[4:5], s[0:1], %d" % KA_WS)
    k.stamp(0)
    k.rstamp(4)
    e("s_and_b32 s30, s2, 7")
    e("s_lshr_b32 s31, s2, 3")
    e("s_and_b32 s32, s31, 3")
    e("s_lshl_b32 s30, s30, 2")
    e("s_add_u32 s30, s30, s32")
    e("s_lshr_b32 s31, s31, 2")
    e("v_lshrrev_b32 v4, 6, v0")
    e("v_and_b32 v3, 63, v0")
    e("v_readfirstlane_b32 s35, v4")
    e("s_mul_i32 s33, s30, %d" % KVHEAD)
    e("s_lshr_b32 s40, s35, 3")
    e("s_and_b32 s41, s35, 7")
    e("s_mul_i32 s42, s40, %d" % HALF)
    e("v_lshlrev_b32 v1, 4, v3")
    e("s_lshl_b32 s36, s31, 3")
    e("s_add_u32 s36, s36, s41")
    e("s_mul_i32 s37, s36, 1152")
    e("s_mul_i32 s38, s30, %d" % QHEAD)
    e("s_add_u32 s37, s37, s38")
    e("s_add_u32 s37, s37, 0x%x" % QPI)
    e("v_and_b32 v5, 31, v3")
    e("v_lshrrev_b32 v6, 5, v3")
    e("v_lshlrev_b32 v7, 2, v5")
    e("s_lshl_b32 s39, s41, 10")
    e("s_add_u32 s39, s39, s42")
    e("s_add_u32 s43, s42, %d" % (75 * 1024))
    e("s_waitcnt lgkmcnt(0)")
    e("s_add_u32 s8, s4, s33")
    e("s_addc_u32 s9, s5, 0")
    e("s_add_u32 s8, s8, 0x%x" % KVI)
    e("s_addc_u32 s9, s9, 0")
    e("s_mov_b32 s10, %d" % KVHEAD)
    e("s_mov_b32 s11, 0x00020000")
    k.srd(16, 4, 0, WS_SIZE)
    e("buffer_load_dwordx4 %s, v1, s[16:19], s37 offen" % vr(Q1, 4))
    e("buffer_load_dword v%d, v7, s[16:19], s37 offen offset:1024" % Q2)
    def dma(i):
        if i == 9:
            e("s_min_u32 s39, s39, s43")
        e("s_mov_b32 m0, s39")
        e("s_nop 0")
        e("buffer_load_dwordx4 v1, s[8:11], s39 offen lds")
        e("s_add_u32 s39, s39, 8192")

    dma(0)
    dma(1)
    e("v_add_u32 v%d, s42, v1" % vK1b)
    e("v_add_u32 v8, 1024, v7")
    e("v_add_u32 v%d, s42, v8" % vK2b)
    e("v_min_u32 v8, 18, v5")
    e("v_lshlrev_b32 v8, 4, v8")
    e("v_mul_u32_u24 v9, 320, v6")
    e("v_add3_u32 v8, v8, v9, s42")
    e("v_add_u32 v%d, 1152, v8" % vVb)
    for i in range(1, 4):
        e("v_mov_b32 v%d, 0" % (Q2 + i))
        e("v_mov_b32 v%d, 0" % (K2 + i))
    e("v_cmp_eq_u32 vcc, 0, v6")
    e("s_waitcnt vmcnt(2)")
    e("v_cndmask_b32 v%d, 0, v%d, vcc" % (Q2, Q2))
    e("s_mov_b32 s50, 0")

    def seg_wait(c):
        ntiles = sum(SEGS[:c + 1]) + 2
        need = min(-(-(ntiles * 2432) // 1024), 76)
        n = min((need - 1) // 8 + 1, 10)
        issued = 2 + min(sum(SEGS[:c]), 8)
        assert issued >= n
        return issued - n

    e("s_waitcnt vmcnt(%d)" % seg_wait(0))
    e("s_barrier")
    k.stamp(1)
    e("ds_read_b128 %s, v%d" % (vr(K1, 4), vK1b))
    e("ds_read_b32 v%d, v%d" % (K2, vK2b))
    e("s_waitcnt lgkmcnt(0)")
    e("v_mfma_f32_32x32x16_bf16 %s, %s, %s, 0" % (vr(SA, 16), vr(K1, 4), vr(Q1, 4)))
    e("v_mfma_f32_32x32x16_bf16 %s, %s, %s, %s" % (vr(SA, 16), vr(K2, 4), vr(Q2, 4), vr(SA, 16)))
    e("s_nop 7")
    e("s_nop 7")
    e("v_max3_f32 v10, v%d, v%d, v%d" % (SA, SA + 1, SA + 2))
    for i in range(3, 15, 2):
        e("v_max3_f32 v10, v10, v%d, v%d" % (SA + i, SA + i + 1))
    e("v_max_f32 v10, v10, v%d" % (SA + 15))
    run = "L_%s_run" % name
    k.lab(run)
    e("v_mov_b32 v11, v10")
    e("s_nop 1")
    e("v_permlane32_swap_b32 v11, v10")
    e("s_nop 1")
    e("v_max_f32 v10, v10, v11")
    e("v_sub_f32 v10, 0, v10")
    for i in range(16):
        e("v_mov_b32 v%d, v10" % (CM + i))
        e("v_mov_b32 v%d, 0" % (O + i))
    e("v_mov_b32 v%d, v%d" % (vK1, vK1b))
    e("v_mov_b32 v%d, v%d" % (vK2, vK2b))
    e("v_mov_b32 v%d, v%d" % (vV, vVb))
    e("ds_read_b128 %s, v%d" % (vr(K1, 4), vK1))
    e("ds_read_b32 v%d, v%d" % (K2, vK2))
    e("s_waitcnt lgkmcnt(0)")
    e("v_mfma_f32_32x32x16_bf16 %s, %s, %s, %s" % (vr(SA, 16), vr(K1, 4), vr(Q1, 4), vr(CM, 16)))
    e("v_mfma_f32_32x32x16_bf16 %s, %s, %s, %s" % (vr(SA, 16), vr(K2, 4), vr(Q2, 4), vr(SA, 16)))
    e("ds_read_b128 %s, v%d offset:2432" % (vr(K1, 4), vK1))
    e("ds_read_b32 v%d, v%d offset:2432" % (K2, vK2))
    e("ds_read_b128 %s, v%d" % (vr(VVa, 4), vV))
    e("ds_read_b128 %s, v%d offset:640" % (vr(VVb, 4), vV))
    e("s_nop 7")

    def body(t, Sc, Sn):
        o = 2432 * (t % 16)
        e("s_waitcnt lgkmcnt(2)")
        e("v_mfma_f32_32x32x16_bf16 %s, %s, %s, %s" % (vr(Sn, 16), vr(K1, 4), vr(Q1, 4), vr(CM, 16)))
        e("v_mfma_f32_32x32x16_bf16 %s, %s, %s, %s" % (vr(Sn, 16), vr(K2, 4), vr(Q2, 4), vr(Sn, 16)))
        e("ds_read_b128 %s, v%d offset:%d" % (vr(K1, 4), vK1, o + 2 * 2432))
        e("ds_read_b32 v%d, v%d offset:%d" % (K2, vK2, o + 2 * 2432))
        for i in range(16):
            e("v_exp_f32 v%d, v%d" % (Sc + i, Sc + i))
            if i & 1 and i >= 3:
                e("v_cvt_pk_bf16_f32 v%d, v%d, v%d" % (P + (i - 3) // 2, Sc + i - 3, Sc + i - 2))
        e("v_cvt_pk_bf16_f32 v%d, v%d, v%d" % (P + 7, Sc + 14, Sc + 15))
        e("s_waitcnt lgkmcnt(2)")
        e("v_mfma_f32_32x32x16_bf16 %s, %s, %s, %s" % (vr(O, 16), vr(VVa, 4), vr(P, 4), vr(O, 16)))
        e("v_mfma_f32_32x32x16_bf16 %s, %s, %s, %s" % (vr(O, 16), vr(VVb, 4), vr(P + 4, 4), vr(O, 16)))
        e("ds_read_b128 %s, v%d offset:%d" % (vr(VVa, 4), vV, o + 2432))
        e("ds_read_b128 %s, v%d offset:%d" % (vr(VVb, 4), vV, o + 2432 + 640))

    t = 0
    for c, nts in enumerate(SEGS):
        if c > 0:
            sk = k.newlab("sk")
            e("s_cmp_lg_u32 s50, 0")
            e("s_cbranch_scc1 %s" % sk)
            e("s_waitcnt vmcnt(%d)" % seg_wait(c))
            e("s_barrier")
            k.lab(sk)
        if c == 2:
            for _ in range(int(EXP.get("pad", 0))):
                e("s_nop 0")
        for i in range(nts):
            if t == 16:
                e("v_add_u32 v%d, %d, v%d" % (vK1, 16 * 2432, vK1))
                e("v_add_u32 v%d, %d, v%d" % (vK2, 16 * 2432, vK2))
                e("v_add_u32 v%d, %d, v%d" % (vV, 16 * 2432, vV))
            if t < 8:
                sk = k.newlab("sd")
                e("s_cmp_lg_u32 s50, 0")
                e("s_cbranch_scc1 %s" % sk)
                dma(t + 2)
                k.lab(sk)
            if t & 1:
                body(t, SB, SA)
            else:
                body(t, SA, SB)
            t += 1
    e("s_waitcnt lgkmcnt(0)")
    k.stamp(2)
    e("s_nop 7")
    e("s_nop 7")
    e("v_max3_f32 v10, |v%d|, |v%d|, |v%d|" % (O, O + 1, O + 2))
    for i in range(3, 11, 2):
        e("v_max3_f32 v10, v10, |v%d|, |v%d|" % (O + i, O + i + 1))
    e("v_max_f32 v10, v10, |v%d|" % (O + 11))
    e("v_add_f32 v11, v%d, v%d" % (O, O + 1))
    for i in range(2, 12):
        e("v_add_f32 v11, v11, v%d" % (O + i))
    e("v_mov_b32 v12, 0x%x" % f2u(2.0 ** (-100 if EXP.get("forcefb") else 100)))
    e("v_cmp_nlt_f32 vcc, v10, v12")
    e("v_cmp_u_f32 s[52:53], v11, v11")
    e("s_nop 3")
    e("s_or_b64 vcc, vcc, s[52:53]")
    e("s_cmp_lg_u32 s50, 0")
    fin = "L_%s_fin" % name
    e("s_cbranch_scc1 %s" % fin)
    e("s_cbranch_vccz %s" % fin)
    e("s_mov_b32 s50, 1")
    e("v_mov_b32 v%d, v%d" % (vK1, vK1b))
    e("v_mov_b32 v%d, v%d" % (vK2, vK2b))
    e("v_mov_b32 v10, 0xff800000")
    e("s_mov_b32 s51, 0")
    fl = "L_%s_fl" % name
    k.lab(fl)
    e("ds_read_b128 %s, v%d" % (vr(K1, 4), vK1))
    e("ds_read_b32 v%d, v%d" % (K2, vK2))
    e("s_waitcnt lgkmcnt(0)")
    e("v_mfma_f32_32x32x16_bf16 %s, %s, %s, 0" % (vr(SA, 16), vr(K1, 4), vr(Q1, 4)))
    e("v_mfma_f32_32x32x16_bf16 %s, %s, %s, %s" % (vr(SA, 16), vr(K2, 4), vr(Q2, 4), vr(SA, 16)))
    e("s_nop 7")
    e("s_nop 7")
    for i in range(0, 16, 2):
        e("v_max3_f32 v10, v10, v%d, v%d" % (SA + i, SA + i + 1))
    e("v_add_u32 v%d, 2432, v%d" % (vK1, vK1))
    e("v_add_u32 v%d, 2432, v%d" % (vK2, vK2))
    e("s_add_u32 s51, s51, 1")
    e("s_cmp_lt_u32 s51, 32")
    e("s_cbranch_scc1 %s" % fl)
    e("s_branch %s" % run)
    k.lab(fin)
    e("s_barrier")
    e("s_mul_i32 s37, s41, 4096")
    e("v_add_u32 v1, s37, v1")
    e("s_cmp_eq_u32 s40, 0")
    lo = "L_%s_lo" % name
    e("s_cbranch_scc1 %s" % lo)
    e("v_mov_b32 v%d, v%d" % (O + 10, CM))
    for i in range(3):
        e("ds_write_b128 v1, %s offset:%d" % (vr(O + 4 * i, 4), 1024 * i))
    e("s_waitcnt lgkmcnt(0)")
    e("s_barrier")
    e("s_endpgm")
    k.lab(lo)
    e("s_barrier")
    for i in range(3):
        e("ds_read_b128 %s, v1 offset:%d" % (vr(SA + 4 * i, 4), 1024 * i))
    e("s_waitcnt lgkmcnt(0)")
    e("v_min_f32 v10, v%d, v%d" % (CM, SA + 10))
    e("v_sub_f32 v11, v10, v%d" % CM)
    e("v_sub_f32 v12, v10, v%d" % (SA + 10))
    e("v_exp_f32 v11, v11")
    e("v_exp_f32 v12, v12")
    e("s_nop 0")
    for i in list(range(10)) + [11]:
        e("v_mul_f32 v%d, v11, v%d" % (O + i, O + i))
        e("v_fmac_f32 v%d, v12, v%d" % (O + i, SA + i))
    e("v_rcp_f32 v10, v%d" % (O + 11))
    e("s_nop 0")
    for i in range(10):
        e("v_mul_f32 v%d, v10, v%d" % (O + i, O + i))
    for i in range(5):
        e("v_cvt_pk_bf16_f32 v%d, v%d, v%d" % (O + i, O + 2 * i, O + 2 * i + 1))
    e("s_lshl_b32 s37, s36, 1")
    e("v_lshrrev_b32 v12, 4, v5")
    e("v_add_u32 v12, s37, v12")
    e("v_mul_u32_u24 v12, 18432, v12")
    e("v_and_b32 v13, 15, v5")
    e("v_lshl_add_u32 v12, v13, 4, v12")
    e("v_add_u32 v12, 0x%x, v12" % OB)
    e("s_mul_i32 s37, s30, 18")
    e("v_lshlrev_b32 v13, 2, v6")
    e("v_add_u32 v13, s37, v13")
    e("v_cmp_eq_u32 vcc, 0, v6")
    for i, dd in enumerate([0, 2, 8, 10, 16]):
        e("v_add_u32 v14, %d, v13" % dd)
        e("v_lshrrev_b32 v15, 3, v14")
        e("v_and_b32 v14, 7, v14")
        e("v_lshl_add_u32 v15, v15, 8, v12")
        e("v_lshl_add_u32 v15, v14, 1, v15")
        if dd == 16:
            e("v_mov_b32 v14, 0x40000000")
            e("v_cndmask_b32 v15, v14, v15, vcc")
        e("buffer_store_dword v%d, v15, s[16:19], 0 offen" % (O + i))
    k.stamp(3)
    k.rstamp(5)
    k.dump()
    k.lab(end)
    e("s_endpgm")
    return k


def gen_attn8(name, k=None, out_fid=None):
    chained = k is not None
    if chained:
        k.vgpr = max(k.vgpr, 200)
        k.lds = max(k.lds, KVHEAD)
        name = k.newlab("a")[2:]
    else:
        k = Kern(name, 200, KVHEAD, (256, 1, 1), (512, 1, 1))
    e = k.e
    S = [[16, 32], [48, 64]]
    P = [80, 88]
    O = [96, 112]
    CM = [128, 144]
    Q1 = [160, 168]
    Q2 = [164, 172]
    K1, K2 = 176, 180
    VVa, VVb = 184, 188
    vK1, vK2, vV = 192, 193, 194
    vK1b, vK2b, vVb = 195, 196, 197
    SEGS = [2, 6, 24]
    HALF = 32 * 2432
    NP = 19
    if chained:
        end = k.endlab
    else:
        end = "L_%s_end" % name
        e("s_cmp_ge_u32 s2, 256")
        e("s_cbranch_scc1 %s" % end)
        e("s_load_dwordx2 s[4:5], s[0:1], %d" % KA_WS)
        k.stamp(0)
        k.rstamp(4)
    e("s_and_b32 s30, s2, 7")
    e("s_lshr_b32 s31, s2, 3")
    e("s_and_b32 s32, s31, 3")
    e("s_lshl_b32 s30, s30, 2")
    e("s_add_u32 s30, s30, s32")
    e("s_lshr_b32 s31, s31, 2")
    e("v_lshrrev_b32 v4, 6, v0")
    e("v_and_b32 v3, 63, v0")
    e("v_readfirstlane_b32 s35, v4")
    e("s_mul_i32 s33, s30, %d" % KVHEAD)
    e("s_lshr_b32 s40, s35, 2")
    e("s_and_b32 s41, s35, 3")
    e("s_mul_i32 s42, s40, %d" % HALF)
    e("v_lshlrev_b32 v1, 4, v3")
    e("s_lshl_b32 s36, s31, 3")
    e("s_lshl_b32 s37, s41, 1")
    e("s_add_u32 s36, s36, s37")
    e("s_mul_i32 s37, s36, 1152")
    e("s_mul_i32 s38, s30, %d" % QHEAD)
    e("s_add_u32 s37, s37, s38")
    e("s_add_u32 s37, s37, 0x%x" % QPI)
    e("v_and_b32 v5, 31, v3")
    e("v_lshrrev_b32 v6, 5, v3")
    e("v_lshlrev_b32 v7, 2, v5")
    e("s_lshl_b32 s39, s41, 10")
    e("s_add_u32 s39, s39, s42")
    e("s_waitcnt lgkmcnt(0)")
    e("s_add_u32 s8, s4, s33")
    e("s_addc_u32 s9, s5, 0")
    e("s_add_u32 s8, s8, 0x%x" % KVI)
    e("s_addc_u32 s9, s9, 0")
    e("s_mov_b32 s10, %d" % KVHEAD)
    e("s_mov_b32 s11, 0x00020000")
    k.srd(16, 4, 0, WS_SIZE)
    if chained:
        sk = k.newlab("nw")
        e("s_cmp_lg_u32 s35, 0")
        e("s_cbranch_scc1 %s" % sk)
        e("s_lshr_b32 s43, s30, 1")
        emit_poll(k, "s43", 16, sk)
        k.lab(sk)
        e("s_barrier")
    for t in range(2):
        e("buffer_load_dwordx4 %s, v1, s[16:19], s37 offen offset:%d%s" % (vr(Q1[t], 4), 1152 * t, " sc1" if chained else ""))
        e("buffer_load_dword v%d, v7, s[16:19], s37 offen offset:%d%s" % (Q2[t], 1024 + 1152 * t, " sc1" if chained else ""))

    def dma():
        e("s_mov_b32 m0, s39")
        e("s_nop 0")
        e("buffer_load_dwordx4 v1, s[8:11], s39 offen%s lds" % (" sc1" if chained else ""))
        e("s_add_u32 s39, s39, 4096")

    for i in range(3):
        dma()
    e("v_add_u32 v%d, s42, v1" % vK1b)
    e("v_add_u32 v8, 1024, v7")
    e("v_add_u32 v%d, s42, v8" % vK2b)
    e("v_min_u32 v8, 18, v5")
    e("v_lshlrev_b32 v8, 4, v8")
    e("v_mul_u32_u24 v9, 320, v6")
    e("v_add3_u32 v8, v8, v9, s42")
    e("v_add_u32 v%d, 1152, v8" % vVb)
    for i in range(1, 4):
        e("v_mov_b32 v%d, 0" % (Q2[0] + i))
        e("v_mov_b32 v%d, 0" % (Q2[1] + i))
        e("v_mov_b32 v%d, 0" % (K2 + i))
    e("v_cmp_eq_u32 vcc, 0, v6")
    e("s_waitcnt vmcnt(3)")
    for t in range(2):
        e("v_cndmask_b32 v%d, 0, v%d, vcc" % (Q2[t], Q2[t]))
    e("s_mov_b32 s50, 0")

    def issued_before(tile):
        return min(3 + 2 * tile, NP)

    def seg_wait(c):
        ntiles = sum(SEGS[:c + 1]) + 2
        need = min(-(-(ntiles * 2432) // 1024), 76)
        n = min((need - 1) // 4 + 1, NP)
        issued = issued_before(sum(SEGS[:c]))
        assert issued >= n, (c, issued, n)
        return issued - n

    e("s_waitcnt vmcnt(%d)" % seg_wait(0))
    e("s_barrier")
    k.stamp(1)
    e("ds_read_b128 %s, v%d" % (vr(K1, 4), vK1b))
    e("ds_read_b32 v%d, v%d" % (K2, vK2b))
    e("s_waitcnt lgkmcnt(0)")
    for t in range(2):
        e("v_mfma_f32_32x32x16_bf16 %s, %s, %s, 0" % (vr(S[t][0], 16), vr(K1, 4), vr(Q1[t], 4)))
        e("v_mfma_f32_32x32x16_bf16 %s, %s, %s, %s" % (vr(S[t][0], 16), vr(K2, 4), vr(Q2[t], 4), vr(S[t][0], 16)))
    e("s_nop 7")
    e("s_nop 7")
    for t in range(2):
        sa = S[t][0]
        e("v_max3_f32 v%d, v%d, v%d, v%d" % (10 + t, sa, sa + 1, sa + 2))
        for i in range(3, 15, 2):
            e("v_max3_f32 v%d, v%d, v%d, v%d" % (10 + t, 10 + t, sa + i, sa + i + 1))
        e("v_max_f32 v%d, v%d, v%d" % (10 + t, 10 + t, sa + 15))
    run = "L_%s_run" % name
    k.lab(run)
    for t in range(2):
        e("v_mov_b32 v%d, v%d" % (12 + t, 10 + t))
    e("s_nop 1")
    for t in range(2):
        e("v_permlane32_swap_b32 v%d, v%d" % (12 + t, 10 + t))
    e("s_nop 1")
    for t in range(2):
        e("v_max_f32 v%d, v%d, v%d" % (10 + t, 10 + t, 12 + t))
        e("v_sub_f32 v%d, 0, v%d" % (10 + t, 10 + t))
        for i in range(16):
            e("v_mov_b32 v%d, v%d" % (CM[t] + i, 10 + t))
            e("v_mov_b32 v%d, 0" % (O[t] + i))
    e("v_mov_b32 v%d, v%d" % (vK1, vK1b))
    e("v_mov_b32 v%d, v%d" % (vK2, vK2b))
    e("v_mov_b32 v%d, v%d" % (vV, vVb))
    e("ds_read_b128 %s, v%d" % (vr(K1, 4), vK1))
    e("ds_read_b32 v%d, v%d" % (K2, vK2))
    e("s_waitcnt lgkmcnt(0)")
    for t in range(2):
        e("v_mfma_f32_32x32x16_bf16 %s, %s, %s, %s" % (vr(S[t][0], 16), vr(K1, 4), vr(Q1[t], 4), vr(CM[t], 16)))
        e("v_mfma_f32_32x32x16_bf16 %s, %s, %s, %s" % (vr(S[t][0], 16), vr(K2, 4), vr(Q2[t], 4), vr(S[t][0], 16)))
    e("ds_read_b128 %s, v%d offset:2432" % (vr(K1, 4), vK1))
    e("ds_read_b32 v%d, v%d offset:2432" % (K2, vK2))
    e("ds_read_b128 %s, v%d" % (vr(VVa, 4), vV))
    e("ds_read_b128 %s, v%d offset:640" % (vr(VVb, 4), vV))
    e("s_nop 7")

    def expcvt(Sc, Pt):
        for i in range(16):
            e("v_exp_f32 v%d, v%d" % (Sc + i, Sc + i))
            if i & 1 and i >= 3:
                e("v_cvt_pk_bf16_f32 v%d, v%d, v%d" % (Pt + (i - 3) // 2, Sc + i - 3, Sc + i - 2))
        e("v_cvt_pk_bf16_f32 v%d, v%d, v%d" % (Pt + 7, Sc + 14, Sc + 15))

    def body(tl):
        c, n = tl & 1, 1 - (tl & 1)
        o = 2432 * (tl % 16)
        e("s_waitcnt lgkmcnt(2)")
        for t in range(2):
            e("v_mfma_f32_32x32x16_bf16 %s, %s, %s, %s" % (vr(S[t][n], 16), vr(K1, 4), vr(Q1[t], 4), vr(CM[t], 16)))
            e("v_mfma_f32_32x32x16_bf16 %s, %s, %s, %s" % (vr(S[t][n], 16), vr(K2, 4), vr(Q2[t], 4), vr(S[t][n], 16)))
        e("ds_read_b128 %s, v%d offset:%d" % (vr(K1, 4), vK1, o + 2 * 2432))
        e("ds_read_b32 v%d, v%d offset:%d" % (K2, vK2, o + 2 * 2432))
        expcvt(S[0][c], P[0])
        e("s_waitcnt lgkmcnt(2)")
        e("v_mfma_f32_32x32x16_bf16 %s, %s, %s, %s" % (vr(O[0], 16), vr(VVa, 4), vr(P[0], 4), vr(O[0], 16)))
        e("v_mfma_f32_32x32x16_bf16 %s, %s, %s, %s" % (vr(O[0], 16), vr(VVb, 4), vr(P[0] + 4, 4), vr(O[0], 16)))
        expcvt(S[1][c], P[1])
        e("s_nop 0")
        e("v_mfma_f32_32x32x16_bf16 %s, %s, %s, %s" % (vr(O[1], 16), vr(VVa, 4), vr(P[1], 4), vr(O[1], 16)))
        e("v_mfma_f32_32x32x16_bf16 %s, %s, %s, %s" % (vr(O[1], 16), vr(VVb, 4), vr(P[1] + 4, 4), vr(O[1], 16)))
        e("ds_read_b128 %s, v%d offset:%d" % (vr(VVa, 4), vV, o + 2432))
        e("ds_read_b128 %s, v%d offset:%d" % (vr(VVb, 4), vV, o + 2432 + 640))

    tl = 0
    for c, nts in enumerate(SEGS):
        if c > 0:
            sk = k.newlab("sk")
            e("s_cmp_lg_u32 s50, 0")
            e("s_cbranch_scc1 %s" % sk)
            e("s_waitcnt vmcnt(%d)" % seg_wait(c))
            e("s_barrier")
            k.lab(sk)
        for i in range(nts):
            if tl == 16:
                e("v_add_u32 v%d, %d, v%d" % (vK1, 16 * 2432, vK1))
                e("v_add_u32 v%d, %d, v%d" % (vK2, 16 * 2432, vK2))
                e("v_add_u32 v%d, %d, v%d" % (vV, 16 * 2432, vV))
            nd = issued_before(tl + 1) - issued_before(tl)
            if nd:
                sk = k.newlab("sd")
                e("s_cmp_lg_u32 s50, 0")
                e("s_cbranch_scc1 %s" % sk)
                for _ in range(nd):
                    dma()
                k.lab(sk)
            body(tl)
            tl += 1
    e("s_waitcnt lgkmcnt(0)")
    k.stamp(2)
    e("s_nop 7")
    e("s_nop 7")
    e("v_mov_b32 v10, 0")
    e("v_mov_b32 v11, 0")
    for t in range(2):
        for i in range(0, 12, 2):
            e("v_max3_f32 v10, v10, |v%d|, |v%d|" % (O[t] + i, O[t] + i + 1))
        for i in range(12):
            e("v_add_f32 v11, v11, v%d" % (O[t] + i))
    e("v_mov_b32 v12, 0x%x" % f2u(2.0 ** (-100 if EXP.get("forcefb") else 100)))
    e("v_cmp_nlt_f32 vcc, v10, v12")
    e("v_cmp_u_f32 s[52:53], v11, v11")
    e("s_nop 3")
    e("s_or_b64 vcc, vcc, s[52:53]")
    e("s_cmp_lg_u32 s50, 0")
    fin = "L_%s_fin" % name
    e("s_cbranch_scc1 %s" % fin)
    e("s_cbranch_vccz %s" % fin)
    e("s_mov_b32 s50, 1")
    e("v_mov_b32 v%d, v%d" % (vK1, vK1b))
    e("v_mov_b32 v%d, v%d" % (vK2, vK2b))
    e("v_mov_b32 v10, 0xff800000")
    e("v_mov_b32 v11, 0xff800000")
    e("s_mov_b32 s51, 0")
    fl = "L_%s_fl" % name
    k.lab(fl)
    e("ds_read_b128 %s, v%d" % (vr(K1, 4), vK1))
    e("ds_read_b32 v%d, v%d" % (K2, vK2))
    e("s_waitcnt lgkmcnt(0)")
    for t in range(2):
        e("v_mfma_f32_32x32x16_bf16 %s, %s, %s, 0" % (vr(S[t][0], 16), vr(K1, 4), vr(Q1[t], 4)))
        e("v_mfma_f32_32x32x16_bf16 %s, %s, %s, %s" % (vr(S[t][0], 16), vr(K2, 4), vr(Q2[t], 4), vr(S[t][0], 16)))
    e("s_nop 7")
    e("s_nop 7")
    for t in range(2):
        for i in range(0, 16, 2):
            e("v_max3_f32 v%d, v%d, v%d, v%d" % (10 + t, 10 + t, S[t][0] + i, S[t][0] + i + 1))
    e("v_add_u32 v%d, 2432, v%d" % (vK1, vK1))
    e("v_add_u32 v%d, 2432, v%d" % (vK2, vK2))
    e("s_add_u32 s51, s51, 1")
    e("s_cmp_lt_u32 s51, 32")
    e("s_cbranch_scc1 %s" % fl)
    e("s_branch %s" % run)
    k.lab(fin)
    e("s_barrier")
    e("s_mul_i32 s37, s35, 4096")
    e("v_add_u32 v2, s37, v1")
    e("s_xor_b32 s38, s35, 4")
    e("s_mul_i32 s38, s38, 4096")
    e("v_add_u32 v1, s38, v1")
    lo = "L_%s_lo" % name
    jn = "L_%s_jn" % name
    e("s_cmp_eq_u32 s40, 0")
    e("s_cbranch_scc1 %s" % lo)
    e("v_mov_b32 v%d, v%d" % (O[0] + 10, CM[0]))
    for i in range(3):
        e("ds_write_b128 v2, %s offset:%d" % (vr(O[0] + 4 * i, 4), 1024 * i))
    for i in range(12):
        e("v_mov_b32 v%d, v%d" % (O[0] + i, O[1] + i))
    e("v_mov_b32 v%d, v%d" % (CM[0], CM[1]))
    e("s_add_u32 s36, s36, 1")
    e("s_branch %s" % jn)
    k.lab(lo)
    e("v_mov_b32 v%d, v%d" % (O[1] + 10, CM[1]))
    for i in range(3):
        e("ds_write_b128 v2, %s offset:%d" % (vr(O[1] + 4 * i, 4), 1024 * i))
    k.lab(jn)
    e("s_waitcnt lgkmcnt(0)")
    e("s_barrier")
    SA = 16
    OO = O[0]
    for i in range(3):
        e("ds_read_b128 %s, v1 offset:%d" % (vr(SA + 4 * i, 4), 1024 * i))
    e("s_waitcnt lgkmcnt(0)")
    e("v_min_f32 v10, v%d, v%d" % (CM[0], SA + 10))
    e("v_sub_f32 v11, v10, v%d" % CM[0])
    e("v_sub_f32 v12, v10, v%d" % (SA + 10))
    e("v_exp_f32 v11, v11")
    e("v_exp_f32 v12, v12")
    e("s_nop 0")
    for i in list(range(10)) + [11]:
        e("v_mul_f32 v%d, v11, v%d" % (OO + i, OO + i))
        e("v_fmac_f32 v%d, v12, v%d" % (OO + i, SA + i))
    e("v_rcp_f32 v10, v%d" % (OO + 11))
    e("s_nop 0")
    for i in range(10):
        e("v_mul_f32 v%d, v10, v%d" % (OO + i, OO + i))
    for i in range(5):
        e("v_cvt_pk_bf16_f32 v%d, v%d, v%d" % (OO + i, OO + 2 * i, OO + 2 * i + 1))
    e("s_lshl_b32 s37, s36, 1")
    e("v_lshrrev_b32 v12, 4, v5")
    e("v_add_u32 v12, s37, v12")
    e("v_mul_u32_u24 v12, 18432, v12")
    e("v_and_b32 v13, 15, v5")
    e("v_lshl_add_u32 v12, v13, 4, v12")
    e("v_add_u32 v12, 0x%x, v12" % OB)
    e("s_mul_i32 s37, s30, 18")
    e("v_lshlrev_b32 v13, 2, v6")
    e("v_add_u32 v13, s37, v13")
    e("v_cmp_eq_u32 vcc, 0, v6")
    for i, dd in enumerate([0, 2, 8, 10, 16]):
        e("v_add_u32 v14, %d, v13" % dd)
        e("v_lshrrev_b32 v15, 3, v14")
        e("v_and_b32 v14, 7, v14")
        e("v_lshl_add_u32 v15, v15, 8, v12")
        e("v_lshl_add_u32 v15, v14, 1, v15")
        if dd == 16:
            e("v_mov_b32 v14, 0x40000000")
            e("v_cndmask_b32 v15, v14, v15, vcc")
        e("buffer_store_dword v%d, v15, s[16:19], 0 offen%s" % (OO + i, " sc1" if out_fid is not None else ""))
    if out_fid is not None:
        emit_signal(k, out_fid, "s31", "s30")
        k.endlab = end
        return k
    k.stamp(3)
    k.rstamp(5)
    k.dump()
    k.lab(end)
    e("s_endpgm")
    return k


def gen_out(name, kind, xsrc, xdst, layer, fused=False, fid=0, k=None):
    OA_BASE = 81 * 1024
    lds = OA_BASE + (72 * 1024 if kind == 'A' else 0)
    chained = k is not None
    if chained:
        k.vgpr = max(k.vgpr, 216 if kind == 'A' else 136)
        k.lds = max(k.lds, lds)
        name = k.newlab("o")[2:]
    else:
        k = Kern(name, 216 if kind == 'A' else 136, lds, (256, 1, 1), (512, 1, 1))
    SC = " sc1" if fused else ""
    LSC = " sc1" if chained else ""
    e = k.e
    ACC = 16
    XRES = 36
    AF = 48
    BF = 84
    BF2 = [84, 104]
    VL16 = 124 if kind == 'B' else 208
    VB = VL16 + 1
    VB4 = VL16 + 2
    VX = VL16 + 3
    VX4 = VL16 + 4
    VD = VL16 + 5
    VD4 = VL16 + 6
    if chained:
        end = k.endlab
    else:
        end = "L_%s_end" % name
        e("s_cmp_ge_u32 s2, 256")
        e("s_cbranch_scc1 %s" % end)
        e("s_load_dwordx2 s[4:5], s[0:1], %d" % KA_WS)
        k.stamp(0)
    if xdst is None:
        e("s_load_dwordx2 s[6:7], s[0:1], %d" % KA_OUT)
    e("s_and_b32 s28, s2, 7")
    e("s_lshr_b32 s29, s2, 3")
    e("s_and_b32 s30, s29, 7")
    e("s_lshr_b32 s31, s29, 3")
    e("s_lshl_b32 s28, s28, 2")
    e("s_add_u32 s31, s31, s28")
    e("v_lshrrev_b32 v4, 6, v0")
    e("v_and_b32 v3, 63, v0")
    e("v_readfirstlane_b32 s35, v4")
    e("v_and_b32 v5, 15, v3")
    e("v_lshrrev_b32 v6, 4, v3")
    e("v_lshlrev_b32 v%d, 4, v3" % VL16)
    e("s_and_b32 s36, s35, 3")
    e("s_lshr_b32 s37, s35, 2")
    e("s_lshl_b32 s38, s31, 2")
    e("s_add_u32 s38, s38, s36")
    e("s_mul_i32 s39, s38, 18432")
    e("s_mul_i32 s33, s30, %d" % (81 * 1024))
    e("s_lshl_b32 s52, s35, 10")
    e("s_waitcnt lgkmcnt(0)")
    k.srd(8, 4, xsrc, XB)
    k.srd(12, 4, WOA if kind == 'A' else WOB, WO_SZ)
    if xdst is None:
        k.srd(24, 6, 0, XB)
    else:
        k.srd(24, 4, xdst, XB)
    if kind == 'A':
        k.srd(16, 4, PQF, PQF_SZ)
        k.srd(44, 4, KVACC + layer * KVACC_L, KVACC_L)
    else:
        k.srd(16, 4, OB, XB)
    k.srd(56, 4, STATV.get(xdst, STATS), 2048 * 64)

    def wdma(lo, hi):
        for i in range(lo, hi):
            if 8 * i + 7 < 81:
                e("s_add_u32 m0, s52, %d" % (8192 * i))
                e("s_add_u32 s34, m0, s33")
            else:
                e("s_add_u32 s54, s52, %d" % (8192 * i))
                e("s_min_u32 m0, s54, %d" % (80 * 1024))
                e("s_add_u32 s34, m0, s33")
            e("buffer_load_dwordx4 v%d, s[12:15], s34 offen lds" % VL16)

    if chained:
        sk = k.newlab("nw")
        po = k.newlab("po")
        e("s_cmp_eq_u32 s35, 0")
        e("s_cbranch_scc1 %s" % po)
        wdma(0, 11)
        e("s_cmp_lg_u32 s35, 1")
        e("s_cbranch_scc1 %s" % sk)
        e("s_mov_b32 s52, 0")
        wdma(0, 11)
        e("s_branch %s" % sk)
        k.lab(po)
        e("s_lshr_b32 s43, s31, 2")
        emit_poll(k, "s43", 32, sk)
        k.lab(sk)
        e("s_barrier")

    if kind == 'B':
        e("s_mul_i32 s40, s37, 9216")
        e("s_add_u32 s40, s40, s39")
        for i in range(9):
            e("buffer_load_dwordx4 %s, v%d, s[16:19], s40 offen offset:%d%s" % (vr(AF + 4 * i, 4), VL16, (1024 * i) % 4096, LSC))
            if i % 4 == 3:
                e("s_add_u32 s40, s40, 4096")
    else:
        KVR, PQR, DD = 48, 96, 160
        e("v_and_b32 v1, 31, v3")
        e("v_lshrrev_b32 v2, 5, v3")
        e("s_mul_i32 s40, s35, %d" % (4 * 2432))
        e("v_min_u32 v8, 18, v1")
        e("v_lshlrev_b32 v8, 7, v8")
        e("v_add_u32 v9, s40, v8")
        e("v_lshl_add_u32 v8, v2, 5, v9")
        e("v_lshlrev_b32 v10, 2, v1")
        e("s_lshl_b32 s41, s31, 6")
        e("s_lshl_b32 s42, s35, 2")
        e("s_add_u32 s41, s41, s42")
        e("s_mul_i32 s55, s41, 1152")
        for hh in range(4):
            for t in range(2):
                for i in range(1, 4):
                    e("v_mov_b32 v%d, 0" % (PQR + 16 * hh + 8 * t + 4 + i))

        def s1load(hh):
            e("s_mov_b32 s34, %d" % (hh * 2432))
            e("buffer_load_dwordx4 %s, v8, s[44:47], s34 offen%s" % (vr(KVR + 12 * hh, 4), LSC))
            e("buffer_load_dwordx4 %s, v8, s[44:47], s34 offen offset:16%s" % (vr(KVR + 12 * hh + 4, 4), LSC))
            e("buffer_load_dwordx2 %s, v9, s[44:47], s34 offen offset:64%s" % (vr(KVR + 12 * hh + 8, 2), LSC))
            for t in range(2):
                e("s_add_u32 s34, s55, %d" % (t * 32 * 1152 + hh * 1152))
                e("buffer_load_dwordx4 %s, v%d, s[16:19], s34 offen%s" % (vr(PQR + 16 * hh + 8 * t, 4), VL16, LSC))
                e("buffer_load_dword v%d, v10, s[16:19], s34 offen offset:1024%s" % (PQR + 16 * hh + 8 * t + 4, LSC))

        s1load(0)
        s1load(1)
    if kind == 'B' and not chained:
        wdma(0, 11)
    e("s_lshr_b32 s40, s38, 1")
    e("s_mul_i32 s40, s40, 36864")
    e("s_and_b32 s41, s38, 1")
    e("s_lshl_b32 s41, s41, 8")
    e("s_add_u32 s40, s40, s41")
    e("s_mul_i32 s41, s30, 4608")
    e("s_add_u32 s40, s40, s41")
    e("v_lshrrev_b32 v7, 1, v6")
    e("v_lshlrev_b32 v7, 9, v7")
    e("v_lshl_add_u32 v7, v5, 4, v7")
    e("v_and_b32 v11, 1, v6")
    e("v_lshl_add_u32 v7, v11, 3, v7")
    e("v_add_u32 v%d, s40, v7" % VX)
    e("v_cmp_gt_u32 vcc, 2, v6")
    e("v_mov_b32 v11, 0x40000000")
    e("s_nop 0")
    e("v_cndmask_b32 v%d, v11, v%d, vcc" % (VX4, VX))
    if xdst is None:
        e("s_lshl_b32 s40, s38, 4")
        e("v_add_u32 v7, s40, v5")
        e("v_mul_u32_u24 v7, 1152, v7")
        e("v_lshl_add_u32 v7, v6, 3, v7")
        e("s_mul_i32 s40, s30, 144")
        e("v_add_u32 v%d, s40, v7" % VD)
        e("v_cndmask_b32 v%d, v11, v%d, vcc" % (VD4, VD))
    def xres():
        for t in range(5):
            e("s_mov_b32 s34, %d" % (1024 * t))
            e("buffer_load_dwordx2 %s, v%d, s[8:11], s34 offen%s" % (vr(XRES + 2 * t, 2), VX4 if t == 4 else VX, LSC))

    if kind == 'B':
        xres()
    e("s_mul_i32 s40, s37, %d" % (4 * 9216))
    e("v_add_u32 v%d, s40, v%d" % (VB, VL16))
    e("v_and_b32 v7, 7, v5")
    e("v_lshlrev_b32 v7, 4, v7")
    e("v_lshl_add_u32 v7, v6, 7, v7")
    e("v_add_u32 v%d, s40, v7" % VB4)
    for i in range(20):
        e("v_mov_b32 v%d, 0" % (ACC + i))
    if kind == 'A':
        e("s_mul_i32 s41, s35, 2304")
        e("s_add_u32 s41, s41, %d" % OA_BASE)
        e("v_lshrrev_b32 v11, 4, v1")
        e("v_mul_u32_u24 v11, 18432, v11")
        e("v_and_b32 v12, 15, v1")
        e("v_lshl_add_u32 v11, v12, 4, v11")
        e("v_add_u32 v11, s41, v11")
        e("s_mov_b32 s42, 0x%x" % f2u(1e-6))
        e("v_cmp_eq_u32 s[48:49], 0, v2")
        for hh in range(4):
            kv = KVR + 12 * hh
            k.stamp(7 + 2 * hh)
            e("s_waitcnt vmcnt(%d)" % ([7, 7, 7, 0] if chained else [7, 7, 7, 6])[hh])
            k.stamp(8 + 2 * hh)
            for i in range(5):
                e("v_cvt_pk_bf16_f32 v%d, v%d, v%d" % (kv + i, kv + 2 * i, kv + 2 * i + 1))
            for i in range(5, 8):
                e("v_mov_b32 v%d, 0" % (kv + i))
            for t in range(2):
                q2 = PQR + 16 * hh + 8 * t + 4
                e("v_cndmask_b32 v%d, 0, v%d, s[48:49]" % (q2, q2))
            e("s_nop 1")
            for t in range(2):
                q1 = PQR + 16 * hh + 8 * t
                e("v_mfma_f32_32x32x16_bf16 %s, %s, %s, 0" % (vr(DD + 16 * t, 16), vr(kv, 4), vr(q1, 4)))
                e("v_mfma_f32_32x32x16_bf16 %s, %s, %s, %s" % (vr(DD + 16 * t, 16), vr(kv + 4, 4), vr(q1 + 4, 4), vr(DD + 16 * t, 16)))
            if hh < 2:
                s1load(hh + 2)
            elif hh == 2:
                if not chained:
                    wdma(0, 6)
            else:
                if not chained:
                    wdma(6, 11)
                xres()
            lo, hi = [], []
            for i, dd in enumerate([0, 2, 8, 10, 16]):
                for h in range(2):
                    c = 18 * hh + dd + 4 * h
                    off = (c >> 3) * 256 + (c & 7) * 2
                    if not (dd == 16 and h == 1):
                        (lo if h == 0 else hi).append("v_add_u32 v%d, %d, v11" % (192 + i, off))
            half_ops(k, lo, hi)
            e("s_nop 3")
            for t in range(2):
                d = DD + 16 * t
                e("v_add_f32 v%d, s42, v%d" % (d + 12, d + 11))
            for t in range(2):
                d = DD + 16 * t
                e("v_rcp_f32 v%d, v%d" % (d + 12, d + 12))
            for t in range(2):
                d = DD + 16 * t
                e("v_mov_b32 v%d, v%d" % (d + 13, d + 12))
            for t in range(2):
                d = DD + 16 * t
                for i in range(5):
                    e("v_pk_mul_f32 %s, %s, %s" % (vr(d + 2 * i, 2), vr(d + 2 * i, 2), vr(d + 12, 2)))
                    e("v_cvt_pk_bf16_f32 v%d, v%d, v%d" % (d + 2 * i, d + 2 * i, d + 2 * i + 1))
                    if i == 4:
                        e("s_mov_b32 exec_hi, 0")
                    e("ds_write_b32 v%d, v%d offset:%d" % (192 + i, d + 2 * i, t * 36864))
                    if i == 4:
                        e("s_mov_b32 exec_hi, -1")
        e("s_mul_i32 s40, s36, 18432")
        e("s_mul_i32 s41, s37, 9216")
        e("s_add_u32 s40, s40, s41")
        e("s_add_u32 s40, s40, %d" % OA_BASE)
        e("v_add_u32 v7, s40, v%d" % VL16)
    k.stamp(1)
    e("s_waitcnt vmcnt(0) lgkmcnt(0)")
    e("s_barrier")
    k.stamp(2)
    if kind == 'A':
        for i in range(9):
            e("ds_read_b128 %s, v7 offset:%d" % (vr(AF + 4 * i, 4), 1024 * i))
    l1 = "L_%s_k1" % name
    lj = "L_%s_kj" % name
    e("s_cmp_eq_u32 s37, 1")
    e("s_cbranch_scc1 %s" % l1)
    for kh in range(2):
        if kh == 1:
            k.lab(l1)
        def bread(i):
            bf = BF2[i & 1]
            sl = i + kh
            po = (sl >> 1) * 9216
            for t in range(4):
                e("ds_read_b128 %s, v%d offset:%d" % (vr(bf + 4 * t, 4), VB, po + (sl & 1) * 4096 + t * 1024))
            e("ds_read_b128 %s, v%d offset:%d" % (vr(bf + 16, 4), VB4, po + 8192 + (sl & 1) * 512))

        bread(0)
        for i in range(9):
            if i + 1 < 9:
                bread(i + 1)
                e("s_waitcnt lgkmcnt(5)")
            else:
                e("s_waitcnt lgkmcnt(0)")
            bf = BF2[i & 1]
            for t in range(5):
                e("v_mfma_f32_16x16x32_bf16 %s, %s, %s, %s" % (vr(ACC + 4 * t, 4), vr(bf + 4 * t, 4), vr(AF + 4 * i, 4), vr(ACC + 4 * t, 4)))
        k.stamp(4)
        e("s_barrier")
        e("s_mul_i32 s40, s36, 5120")
        e("v_add_u32 v7, s40, v%d" % VL16)
        if kh == 1:
            e("s_nop 7")
            for t in range(5):
                e("ds_write_b128 v7, %s offset:%d" % (vr(ACC + 4 * t, 4), 1024 * t))
            e("s_waitcnt lgkmcnt(0)")
            e("s_barrier")
            if not fused:
                e("s_endpgm")
        else:
            e("s_barrier")
            for t in range(5):
                e("ds_read_b128 %s, v7 offset:%d" % (vr(BF + 4 * t, 4), 1024 * t))
            e("s_waitcnt lgkmcnt(0)")
            for t in range(5):
                a = ACC + 4 * t
                x = XRES + 2 * t
                e("v_lshlrev_b32 v8, 16, v%d" % x)
                e("v_and_b32 v9, 0xffff0000, v%d" % x)
                e("v_lshlrev_b32 v10, 16, v%d" % (x + 1))
                e("v_and_b32 v11, 0xffff0000, v%d" % (x + 1))
                for r in range(4):
                    e("v_add_f32 v%d, v%d, v%d" % (a + r, a + r, BF + 4 * t + r))
                    e("v_add_f32 v%d, v%d, v%d" % (a + r, a + r, 8 + r))
                e("v_cvt_pk_bf16_f32 v%d, v%d, v%d" % (a, a, a + 1))
                e("v_cvt_pk_bf16_f32 v%d, v%d, v%d" % (a + 1, a + 2, a + 3))
                if xdst is None:
                    e("buffer_store_dwordx2 %s, v%d, s[24:27], 0 offen offset:%d" % (vr(a, 2), VD4 if t == 4 else VD, 32 * t))
                else:
                    e("s_mov_b32 s34, %d" % (1024 * t))
                    e("buffer_store_dwordx2 %s, v%d, s[24:27], s34 offen%s" % (vr(a, 2), VX4 if t == 4 else VX, SC))
            if xdst is not None:
                e("s_mov_b32 s42, 0x3f803f80")
                e("v_cmp_gt_u32 vcc, 2, v6")
                e("v_mov_b32 v8, 0")
                e("v_mov_b32 v9, 0")
                e("v_cndmask_b32 v%d, 0, v%d, vcc" % (ACC + 18, ACC + 16))
                e("v_cndmask_b32 v%d, 0, v%d, vcc" % (ACC + 19, ACC + 17))
                for t in range(5):
                    for i in range(2):
                        r = ACC + 4 * t + i + (2 if t == 4 else 0)
                        e("v_dot2_f32_bf16 v8, v%d, s42, v8" % r)
                        e("v_dot2_f32_bf16 v9, v%d, v%d, v9" % (r, r))
                e("s_nop 2")
                e("v_mov_b32 v10, v8")
                e("v_mov_b32 v11, v9")
                e("s_nop 1")
                e("v_permlane16_swap_b32 v10, v8")
                e("v_permlane16_swap_b32 v11, v9")
                e("s_nop 1")
                e("v_add_f32 v8, v8, v10")
                e("v_add_f32 v9, v9, v11")
                e("v_mov_b32 v10, v8")
                e("v_mov_b32 v11, v9")
                e("s_nop 1")
                e("v_permlane32_swap_b32 v10, v8")
                e("v_permlane32_swap_b32 v11, v9")
                e("s_nop 1")
                e("v_add_f32 v8, v8, v10")
                e("v_add_f32 v9, v9, v11")
                e("s_lshl_b32 s40, s38, 10")
                e("s_lshl_b32 s41, s30, 3")
                e("s_add_u32 s40, s40, s41")
                e("v_lshlrev_b32 v10, 6, v5")
                e("v_cmp_eq_u32 vcc, 0, v6")
                e("v_mov_b32 v11, 0x40000000")
                e("s_nop 0")
                e("v_cndmask_b32 v10, v11, v10, vcc")
                e("buffer_store_dwordx2 v[8:9], v10, s[56:59], s40 offen%s" % SC)
            if fused:
                e("s_waitcnt vmcnt(0)")
                e("s_branch %s" % lj)
                continue
            k.stamp(5)
            if STAMPS:
                e("s_waitcnt vmcnt(0)")
            k.stamp(6)
            k.dump()
            e("s_endpgm")
    if fused:
        k.lab(lj)
        e("s_barrier")
        k.srd(20, 4, FLAGS + fid * 2048, 2048)
        sk = k.newlab("sig")
        e("s_cmp_lg_u32 s35, 0")
        e("s_cbranch_scc1 %s" % sk)
        e("s_lshr_b32 s40, s31, 1")
        e("s_lshl_b32 s40, s40, 7")
        e("s_and_b32 s41, s31, 1")
        e("s_lshl_b32 s41, s41, 3")
        e("s_add_u32 s41, s41, s30")
        e("s_lshl_b32 s41, s41, 2")
        e("s_add_u32 s40, s40, s41")
        e("v_mov_b32 v8, 1")
        e("v_mov_b32 v9, 0")
        e("s_mov_b64 exec, 1")
        e("buffer_store_dword v8, v9, s[20:23], s40 offen sc1")
        e("s_mov_b64 exec, -1")
        k.lab(sk)
        k.endlab = end
        return k
    k.lab(end)
    e("s_endpgm")
    return k


ATTN8 = True


def main():
    mode = EXP.get("mode", "11")
    if mode == "11":
        ks = [
            gen_prep(),
            gen_qkv('A', params=[(58, X0F), (59, KVACC)], kname="qkv_a1_kernel"),
            gen_out("out_a1_kernel", 'A', X0F, X1, 0),
            gen_qkv('B', params=[(58, X1), (59, 0)], kname="qkv_b1_kernel"),
            gen_attn("attn_kernel"),
            gen_out("out_b1_kernel", 'B', X1, X2, 0),
            gen_qkv('A', params=[(58, X2), (59, KVACC + KVACC_L)], kname="qkv_a2_kernel"),
            gen_out("out_a2_kernel", 'A', X2, X3, 1),
            gen_qkv('B', params=[(58, X3), (59, 0)], kname="qkv_b2_kernel"),
            gen_out("out_b2_kernel", 'B', X3, None, 1),
        ]
        order = ["prep_kernel", "qkv_a1_kernel", "out_a1_kernel", "qkv_b1_kernel", "attn_kernel", "out_b1_kernel",
                 "qkv_a2_kernel", "out_a2_kernel", "qkv_b2_kernel", "attn_kernel", "out_b2_kernel"]
    elif mode == "8":
        qa = gen_qkv('A', params=[(58, X0F), (59, KVACC)], kname="qkv_a1_kernel")
        f1 = gen_qkv('B', gen_out("f1_kernel", 'A', X0F, X1, 0, fused=True, fid=0), [(58, X1), (59, 0)])
        f2 = gen_qkv('A', gen_out("f2_kernel", 'B', X1, X2, 0, fused=True, fid=1), [(58, X2), (59, KVACC + KVACC_L)])
        f3 = gen_qkv('B', gen_out("f3_kernel", 'A', X2, X3, 1, fused=True, fid=2), [(58, X3), (59, 0)])
        ks = [gen_prep(), qa, f1, f2, f3, gen_attn("attn_kernel"), gen_out("out_b2_kernel", 'B', X3, None, 1)]
        order = ["prep_kernel", "qkv_a1_kernel", "f1_kernel", "attn_kernel", "f2_kernel", "f3_kernel",
                 "attn_kernel", "out_b2_kernel"]
    else:
        qa = gen_qkv('A', params=[(58, X0F), (59, KVACC)], kname="qkv_a1_kernel")
        f1 = gen_out("f1_kernel", 'A', X0F, X1, 0, fused=True, fid=0)
        f1 = gen_qkv('B', f1, [(58, X1), (59, 0)], chain=1)
        f1 = gen_attn8(None, f1, out_fid=2)
        f1 = gen_out(None, 'B', X1, X2, 0, fused=True, fid=3, k=f1)
        f1 = gen_qkv('A', f1, [(58, X2), (59, KVACC + KVACC_L)])
        f2 = gen_out("f2_kernel", 'A', X2, X3, 1, fused=True, fid=4)
        f2 = gen_qkv('B', f2, [(58, X3), (59, 0)], chain=5)
        f2 = gen_attn8(None, f2, out_fid=6)
        f2 = gen_out(None, 'B', X3, None, 1, k=f2)
        ks = [gen_prep(), qa, f1, f2]
        order = ["prep_kernel", "qkv_a1_kernel", "f1_kernel", "f2_kernel"]
    byname = {k.name: k for k in ks}
    hdr = open("cdna_kernels/%s.s.ref" % NAME).read().split("; Override launch geometry")[0]
    out = hdr
    for n in order:
        k = byname[n]
        out += "; @launch kernel=%s grid=(%d,%d,%d) block=(%d,%d,%d) lds=%d\n" % ((n,) + k.grid + k.block + (k.lds,))
    out += '.amdgcn_target "amdgcn-amd-amdhsa--gfx950"\n.text\n'
    for k in ks:
        if getattr(k, "nodesc", False):
            out += ".p2align 8\n%s:\n" % k.name + "\n".join(k.L) + "\n"
        else:
            out += k.text()
    out += '.section .rodata,"a"\n'
    for k in ks:
        if not getattr(k, "nodesc", False):
            out += ".p2align 6\n" + k.desc()
    dst = "cdna_kernels/%s.s" % NAME
    if STAMPS or EXP.get("dst"):
        dst = EXP.get("dst", OUTFILE)
    open(dst, "w").write(out)


if __name__ == "__main__":
    if len(sys.argv) > 1:
        STAMPS = sys.argv[1] == "stamps"
        for a in sys.argv[2:]:
            if a.startswith("out="):
                OUTFILE = a[4:]
            elif a.startswith("wg="):
                STAMP_WG = int(a[3:])
            elif "=" in a:
                EXP[a.split("=")[0]] = a.split("=")[1]
            else:
                EXP[a] = True
    main()
```

```python
import sys, re

NAME = "interleave_layers__linear_attn_block__mha_block__prompt"

XB = 2048 * 576 * 2
X1 = 0x0
X2 = 0x240000
X3 = 0x480000
PQ = 0x6C0000
OB = 0x900000
QPI = 0xB40000
QHEAD = 64 * 1152
KVI = 0xF40000
KVHEAD = 64 * 2432
KVACC = 0x1400000
KVACC_L = 32 * 19 * 32 * 4
WFA = 0x2000000
WFB = 0x2240000
WF_SZ = 8 * 36 * 8 * 1024
STATS = 0x1500000
STATV = {}
WOA = 0x1840000
WOB = 0x1900000
WO_SZ = 8 * 81 * 1024
CS = 0x1480000
CS_MAT = 3 * 16 * 512
PQF = 0x1A00000
PQF_SZ = 64 * 32 * 1152
X0F = 0x1D00000
STATV.update({X0F: STATS, X1: STATS + 0x20000, X2: STATS + 0x40000, X3: STATS + 0x60000})
FLAGS = KVACC + 2 * KVACC_L
WS_SIZE = 0x2500000

LOG2E = 1.4426950408889634
QSCALE = (18.0 ** -0.5) * LOG2E

import struct
def f2u(x):
    return struct.unpack("<I", struct.pack("<f", x))[0]


EXP = {}
STAMPS = False
STAMP_WG = 0


class Kern:
    def __init__(self, name, vgpr, lds, grid, block):
        self.name = name
        self.vgpr = vgpr
        self.lds = lds
        self.grid = grid
        self.block = block
        self.L = []
        self.uid = 0

    def e(self, s):
        m = re.search(r"offset:(\d+)", s)
        if m:
            o = int(m.group(1))
            if s.startswith("buffer_"):
                assert o <= 4095, s
            elif s.startswith("ds_"):
                assert o <= 65535, s
        self.L.append("    " + s)

    def lab(self, s):
        self.L.append(s + ":")

    def newlab(self, p):
        self.uid += 1
        return "L_%s_%s%d" % (self.name, p, self.uid)

    def srd(self, d, b, off, size):
        if off:
            self.e("s_add_u32 s%d, s%d, 0x%x" % (d, b, off))
            self.e("s_addc_u32 s%d, s%d, 0" % (d + 1, b + 1))
        else:
            self.e("s_mov_b32 s%d, s%d" % (d, b))
            self.e("s_mov_b32 s%d, s%d" % (d + 1, b + 1))
        self.e("s_mov_b32 s%d, 0x%x" % (d + 2, size))
        self.e("s_mov_b32 s%d, 0x00020000" % (d + 3))

    def rstamp(self, i):
        if STAMPS:
            self.e("s_memrealtime s[%d:%d]" % (64 + 2 * i, 65 + 2 * i))
            self.nst = max(getattr(self, "nst", 0), i + 1)

    def stamp(self, i):
        if STAMPS:
            self.e("s_memtime s[%d:%d]" % (64 + 2 * i, 65 + 2 * i))
            self.nst = max(getattr(self, "nst", 0), i + 1)

    def dump(self):
        if STAMPS and getattr(self, "nst", 0):
            l = self.newlab("nd")
            self.e("s_cmp_lg_u32 s2, %d" % STAMP_WG)
            self.e("s_cbranch_scc1 %s" % l)
            self.e("s_load_dwordx2 s[60:61], s[0:1], %d" % KA_DBG)
            self.e("s_waitcnt lgkmcnt(0)")
            self.e("s_mov_b32 s62, 256")
            self.e("s_mov_b32 s63, 0x00020000")
            self.e("v_lshrrev_b32 v1, 6, v0")
            if EXP.get("hiwaves"):
                self.e("v_xor_b32 v1, 4, v1")
            self.e("v_lshlrev_b32 v1, 6, v1")
            if getattr(self, "endlab", None):
                self.e("v_add_u32 v1, 128, v1")
            for i in range(self.nst):
                self.e("v_mov_b32 v2, s%d" % (64 + 2 * i))
                self.e("buffer_store_dword v2, v1, s[60:63], 0 offen offset:%d" % (4 * i))
            self.lab(l)

    def text(self):
        if getattr(self, "stub", None):
            return (".globl %s\n.p2align 8\n.type %s,@function\n%s:\n" % (self.name, self.name, self.name)
                    + "".join("    %s\n" % x for x in self.stub))
        out = []
        out.append(".globl %s" % self.name)
        out.append(".p2align 8")
        out.append(".type %s,@function" % self.name)
        out.append("%s:" % self.name)
        out += self.L
        return "\n".join(out) + "\n"

    def desc(self):
        v = (self.vgpr + 3) // 4 * 4
        return """.amdhsa_kernel %s
  .amdhsa_next_free_vgpr %d
  .amdhsa_next_free_sgpr 96
  .amdhsa_accum_offset %d
  .amdhsa_group_segment_fixed_size 0
  .amdhsa_kernarg_size 72
  .amdhsa_user_sgpr_count 2
  .amdhsa_user_sgpr_kernarg_segment_ptr 1
  .amdhsa_system_sgpr_workgroup_id_x 1
.end_amdhsa_kernel
""" % (self.name, v, v)


def vr(a, n):
    return "v[%d:%d]" % (a, a + n - 1)


KA_AX, KA_AWQKV, KA_AWO, KA_BX, KA_BWQKV, KA_BWO, KA_OUT, KA_DBG, KA_WS = [8 * i for i in range(9)]


OUTFILE = 'st.s'
PB_ROW = 288
OB_ROW = 160


def gen_prep():
    NQ = 96
    NO = 96
    NZ = 0
    NX = 64
    GL = 64 * PB_ROW
    k = Kern("prep_kernel", 96, 3 * GL + 4096, (NQ + NO + NZ + NX, 1, 1), (768, 1, 1))
    e = k.e
    e("s_cmp_ge_u32 s2, %d" % (NQ + NO + NZ + NX))
    e("s_cbranch_scc1 L_prep_end")
    e("s_load_dwordx2 s[4:5], s[0:1], %d" % KA_WS)
    e("s_load_dwordx2 s[20:21], s[0:1], %d" % KA_AWQKV)
    e("s_load_dwordx2 s[22:23], s[0:1], %d" % KA_BWQKV)
    e("s_load_dwordx2 s[24:25], s[0:1], %d" % KA_AWO)
    e("s_load_dwordx2 s[26:27], s[0:1], %d" % KA_BWO)
    e("s_load_dwordx2 s[44:45], s[0:1], %d" % KA_AX)
    k.stamp(0)
    e("v_and_b32 v3, 63, v0")
    e("v_lshrrev_b32 v4, 6, v0")
    e("v_and_b32 v0, 255, v0")
    e("v_readfirstlane_b32 s35, v4")
    e("v_lshlrev_b32 v5, 4, v3")
    e("v_lshrrev_b32 v6, 4, v3")
    e("v_lshrrev_b32 v8, 2, v3")
    e("v_and_b32 v8, 3, v8")
    e("v_and_b32 v9, 3, v3")
    e("s_lshr_b32 s46, s35, 2")
    e("s_and_b32 s35, s35, 3")
    e("s_mul_i32 s47, s46, %d" % GL)
    e("s_waitcnt lgkmcnt(0)")
    k.srd(16, 4, 0, WS_SIZE)
    e("s_cmp_ge_u32 s2, %d" % (NQ + NO))
    e("s_cbranch_scc1 L_prep_misc")
    e("s_cmp_ge_u32 s2, %d" % NQ)
    e("s_cbranch_scc1 L_prep_wo")
    e("s_cmp_ge_u32 s2, 48")
    e("s_cselect_b32 s30, 1, 0")
    e("s_mul_i32 s31, s30, 48")
    e("s_sub_u32 s31, s2, s31")
    e("s_mul_i32 s32, s31, 21846")
    e("s_lshr_b32 s32, s32, 16")
    e("s_mul_i32 s33, s32, 3")
    e("s_sub_u32 s33, s31, s33")
    e("s_mul_i32 s48, s33, 6")
    e("s_lshl_b32 s49, s46, 1")
    e("s_add_u32 s48, s48, s49")
    e("s_cmp_eq_u32 s30, 0")
    e("s_cselect_b32 s8, s20, s22")
    e("s_cselect_b32 s9, s21, s23")
    e("s_mov_b32 s10, %d" % (576 * 3456))
    e("s_mov_b32 s11, 0x00020000")
    e("s_cselect_b32 s36, 1, 0")
    e("s_mul_i32 s37, s32, 72")
    e("s_mul_i32 s38, s48, %d" % (32 * 3456))
    e("s_add_u32 s37, s37, s38")
    for i in range(7):
        e("v_add_u32 v10, %d, v0" % (256 * i))
        if i == 6:
            e("v_min_u32 v10, 1727, v10")
        e("v_mul_u32_u24 v11, 9710, v10")
        e("v_lshrrev_b32 v11, 18, v11")
        e("v_mul_u32_u24 v12, 27, v11")
        e("v_sub_u32 v12, v10, v12")
        e("v_mul_u32_u24 v13, 57, v12")
        e("v_lshrrev_b32 v13, 9, v13")
        e("v_mul_u32_u24 v14, 9, v13")
        e("v_sub_u32 v14, v12, v14")
        e("v_add_u32 v13, s36, v13")
        e("v_cmp_eq_u32 vcc, 3, v13")
        e("s_nop 1")
        e("v_cndmask_b32_e64 v13, v13, 0, vcc")
        e("v_mul_u32_u24 v13, 1152, v13")
        e("v_mul_u32_u24 v15, 3456, v11")
        e("v_add3_u32 v15, v15, v13, s37")
        e("v_lshl_add_u32 v15, v14, 3, v15")
        e("buffer_load_dwordx2 %s, v15, s[8:11], 0 offen" % vr(32 + 2 * i, 2))
        e("v_mul_u32_u24 v15, %d, v11" % PB_ROW)
        e("v_lshl_add_u32 v15, v12, 3, v15")
        e("v_add_u32 v%d, s47, v15" % (20 + i))
    e("v_mov_b32 v28, 0")
    e("v_mov_b32 v29, 0")
    for i in range(2):
        e("v_add_u32 v10, %d, v0" % (256 * i))
        e("v_min_u32 v10, 319, v10")
        e("v_mul_u32_u24 v11, 13108, v10")
        e("v_lshrrev_b32 v11, 16, v11")
        e("v_mul_u32_u24 v12, 5, v11")
        e("v_sub_u32 v12, v10, v12")
        e("v_mul_u32_u24 v11, %d, v11" % PB_ROW)
        e("v_lshl_add_u32 v11, v12, 3, v11")
        e("v_add_u32 v11, s47, v11")
        e("ds_write_b64 v11, v[28:29] offset:216")
    e("v_lshrrev_b32 v7, 1, v6")
    e("v_lshl_add_u32 v7, v7, 3, v8")
    e("v_mul_u32_u24 v7, %d, v7" % PB_ROW)
    e("v_and_b32 v10, 1, v6")
    e("v_lshl_add_u32 v7, v10, 5, v7")
    e("v_lshl_add_u32 v7, v9, 3, v7")
    e("s_lshl_b32 s38, s35, 6")
    e("s_add_u32 s38, s38, s47")
    e("v_add_u32 v7, s38, v7")
    for i in range(4):
        e("v_mov_b32 v%d, 0x3f803f80" % (28 + i))
    e("s_mul_i32 s38, s32, 36")
    e("s_lshl_b32 s39, s48, 1")
    e("s_add_u32 s38, s38, s39")
    e("s_lshl_b32 s38, s38, 2")
    e("s_add_u32 s38, s38, s35")
    e("s_lshl_b32 s38, s38, 10")
    e("s_mul_i32 s39, s30, 0x%x" % (WFB - WFA))
    e("s_add_u32 s38, s38, s39")
    e("s_add_u32 s38, s38, 0x%x" % WFA)
    e("s_lshl_b32 s39, s33, 4")
    e("s_add_u32 s39, s39, s32")
    e("s_lshl_b32 s39, s39, 9")
    e("s_mul_i32 s40, s30, %d" % CS_MAT)
    e("s_add_u32 s39, s39, s40")
    e("s_add_u32 s39, s39, 0x%x" % CS)
    e("s_lshl_b32 s40, s46, 9")
    e("s_lshl_b32 s41, s35, 7")
    e("s_add_u32 s40, s40, s41")
    e("s_add_u32 s40, s40, %d" % (3 * GL))
    e("v_and_b32 v10, 31, v3")
    e("v_lshl_add_u32 v10, v10, 2, s40")
    k.stamp(1)
    e("s_waitcnt vmcnt(0)")
    k.stamp(2)
    for i in range(7):
        e("ds_write_b64 v%d, %s" % (20 + i, vr(32 + 2 * i, 2)))
    e("s_waitcnt lgkmcnt(0)")
    e("s_barrier")
    k.stamp(3)
    for ks in range(4):
        for hf in range(2):
            e("ds_read_b64_tr_b16 %s, v7 offset:%d" % (vr(32 + 4 * ks + 2 * hf, 2), (16 * ks + 4 * hf) * PB_ROW))
    e("s_waitcnt lgkmcnt(0)")
    for ks in range(4):
        c = "0" if ks == 0 else vr(48, 16)
        e("v_mfma_f32_32x32x16_bf16 %s, v[28:31], %s, %s" % (vr(48, 16), vr(32 + 4 * ks, 4), c))
        e("s_add_u32 s40, s38, %d" % (4096 * ks))
        e("buffer_store_dwordx4 %s, v5, s[16:19], s40 offen" % vr(32 + 4 * ks, 4))
    e("s_nop 7")
    e("s_nop 7")
    e("ds_write_b32 v10, v48")
    e("s_waitcnt lgkmcnt(0)")
    e("s_barrier")
    e("s_cmp_lg_u32 s46, 0")
    e("s_cbranch_scc1 L_prep_end")
    e("s_cmp_ge_u32 s35, 2")
    e("s_cbranch_scc1 L_prep_end")
    e("v_lshlrev_b32 v10, 2, v0")
    for i in range(3):
        e("ds_read_b32 v%d, v10 offset:%d" % (12 + i, 3 * GL + 512 * i))
    e("s_waitcnt lgkmcnt(0)")
    e("v_add_f32 v12, v12, v13")
    e("v_add_f32 v12, v12, v14")
    e("buffer_store_dword v12, v10, s[16:19], s39 offen")
    k.stamp(4)
    if STAMPS:
        e("s_waitcnt vmcnt(0)")
    k.stamp(5)
    k.dump()
    e("s_endpgm")
    k.lab("L_prep_wo")
    e("s_sub_u32 s29, s2, %d" % NQ)
    e("s_mul_i32 s29, s29, 3")
    e("s_add_u32 s29, s29, s46")
    e("s_cmp_ge_u32 s29, 144")
    e("s_cselect_b32 s30, 1, 0")
    e("s_mul_i32 s31, s30, 144")
    e("s_sub_u32 s31, s29, s31")
    e("s_mul_i32 s32, s31, 3641")
    e("s_lshr_b32 s32, s32, 16")
    e("s_mul_i32 s33, s32, 18")
    e("s_sub_u32 s33, s31, s33")
    e("s_cmp_eq_u32 s30, 0")
    e("s_cselect_b32 s8, s24, s26")
    e("s_cselect_b32 s9, s25, s27")
    e("s_mov_b32 s10, %d" % (576 * 1152))
    e("s_mov_b32 s11, 0x00020000")
    e("s_mul_i32 s37, s32, 144")
    e("s_mul_i32 s38, s33, %d" % (32 * 1152))
    e("s_add_u32 s37, s37, s38")
    for i in range(2):
        e("v_add_u32 v10, %d, v0" % (256 * i))
        if i == 1:
            e("v_min_u32 v10, 287, v10")
        e("v_mul_u32_u24 v11, 7282, v10")
        e("v_lshrrev_b32 v11, 16, v11")
        e("v_mul_u32_u24 v12, 9, v11")
        e("v_sub_u32 v12, v10, v12")
        e("v_mul_u32_u24 v15, 1152, v11")
        e("v_lshl_add_u32 v15, v12, 4, v15")
        e("v_add_u32 v15, s37, v15")
        e("buffer_load_dwordx4 %s, v15, s[8:11], 0 offen" % vr(32 + 4 * i, 4))
        e("v_mul_u32_u24 v15, %d, v11" % OB_ROW)
        e("v_lshrrev_b32 v13, 3, v11")
        e("v_lshl_add_u32 v15, v13, 7, v15")
        e("v_lshl_add_u32 v15, v12, 4, v15")
        e("v_add_u32 v%d, s47, v15" % (20 + i))
    e("s_waitcnt vmcnt(0)")
    for i in range(2):
        e("ds_write_b128 v%d, %s" % (20 + i, vr(32 + 4 * i, 4)))
    e("v_mul_u32_u24 v7, %d, v6" % (8 * OB_ROW + 128))
    e("v_mul_u32_u24 v10, %d, v8" % OB_ROW)
    e("v_lshl_add_u32 v10, v9, 3, v10")
    e("s_lshl_b32 s38, s35, 5")
    e("s_add_u32 s38, s38, s47")
    e("v_add3_u32 v7, v7, v10, s38")
    e("s_mul_i32 s38, s32, %d" % (81 * 1024))
    e("s_lshr_b32 s39, s33, 1")
    e("s_mul_i32 s39, s39, 9216")
    e("s_add_u32 s38, s38, s39")
    e("s_mul_i32 s39, s30, 0x%x" % (WOB - WOA))
    e("s_add_u32 s38, s38, s39")
    e("s_add_u32 s38, s38, 0x%x" % WOA)
    e("s_and_b32 s39, s33, 1")
    e("s_lshl_b32 s40, s39, 9")
    e("s_add_u32 s40, s40, s38")
    e("s_add_u32 s40, s40, 8192")
    e("s_lshl_b32 s39, s39, 12")
    e("s_add_u32 s38, s38, s39")
    e("s_lshl_b32 s39, s35, 10")
    e("s_add_u32 s38, s38, s39")
    e("v_and_b32 v10, 15, v3")
    e("v_lshlrev_b32 v11, 4, v10")
    e("v_lshl_add_u32 v11, v6, 7, v11")
    e("v_cmp_gt_u32 vcc, 8, v10")
    e("v_mov_b32 v12, 0x40000000")
    e("s_nop 0")
    e("v_cndmask_b32 v11, v12, v11, vcc")
    e("s_waitcnt lgkmcnt(0)")
    e("s_barrier")
    for q in range(2):
        for hf in range(2):
            e("ds_read_b64_tr_b16 %s, v7 offset:%d" % (vr(32 + 4 * q + 2 * hf, 2), hf * 4 * OB_ROW + 128 * q))
    e("s_waitcnt lgkmcnt(0)")
    e("buffer_store_dwordx4 %s, v5, s[16:19], s38 offen" % vr(32, 4))
    e("s_cmp_lg_u32 s35, 0")
    e("s_cbranch_scc1 L_prep_end")
    e("buffer_store_dwordx4 %s, v11, s[16:19], s40 offen" % vr(36, 4))
    e("s_endpgm")
    k.lab("L_prep_misc")
    e("s_sub_u32 s3, s2, %d" % (NQ + NO))
    e("s_cmp_eq_u32 s46, 0")
    e("s_cbranch_scc1 L_prep_x0")
    e("s_cmp_eq_u32 s46, 2")
    e("s_cbranch_scc1 L_prep_end")
    e("s_cmp_ge_u32 s3, 42")
    e("s_cbranch_scc1 L_prep_end")
    e("s_lshl_b32 s3, s3, 12")
    e("v_lshlrev_b32 v1, 4, v0")
    e("v_add_u32 v1, s3, v1")
    e("v_add_u32 v1, 0x%x, v1" % KVACC)
    for i in range(4):
        e("v_mov_b32 v%d, 0" % (4 + i))
    e("buffer_store_dwordx4 v[4:7], v1, s[16:19], 0 offen")
    e("s_endpgm")
    k.lab("L_prep_x0")

    e("s_mov_b32 s8, s44")
    e("s_mov_b32 s9, s45")
    e("s_mov_b32 s10, %d" % XB)
    e("s_mov_b32 s11, 0x00020000")
    e("s_mul_i32 s7, s3, 36864")
    e("s_add_u32 s6, s7, 0x%x" % X0F)
    e("s_mov_b32 s42, 0x3f803f80")
    e("v_and_b32 v1, 31, v3")
    e("v_lshrrev_b32 v2, 5, v3")
    e("s_lshl_b32 s28, s35, 1")
    e("v_add_u32 v2, s28, v2")
    e("v_mul_u32_u24 v4, 1152, v1")
    e("v_mul_u32_u24 v7, 144, v2")
    e("v_add_u32 v4, v4, v7")
    for i in range(9):
        e("buffer_load_dwordx4 %s, v4, s[8:11], s7 offen offset:%d" % (vr(32 + 4 * i, 4), 16 * i))
    e("v_mul_u32_u24 v7, 4608, v2")
    e("v_lshl_add_u32 v7, v1, 4, v7")
    e("v_lshlrev_b32 v10, 6, v1")
    e("v_lshl_add_u32 v10, v2, 3, v10")
    e("s_lshl_b32 s28, s3, 11")
    e("s_add_u32 s28, s28, 0x%x" % STATS)
    e("v_mov_b32 v8, 0")
    e("v_mov_b32 v9, 0")
    e("s_waitcnt vmcnt(0)")
    for i in range(9):
        e("s_add_u32 s7, s6, %d" % (512 * i))
        e("buffer_store_dwordx4 %s, v7, s[16:19], s7 offen" % vr(32 + 4 * i, 4))
        for q in range(4):
            e("v_dot2_f32_bf16 v8, v%d, s42, v8" % (32 + 4 * i + q))
            e("v_dot2_f32_bf16 v9, v%d, v%d, v9" % (32 + 4 * i + q, 32 + 4 * i + q))
    e("s_nop 2")
    e("buffer_store_dwordx2 v[8:9], v10, s[16:19], s28 offen")
    k.stamp(4)
    if STAMPS:
        e("s_waitcnt vmcnt(0)")
    k.stamp(5)
    k.dump()
    k.lab("L_prep_end")
    e("s_endpgm")
    return k


NB = 8
BSLOT = 16 * 1024
QCS_BASE = NB * BSLOT
QST_BASE = QCS_BASE + 1536
QPQ_BASE = 32768
QKV_LDS = QST_BASE + 1024
T_STRIDE = 272


def emit_phi(e, x, t1, t2):
    e("v_min_f32 v%d, 0, v%d" % (t1, x))
    e("v_mul_f32 v%d, s40, v%d" % (t1, t1))
    e("v_exp_f32 v%d, v%d" % (t1, t1))
    e("v_max_f32 v%d, 0, v%d" % (t2, x))
    e("v_add_f32 v%d, s41, v%d" % (t2, t2))
    e("v_add_f32 v%d, v%d, v%d" % (x, t1, t2))


def emit_signal(k, fid, line_sgpr, word_sgpr):
    e = k.e
    e("s_waitcnt vmcnt(0)")
    e("s_barrier")
    k.srd(20, 4, FLAGS + fid * 2048, 2048)
    sk = k.newlab("sig")
    e("s_cmp_lg_u32 s35, 0")
    e("s_cbranch_scc1 %s" % sk)
    e("s_lshl_b32 s40, %s, 7" % line_sgpr)
    e("s_lshl_b32 s41, %s, 2" % word_sgpr)
    e("s_add_u32 s40, s40, s41")
    e("v_mov_b32 v8, 1")
    e("v_mov_b32 v9, 0")
    e("s_mov_b64 exec, 1")
    e("buffer_store_dword v8, v9, s[20:23], s40 offen sc1")
    e("s_mov_b64 exec, -1")
    k.lab(sk)


def emit_poll(k, line_sgpr, nflags, done):
    e = k.e
    lp = k.newlab("poll")
    e("s_lshl_b32 s60, %s, 7" % line_sgpr)
    e("v_and_b32 v9, %d, v3" % (nflags - 1))
    e("v_lshlrev_b32 v9, 2, v9")
    e("s_mov_b32 s61, 0")
    k.lab(lp)
    e("buffer_load_dword v8, v9, s[20:23], s60 offen sc1")
    e("s_waitcnt vmcnt(0)")
    e("v_cmp_ne_u32 vcc, 1, v8")
    e("s_add_u32 s61, s61, 1")
    e("s_nop 3")
    e("s_cbranch_vccz %s" % done)
    e("s_sleep 1")
    e("s_cmp_lt_u32 s61, 0x400000")
    e("s_cbranch_scc1 %s" % lp)


def gen_stub(name, body, params):
    k = Kern(name, body.vgpr, body.lds, body.grid, body.block)
    k.stub = ["s_mov_b32 s%d, 0x%x" % (r, v) for r, v in params] + ["s_branch %s" % body.name]
    return k


def gen_qkv(kind, k=None, params=None, chain=None, kname=None):
    fused = k is not None
    name = "L_qkv%s" % kind
    if not fused:
        if kname:
            name = kname
        k = Kern(name, 184, QKV_LDS, (256, 1, 1), (512, 1, 1))
        if not kname:
            k.nodesc = True
    else:
        k.vgpr = max(k.vgpr, 184)
        k.lds = max(k.lds, QKV_LDS)
    SC = " sc1" if fused else ""
    e = k.e
    ACC = 16
    FR = [48, 72]
    VL16 = 100
    VA = [101, 102]
    VB = [103, 104]
    CSR = 105
    VCS = 106
    STR = 112
    EA = 128
    if fused:
        end = k.endlab
        for r, v in params:
            e("s_mov_b32 s%d, 0x%x" % (r, v))
    else:
        end = "L_%s_end" % name
        e("s_cmp_ge_u32 s2, 256")
        e("s_cbranch_scc1 %s" % end)
        e("s_load_dwordx2 s[4:5], s[0:1], %d" % KA_WS)
        k.stamp(0)
        if kname:
            for r, v in params:
                e("s_mov_b32 s%d, 0x%x" % (r, v))
    k.pqsc = " sc1" if chain is not None else ""
    e("s_and_b32 s28, s2, 7")
    e("s_lshr_b32 s29, s2, 3")
    e("s_lshr_b32 s31, s28, 1")
    e("s_lshl_b32 s31, s31, 2")
    e("s_lshr_b32 s32, s29, 3")
    e("s_add_u32 s31, s31, s32")
    e("s_and_b32 s30, s28, 1")
    e("s_lshl_b32 s30, s30, 3")
    e("s_and_b32 s32, s29, 7")
    e("s_add_u32 s30, s30, s32")
    e("v_and_b32 v3, 63, v0")
    e("v_lshrrev_b32 v4, 6, v0")
    e("v_and_b32 v5, 31, v3")
    e("v_readfirstlane_b32 s35, v4")
    e("v_lshrrev_b32 v6, 5, v3")
    e("v_lshlrev_b32 v%d, 4, v3" % VL16)
    e("s_lshl_b32 s52, s35, 10")
    e("s_mul_i32 s53, s30, %d" % (36 * 4096))
    e("s_add_u32 s53, s53, s52")
    e("s_lshl_b32 s50, s31, 2")
    e("s_lshr_b32 s51, s35, 1")
    e("s_add_u32 s50, s50, s51")
    e("s_mul_i32 s50, s50, 36864")
    e("s_and_b32 s51, s35, 1")
    e("s_lshl_b32 s51, s51, 10")
    e("s_add_u32 s50, s50, s51")
    e("s_and_b32 s36, s35, 3")
    e("s_lshr_b32 s37, s35, 2")
    for i in range(32):
        e("v_mov_b32 v%d, 0" % (ACC + i))
    e("s_lshl_b32 s34, s37, 12")
    e("v_add_u32 v%d, s34, v%d" % (VA[0], VL16))
    e("v_add_u32 v%d, 0x10000, v%d" % (VA[1], VA[0]))
    e("s_lshl_b32 s34, s36, 10")
    e("s_add_u32 s34, s34, 8192")
    e("v_add_u32 v%d, s34, v%d" % (VB[0], VL16))
    e("v_add_u32 v%d, 0x10000, v%d" % (VB[1], VB[0]))
    e("s_mov_b32 s40, 0x%x" % f2u(LOG2E))
    e("s_mov_b32 s41, 0x%x" % f2u(1e-6))
    e("s_waitcnt lgkmcnt(0)")
    k.stamp(2)
    e("s_add_u32 s8, s4, s58")
    e("s_addc_u32 s9, s5, 0")
    e("s_mov_b32 s10, %d" % XB)
    e("s_mov_b32 s11, 0x00020000")
    k.srd(12, 4, WFA if kind == 'A' else WFB, WF_SZ)
    k.srd(16, 4, 0, WS_SIZE)
    issued = []

    def group_ops(g):
        slot = (g % NB) * BSLOT
        return [(g, ["s_add_u32 m0, s52, %d" % slot, "s_nop 0",
                     "buffer_load_dwordx4 v%d, s[8:11], s50 offen%s lds" % (VL16, SC),
                     "s_add_u32 s50, s50, 2048"]),
                (g, ["s_add_u32 m0, s52, %d" % (slot + 8192), "s_nop 0",
                     "buffer_load_dwordx4 v%d, s[12:15], s53 offen lds" % VL16,
                     "s_add_u32 s53, s53, 8192"])]

    def emit_op(op):
        tag, lines = op
        for x in lines:
            e(x)
        if tag is not None:
            issued.append(tag)

    def wait_for(stage):
        last = max(i for i, t in enumerate(issued) if t <= stage)
        return len(issued) - 1 - last

    if fused:
        sk = k.newlab("nb")
        e("s_cmp_lg_u32 s35, 4")
        e("s_cbranch_scc1 %s" % sk)
        e("s_sub_u32 s34, s53, 4096")
        for g in range(NB):
            e("s_mov_b32 m0, %d" % ((g % NB) * BSLOT + 8192))
            e("s_nop 0")
            e("buffer_load_dwordx4 v%d, s[12:15], s34 offen lds" % VL16)
            e("s_add_u32 s34, s34, 8192")
        k.lab(sk)
        sk = k.newlab("nb")
        e("s_cmp_eq_u32 s35, 0")
        e("s_cselect_b32 s34, %d, 0" % (NB * 8192))
        e("s_add_u32 s53, s53, s34")
        e("s_cmp_eq_u32 s35, 0")
        e("s_cbranch_scc1 %s" % sk)
        for g in range(NB):
            emit_op(group_ops(g)[1])
        k.lab(sk)
    else:
        for g in range(3):
            for op in group_ops(g):
                emit_op(op)
    k.mem = []
    if kind == 'A':
        epi_A_pre(k, EA)
    else:
        epi_B_pre(k, EA)
    e("v_min_u32 v7, 383, v0")
    e("v_lshrrev_b32 v8, 7, v7")
    e("v_and_b32 v7, 127, v7")
    e("v_lshlrev_b32 v7, 2, v7")
    e("v_lshl_add_u32 v%d, v8, 13, v7" % VCS)
    e("v_lshl_add_u32 v107, v8, 9, v7")
    e("s_lshl_b32 s54, s30, 9")
    e("s_add_u32 s54, s54, 0x%x" % (CS + (0 if kind == 'A' else CS_MAT)))
    k.stamp(13)
    if fused:
        sk = k.newlab("nw")
        lp = k.newlab("poll")
        e("s_cmp_lg_u32 s35, 0")
        e("s_cbranch_scc1 %s" % sk)
        e("s_lshl_b32 s38, s31, 7")
        e("v_and_b32 v9, 15, v3")
        e("v_lshlrev_b32 v9, 2, v9")
        e("s_mov_b32 s39, 0")
        k.lab(lp)
        e("buffer_load_dword v8, v9, s[20:23], s38 offen sc1")
        e("s_waitcnt vmcnt(0)")
        e("v_cmp_ne_u32 vcc, 1, v8")
        e("s_add_u32 s39, s39, 1")
        e("s_nop 3")
        e("s_cbranch_vccz %s" % sk)
        e("s_sleep 1")
        e("s_cmp_lt_u32 s39, 0x400000")
        e("s_cbranch_scc1 %s" % lp)
        k.lab(sk)
        e("s_barrier")
        k.stamp(12)
        for g in range(NB):
            emit_op(group_ops(g)[0])
    e("s_waitcnt vmcnt(%d) lgkmcnt(0)" % wait_for(0))
    k.stamp(1)
    e("s_barrier")
    k.stamp(3)

    def fread_ops(s):
        f = FR[s & 1]
        slot = s % NB
        hi, so = slot >> 2, (slot & 3) * BSLOT
        ops = []
        for ks in range(2):
            ops.append((None, ["ds_read_b128 %s, v%d offset:%d" % (vr(f + 16 + 4 * ks, 4), VB[hi], so + ks * 4096)]))
            for a in range(2):
                ops.append((None, ["ds_read_b128 %s, v%d offset:%d" % (vr(f + 8 * a + 4 * ks, 4), VA[hi], so + a * 2048 + ks * 1024)]))
        return ops

    for op in fread_ops(0):
        emit_op(op)
    nextg = NB if fused else 3
    for s in range(18):
        fill = []
        if s + 1 <= 17:
            e("s_waitcnt vmcnt(%d) lgkmcnt(0)" % wait_for(s + 1))
            e("s_barrier")
            fill += fread_ops(s + 1)
            for _ in range(int(EXP.get("ng", 2))):
                if nextg <= 17 and nextg <= s + NB:
                    fill += group_ops(nextg)
                    nextg += 1
            if s == 10:
                fill.append((99, ["buffer_load_dword v%d, v%d, s[16:19], s54 offen" % (CSR, VCS)]))
        else:
            e("s_waitcnt lgkmcnt(0)")
        if s == 11:
            ns = k.newlab("ns")
            e("s_cmp_lt_u32 s35, 6")
            e("s_cbranch_scc1 %s" % ns)
            e("s_lshl_b32 s34, s31, 13")
            if params:
                e("s_add_u32 s34, s34, 0x%x" % (STATV[dict(params)[58]] - 6 * 4096))
            else:
                e("s_add_u32 s34, s34, s57")
            e("v_lshlrev_b32 v7, 6, v0")
            for i in range(4):
                e("buffer_load_dwordx4 %s, v7, s[16:19], s34 offen offset:%d%s" % (vr(STR + 4 * i, 4), 16 * i, SC))
            k.lab(ns)
        if s % 3 == 0 and s > 0:
            k.stamp(6 + s // 3)
        f = FR[s & 1]
        nfill = -(-len(fill) // 4)
        for ks in range(2):
            for a in range(2):
                acc = ACC + 16 * a
                e("v_mfma_f32_32x32x16_bf16 %s, %s, %s, %s" % (vr(acc, 16), vr(f + 16 + 4 * ks, 4), vr(f + 8 * a + 4 * ks, 4), vr(acc, 16)))
                for _ in range(nfill):
                    if fill:
                        emit_op(fill.pop(0))
    k.stamp(4)
    e("s_waitcnt vmcnt(0)")
    e("ds_write_b32 v107, v%d offset:0" % CSR if False else "v_add_u32 v7, %d, v107" % QCS_BASE)
    e("ds_write_b32 v7, v%d" % CSR)
    ns = k.newlab("ns")
    e("s_cmp_lt_u32 s35, 6")
    e("s_cbranch_scc1 %s" % ns)
    for i in range(1, 8):
        e("v_add_f32 v%d, v%d, v%d" % (STR, STR, STR + 2 * i))
        e("v_add_f32 v%d, v%d, v%d" % (STR + 1, STR + 1, STR + 2 * i + 1))
    e("v_mul_f32 v%d, 0x%x, v%d" % (STR, f2u(1.0 / 576), STR))
    e("v_mul_f32 v%d, 0x%x, v%d" % (STR + 1, f2u(1.0 / 576), STR + 1))
    e("v_fma_f32 v%d, -v%d, v%d, v%d" % (STR + 1, STR, STR, STR + 1))
    e("v_max_f32 v%d, 0, v%d" % (STR + 1, STR + 1))
    e("v_add_f32 v%d, 0x%x, v%d" % (STR + 1, f2u(1e-5), STR + 1))
    e("v_rsq_f32 v%d, v%d" % (STR + 1, STR + 1))
    e("s_nop 0")
    e("v_mul_f32 v%d, v%d, v%d" % (STR, STR, STR + 1))
    e("v_lshlrev_b32 v7, 2, v0")
    e("v_add_u32 v7, %d, v7" % (QST_BASE - 6 * 256))
    e("ds_write_b32 v7, v%d" % (STR + 1))
    e("ds_write_b32 v7, v%d offset:512" % STR)
    k.lab(ns)
    e("s_waitcnt lgkmcnt(0)")
    e("s_barrier")
    RS = 100
    e("s_lshl_b32 s34, s37, 8")
    e("s_add_u32 s34, s34, %d" % QST_BASE)
    e("v_lshl_add_u32 v7, v5, 2, s34")
    for a in range(2):
        e("ds_read_b32 v%d, v7 offset:%d" % (RS + 2 * a, a * 128))
        e("ds_read_b32 v%d, v7 offset:%d" % (RS + 4 + 2 * a, 512 + a * 128))
    e("s_lshl_b32 s34, s36, 7")
    e("s_add_u32 s34, s34, %d" % QCS_BASE)
    e("v_lshl_add_u32 v8, v6, 4, s34")
    for q in range(4):
        for p in range(3):
            e("ds_read_b128 %s, v8 offset:%d" % (vr(52 + 16 * p + 4 * q, 4), 512 * p + 32 * q))
    e("s_waitcnt lgkmcnt(0)")
    for i in range(4):
        e("v_mov_b32 v%d, v%d" % (RS + 2 * i + 1, RS + 2 * i))
    for r in range(0, 16, 2):
        e("v_pk_add_f32 %s, %s, %s" % (vr(52 + r, 2), vr(52 + r, 2), vr(68 + r, 2)))
        e("v_pk_add_f32 %s, %s, %s" % (vr(52 + r, 2), vr(52 + r, 2), vr(84 + r, 2)))
    for a in range(2):
        for r in range(0, 16, 2):
            acc = ACC + 16 * a + r
            e("v_pk_mul_f32 v[10:11], %s, %s" % (vr(RS + 4 + 2 * a, 2), vr(52 + r, 2)))
            e("v_pk_fma_f32 %s, %s, %s, v[10:11] neg_lo:[0,0,1] neg_hi:[0,0,1]" % (vr(acc, 2), vr(acc, 2), vr(RS + 2 * a, 2)))
    if kind == 'A':
        epi_A(k, ACC, EA)
    else:
        epi_B(k, ACC, EA)
    if chain is not None:
        emit_signal(k, chain, "s30", "s31")
        k.endlab = end
        return k
    k.stamp(5)
    if STAMPS:
        e("s_waitcnt vmcnt(0)")
    k.stamp(6)
    k.dump()
    k.lab(end)
    e("s_endpgm")
    return k


def sprinkle(k, n):
    for _ in range(n):
        if k.mem:
            for x in k.mem.pop(0):
                k.e(x)


def per_wave(k, fn, nw=8):
    e = k.e
    labs = [k.newlab("w") for _ in range(nw)]
    lj = k.newlab("wj")
    for w in range(1, nw):
        e("s_cmp_eq_u32 s35, %d" % w)
        e("s_cbranch_scc1 %s" % labs[w])
    for w in range(nw):
        k.lab(labs[w])
        fn(w)
        if w < nw - 1:
            e("s_branch %s" % lj)
    k.lab(lj)


def half_ops(k, lo, hi):
    for x in lo:
        k.e(x)
    k.e("s_mov_b32 exec_lo, 0")
    for x in hi:
        k.e(x)
    k.e("s_mov_b32 exec_lo, -1")


DUMMY = 98304


KV_ROW = 168


def epi_A_pre(k, EA):
    e = k.e
    e("v_mul_u32_u24 v12, %d, v5" % KV_ROW)
    e("v_lshlrev_b32 v13, 4, v5")
    e("v_lshlrev_b32 v14, 2, v5")

    def var(w):
        ct, rh = w & 3, w >> 2
        ops = [[], []]
        for q in range(4):
            for pr in range(2):
                i = 2 * q + pr
                for h in range(2):
                    vc = 32 * ct + 8 * q + 4 * h + 2 * pr
                    for a in range(2):
                        if vc < 72:
                            c = (64 * rh + 32 * a) * KV_ROW + (vc // 18) * 40 + (vc % 18) * 2
                            t = 12
                        elif vc < 108:
                            hl, d = (vc - 72) // 18, (vc - 72) % 18
                            sb = QPQ_BASE + (4 * hl + 2 * rh + a) * 2560
                            if d < 16:
                                c, t = sb + (d >> 3) * 512 + (d & 7) * 2, 13
                            else:
                                c, t = sb + 1024, 14
                        else:
                            c, t = DUMMY, 12
                        ops[h].append("v_add_u32 v%d, %d, v%d" % (EA + 2 * i + a, c, t))
                    isv = 36 <= vc < 72
                    ops[h].append("v_mov_b32 v%d, 0x%x" % (EA + 32 + i, 0 if isv else f2u(1.0)))
                    ops[h].append("v_mov_b32 v%d, 0x%x" % (EA + 44 + i, 0xff800000 if isv else 0))
        half_ops(k, ops[0], ops[1])
        if w < 2:
            e("v_lshrrev_b32 v7, 2, v3")
            e("v_and_b32 v7, 3, v7")
            e("v_lshl_add_u32 v7, v6, 3, v7")
            e("v_mul_u32_u24 v7, %d, v7" % KV_ROW)
            e("v_bfe_u32 v8, v3, 4, 1")
            e("v_lshl_add_u32 v7, v8, 5, v7")
            e("v_and_b32 v8, 3, v3")
            e("v_lshl_add_u32 v7, v8, 3, v7")
            e("v_add_u32 v%d, %d, v7" % (EA + 40, 40 * w))
            e("v_add_u32 v%d, %d, v7" % (EA + 41, 80 + 40 * w))
            e("v_cmp_gt_u32 vcc, 18, v5")
            e("v_lshlrev_b32 v10, 2, v5")
            e("v_lshl_add_u32 v10, v6, 9, v10")
            e("v_mov_b32 v9, 0x40000000")
            e("v_cndmask_b32 v%d, v9, v10, vcc" % (EA + 42))
            e("v_cmp_eq_u32 vcc, 0, v6")
            e("s_nop 1")
            e("v_cndmask_b32 v%d, v9, v%d, vcc" % (EA + 43, EA + 42))
        else:
            for i in range(4):
                e("v_mov_b32 v%d, 0x40000000" % (EA + 40 + i))

    per_wave(k, var)


def epi_A(k, ACC, EA):
    e = k.e
    e("v_mov_b32 v12, s40")
    e("v_mov_b32 v13, s40")
    e("v_mov_b32 v14, s41")
    e("v_mov_b32 v15, s41")
    for q in range(4):
        for pr in range(2):
            i = 2 * q + pr
            for a in range(2):
                acc = ACC + 16 * a + 4 * q + 2 * pr
                e("v_pk_mul_f32 v[10:11], %s, v[12:13]" % vr(acc, 2))
                e("v_min_f32 v10, 0, v10")
                e("v_min_f32 v11, 0, v11")
                e("v_exp_f32 v10, v10")
                e("v_exp_f32 v11, v11")
                e("v_max_f32 v%d, v%d, v%d" % (acc, acc, EA + 44 + i))
                e("v_max_f32 v%d, v%d, v%d" % (acc + 1, acc + 1, EA + 44 + i))
                e("v_pk_add_f32 v[10:11], v[10:11], v[14:15]")
                e("v_fmac_f32 v%d, v10, v%d" % (acc, EA + 32 + i))
                e("v_fmac_f32 v%d, v11, v%d" % (acc + 1, EA + 32 + i))
                e("v_cvt_pk_bf16_f32 v%d, v%d, v%d" % (acc, acc, acc + 1))
                e("ds_write_b32 v%d, v%d" % (EA + 2 * i + a, acc))
    e("v_lshrrev_b32 v10, 2, v0")
    e("v_mul_u32_u24 v10, %d, v10" % KV_ROW)
    e("v_and_b32 v11, 3, v0")
    e("v_mul_u32_u24 v11, 40, v11")
    e("v_add_u32 v10, v10, v11")
    e("v_mov_b32 v11, 0x3f80")
    e("ds_write_b32 v10, v11 offset:36")
    e("s_waitcnt lgkmcnt(0)")
    e("s_barrier")
    e("s_lshl_b32 s39, s31, 2")
    e("s_add_u32 s39, s39, s36")
    e("s_lshl_b32 s39, s39, 5")
    e("s_lshl_b32 s43, s30, 1")
    e("s_add_u32 s39, s39, s43")
    e("s_add_u32 s39, s39, s37")
    e("s_mul_i32 s39, s39, 1152")
    e("s_add_u32 s39, s39, 0x%x" % PQF)
    e("s_mul_i32 s38, s35, 2560")
    e("s_add_u32 s38, s38, %d" % QPQ_BASE)
    e("v_lshlrev_b32 v8, 4, v3")
    e("v_add_u32 v9, s38, v8")
    e("ds_read_b128 v[100:103], v9")
    e("ds_read_b128 v[104:107], v9 offset:1024")
    e("v_mov_b32 v10, 0x40000000")
    e("v_cmp_gt_u32 vcc, 8, v3")
    e("s_nop 1")
    e("v_cndmask_b32 v11, v10, v8, vcc")
    e("s_waitcnt lgkmcnt(0)")
    e("buffer_store_dwordx4 v[100:103], v8, s[16:19], s39 offen%s" % k.pqsc)
    e("buffer_store_dwordx4 v[104:107], v11, s[16:19], s39 offen offset:1024%s" % k.pqsc)
    lj = k.newlab("ej")
    e("s_cmp_ge_u32 s35, 2")
    e("s_cbranch_scc1 %s" % lj)
    for st in range(8):
        for hf in range(2):
            o = (16 * st + 4 * hf) * KV_ROW
            e("ds_read_b64_tr_b16 %s, v%d offset:%d" % (vr(16 + 8 * st + 2 * hf, 2), EA + 40, o))
            e("ds_read_b64_tr_b16 %s, v%d offset:%d" % (vr(20 + 8 * st + 2 * hf, 2), EA + 41, o))
    e("s_lshl_b32 s39, s30, 1")
    e("s_add_u32 s39, s39, s35")
    e("s_mul_i32 s39, s39, 2432")
    e("s_add_u32 s39, s39, s59")
    e("s_waitcnt lgkmcnt(0)")
    for st in range(8):
        c = "0" if st == 0 else vr(80, 16)
        e("v_mfma_f32_32x32x16_bf16 %s, %s, %s, %s" % (vr(80, 16), vr(20 + 8 * st, 4), vr(16 + 8 * st, 4), c))
    e("s_nop 7")
    e("s_nop 7")
    for r in range(11):
        ee = (r & 3) + 8 * (r >> 2)
        e("buffer_atomic_add_f32 v%d, v%d, s[16:19], s39 offen offset:%d" % (80 + r, EA + 42 if r < 8 else EA + 43, 128 * ee))
    k.lab(lj)


IMG_S = 2560
IMG_K = 8 * IMG_S
IMG_V = 16 * IMG_S
V_ROW = 72


def epi_B_pre(k, EA):
    e = k.e
    e("v_lshlrev_b32 v12, 4, v5")
    e("v_lshlrev_b32 v13, 2, v5")
    e("v_mul_u32_u24 v14, %d, v5" % V_ROW)

    def var(w):
        ct, rh = w & 3, w >> 2
        ops = [[], []]
        for q in range(4):
            for pr in range(2):
                i = 2 * q + pr
                for h in range(2):
                    vc = 32 * ct + 8 * q + 4 * h + 2 * pr
                    sc = 1.0
                    if vc >= 108:
                        c, t = DUMMY, 13
                    else:
                        seg, cc = vc // 36, vc % 36
                        hl, d = cc // 18, cc % 18
                        sb = (4 * hl + 2 * rh) * IMG_S
                        if seg == 2:
                            c, t = IMG_V + sb + d * 2, 14
                        else:
                            base = sb + (IMG_K if seg == 1 else 0)
                            if d < 16:
                                c, t = base + (d >> 3) * 512 + (d & 7) * 2, 12
                            else:
                                c, t = base + 1024, 13
                            if seg == 0:
                                sc = QSCALE
                    ops[h].append("v_add_u32 v%d, %d, v%d" % (EA + i, c, t))
                    ops[h].append("v_mov_b32 v%d, 0x%x" % (EA + 16 + 2 * i, f2u(sc)))
                    ops[h].append("v_mov_b32 v%d, 0x%x" % (EA + 17 + 2 * i, f2u(sc)))
        half_ops(k, ops[0], ops[1])

    per_wave(k, var)
    e("v_lshrrev_b32 v7, 2, v3")
    e("v_and_b32 v7, 3, v7")
    e("v_lshl_add_u32 v7, v6, 2, v7")
    e("v_mul_u32_u24 v7, %d, v7" % V_ROW)
    e("v_bfe_u32 v8, v3, 4, 1")
    e("v_lshl_add_u32 v7, v8, 5, v7")
    e("v_and_b32 v9, 3, v3")
    e("v_lshl_add_u32 v7, v9, 3, v7")
    e("s_mul_i32 s38, s35, %d" % IMG_S)
    e("s_add_u32 s38, s38, %d" % IMG_V)
    e("v_add_u32 v%d, s38, v7" % (EA + 8))
    e("v_mul_u32_u24 v7, 320, v6")
    e("v_lshl_add_u32 v7, v5, 4, v7")
    e("v_add_u32 v7, 1152, v7")
    e("v_cmp_gt_u32 vcc, 19, v5")
    e("v_mov_b32 v10, 0x40000000")
    e("s_nop 0")
    e("v_cndmask_b32 v%d, v10, v7, vcc" % (EA + 9))
    e("v_lshlrev_b32 v8, 4, v3")
    e("v_cmp_gt_u32 vcc, 8, v3")
    e("s_nop 1")
    e("v_cndmask_b32 v%d, v10, v8, vcc" % (EA + 10))


def epi_B(k, ACC, EA):
    e = k.e
    for q in range(4):
        for pr in range(2):
            i = 2 * q + pr
            for a in range(2):
                acc = ACC + 16 * a + 4 * q + 2 * pr
                e("v_pk_mul_f32 %s, %s, %s" % (vr(acc, 2), vr(acc, 2), vr(EA + 16 + 2 * i, 2)))
                e("v_cvt_pk_bf16_f32 v%d, v%d, v%d" % (acc, acc, acc + 1))
                e("ds_write_b32 v%d, v%d offset:%d" % (EA + i, acc, IMG_S * a))
    e("s_mul_i32 s38, s35, %d" % IMG_S)
    e("v_mul_u32_u24 v7, %d, v5" % V_ROW)
    e("v_add_u32 v7, s38, v7")
    e("v_mov_b32 v8, 0x3f80")
    e("ds_write_b32 v7, v8 offset:%d" % (IMG_V + 36))
    e("s_waitcnt lgkmcnt(0)")
    e("s_barrier")
    e("v_lshlrev_b32 v8, 4, v3")
    e("v_add_u32 v9, s38, v8")
    e("ds_read_b128 v[48:51], v9")
    e("ds_read_b128 v[52:55], v9 offset:1024")
    e("ds_read_b128 v[56:59], v9 offset:%d" % IMG_K)
    e("ds_read_b128 v[60:63], v9 offset:%d" % (IMG_K + 1024))
    for ab in range(2):
        for hf in range(2):
            e("ds_read_b64_tr_b16 %s, v%d offset:%d" % (vr(64 + 4 * ab + 2 * hf, 2), EA + 8, (16 * ab + 8 * hf) * V_ROW))
    e("s_lshl_b32 s43, s30, 1")
    e("s_add_u32 s43, s43, s37")
    e("s_lshl_b32 s38, s31, 2")
    e("s_add_u32 s38, s38, s36")
    e("s_mul_i32 s44, s43, %d" % QHEAD)
    e("s_mul_i32 s39, s38, 1152")
    e("s_add_u32 s44, s44, s39")
    e("s_add_u32 s44, s44, 0x%x" % QPI)
    e("s_mul_i32 s46, s43, %d" % KVHEAD)
    e("s_mul_i32 s39, s38, 2432")
    e("s_add_u32 s46, s46, s39")
    e("s_add_u32 s46, s46, 0x%x" % KVI)
    e("s_waitcnt lgkmcnt(0)")
    sc = k.pqsc
    e("buffer_store_dwordx4 v[48:51], v8, s[16:19], s44 offen" + sc)
    e("buffer_store_dwordx4 v[52:55], v%d, s[16:19], s44 offen offset:1024" % (EA + 10) + sc)
    e("buffer_store_dwordx4 v[56:59], v8, s[16:19], s46 offen" + sc)
    e("buffer_store_dwordx4 v[60:63], v%d, s[16:19], s46 offen offset:1024" % (EA + 10) + sc)
    e("buffer_store_dwordx4 v[64:67], v%d, s[16:19], s46 offen" % (EA + 9) + sc)
    e("buffer_store_dwordx4 v[68:71], v%d, s[16:19], s46 offen offset:640" % (EA + 9) + sc)


def gen_attn(name):
    k = Kern(name, 120, KVHEAD, (256, 1, 1), (1024, 1, 1))
    e = k.e
    SA, SB = 16, 32
    P = 48
    O = 56
    CM = 72
    Q1, Q2 = 88, 92
    K1, K2 = 96, 100
    VVa, VVb = 104, 108
    vK1, vK2, vV = 112, 113, 114
    vK1b, vK2b, vVb = 115, 116, 117
    SEGS = [2, 6, 24]
    HALF = 32 * 2432
    end = "L_%s_end" % name
    e("s_cmp_ge_u32 s2, 256")
    e("s_cbranch_scc1 %s" % end)
    e("s_load_dwordx2 s[4:5], s[0:1], %d" % KA_WS)
    k.stamp(0)
    k.rstamp(4)
    e("s_and_b32 s30, s2, 7")
    e("s_lshr_b32 s31, s2, 3")
    e("s_and_b32 s32, s31, 3")
    e("s_lshl_b32 s30, s30, 2")
    e("s_add_u32 s30, s30, s32")
    e("s_lshr_b32 s31, s31, 2")
    e("v_lshrrev_b32 v4, 6, v0")
    e("v_and_b32 v3, 63, v0")
    e("v_readfirstlane_b32 s35, v4")
    e("s_mul_i32 s33, s30, %d" % KVHEAD)
    e("s_lshr_b32 s40, s35, 3")
    e("s_and_b32 s41, s35, 7")
    e("s_mul_i32 s42, s40, %d" % HALF)
    e("v_lshlrev_b32 v1, 4, v3")
    e("s_lshl_b32 s36, s31, 3")
    e("s_add_u32 s36, s36, s41")
    e("s_mul_i32 s37, s36, 1152")
    e("s_mul_i32 s38, s30, %d" % QHEAD)
    e("s_add_u32 s37, s37, s38")
    e("s_add_u32 s37, s37, 0x%x" % QPI)
    e("v_and_b32 v5, 31, v3")
    e("v_lshrrev_b32 v6, 5, v3")
    e("v_lshlrev_b32 v7, 2, v5")
    e("s_lshl_b32 s39, s41, 10")
    e("s_add_u32 s39, s39, s42")
    e("s_add_u32 s43, s42, %d" % (75 * 1024))
    e("s_waitcnt lgkmcnt(0)")
    e("s_add_u32 s8, s4, s33")
    e("s_addc_u32 s9, s5, 0")
    e("s_add_u32 s8, s8, 0x%x" % KVI)
    e("s_addc_u32 s9, s9, 0")
    e("s_mov_b32 s10, %d" % KVHEAD)
    e("s_mov_b32 s11, 0x00020000")
    k.srd(16, 4, 0, WS_SIZE)
    e("buffer_load_dwordx4 %s, v1, s[16:19], s37 offen" % vr(Q1, 4))
    e("buffer_load_dword v%d, v7, s[16:19], s37 offen offset:1024" % Q2)
    def dma(i):
        if i == 9:
            e("s_min_u32 s39, s39, s43")
        e("s_mov_b32 m0, s39")
        e("s_nop 0")
        e("buffer_load_dwordx4 v1, s[8:11], s39 offen lds")
        e("s_add_u32 s39, s39, 8192")

    dma(0)
    dma(1)
    e("v_add_u32 v%d, s42, v1" % vK1b)
    e("v_add_u32 v8, 1024, v7")
    e("v_add_u32 v%d, s42, v8" % vK2b)
    e("v_min_u32 v8, 18, v5")
    e("v_lshlrev_b32 v8, 4, v8")
    e("v_mul_u32_u24 v9, 320, v6")
    e("v_add3_u32 v8, v8, v9, s42")
    e("v_add_u32 v%d, 1152, v8" % vVb)
    for i in range(1, 4):
        e("v_mov_b32 v%d, 0" % (Q2 + i))
        e("v_mov_b32 v%d, 0" % (K2 + i))
    e("v_cmp_eq_u32 vcc, 0, v6")
    e("s_waitcnt vmcnt(2)")
    e("v_cndmask_b32 v%d, 0, v%d, vcc" % (Q2, Q2))
    e("s_mov_b32 s50, 0")

    def seg_wait(c):
        ntiles = sum(SEGS[:c + 1]) + 2
        need = min(-(-(ntiles * 2432) // 1024), 76)
        n = min((need - 1) // 8 + 1, 10)
        issued = 2 + min(sum(SEGS[:c]), 8)
        assert issued >= n
        return issued - n

    e("s_waitcnt vmcnt(%d)" % seg_wait(0))
    e("s_barrier")
    k.stamp(1)
    e("ds_read_b128 %s, v%d" % (vr(K1, 4), vK1b))
    e("ds_read_b32 v%d, v%d" % (K2, vK2b))
    e("s_waitcnt lgkmcnt(0)")
    e("v_mfma_f32_32x32x16_bf16 %s, %s, %s, 0" % (vr(SA, 16), vr(K1, 4), vr(Q1, 4)))
    e("v_mfma_f32_32x32x16_bf16 %s, %s, %s, %s" % (vr(SA, 16), vr(K2, 4), vr(Q2, 4), vr(SA, 16)))
    e("s_nop 7")
    e("s_nop 7")
    e("v_max3_f32 v10, v%d, v%d, v%d" % (SA, SA + 1, SA + 2))
    for i in range(3, 15, 2):
        e("v_max3_f32 v10, v10, v%d, v%d" % (SA + i, SA + i + 1))
    e("v_max_f32 v10, v10, v%d" % (SA + 15))
    run = "L_%s_run" % name
    k.lab(run)
    e("v_mov_b32 v11, v10")
    e("s_nop 1")
    e("v_permlane32_swap_b32 v11, v10")
    e("s_nop 1")
    e("v_max_f32 v10, v10, v11")
    e("v_sub_f32 v10, 0, v10")
    for i in range(16):
        e("v_mov_b32 v%d, v10" % (CM + i))
        e("v_mov_b32 v%d, 0" % (O + i))
    e("v_mov_b32 v%d, v%d" % (vK1, vK1b))
    e("v_mov_b32 v%d, v%d" % (vK2, vK2b))
    e("v_mov_b32 v%d, v%d" % (vV, vVb))
    e("ds_read_b128 %s, v%d" % (vr(K1, 4), vK1))
    e("ds_read_b32 v%d, v%d" % (K2, vK2))
    e("s_waitcnt lgkmcnt(0)")
    e("v_mfma_f32_32x32x16_bf16 %s, %s, %s, %s" % (vr(SA, 16), vr(K1, 4), vr(Q1, 4), vr(CM, 16)))
    e("v_mfma_f32_32x32x16_bf16 %s, %s, %s, %s" % (vr(SA, 16), vr(K2, 4), vr(Q2, 4), vr(SA, 16)))
    e("ds_read_b128 %s, v%d offset:2432" % (vr(K1, 4), vK1))
    e("ds_read_b32 v%d, v%d offset:2432" % (K2, vK2))
    e("ds_read_b128 %s, v%d" % (vr(VVa, 4), vV))
    e("ds_read_b128 %s, v%d offset:640" % (vr(VVb, 4), vV))
    e("s_nop 7")

    def body(t, Sc, Sn):
        o = 2432 * (t % 16)
        e("s_waitcnt lgkmcnt(2)")
        e("v_mfma_f32_32x32x16_bf16 %s, %s, %s, %s" % (vr(Sn, 16), vr(K1, 4), vr(Q1, 4), vr(CM, 16)))
        e("v_mfma_f32_32x32x16_bf16 %s, %s, %s, %s" % (vr(Sn, 16), vr(K2, 4), vr(Q2, 4), vr(Sn, 16)))
        e("ds_read_b128 %s, v%d offset:%d" % (vr(K1, 4), vK1, o + 2 * 2432))
        e("ds_read_b32 v%d, v%d offset:%d" % (K2, vK2, o + 2 * 2432))
        for i in range(16):
            e("v_exp_f32 v%d, v%d" % (Sc + i, Sc + i))
            if i & 1 and i >= 3:
                e("v_cvt_pk_bf16_f32 v%d, v%d, v%d" % (P + (i - 3) // 2, Sc + i - 3, Sc + i - 2))
        e("v_cvt_pk_bf16_f32 v%d, v%d, v%d" % (P + 7, Sc + 14, Sc + 15))
        e("s_waitcnt lgkmcnt(2)")
        e("v_mfma_f32_32x32x16_bf16 %s, %s, %s, %s" % (vr(O, 16), vr(VVa, 4), vr(P, 4), vr(O, 16)))
        e("v_mfma_f32_32x32x16_bf16 %s, %s, %s, %s" % (vr(O, 16), vr(VVb, 4), vr(P + 4, 4), vr(O, 16)))
        e("ds_read_b128 %s, v%d offset:%d" % (vr(VVa, 4), vV, o + 2432))
        e("ds_read_b128 %s, v%d offset:%d" % (vr(VVb, 4), vV, o + 2432 + 640))

    t = 0
    for c, nts in enumerate(SEGS):
        if c > 0:
            sk = k.newlab("sk")
            e("s_cmp_lg_u32 s50, 0")
            e("s_cbranch_scc1 %s" % sk)
            e("s_waitcnt vmcnt(%d)" % seg_wait(c))
            e("s_barrier")
            k.lab(sk)
        if c == 2:
            for _ in range(int(EXP.get("pad", 0))):
                e("s_nop 0")
        for i in range(nts):
            if t == 16:
                e("v_add_u32 v%d, %d, v%d" % (vK1, 16 * 2432, vK1))
                e("v_add_u32 v%d, %d, v%d" % (vK2, 16 * 2432, vK2))
                e("v_add_u32 v%d, %d, v%d" % (vV, 16 * 2432, vV))
            if t < 8:
                sk = k.newlab("sd")
                e("s_cmp_lg_u32 s50, 0")
                e("s_cbranch_scc1 %s" % sk)
                dma(t + 2)
                k.lab(sk)
            if t & 1:
                body(t, SB, SA)
            else:
                body(t, SA, SB)
            t += 1
    e("s_waitcnt lgkmcnt(0)")
    k.stamp(2)
    e("s_nop 7")
    e("s_nop 7")
    e("v_max3_f32 v10, |v%d|, |v%d|, |v%d|" % (O, O + 1, O + 2))
    for i in range(3, 11, 2):
        e("v_max3_f32 v10, v10, |v%d|, |v%d|" % (O + i, O + i + 1))
    e("v_max_f32 v10, v10, |v%d|" % (O + 11))
    e("v_add_f32 v11, v%d, v%d" % (O, O + 1))
    for i in range(2, 12):
        e("v_add_f32 v11, v11, v%d" % (O + i))
    e("v_mov_b32 v12, 0x%x" % f2u(2.0 ** (-100 if EXP.get("forcefb") else 100)))
    e("v_cmp_nlt_f32 vcc, v10, v12")
    e("v_cmp_u_f32 s[52:53], v11, v11")
    e("s_nop 3")
    e("s_or_b64 vcc, vcc, s[52:53]")
    e("s_cmp_lg_u32 s50, 0")
    fin = "L_%s_fin" % name
    e("s_cbranch_scc1 %s" % fin)
    e("s_cbranch_vccz %s" % fin)
    e("s_mov_b32 s50, 1")
    e("v_mov_b32 v%d, v%d" % (vK1, vK1b))
    e("v_mov_b32 v%d, v%d" % (vK2, vK2b))
    e("v_mov_b32 v10, 0xff800000")
    e("s_mov_b32 s51, 0")
    fl = "L_%s_fl" % name
    k.lab(fl)
    e("ds_read_b128 %s, v%d" % (vr(K1, 4), vK1))
    e("ds_read_b32 v%d, v%d" % (K2, vK2))
    e("s_waitcnt lgkmcnt(0)")
    e("v_mfma_f32_32x32x16_bf16 %s, %s, %s, 0" % (vr(SA, 16), vr(K1, 4), vr(Q1, 4)))
    e("v_mfma_f32_32x32x16_bf16 %s, %s, %s, %s" % (vr(SA, 16), vr(K2, 4), vr(Q2, 4), vr(SA, 16)))
    e("s_nop 7")
    e("s_nop 7")
    for i in range(0, 16, 2):
        e("v_max3_f32 v10, v10, v%d, v%d" % (SA + i, SA + i + 1))
    e("v_add_u32 v%d, 2432, v%d" % (vK1, vK1))
    e("v_add_u32 v%d, 2432, v%d" % (vK2, vK2))
    e("s_add_u32 s51, s51, 1")
    e("s_cmp_lt_u32 s51, 32")
    e("s_cbranch_scc1 %s" % fl)
    e("s_branch %s" % run)
    k.lab(fin)
    e("s_barrier")
    e("s_mul_i32 s37, s41, 4096")
    e("v_add_u32 v1, s37, v1")
    e("s_cmp_eq_u32 s40, 0")
    lo = "L_%s_lo" % name
    e("s_cbranch_scc1 %s" % lo)
    e("v_mov_b32 v%d, v%d" % (O + 10, CM))
    for i in range(3):
        e("ds_write_b128 v1, %s offset:%d" % (vr(O + 4 * i, 4), 1024 * i))
    e("s_waitcnt lgkmcnt(0)")
    e("s_barrier")
    e("s_endpgm")
    k.lab(lo)
    e("s_barrier")
    for i in range(3):
        e("ds_read_b128 %s, v1 offset:%d" % (vr(SA + 4 * i, 4), 1024 * i))
    e("s_waitcnt lgkmcnt(0)")
    e("v_min_f32 v10, v%d, v%d" % (CM, SA + 10))
    e("v_sub_f32 v11, v10, v%d" % CM)
    e("v_sub_f32 v12, v10, v%d" % (SA + 10))
    e("v_exp_f32 v11, v11")
    e("v_exp_f32 v12, v12")
    e("s_nop 0")
    for i in list(range(10)) + [11]:
        e("v_mul_f32 v%d, v11, v%d" % (O + i, O + i))
        e("v_fmac_f32 v%d, v12, v%d" % (O + i, SA + i))
    e("v_rcp_f32 v10, v%d" % (O + 11))
    e("s_nop 0")
    for i in range(10):
        e("v_mul_f32 v%d, v10, v%d" % (O + i, O + i))
    for i in range(5):
        e("v_cvt_pk_bf16_f32 v%d, v%d, v%d" % (O + i, O + 2 * i, O + 2 * i + 1))
    e("s_lshl_b32 s37, s36, 1")
    e("v_lshrrev_b32 v12, 4, v5")
    e("v_add_u32 v12, s37, v12")
    e("v_mul_u32_u24 v12, 18432, v12")
    e("v_and_b32 v13, 15, v5")
    e("v_lshl_add_u32 v12, v13, 4, v12")
    e("v_add_u32 v12, 0x%x, v12" % OB)
    e("s_mul_i32 s37, s30, 18")
    e("v_lshlrev_b32 v13, 2, v6")
    e("v_add_u32 v13, s37, v13")
    e("v_cmp_eq_u32 vcc, 0, v6")
    for i, dd in enumerate([0, 2, 8, 10, 16]):
        e("v_add_u32 v14, %d, v13" % dd)
        e("v_lshrrev_b32 v15, 3, v14")
        e("v_and_b32 v14, 7, v14")
        e("v_lshl_add_u32 v15, v15, 8, v12")
        e("v_lshl_add_u32 v15, v14, 1, v15")
        if dd == 16:
            e("v_mov_b32 v14, 0x40000000")
            e("v_cndmask_b32 v15, v14, v15, vcc")
        e("buffer_store_dword v%d, v15, s[16:19], 0 offen" % (O + i))
    k.stamp(3)
    k.rstamp(5)
    k.dump()
    k.lab(end)
    e("s_endpgm")
    return k


def gen_attn8(name, k=None, out_fid=None):
    chained = k is not None
    if chained:
        k.vgpr = max(k.vgpr, 200)
        k.lds = max(k.lds, KVHEAD)
        name = k.newlab("a")[2:]
    else:
        k = Kern(name, 200, KVHEAD, (256, 1, 1), (512, 1, 1))
    e = k.e
    S = [[16, 32], [48, 64]]
    P = [80, 88]
    O = [96, 112]
    CM = [128, 144]
    Q1 = [160, 168]
    Q2 = [164, 172]
    K1, K2 = 176, 180
    VVa, VVb = 184, 188
    vK1, vK2, vV = 192, 193, 194
    vK1b, vK2b, vVb = 195, 196, 197
    SEGS = [2, 6, 24]
    HALF = 32 * 2432
    NP = 19
    if chained:
        end = k.endlab
    else:
        end = "L_%s_end" % name
        e("s_cmp_ge_u32 s2, 256")
        e("s_cbranch_scc1 %s" % end)
        e("s_load_dwordx2 s[4:5], s[0:1], %d" % KA_WS)
        k.stamp(0)
        k.rstamp(4)
    e("s_and_b32 s30, s2, 7")
    e("s_lshr_b32 s31, s2, 3")
    e("s_and_b32 s32, s31, 3")
    e("s_lshl_b32 s30, s30, 2")
    e("s_add_u32 s30, s30, s32")
    e("s_lshr_b32 s31, s31, 2")
    e("v_lshrrev_b32 v4, 6, v0")
    e("v_and_b32 v3, 63, v0")
    e("v_readfirstlane_b32 s35, v4")
    e("s_mul_i32 s33, s30, %d" % KVHEAD)
    e("s_lshr_b32 s40, s35, 2")
    e("s_and_b32 s41, s35, 3")
    e("s_mul_i32 s42, s40, %d" % HALF)
    e("v_lshlrev_b32 v1, 4, v3")
    e("s_lshl_b32 s36, s31, 3")
    e("s_lshl_b32 s37, s41, 1")
    e("s_add_u32 s36, s36, s37")
    e("s_mul_i32 s37, s36, 1152")
    e("s_mul_i32 s38, s30, %d" % QHEAD)
    e("s_add_u32 s37, s37, s38")
    e("s_add_u32 s37, s37, 0x%x" % QPI)
    e("v_and_b32 v5, 31, v3")
    e("v_lshrrev_b32 v6, 5, v3")
    e("v_lshlrev_b32 v7, 2, v5")
    e("s_lshl_b32 s39, s41, 10")
    e("s_add_u32 s39, s39, s42")
    e("s_waitcnt lgkmcnt(0)")
    e("s_add_u32 s8, s4, s33")
    e("s_addc_u32 s9, s5, 0")
    e("s_add_u32 s8, s8, 0x%x" % KVI)
    e("s_addc_u32 s9, s9, 0")
    e("s_mov_b32 s10, %d" % KVHEAD)
    e("s_mov_b32 s11, 0x00020000")
    k.srd(16, 4, 0, WS_SIZE)
    if chained:
        sk = k.newlab("nw")
        e("s_cmp_lg_u32 s35, 0")
        e("s_cbranch_scc1 %s" % sk)
        e("s_lshr_b32 s43, s30, 1")
        emit_poll(k, "s43", 16, sk)
        k.lab(sk)
        e("s_barrier")
    for t in range(2):
        e("buffer_load_dwordx4 %s, v1, s[16:19], s37 offen offset:%d%s" % (vr(Q1[t], 4), 1152 * t, " sc1" if chained else ""))
        e("buffer_load_dword v%d, v7, s[16:19], s37 offen offset:%d%s" % (Q2[t], 1024 + 1152 * t, " sc1" if chained else ""))

    def dma():
        e("s_mov_b32 m0, s39")
        e("s_nop 0")
        e("buffer_load_dwordx4 v1, s[8:11], s39 offen%s lds" % (" sc1" if chained else ""))
        e("s_add_u32 s39, s39, 4096")

    for i in range(3):
        dma()
    e("v_add_u32 v%d, s42, v1" % vK1b)
    e("v_add_u32 v8, 1024, v7")
    e("v_add_u32 v%d, s42, v8" % vK2b)
    e("v_min_u32 v8, 18, v5")
    e("v_lshlrev_b32 v8, 4, v8")
    e("v_mul_u32_u24 v9, 320, v6")
    e("v_add3_u32 v8, v8, v9, s42")
    e("v_add_u32 v%d, 1152, v8" % vVb)
    for i in range(1, 4):
        e("v_mov_b32 v%d, 0" % (Q2[0] + i))
        e("v_mov_b32 v%d, 0" % (Q2[1] + i))
        e("v_mov_b32 v%d, 0" % (K2 + i))
    e("v_cmp_eq_u32 vcc, 0, v6")
    e("s_waitcnt vmcnt(3)")
    for t in range(2):
        e("v_cndmask_b32 v%d, 0, v%d, vcc" % (Q2[t], Q2[t]))
    e("s_mov_b32 s50, 0")

    def issued_before(tile):
        return min(3 + 2 * tile, NP)

    def seg_wait(c):
        ntiles = sum(SEGS[:c + 1]) + 2
        need = min(-(-(ntiles * 2432) // 1024), 76)
        n = min((need - 1) // 4 + 1, NP)
        issued = issued_before(sum(SEGS[:c]))
        assert issued >= n, (c, issued, n)
        return issued - n

    e("s_waitcnt vmcnt(%d)" % seg_wait(0))
    e("s_barrier")
    k.stamp(1)
    e("ds_read_b128 %s, v%d" % (vr(K1, 4), vK1b))
    e("ds_read_b32 v%d, v%d" % (K2, vK2b))
    e("s_waitcnt lgkmcnt(0)")
    for t in range(2):
        e("v_mfma_f32_32x32x16_bf16 %s, %s, %s, 0" % (vr(S[t][0], 16), vr(K1, 4), vr(Q1[t], 4)))
        e("v_mfma_f32_32x32x16_bf16 %s, %s, %s, %s" % (vr(S[t][0], 16), vr(K2, 4), vr(Q2[t], 4), vr(S[t][0], 16)))
    e("s_nop 7")
    e("s_nop 7")
    for t in range(2):
        sa = S[t][0]
        e("v_max3_f32 v%d, v%d, v%d, v%d" % (10 + t, sa, sa + 1, sa + 2))
        for i in range(3, 15, 2):
            e("v_max3_f32 v%d, v%d, v%d, v%d" % (10 + t, 10 + t, sa + i, sa + i + 1))
        e("v_max_f32 v%d, v%d, v%d" % (10 + t, 10 + t, sa + 15))
    run = "L_%s_run" % name
    k.lab(run)
    for t in range(2):
        e("v_mov_b32 v%d, v%d" % (12 + t, 10 + t))
    e("s_nop 1")
    for t in range(2):
        e("v_permlane32_swap_b32 v%d, v%d" % (12 + t, 10 + t))
    e("s_nop 1")
    for t in range(2):
        e("v_max_f32 v%d, v%d, v%d" % (10 + t, 10 + t, 12 + t))
        e("v_sub_f32 v%d, 0, v%d" % (10 + t, 10 + t))
        for i in range(16):
            e("v_mov_b32 v%d, v%d" % (CM[t] + i, 10 + t))
            e("v_mov_b32 v%d, 0" % (O[t] + i))
    e("v_mov_b32 v%d, v%d" % (vK1, vK1b))
    e("v_mov_b32 v%d, v%d" % (vK2, vK2b))
    e("v_mov_b32 v%d, v%d" % (vV, vVb))
    e("ds_read_b128 %s, v%d" % (vr(K1, 4), vK1))
    e("ds_read_b32 v%d, v%d" % (K2, vK2))
    e("s_waitcnt lgkmcnt(0)")
    for t in range(2):
        e("v_mfma_f32_32x32x16_bf16 %s, %s, %s, %s" % (vr(S[t][0], 16), vr(K1, 4), vr(Q1[t], 4), vr(CM[t], 16)))
        e("v_mfma_f32_32x32x16_bf16 %s, %s, %s, %s" % (vr(S[t][0], 16), vr(K2, 4), vr(Q2[t], 4), vr(S[t][0], 16)))
    e("ds_read_b128 %s, v%d offset:2432" % (vr(K1, 4), vK1))
    e("ds_read_b32 v%d, v%d offset:2432" % (K2, vK2))
    e("ds_read_b128 %s, v%d" % (vr(VVa, 4), vV))
    e("ds_read_b128 %s, v%d offset:640" % (vr(VVb, 4), vV))
    e("s_nop 7")

    def expcvt(Sc, Pt):
        for i in range(16):
            e("v_exp_f32 v%d, v%d" % (Sc + i, Sc + i))
            if i & 1 and i >= 3:
                e("v_cvt_pk_bf16_f32 v%d, v%d, v%d" % (Pt + (i - 3) // 2, Sc + i - 3, Sc + i - 2))
        e("v_cvt_pk_bf16_f32 v%d, v%d, v%d" % (Pt + 7, Sc + 14, Sc + 15))

    def body(tl):
        c, n = tl & 1, 1 - (tl & 1)
        o = 2432 * (tl % 16)
        e("s_waitcnt lgkmcnt(2)")
        for t in range(2):
            e("v_mfma_f32_32x32x16_bf16 %s, %s, %s, %s" % (vr(S[t][n], 16), vr(K1, 4), vr(Q1[t], 4), vr(CM[t], 16)))
            e("v_mfma_f32_32x32x16_bf16 %s, %s, %s, %s" % (vr(S[t][n], 16), vr(K2, 4), vr(Q2[t], 4), vr(S[t][n], 16)))
        e("ds_read_b128 %s, v%d offset:%d" % (vr(K1, 4), vK1, o + 2 * 2432))
        e("ds_read_b32 v%d, v%d offset:%d" % (K2, vK2, o + 2 * 2432))
        expcvt(S[0][c], P[0])
        e("s_waitcnt lgkmcnt(2)")
        e("v_mfma_f32_32x32x16_bf16 %s, %s, %s, %s" % (vr(O[0], 16), vr(VVa, 4), vr(P[0], 4), vr(O[0], 16)))
        e("v_mfma_f32_32x32x16_bf16 %s, %s, %s, %s" % (vr(O[0], 16), vr(VVb, 4), vr(P[0] + 4, 4), vr(O[0], 16)))
        expcvt(S[1][c], P[1])
        e("s_nop 0")
        e("v_mfma_f32_32x32x16_bf16 %s, %s, %s, %s" % (vr(O[1], 16), vr(VVa, 4), vr(P[1], 4), vr(O[1], 16)))
        e("v_mfma_f32_32x32x16_bf16 %s, %s, %s, %s" % (vr(O[1], 16), vr(VVb, 4), vr(P[1] + 4, 4), vr(O[1], 16)))
        e("ds_read_b128 %s, v%d offset:%d" % (vr(VVa, 4), vV, o + 2432))
        e("ds_read_b128 %s, v%d offset:%d" % (vr(VVb, 4), vV, o + 2432 + 640))

    tl = 0
    for c, nts in enumerate(SEGS):
        if c > 0:
            sk = k.newlab("sk")
            e("s_cmp_lg_u32 s50, 0")
            e("s_cbranch_scc1 %s" % sk)
            e("s_waitcnt vmcnt(%d)" % seg_wait(c))
            e("s_barrier")
            k.lab(sk)
        for i in range(nts):
            if tl == 16:
                e("v_add_u32 v%d, %d, v%d" % (vK1, 16 * 2432, vK1))
                e("v_add_u32 v%d, %d, v%d" % (vK2, 16 * 2432, vK2))
                e("v_add_u32 v%d, %d, v%d" % (vV, 16 * 2432, vV))
            nd = issued_before(tl + 1) - issued_before(tl)
            if nd:
                sk = k.newlab("sd")
                e("s_cmp_lg_u32 s50, 0")
                e("s_cbranch_scc1 %s" % sk)
                for _ in range(nd):
                    dma()
                k.lab(sk)
            body(tl)
            tl += 1
    e("s_waitcnt lgkmcnt(0)")
    k.stamp(2)
    e("s_nop 7")
    e("s_nop 7")
    e("v_mov_b32 v10, 0")
    e("v_mov_b32 v11, 0")
    for t in range(2):
        for i in range(0, 12, 2):
            e("v_max3_f32 v10, v10, |v%d|, |v%d|" % (O[t] + i, O[t] + i + 1))
        for i in range(12):
            e("v_add_f32 v11, v11, v%d" % (O[t] + i))
    e("v_mov_b32 v12, 0x%x" % f2u(2.0 ** (-100 if EXP.get("forcefb") else 100)))
    e("v_cmp_nlt_f32 vcc, v10, v12")
    e("v_cmp_u_f32 s[52:53], v11, v11")
    e("s_nop 3")
    e("s_or_b64 vcc, vcc, s[52:53]")
    e("s_cmp_lg_u32 s50, 0")
    fin = "L_%s_fin" % name
    e("s_cbranch_scc1 %s" % fin)
    e("s_cbranch_vccz %s" % fin)
    e("s_mov_b32 s50, 1")
    e("v_mov_b32 v%d, v%d" % (vK1, vK1b))
    e("v_mov_b32 v%d, v%d" % (vK2, vK2b))
    e("v_mov_b32 v10, 0xff800000")
    e("v_mov_b32 v11, 0xff800000")
    e("s_mov_b32 s51, 0")
    fl = "L_%s_fl" % name
    k.lab(fl)
    e("ds_read_b128 %s, v%d" % (vr(K1, 4), vK1))
    e("ds_read_b32 v%d, v%d" % (K2, vK2))
    e("s_waitcnt lgkmcnt(0)")
    for t in range(2):
        e("v_mfma_f32_32x32x16_bf16 %s, %s, %s, 0" % (vr(S[t][0], 16), vr(K1, 4), vr(Q1[t], 4)))
        e("v_mfma_f32_32x32x16_bf16 %s, %s, %s, %s" % (vr(S[t][0], 16), vr(K2, 4), vr(Q2[t], 4), vr(S[t][0], 16)))
    e("s_nop 7")
    e("s_nop 7")
    for t in range(2):
        for i in range(0, 16, 2):
            e("v_max3_f32 v%d, v%d, v%d, v%d" % (10 + t, 10 + t, S[t][0] + i, S[t][0] + i + 1))
    e("v_add_u32 v%d, 2432, v%d" % (vK1, vK1))
    e("v_add_u32 v%d, 2432, v%d" % (vK2, vK2))
    e("s_add_u32 s51, s51, 1")
    e("s_cmp_lt_u32 s51, 32")
    e("s_cbranch_scc1 %s" % fl)
    e("s_branch %s" % run)
    k.lab(fin)
    e("s_barrier")
    e("s_mul_i32 s37, s35, 4096")
    e("v_add_u32 v2, s37, v1")
    e("s_xor_b32 s38, s35, 4")
    e("s_mul_i32 s38, s38, 4096")
    e("v_add_u32 v1, s38, v1")
    lo = "L_%s_lo" % name
    jn = "L_%s_jn" % name
    e("s_cmp_eq_u32 s40, 0")
    e("s_cbranch_scc1 %s" % lo)
    e("v_mov_b32 v%d, v%d" % (O[0] + 10, CM[0]))
    for i in range(3):
        e("ds_write_b128 v2, %s offset:%d" % (vr(O[0] + 4 * i, 4), 1024 * i))
    for i in range(12):
        e("v_mov_b32 v%d, v%d" % (O[0] + i, O[1] + i))
    e("v_mov_b32 v%d, v%d" % (CM[0], CM[1]))
    e("s_add_u32 s36, s36, 1")
    e("s_branch %s" % jn)
    k.lab(lo)
    e("v_mov_b32 v%d, v%d" % (O[1] + 10, CM[1]))
    for i in range(3):
        e("ds_write_b128 v2, %s offset:%d" % (vr(O[1] + 4 * i, 4), 1024 * i))
    k.lab(jn)
    e("s_waitcnt lgkmcnt(0)")
    e("s_barrier")
    SA = 16
    OO = O[0]
    for i in range(3):
        e("ds_read_b128 %s, v1 offset:%d" % (vr(SA + 4 * i, 4), 1024 * i))
    e("s_waitcnt lgkmcnt(0)")
    e("v_min_f32 v10, v%d, v%d" % (CM[0], SA + 10))
    e("v_sub_f32 v11, v10, v%d" % CM[0])
    e("v_sub_f32 v12, v10, v%d" % (SA + 10))
    e("v_exp_f32 v11, v11")
    e("v_exp_f32 v12, v12")
    e("s_nop 0")
    for i in list(range(10)) + [11]:
        e("v_mul_f32 v%d, v11, v%d" % (OO + i, OO + i))
        e("v_fmac_f32 v%d, v12, v%d" % (OO + i, SA + i))
    e("v_rcp_f32 v10, v%d" % (OO + 11))
    e("s_nop 0")
    for i in range(10):
        e("v_mul_f32 v%d, v10, v%d" % (OO + i, OO + i))
    for i in range(5):
        e("v_cvt_pk_bf16_f32 v%d, v%d, v%d" % (OO + i, OO + 2 * i, OO + 2 * i + 1))
    e("s_lshl_b32 s37, s36, 1")
    e("v_lshrrev_b32 v12, 4, v5")
    e("v_add_u32 v12, s37, v12")
    e("v_mul_u32_u24 v12, 18432, v12")
    e("v_and_b32 v13, 15, v5")
    e("v_lshl_add_u32 v12, v13, 4, v12")
    e("v_add_u32 v12, 0x%x, v12" % OB)
    e("s_mul_i32 s37, s30, 18")
    e("v_lshlrev_b32 v13, 2, v6")
    e("v_add_u32 v13, s37, v13")
    e("v_cmp_eq_u32 vcc, 0, v6")
    for i, dd in enumerate([0, 2, 8, 10, 16]):
        e("v_add_u32 v14, %d, v13" % dd)
        e("v_lshrrev_b32 v15, 3, v14")
        e("v_and_b32 v14, 7, v14")
        e("v_lshl_add_u32 v15, v15, 8, v12")
        e("v_lshl_add_u32 v15, v14, 1, v15")
        if dd == 16:
            e("v_mov_b32 v14, 0x40000000")
            e("v_cndmask_b32 v15, v14, v15, vcc")
        e("buffer_store_dword v%d, v15, s[16:19], 0 offen%s" % (OO + i, " sc1" if out_fid is not None else ""))
    if out_fid is not None:
        emit_signal(k, out_fid, "s31", "s30")
        k.endlab = end
        return k
    k.stamp(3)
    k.rstamp(5)
    k.dump()
    k.lab(end)
    e("s_endpgm")
    return k


def srd_s(k, d, b, sreg, size):
    k.e("s_add_u32 s%d, s%d, s%d" % (d, b, sreg))
    k.e("s_addc_u32 s%d, s%d, 0" % (d + 1, b + 1))
    k.e("s_mov_b32 s%d, 0x%x" % (d + 2, size))
    k.e("s_mov_b32 s%d, 0x00020000" % (d + 3))


def gen_out(name, kind, xsrc, xdst, layer, fused=False, fid=0, k=None, shared=False):
    OA_BASE = 81 * 1024
    lds = OA_BASE + (72 * 1024 if kind == 'A' else 0)
    chained = k is not None
    if chained:
        k.vgpr = max(k.vgpr, 216 if kind == 'A' else 136)
        k.lds = max(k.lds, lds)
        name = k.newlab("o")[2:]
    else:
        k = Kern(name, 216 if kind == 'A' else 136, lds, (256, 1, 1), (512, 1, 1))
        if shared:
            k.nodesc = True
    SC = " sc1" if fused else ""
    LSC = " sc1" if chained else ""
    e = k.e
    ACC = 16
    XRES = 36
    AF = 48
    BF = 84
    BF2 = [84, 104]
    VL16 = 124 if kind == 'B' else 208
    VB = VL16 + 1
    VB4 = VL16 + 2
    VX = VL16 + 3
    VX4 = VL16 + 4
    VD = VL16 + 5
    VD4 = VL16 + 6
    if chained:
        end = k.endlab
    else:
        end = "L_%s_end" % name
        e("s_cmp_ge_u32 s2, 256")
        e("s_cbranch_scc1 %s" % end)
        e("s_load_dwordx2 s[4:5], s[0:1], %d" % KA_WS)
        k.stamp(0)
    if xdst is None:
        e("s_load_dwordx2 s[6:7], s[0:1], %d" % KA_OUT)
    e("s_and_b32 s28, s2, 7")
    e("s_lshr_b32 s29, s2, 3")
    e("s_and_b32 s30, s29, 7")
    e("s_lshr_b32 s31, s29, 3")
    e("s_lshl_b32 s28, s28, 2")
    e("s_add_u32 s31, s31, s28")
    e("v_lshrrev_b32 v4, 6, v0")
    e("v_and_b32 v3, 63, v0")
    e("v_readfirstlane_b32 s35, v4")
    e("v_and_b32 v5, 15, v3")
    e("v_lshrrev_b32 v6, 4, v3")
    e("v_lshlrev_b32 v%d, 4, v3" % VL16)
    e("s_and_b32 s36, s35, 3")
    e("s_lshr_b32 s37, s35, 2")
    e("s_lshl_b32 s38, s31, 2")
    e("s_add_u32 s38, s38, s36")
    e("s_mul_i32 s39, s38, 18432")
    e("s_mul_i32 s33, s30, %d" % (81 * 1024))
    e("s_lshl_b32 s52, s35, 10")
    e("s_waitcnt lgkmcnt(0)")
    k.srd(12, 4, WOA if kind == 'A' else WOB, WO_SZ)
    if shared:
        srd_s(k, 8, 4, 60, XB)
        srd_s(k, 24, 4, 61, XB)
        srd_s(k, 44, 4, 62, KVACC_L)
        srd_s(k, 56, 4, 63, 2048 * 64)
        k.srd(16, 4, PQF if kind == 'A' else OB, PQF_SZ if kind == 'A' else XB)
    else:
        k.srd(8, 4, xsrc, XB)
        if xdst is None:
            k.srd(24, 6, 0, XB)
        else:
            k.srd(24, 4, xdst, XB)
        if kind == 'A':
            k.srd(16, 4, PQF, PQF_SZ)
            k.srd(44, 4, KVACC + layer * KVACC_L, KVACC_L)
        else:
            k.srd(16, 4, OB, XB)
        k.srd(56, 4, STATV.get(xdst, STATS), 2048 * 64)

    def wdma(lo, hi):
        for i in range(lo, hi):
            if 8 * i + 7 < 81:
                e("s_add_u32 m0, s52, %d" % (8192 * i))
                e("s_add_u32 s34, m0, s33")
            else:
                e("s_add_u32 s54, s52, %d" % (8192 * i))
                e("s_min_u32 m0, s54, %d" % (80 * 1024))
                e("s_add_u32 s34, m0, s33")
            e("buffer_load_dwordx4 v%d, s[12:15], s34 offen lds" % VL16)

    if chained:
        sk = k.newlab("nw")
        po = k.newlab("po")
        e("s_cmp_eq_u32 s35, 0")
        e("s_cbranch_scc1 %s" % po)
        wdma(0, 11)
        e("s_cmp_lg_u32 s35, 1")
        e("s_cbranch_scc1 %s" % sk)
        e("s_mov_b32 s52, 0")
        wdma(0, 11)
        e("s_branch %s" % sk)
        k.lab(po)
        e("s_lshr_b32 s43, s31, 2")
        emit_poll(k, "s43", 32, sk)
        k.lab(sk)
        e("s_barrier")

    if kind == 'B':
        e("s_mul_i32 s40, s37, 9216")
        e("s_add_u32 s40, s40, s39")
        for i in range(9):
            e("buffer_load_dwordx4 %s, v%d, s[16:19], s40 offen offset:%d%s" % (vr(AF + 4 * i, 4), VL16, (1024 * i) % 4096, LSC))
            if i % 4 == 3:
                e("s_add_u32 s40, s40, 4096")
    else:
        KVR, PQR, DD = 48, 96, 160
        e("v_and_b32 v1, 31, v3")
        e("v_lshrrev_b32 v2, 5, v3")
        e("s_mul_i32 s40, s35, %d" % (4 * 2432))
        e("v_min_u32 v8, 18, v1")
        e("v_lshlrev_b32 v8, 7, v8")
        e("v_add_u32 v9, s40, v8")
        e("v_lshl_add_u32 v8, v2, 5, v9")
        e("v_lshlrev_b32 v10, 2, v1")
        e("s_lshl_b32 s41, s31, 6")
        e("s_lshl_b32 s42, s35, 2")
        e("s_add_u32 s41, s41, s42")
        e("s_mul_i32 s55, s41, 1152")
        for hh in range(4):
            for t in range(2):
                for i in range(1, 4):
                    e("v_mov_b32 v%d, 0" % (PQR + 16 * hh + 8 * t + 4 + i))

        def s1load(hh):
            e("s_mov_b32 s34, %d" % (hh * 2432))
            e("buffer_load_dwordx4 %s, v8, s[44:47], s34 offen%s" % (vr(KVR + 12 * hh, 4), LSC))
            e("buffer_load_dwordx4 %s, v8, s[44:47], s34 offen offset:16%s" % (vr(KVR + 12 * hh + 4, 4), LSC))
            e("buffer_load_dwordx2 %s, v9, s[44:47], s34 offen offset:64%s" % (vr(KVR + 12 * hh + 8, 2), LSC))
            for t in range(2):
                e("s_add_u32 s34, s55, %d" % (t * 32 * 1152 + hh * 1152))
                e("buffer_load_dwordx4 %s, v%d, s[16:19], s34 offen%s" % (vr(PQR + 16 * hh + 8 * t, 4), VL16, LSC))
                e("buffer_load_dword v%d, v10, s[16:19], s34 offen offset:1024%s" % (PQR + 16 * hh + 8 * t + 4, LSC))

        s1load(0)
        s1load(1)
    if kind == 'B' and not chained:
        wdma(0, 11)
    e("s_lshr_b32 s40, s38, 1")
    e("s_mul_i32 s40, s40, 36864")
    e("s_and_b32 s41, s38, 1")
    e("s_lshl_b32 s41, s41, 8")
    e("s_add_u32 s40, s40, s41")
    e("s_mul_i32 s41, s30, 4608")
    e("s_add_u32 s40, s40, s41")
    e("v_lshrrev_b32 v7, 1, v6")
    e("v_lshlrev_b32 v7, 9, v7")
    e("v_lshl_add_u32 v7, v5, 4, v7")
    e("v_and_b32 v11, 1, v6")
    e("v_lshl_add_u32 v7, v11, 3, v7")
    e("v_add_u32 v%d, s40, v7" % VX)
    e("v_cmp_gt_u32 vcc, 2, v6")
    e("v_mov_b32 v11, 0x40000000")
    e("s_nop 0")
    e("v_cndmask_b32 v%d, v11, v%d, vcc" % (VX4, VX))
    if xdst is None:
        e("s_lshl_b32 s40, s38, 4")
        e("v_add_u32 v7, s40, v5")
        e("v_mul_u32_u24 v7, 1152, v7")
        e("v_lshl_add_u32 v7, v6, 3, v7")
        e("s_mul_i32 s40, s30, 144")
        e("v_add_u32 v%d, s40, v7" % VD)
        e("v_cndmask_b32 v%d, v11, v%d, vcc" % (VD4, VD))
    def xres():
        for t in range(5):
            e("s_mov_b32 s34, %d" % (1024 * t))
            e("buffer_load_dwordx2 %s, v%d, s[8:11], s34 offen%s" % (vr(XRES + 2 * t, 2), VX4 if t == 4 else VX, LSC))

    if kind == 'B':
        xres()
    e("s_mul_i32 s40, s37, %d" % (4 * 9216))
    e("v_add_u32 v%d, s40, v%d" % (VB, VL16))
    e("v_and_b32 v7, 7, v5")
    e("v_lshlrev_b32 v7, 4, v7")
    e("v_lshl_add_u32 v7, v6, 7, v7")
    e("v_add_u32 v%d, s40, v7" % VB4)
    for i in range(20):
        e("v_mov_b32 v%d, 0" % (ACC + i))
    if kind == 'A':
        e("s_mul_i32 s41, s35, 2304")
        e("s_add_u32 s41, s41, %d" % OA_BASE)
        e("v_lshrrev_b32 v11, 4, v1")
        e("v_mul_u32_u24 v11, 18432, v11")
        e("v_and_b32 v12, 15, v1")
        e("v_lshl_add_u32 v11, v12, 4, v11")
        e("v_add_u32 v11, s41, v11")
        e("s_mov_b32 s42, 0x%x" % f2u(1e-6))
        e("v_cmp_eq_u32 s[48:49], 0, v2")
        for hh in range(4):
            kv = KVR + 12 * hh
            k.stamp(7 + 2 * hh)
            e("s_waitcnt vmcnt(%d)" % ([7, 7, 7, 0] if chained else [7, 7, 7, 6])[hh])
            k.stamp(8 + 2 * hh)
            for i in range(5):
                e("v_cvt_pk_bf16_f32 v%d, v%d, v%d" % (kv + i, kv + 2 * i, kv + 2 * i + 1))
            for i in range(5, 8):
                e("v_mov_b32 v%d, 0" % (kv + i))
            for t in range(2):
                q2 = PQR + 16 * hh + 8 * t + 4
                e("v_cndmask_b32 v%d, 0, v%d, s[48:49]" % (q2, q2))
            e("s_nop 1")
            for t in range(2):
                q1 = PQR + 16 * hh + 8 * t
                e("v_mfma_f32_32x32x16_bf16 %s, %s, %s, 0" % (vr(DD + 16 * t, 16), vr(kv, 4), vr(q1, 4)))
                e("v_mfma_f32_32x32x16_bf16 %s, %s, %s, %s" % (vr(DD + 16 * t, 16), vr(kv + 4, 4), vr(q1 + 4, 4), vr(DD + 16 * t, 16)))
            if hh < 2:
                s1load(hh + 2)
            elif hh == 2:
                if not chained:
                    wdma(0, 6)
            else:
                if not chained:
                    wdma(6, 11)
                xres()
            lo, hi = [], []
            for i, dd in enumerate([0, 2, 8, 10, 16]):
                for h in range(2):
                    c = 18 * hh + dd + 4 * h
                    off = (c >> 3) * 256 + (c & 7) * 2
                    if not (dd == 16 and h == 1):
                        (lo if h == 0 else hi).append("v_add_u32 v%d, %d, v11" % (192 + i, off))
            half_ops(k, lo, hi)
            e("s_nop 3")
            for t in range(2):
                d = DD + 16 * t
                e("v_add_f32 v%d, s42, v%d" % (d + 12, d + 11))
            for t in range(2):
                d = DD + 16 * t
                e("v_rcp_f32 v%d, v%d" % (d + 12, d + 12))
            for t in range(2):
                d = DD + 16 * t
                e("v_mov_b32 v%d, v%d" % (d + 13, d + 12))
            for t in range(2):
                d = DD + 16 * t
                for i in range(5):
                    e("v_pk_mul_f32 %s, %s, %s" % (vr(d + 2 * i, 2), vr(d + 2 * i, 2), vr(d + 12, 2)))
                    e("v_cvt_pk_bf16_f32 v%d, v%d, v%d" % (d + 2 * i, d + 2 * i, d + 2 * i + 1))
                    if i == 4:
                        e("s_mov_b32 exec_hi, 0")
                    e("ds_write_b32 v%d, v%d offset:%d" % (192 + i, d + 2 * i, t * 36864))
                    if i == 4:
                        e("s_mov_b32 exec_hi, -1")
        e("s_mul_i32 s40, s36, 18432")
        e("s_mul_i32 s41, s37, 9216")
        e("s_add_u32 s40, s40, s41")
        e("s_add_u32 s40, s40, %d" % OA_BASE)
        e("v_add_u32 v7, s40, v%d" % VL16)
    k.stamp(1)
    e("s_waitcnt vmcnt(0) lgkmcnt(0)")
    e("s_barrier")
    k.stamp(2)
    if kind == 'A':
        for i in range(9):
            e("ds_read_b128 %s, v7 offset:%d" % (vr(AF + 4 * i, 4), 1024 * i))
    l1 = "L_%s_k1" % name
    lj = "L_%s_kj" % name
    e("s_cmp_eq_u32 s37, 1")
    e("s_cbranch_scc1 %s" % l1)
    for kh in range(2):
        if kh == 1:
            k.lab(l1)
        def bread(i):
            bf = BF2[i & 1]
            sl = i + kh
            po = (sl >> 1) * 9216
            for t in range(4):
                e("ds_read_b128 %s, v%d offset:%d" % (vr(bf + 4 * t, 4), VB, po + (sl & 1) * 4096 + t * 1024))
            e("ds_read_b128 %s, v%d offset:%d" % (vr(bf + 16, 4), VB4, po + 8192 + (sl & 1) * 512))

        bread(0)
        for i in range(9):
            if i + 1 < 9:
                bread(i + 1)
                e("s_waitcnt lgkmcnt(5)")
            else:
                e("s_waitcnt lgkmcnt(0)")
            bf = BF2[i & 1]
            for t in range(5):
                e("v_mfma_f32_16x16x32_bf16 %s, %s, %s, %s" % (vr(ACC + 4 * t, 4), vr(bf + 4 * t, 4), vr(AF + 4 * i, 4), vr(ACC + 4 * t, 4)))
        k.stamp(4)
        e("s_barrier")
        e("s_mul_i32 s40, s36, 5120")
        e("v_add_u32 v7, s40, v%d" % VL16)
        if kh == 1:
            e("s_nop 7")
            for t in range(5):
                e("ds_write_b128 v7, %s offset:%d" % (vr(ACC + 4 * t, 4), 1024 * t))
            e("s_waitcnt lgkmcnt(0)")
            e("s_barrier")
            if not fused:
                e("s_endpgm")
        else:
            e("s_barrier")
            for t in range(5):
                e("ds_read_b128 %s, v7 offset:%d" % (vr(BF + 4 * t, 4), 1024 * t))
            e("s_waitcnt lgkmcnt(0)")
            for t in range(5):
                a = ACC + 4 * t
                x = XRES + 2 * t
                e("v_lshlrev_b32 v8, 16, v%d" % x)
                e("v_and_b32 v9, 0xffff0000, v%d" % x)
                e("v_lshlrev_b32 v10, 16, v%d" % (x + 1))
                e("v_and_b32 v11, 0xffff0000, v%d" % (x + 1))
                for r in range(4):
                    e("v_add_f32 v%d, v%d, v%d" % (a + r, a + r, BF + 4 * t + r))
                    e("v_add_f32 v%d, v%d, v%d" % (a + r, a + r, 8 + r))
                e("v_cvt_pk_bf16_f32 v%d, v%d, v%d" % (a, a, a + 1))
                e("v_cvt_pk_bf16_f32 v%d, v%d, v%d" % (a + 1, a + 2, a + 3))
                if xdst is None:
                    e("buffer_store_dwordx2 %s, v%d, s[24:27], 0 offen offset:%d" % (vr(a, 2), VD4 if t == 4 else VD, 32 * t))
                else:
                    e("s_mov_b32 s34, %d" % (1024 * t))
                    e("buffer_store_dwordx2 %s, v%d, s[24:27], s34 offen%s" % (vr(a, 2), VX4 if t == 4 else VX, SC))
            if xdst is not None:
                e("s_mov_b32 s42, 0x3f803f80")
                e("v_cmp_gt_u32 vcc, 2, v6")
                e("v_mov_b32 v8, 0")
                e("v_mov_b32 v9, 0")
                e("v_cndmask_b32 v%d, 0, v%d, vcc" % (ACC + 18, ACC + 16))
                e("v_cndmask_b32 v%d, 0, v%d, vcc" % (ACC + 19, ACC + 17))
                for t in range(5):
                    for i in range(2):
                        r = ACC + 4 * t + i + (2 if t == 4 else 0)
                        e("v_dot2_f32_bf16 v8, v%d, s42, v8" % r)
                        e("v_dot2_f32_bf16 v9, v%d, v%d, v9" % (r, r))
                e("s_nop 2")
                e("v_mov_b32 v10, v8")
                e("v_mov_b32 v11, v9")
                e("s_nop 1")
                e("v_permlane16_swap_b32 v10, v8")
                e("v_permlane16_swap_b32 v11, v9")
                e("s_nop 1")
                e("v_add_f32 v8, v8, v10")
                e("v_add_f32 v9, v9, v11")
                e("v_mov_b32 v10, v8")
                e("v_mov_b32 v11, v9")
                e("s_nop 1")
                e("v_permlane32_swap_b32 v10, v8")
                e("v_permlane32_swap_b32 v11, v9")
                e("s_nop 1")
                e("v_add_f32 v8, v8, v10")
                e("v_add_f32 v9, v9, v11")
                e("s_lshl_b32 s40, s38, 10")
                e("s_lshl_b32 s41, s30, 3")
                e("s_add_u32 s40, s40, s41")
                e("v_lshlrev_b32 v10, 6, v5")
                e("v_cmp_eq_u32 vcc, 0, v6")
                e("v_mov_b32 v11, 0x40000000")
                e("s_nop 0")
                e("v_cndmask_b32 v10, v11, v10, vcc")
                e("buffer_store_dwordx2 v[8:9], v10, s[56:59], s40 offen%s" % SC)
            if fused:
                e("s_waitcnt vmcnt(0)")
                e("s_branch %s" % lj)
                continue
            k.stamp(5)
            if STAMPS:
                e("s_waitcnt vmcnt(0)")
            k.stamp(6)
            k.dump()
            e("s_endpgm")
    if fused:
        k.lab(lj)
        e("s_barrier")
        k.srd(20, 4, FLAGS + fid * 2048, 2048)
        sk = k.newlab("sig")
        e("s_cmp_lg_u32 s35, 0")
        e("s_cbranch_scc1 %s" % sk)
        e("s_lshr_b32 s40, s31, 1")
        e("s_lshl_b32 s40, s40, 7")
        e("s_and_b32 s41, s31, 1")
        e("s_lshl_b32 s41, s41, 3")
        e("s_add_u32 s41, s41, s30")
        e("s_lshl_b32 s41, s41, 2")
        e("s_add_u32 s40, s40, s41")
        e("v_mov_b32 v8, 1")
        e("v_mov_b32 v9, 0")
        e("s_mov_b64 exec, 1")
        e("buffer_store_dword v8, v9, s[20:23], s40 offen sc1")
        e("s_mov_b64 exec, -1")
        k.lab(sk)
        k.endlab = end
        return k
    k.lab(end)
    e("s_endpgm")
    return k


ATTN8 = True


def main():
    mode = EXP.get("mode", "11")
    if mode == "11":
        qa = gen_qkv('A')
        qb = gen_qkv('B')
        oa = gen_out("L_outA", 'A', 1, 1, 0, shared=True)
        sv = lambda x: STATV[x] - 6 * 4096
        ks = [
            gen_prep(),
            gen_stub("qkv_a1_kernel", qa, [(58, X0F), (59, KVACC), (57, sv(X0F))]),
            gen_stub("qkv_a2_kernel", qa, [(58, X2), (59, KVACC + KVACC_L), (57, sv(X2))]),
            qa,
            gen_stub("qkv_b1_kernel", qb, [(58, X1), (59, 0), (57, sv(X1))]),
            gen_stub("qkv_b2_kernel", qb, [(58, X3), (59, 0), (57, sv(X3))]),
            qb,
            gen_stub("out_a1_kernel", oa, [(60, X0F), (61, X1), (62, KVACC), (63, STATV[X1])]),
            gen_stub("out_a2_kernel", oa, [(60, X2), (61, X3), (62, KVACC + KVACC_L), (63, STATV[X3])]),
            oa,
            gen_attn("attn_kernel"),
            gen_out("out_b1_kernel", 'B', X1, X2, 0),
            gen_out("out_b2_kernel", 'B', X3, None, 1),
        ]
        order = ["prep_kernel", "qkv_a1_kernel", "out_a1_kernel", "qkv_b1_kernel", "attn_kernel", "out_b1_kernel",
                 "qkv_a2_kernel", "out_a2_kernel", "qkv_b2_kernel", "attn_kernel", "out_b2_kernel"]
    elif mode == "8":
        qa = gen_qkv('A', params=[(58, X0F), (59, KVACC)], kname="qkv_a1_kernel")
        f1 = gen_qkv('B', gen_out("f1_kernel", 'A', X0F, X1, 0, fused=True, fid=0), [(58, X1), (59, 0)])
        f2 = gen_qkv('A', gen_out("f2_kernel", 'B', X1, X2, 0, fused=True, fid=1), [(58, X2), (59, KVACC + KVACC_L)])
        f3 = gen_qkv('B', gen_out("f3_kernel", 'A', X2, X3, 1, fused=True, fid=2), [(58, X3), (59, 0)])
        ks = [gen_prep(), qa, f1, f2, f3, gen_attn("attn_kernel"), gen_out("out_b2_kernel", 'B', X3, None, 1)]
        order = ["prep_kernel", "qkv_a1_kernel", "f1_kernel", "attn_kernel", "f2_kernel", "f3_kernel",
                 "attn_kernel", "out_b2_kernel"]
    else:
        qa = gen_qkv('A', params=[(58, X0F), (59, KVACC)], kname="qkv_a1_kernel")
        f1 = gen_out("f1_kernel", 'A', X0F, X1, 0, fused=True, fid=0)
        f1 = gen_qkv('B', f1, [(58, X1), (59, 0)], chain=1)
        f1 = gen_attn8(None, f1, out_fid=2)
        f1 = gen_out(None, 'B', X1, X2, 0, fused=True, fid=3, k=f1)
        f1 = gen_qkv('A', f1, [(58, X2), (59, KVACC + KVACC_L)])
        f2 = gen_out("f2_kernel", 'A', X2, X3, 1, fused=True, fid=4)
        f2 = gen_qkv('B', f2, [(58, X3), (59, 0)], chain=5)
        f2 = gen_attn8(None, f2, out_fid=6)
        f2 = gen_out(None, 'B', X3, None, 1, k=f2)
        ks = [gen_prep(), qa, f1, f2]
        order = ["prep_kernel", "qkv_a1_kernel", "f1_kernel", "f2_kernel"]
    byname = {k.name: k for k in ks}
    hdr = open("cdna_kernels/%s.s.ref" % NAME).read().split("; Override launch geometry")[0]
    out = hdr
    for n in order:
        k = byname[n]
        out += "; @launch kernel=%s grid=(%d,%d,%d) block=(%d,%d,%d) lds=%d\n" % ((n,) + k.grid + k.block + (k.lds,))
    out += '.amdgcn_target "amdgcn-amd-amdhsa--gfx950"\n.text\n'
    for k in ks:
        if getattr(k, "nodesc", False):
            out += ".p2align 8\n%s:\n" % k.name + "\n".join(k.L) + "\n"
        else:
            out += k.text()
    out += '.section .rodata,"a"\n'
    for k in ks:
        if not getattr(k, "nodesc", False):
            out += ".p2align 6\n" + k.desc()
    dst = "cdna_kernels/%s.s" % NAME
    if STAMPS or EXP.get("dst"):
        dst = EXP.get("dst", OUTFILE)
    open(dst, "w").write(out)


if __name__ == "__main__":
    if len(sys.argv) > 1:
        STAMPS = sys.argv[1] == "stamps"
        for a in sys.argv[2:]:
            if a.startswith("out="):
                OUTFILE = a[4:]
            elif a.startswith("wg="):
                STAMP_WG = int(a[3:])
            elif "=" in a:
                EXP[a.split("=")[0]] = a.split("=")[1]
            else:
                EXP[a] = True
    main()
```

```python
import sys, re

NAME = "interleave_layers__linear_attn_block__mha_block__prompt"

XB = 2048 * 576 * 2
X1 = 0x0
X2 = 0x240000
X3 = 0x480000
PQ = 0x6C0000
OB = 0x900000
QPI = 0xB40000
QHEAD = 64 * 1152
KVI = 0xF40000
KVHEAD = 64 * 2432
KVACC = 0x1400000
KVACC_L = 32 * 19 * 32 * 4
WFA = 0x2000000
WFB = 0x2240000
WF_SZ = 8 * 36 * 8 * 1024
STATS = 0x1500000
STATV = {}
WOA = 0x1840000
WOB = 0x1900000
WO_SZ = 8 * 81 * 1024
CS = 0x1480000
CS_MAT = 3 * 16 * 512
PQF = 0x1A00000
PQF_SZ = 64 * 32 * 1152
X0F = 0x1D00000
STATV.update({X0F: STATS, X1: STATS + 0x20000, X2: STATS + 0x40000, X3: STATS + 0x60000})
FLAGS = KVACC + 2 * KVACC_L
WS_SIZE = 0x2500000

LOG2E = 1.4426950408889634
QSCALE = (18.0 ** -0.5) * LOG2E

import struct
def f2u(x):
    return struct.unpack("<I", struct.pack("<f", x))[0]


EXP = {}
STAMPS = False
STAMP_WG = 0


class Kern:
    def __init__(self, name, vgpr, lds, grid, block):
        self.name = name
        self.vgpr = vgpr
        self.lds = lds
        self.grid = grid
        self.block = block
        self.L = []
        self.uid = 0

    def e(self, s):
        m = re.search(r"offset:(\d+)", s)
        if m:
            o = int(m.group(1))
            if s.startswith("buffer_"):
                assert o <= 4095, s
            elif s.startswith("ds_"):
                assert o <= 65535, s
        self.L.append("    " + s)

    def lab(self, s):
        self.L.append(s + ":")

    def newlab(self, p):
        self.uid += 1
        return "L_%s_%s%d" % (self.name, p, self.uid)

    def srd(self, d, b, off, size):
        if off:
            self.e("s_add_u32 s%d, s%d, 0x%x" % (d, b, off))
            self.e("s_addc_u32 s%d, s%d, 0" % (d + 1, b + 1))
        else:
            self.e("s_mov_b32 s%d, s%d" % (d, b))
            self.e("s_mov_b32 s%d, s%d" % (d + 1, b + 1))
        self.e("s_mov_b32 s%d, 0x%x" % (d + 2, size))
        self.e("s_mov_b32 s%d, 0x00020000" % (d + 3))

    def rstamp(self, i):
        if STAMPS:
            self.e("s_memrealtime s[%d:%d]" % (64 + 2 * i, 65 + 2 * i))
            self.nst = max(getattr(self, "nst", 0), i + 1)

    def stamp(self, i):
        if STAMPS:
            self.e("s_memtime s[%d:%d]" % (64 + 2 * i, 65 + 2 * i))
            self.nst = max(getattr(self, "nst", 0), i + 1)

    def dump(self):
        if STAMPS and getattr(self, "nst", 0):
            l = self.newlab("nd")
            self.e("s_cmp_lg_u32 s2, %d" % STAMP_WG)
            self.e("s_cbranch_scc1 %s" % l)
            self.e("s_load_dwordx2 s[60:61], s[0:1], %d" % KA_DBG)
            self.e("s_waitcnt lgkmcnt(0)")
            self.e("s_mov_b32 s62, 256")
            self.e("s_mov_b32 s63, 0x00020000")
            self.e("v_lshrrev_b32 v1, 6, v0")
            if EXP.get("hiwaves"):
                self.e("v_xor_b32 v1, 4, v1")
            self.e("v_lshlrev_b32 v1, 6, v1")
            if getattr(self, "endlab", None):
                self.e("v_add_u32 v1, 128, v1")
            for i in range(self.nst):
                self.e("v_mov_b32 v2, s%d" % (64 + 2 * i))
                self.e("buffer_store_dword v2, v1, s[60:63], 0 offen offset:%d" % (4 * i))
            self.lab(l)

    def text(self):
        if getattr(self, "stub", None):
            return (".globl %s\n.p2align 8\n.type %s,@function\n%s:\n" % (self.name, self.name, self.name)
                    + "".join("    %s\n" % x for x in self.stub))
        out = []
        out.append(".globl %s" % self.name)
        out.append(".p2align 8")
        out.append(".type %s,@function" % self.name)
        out.append("%s:" % self.name)
        out += self.L
        return "\n".join(out) + "\n"

    def desc(self):
        v = (self.vgpr + 3) // 4 * 4
        return """.amdhsa_kernel %s
  .amdhsa_next_free_vgpr %d
  .amdhsa_next_free_sgpr 96
  .amdhsa_accum_offset %d
  .amdhsa_group_segment_fixed_size 0
  .amdhsa_kernarg_size 72
  .amdhsa_user_sgpr_count 2
  .amdhsa_user_sgpr_kernarg_segment_ptr 1
  .amdhsa_system_sgpr_workgroup_id_x 1
.end_amdhsa_kernel
""" % (self.name, v, v)


def vr(a, n):
    return "v[%d:%d]" % (a, a + n - 1)


KA_AX, KA_AWQKV, KA_AWO, KA_BX, KA_BWQKV, KA_BWO, KA_OUT, KA_DBG, KA_WS = [8 * i for i in range(9)]


OUTFILE = 'st.s'
PB_ROW = 288
OB_ROW = 160


def gen_prep():
    NQ = 96
    NO = 96
    NZ = 0
    NX = 64
    GL = 64 * PB_ROW
    k = Kern("prep_kernel", 96, 3 * GL + 4096, (NQ + NO + NZ + NX, 1, 1), (768, 1, 1))
    e = k.e
    e("s_cmp_ge_u32 s2, %d" % (NQ + NO + NZ + NX))
    e("s_cbranch_scc1 L_prep_end")
    e("s_load_dwordx2 s[4:5], s[0:1], %d" % KA_WS)
    e("s_load_dwordx2 s[20:21], s[0:1], %d" % KA_AWQKV)
    e("s_load_dwordx2 s[22:23], s[0:1], %d" % KA_BWQKV)
    e("s_load_dwordx2 s[24:25], s[0:1], %d" % KA_AWO)
    e("s_load_dwordx2 s[26:27], s[0:1], %d" % KA_BWO)
    e("s_load_dwordx2 s[44:45], s[0:1], %d" % KA_AX)
    k.stamp(0)
    e("v_and_b32 v3, 63, v0")
    e("v_lshrrev_b32 v4, 6, v0")
    e("v_and_b32 v0, 255, v0")
    e("v_readfirstlane_b32 s35, v4")
    e("v_lshlrev_b32 v5, 4, v3")
    e("v_lshrrev_b32 v6, 4, v3")
    e("v_lshrrev_b32 v8, 2, v3")
    e("v_and_b32 v8, 3, v8")
    e("v_and_b32 v9, 3, v3")
    e("s_lshr_b32 s46, s35, 2")
    e("s_and_b32 s35, s35, 3")
    e("s_mul_i32 s47, s46, %d" % GL)
    e("s_waitcnt lgkmcnt(0)")
    k.srd(16, 4, 0, WS_SIZE)
    e("s_cmp_ge_u32 s2, %d" % (NQ + NO))
    e("s_cbranch_scc1 L_prep_misc")
    e("s_cmp_ge_u32 s2, %d" % NQ)
    e("s_cbranch_scc1 L_prep_wo")
    e("s_cmp_ge_u32 s2, 48")
    e("s_cselect_b32 s30, 1, 0")
    e("s_mul_i32 s31, s30, 48")
    e("s_sub_u32 s31, s2, s31")
    e("s_mul_i32 s32, s31, 21846")
    e("s_lshr_b32 s32, s32, 16")
    e("s_mul_i32 s33, s32, 3")
    e("s_sub_u32 s33, s31, s33")
    e("s_mul_i32 s48, s33, 6")
    e("s_lshl_b32 s49, s46, 1")
    e("s_add_u32 s48, s48, s49")
    e("s_cmp_eq_u32 s30, 0")
    e("s_cselect_b32 s8, s20, s22")
    e("s_cselect_b32 s9, s21, s23")
    e("s_mov_b32 s10, %d" % (576 * 3456))
    e("s_mov_b32 s11, 0x00020000")
    e("s_cselect_b32 s36, 1, 0")
    e("s_mul_i32 s37, s32, 72")
    e("s_mul_i32 s38, s48, %d" % (32 * 3456))
    e("s_add_u32 s37, s37, s38")
    e("v_subrev_u32 v10, 243, v0")
    e("v_cmp_gt_u32 vcc, 243, v0")
    e("s_nop 1")
    e("v_cndmask_b32 v10, v10, v0, vcc")
    e("v_mul_u32_u24 v11, 9710, v10")
    e("v_lshrrev_b32 v11, 18, v11")
    e("v_mul_u32_u24 v12, 27, v11")
    e("v_sub_u32 v12, v10, v12")
    e("v_mul_u32_u24 v13, 57, v12")
    e("v_lshrrev_b32 v13, 9, v13")
    e("v_mul_u32_u24 v14, 9, v13")
    e("v_sub_u32 v14, v12, v14")
    e("v_add_u32 v13, s36, v13")
    e("v_cmp_eq_u32 vcc, 3, v13")
    e("s_nop 1")
    e("v_cndmask_b32_e64 v13, v13, 0, vcc")
    e("v_mul_u32_u24 v13, 1152, v13")
    e("v_mul_u32_u24 v15, 3456, v11")
    e("v_add3_u32 v15, v15, v13, s37")
    e("v_lshl_add_u32 v15, v14, 3, v15")
    e("v_cmp_eq_u32 s[50:51], 0, v11")
    for i in range(7):
        e("s_mov_b32 s34, %d" % (i * 9 * 3456))
        e("buffer_load_dwordx2 %s, v15, s[8:11], s34 offen" % vr(32 + 2 * i, 2))
    e("v_mov_b32 v16, 0x40000000")
    e("v_cndmask_b32 v16, v16, v15, s[50:51]")
    e("s_mov_b32 s34, %d" % (63 * 3456))
    e("buffer_load_dwordx2 %s, v16, s[8:11], s34 offen" % vr(46, 2))
    e("v_mul_u32_u24 v15, %d, v11" % PB_ROW)
    e("v_lshl_add_u32 v15, v12, 3, v15")
    e("v_add_u32 v20, s47, v15")
    e("v_mov_b32 v16, %d" % (3 * GL + 2048))
    e("v_add_u32 v21, %d, v20" % (63 * PB_ROW))
    e("v_cndmask_b32 v21, v16, v21, s[50:51]")
    e("v_mov_b32 v28, 0")
    e("v_mov_b32 v29, 0")
    for i in range(2):
        e("v_add_u32 v10, %d, v0" % (256 * i))
        e("v_min_u32 v10, 319, v10")
        e("v_mul_u32_u24 v11, 13108, v10")
        e("v_lshrrev_b32 v11, 16, v11")
        e("v_mul_u32_u24 v12, 5, v11")
        e("v_sub_u32 v12, v10, v12")
        e("v_mul_u32_u24 v11, %d, v11" % PB_ROW)
        e("v_lshl_add_u32 v11, v12, 3, v11")
        e("v_add_u32 v11, s47, v11")
        e("ds_write_b64 v11, v[28:29] offset:216")
    e("v_lshrrev_b32 v7, 1, v6")
    e("v_lshl_add_u32 v7, v7, 3, v8")
    e("v_mul_u32_u24 v7, %d, v7" % PB_ROW)
    e("v_and_b32 v10, 1, v6")
    e("v_lshl_add_u32 v7, v10, 5, v7")
    e("v_lshl_add_u32 v7, v9, 3, v7")
    e("s_lshl_b32 s38, s35, 6")
    e("s_add_u32 s38, s38, s47")
    e("v_add_u32 v7, s38, v7")
    for i in range(4):
        e("v_mov_b32 v%d, 0x3f803f80" % (28 + i))
    e("s_mul_i32 s38, s32, 36")
    e("s_lshl_b32 s39, s48, 1")
    e("s_add_u32 s38, s38, s39")
    e("s_lshl_b32 s38, s38, 2")
    e("s_add_u32 s38, s38, s35")
    e("s_lshl_b32 s38, s38, 10")
    e("s_mul_i32 s39, s30, 0x%x" % (WFB - WFA))
    e("s_add_u32 s38, s38, s39")
    e("s_add_u32 s38, s38, 0x%x" % WFA)
    e("s_lshl_b32 s39, s33, 4")
    e("s_add_u32 s39, s39, s32")
    e("s_lshl_b32 s39, s39, 9")
    e("s_mul_i32 s40, s30, %d" % CS_MAT)
    e("s_add_u32 s39, s39, s40")
    e("s_add_u32 s39, s39, 0x%x" % CS)
    e("s_lshl_b32 s40, s46, 9")
    e("s_lshl_b32 s41, s35, 7")
    e("s_add_u32 s40, s40, s41")
    e("s_add_u32 s40, s40, %d" % (3 * GL))
    e("v_and_b32 v10, 31, v3")
    e("v_lshl_add_u32 v10, v10, 2, s40")
    k.stamp(1)
    e("s_waitcnt vmcnt(0)")
    k.stamp(2)
    for i in range(7):
        e("ds_write_b64 v20, %s offset:%d" % (vr(32 + 2 * i, 2), i * 9 * PB_ROW))
    e("ds_write_b64 v21, v[46:47]")
    e("s_waitcnt lgkmcnt(0)")
    e("s_barrier")
    k.stamp(3)
    for ks in range(4):
        for hf in range(2):
            e("ds_read_b64_tr_b16 %s, v7 offset:%d" % (vr(32 + 4 * ks + 2 * hf, 2), (16 * ks + 4 * hf) * PB_ROW))
    e("s_waitcnt lgkmcnt(0)")
    for ks in range(4):
        c = "0" if ks == 0 else vr(48, 16)
        e("v_mfma_f32_32x32x16_bf16 %s, v[28:31], %s, %s" % (vr(48, 16), vr(32 + 4 * ks, 4), c))
        e("s_add_u32 s40, s38, %d" % (4096 * ks))
        e("buffer_store_dwordx4 %s, v5, s[16:19], s40 offen" % vr(32 + 4 * ks, 4))
    e("s_nop 7")
    e("s_nop 7")
    e("ds_write_b32 v10, v48")
    e("s_waitcnt lgkmcnt(0)")
    e("s_barrier")
    e("s_cmp_lg_u32 s46, 0")
    e("s_cbranch_scc1 L_prep_end")
    e("s_cmp_ge_u32 s35, 2")
    e("s_cbranch_scc1 L_prep_end")
    e("v_lshlrev_b32 v10, 2, v0")
    for i in range(3):
        e("ds_read_b32 v%d, v10 offset:%d" % (12 + i, 3 * GL + 512 * i))
    e("s_waitcnt lgkmcnt(0)")
    e("v_add_f32 v12, v12, v13")
    e("v_add_f32 v12, v12, v14")
    e("buffer_store_dword v12, v10, s[16:19], s39 offen")
    k.stamp(4)
    if STAMPS:
        e("s_waitcnt vmcnt(0)")
    k.stamp(5)
    k.dump()
    e("s_endpgm")
    k.lab("L_prep_wo")
    e("s_sub_u32 s29, s2, %d" % NQ)
    e("s_mul_i32 s29, s29, 3")
    e("s_add_u32 s29, s29, s46")
    e("s_cmp_ge_u32 s29, 144")
    e("s_cselect_b32 s30, 1, 0")
    e("s_mul_i32 s31, s30, 144")
    e("s_sub_u32 s31, s29, s31")
    e("s_mul_i32 s32, s31, 3641")
    e("s_lshr_b32 s32, s32, 16")
    e("s_mul_i32 s33, s32, 18")
    e("s_sub_u32 s33, s31, s33")
    e("s_cmp_eq_u32 s30, 0")
    e("s_cselect_b32 s8, s24, s26")
    e("s_cselect_b32 s9, s25, s27")
    e("s_mov_b32 s10, %d" % (576 * 1152))
    e("s_mov_b32 s11, 0x00020000")
    e("s_mul_i32 s37, s32, 144")
    e("s_mul_i32 s38, s33, %d" % (32 * 1152))
    e("s_add_u32 s37, s37, s38")
    for i in range(2):
        e("v_add_u32 v10, %d, v0" % (256 * i))
        if i == 1:
            e("v_min_u32 v10, 287, v10")
        e("v_mul_u32_u24 v11, 7282, v10")
        e("v_lshrrev_b32 v11, 16, v11")
        e("v_mul_u32_u24 v12, 9, v11")
        e("v_sub_u32 v12, v10, v12")
        e("v_mul_u32_u24 v15, 1152, v11")
        e("v_lshl_add_u32 v15, v12, 4, v15")
        e("v_add_u32 v15, s37, v15")
        e("buffer_load_dwordx4 %s, v15, s[8:11], 0 offen" % vr(32 + 4 * i, 4))
        e("v_mul_u32_u24 v15, %d, v11" % OB_ROW)
        e("v_lshrrev_b32 v13, 3, v11")
        e("v_lshl_add_u32 v15, v13, 7, v15")
        e("v_lshl_add_u32 v15, v12, 4, v15")
        e("v_add_u32 v%d, s47, v15" % (20 + i))
    e("s_waitcnt vmcnt(0)")
    for i in range(2):
        e("ds_write_b128 v%d, %s" % (20 + i, vr(32 + 4 * i, 4)))
    e("v_mul_u32_u24 v7, %d, v6" % (8 * OB_ROW + 128))
    e("v_mul_u32_u24 v10, %d, v8" % OB_ROW)
    e("v_lshl_add_u32 v10, v9, 3, v10")
    e("s_lshl_b32 s38, s35, 5")
    e("s_add_u32 s38, s38, s47")
    e("v_add3_u32 v7, v7, v10, s38")
    e("s_mul_i32 s38, s32, %d" % (81 * 1024))
    e("s_lshr_b32 s39, s33, 1")
    e("s_mul_i32 s39, s39, 9216")
    e("s_add_u32 s38, s38, s39")
    e("s_mul_i32 s39, s30, 0x%x" % (WOB - WOA))
    e("s_add_u32 s38, s38, s39")
    e("s_add_u32 s38, s38, 0x%x" % WOA)
    e("s_and_b32 s39, s33, 1")
    e("s_lshl_b32 s40, s39, 9")
    e("s_add_u32 s40, s40, s38")
    e("s_add_u32 s40, s40, 8192")
    e("s_lshl_b32 s39, s39, 12")
    e("s_add_u32 s38, s38, s39")
    e("s_lshl_b32 s39, s35, 10")
    e("s_add_u32 s38, s38, s39")
    e("v_and_b32 v10, 15, v3")
    e("v_lshlrev_b32 v11, 4, v10")
    e("v_lshl_add_u32 v11, v6, 7, v11")
    e("v_cmp_gt_u32 vcc, 8, v10")
    e("v_mov_b32 v12, 0x40000000")
    e("s_nop 0")
    e("v_cndmask_b32 v11, v12, v11, vcc")
    e("s_waitcnt lgkmcnt(0)")
    e("s_barrier")
    for q in range(2):
        for hf in range(2):
            e("ds_read_b64_tr_b16 %s, v7 offset:%d" % (vr(32 + 4 * q + 2 * hf, 2), hf * 4 * OB_ROW + 128 * q))
    e("s_waitcnt lgkmcnt(0)")
    e("buffer_store_dwordx4 %s, v5, s[16:19], s38 offen" % vr(32, 4))
    e("s_cmp_lg_u32 s35, 0")
    e("s_cbranch_scc1 L_prep_end")
    e("buffer_store_dwordx4 %s, v11, s[16:19], s40 offen" % vr(36, 4))
    e("s_endpgm")
    k.lab("L_prep_misc")
    e("s_sub_u32 s3, s2, %d" % (NQ + NO))
    e("s_cmp_eq_u32 s46, 0")
    e("s_cbranch_scc1 L_prep_x0")
    e("s_cmp_eq_u32 s46, 2")
    e("s_cbranch_scc1 L_prep_end")
    e("s_cmp_ge_u32 s3, 42")
    e("s_cbranch_scc1 L_prep_end")
    e("s_lshl_b32 s3, s3, 12")
    e("v_lshlrev_b32 v1, 4, v0")
    e("v_add_u32 v1, s3, v1")
    e("v_add_u32 v1, 0x%x, v1" % KVACC)
    for i in range(4):
        e("v_mov_b32 v%d, 0" % (4 + i))
    e("buffer_store_dwordx4 v[4:7], v1, s[16:19], 0 offen")
    e("s_endpgm")
    k.lab("L_prep_x0")

    e("s_mov_b32 s8, s44")
    e("s_mov_b32 s9, s45")
    e("s_mov_b32 s10, %d" % XB)
    e("s_mov_b32 s11, 0x00020000")
    e("s_mul_i32 s7, s3, 36864")
    e("s_add_u32 s6, s7, 0x%x" % X0F)
    e("s_mov_b32 s42, 0x3f803f80")
    e("v_and_b32 v1, 31, v3")
    e("v_lshrrev_b32 v2, 5, v3")
    e("s_lshl_b32 s28, s35, 1")
    e("v_add_u32 v2, s28, v2")
    e("v_mul_u32_u24 v4, 1152, v1")
    e("v_mul_u32_u24 v7, 144, v2")
    e("v_add_u32 v4, v4, v7")
    for i in range(9):
        e("buffer_load_dwordx4 %s, v4, s[8:11], s7 offen offset:%d" % (vr(32 + 4 * i, 4), 16 * i))
    e("v_mul_u32_u24 v7, 4608, v2")
    e("v_lshl_add_u32 v7, v1, 4, v7")
    e("v_lshlrev_b32 v10, 6, v1")
    e("v_lshl_add_u32 v10, v2, 3, v10")
    e("s_lshl_b32 s28, s3, 11")
    e("s_add_u32 s28, s28, 0x%x" % STATS)
    e("v_mov_b32 v8, 0")
    e("v_mov_b32 v9, 0")
    e("s_waitcnt vmcnt(0)")
    for i in range(9):
        e("s_add_u32 s7, s6, %d" % (512 * i))
        e("buffer_store_dwordx4 %s, v7, s[16:19], s7 offen" % vr(32 + 4 * i, 4))
        for q in range(4):
            e("v_dot2_f32_bf16 v8, v%d, s42, v8" % (32 + 4 * i + q))
            e("v_dot2_f32_bf16 v9, v%d, v%d, v9" % (32 + 4 * i + q, 32 + 4 * i + q))
    e("s_nop 2")
    e("buffer_store_dwordx2 v[8:9], v10, s[16:19], s28 offen")
    k.stamp(4)
    if STAMPS:
        e("s_waitcnt vmcnt(0)")
    k.stamp(5)
    k.dump()
    k.lab("L_prep_end")
    e("s_endpgm")
    return k


NB = 8
BSLOT = 16 * 1024
QCS_BASE = NB * BSLOT
QST_BASE = QCS_BASE + 1536
QPQ_BASE = 32768
QKV_LDS = QST_BASE + 1024
T_STRIDE = 272


def emit_phi(e, x, t1, t2):
    e("v_min_f32 v%d, 0, v%d" % (t1, x))
    e("v_mul_f32 v%d, s40, v%d" % (t1, t1))
    e("v_exp_f32 v%d, v%d" % (t1, t1))
    e("v_max_f32 v%d, 0, v%d" % (t2, x))
    e("v_add_f32 v%d, s41, v%d" % (t2, t2))
    e("v_add_f32 v%d, v%d, v%d" % (x, t1, t2))


def emit_signal(k, fid, line_sgpr, word_sgpr):
    e = k.e
    e("s_waitcnt vmcnt(0)")
    e("s_barrier")
    k.srd(20, 4, FLAGS + fid * 2048, 2048)
    sk = k.newlab("sig")
    e("s_cmp_lg_u32 s35, 0")
    e("s_cbranch_scc1 %s" % sk)
    e("s_lshl_b32 s40, %s, 7" % line_sgpr)
    e("s_lshl_b32 s41, %s, 2" % word_sgpr)
    e("s_add_u32 s40, s40, s41")
    e("v_mov_b32 v8, 1")
    e("v_mov_b32 v9, 0")
    e("s_mov_b64 exec, 1")
    e("buffer_store_dword v8, v9, s[20:23], s40 offen sc1")
    e("s_mov_b64 exec, -1")
    k.lab(sk)


def emit_poll(k, line_sgpr, nflags, done):
    e = k.e
    lp = k.newlab("poll")
    e("s_lshl_b32 s60, %s, 7" % line_sgpr)
    e("v_and_b32 v9, %d, v3" % (nflags - 1))
    e("v_lshlrev_b32 v9, 2, v9")
    e("s_mov_b32 s61, 0")
    k.lab(lp)
    e("buffer_load_dword v8, v9, s[20:23], s60 offen sc1")
    e("s_waitcnt vmcnt(0)")
    e("v_cmp_ne_u32 vcc, 1, v8")
    e("s_add_u32 s61, s61, 1")
    e("s_nop 3")
    e("s_cbranch_vccz %s" % done)
    e("s_sleep 1")
    e("s_cmp_lt_u32 s61, 0x400000")
    e("s_cbranch_scc1 %s" % lp)


def gen_stub(name, body, params):
    k = Kern(name, body.vgpr, body.lds, body.grid, body.block)
    k.stub = ["s_mov_b32 s%d, 0x%x" % (r, v) for r, v in params] + ["s_branch %s" % body.name]
    return k


def gen_qkv(kind, k=None, params=None, chain=None, kname=None):
    fused = k is not None
    name = "L_qkv%s" % kind
    if not fused:
        if kname:
            name = kname
        k = Kern(name, 184, QKV_LDS, (256, 1, 1), (512, 1, 1))
        if not kname:
            k.nodesc = True
    else:
        k.vgpr = max(k.vgpr, 184)
        k.lds = max(k.lds, QKV_LDS)
    SC = " sc1" if fused else ""
    e = k.e
    ACC = 16
    FR = [48, 72]
    VL16 = 100
    VA = [101, 102]
    VB = [103, 104]
    CSR = 105
    VCS = 106
    STR = 112
    EA = 128
    if fused:
        end = k.endlab
        for r, v in params:
            e("s_mov_b32 s%d, 0x%x" % (r, v))
    else:
        end = "L_%s_end" % name
        e("s_cmp_ge_u32 s2, 256")
        e("s_cbranch_scc1 %s" % end)
        e("s_load_dwordx2 s[4:5], s[0:1], %d" % KA_WS)
        k.stamp(0)
        if kname:
            for r, v in params:
                e("s_mov_b32 s%d, 0x%x" % (r, v))
    k.pqsc = " sc1" if chain is not None else ""
    e("s_and_b32 s28, s2, 7")
    e("s_lshr_b32 s29, s2, 3")
    e("s_lshr_b32 s31, s28, 1")
    e("s_lshl_b32 s31, s31, 2")
    e("s_lshr_b32 s32, s29, 3")
    e("s_add_u32 s31, s31, s32")
    e("s_and_b32 s30, s28, 1")
    e("s_lshl_b32 s30, s30, 3")
    e("s_and_b32 s32, s29, 7")
    e("s_add_u32 s30, s30, s32")
    e("v_and_b32 v3, 63, v0")
    e("v_lshrrev_b32 v4, 6, v0")
    e("v_and_b32 v5, 31, v3")
    e("v_readfirstlane_b32 s35, v4")
    e("v_lshrrev_b32 v6, 5, v3")
    e("v_lshlrev_b32 v%d, 4, v3" % VL16)
    e("s_lshl_b32 s52, s35, 10")
    e("s_mul_i32 s53, s30, %d" % (36 * 4096))
    e("s_add_u32 s53, s53, s52")
    e("s_lshl_b32 s50, s31, 2")
    e("s_lshr_b32 s51, s35, 1")
    e("s_add_u32 s50, s50, s51")
    e("s_mul_i32 s50, s50, 36864")
    e("s_and_b32 s51, s35, 1")
    e("s_lshl_b32 s51, s51, 10")
    e("s_add_u32 s50, s50, s51")
    e("s_and_b32 s36, s35, 3")
    e("s_lshr_b32 s37, s35, 2")
    for i in range(32):
        e("v_mov_b32 v%d, 0" % (ACC + i))
    e("s_lshl_b32 s34, s37, 12")
    e("v_add_u32 v%d, s34, v%d" % (VA[0], VL16))
    e("v_add_u32 v%d, 0x10000, v%d" % (VA[1], VA[0]))
    e("s_lshl_b32 s34, s36, 10")
    e("s_add_u32 s34, s34, 8192")
    e("v_add_u32 v%d, s34, v%d" % (VB[0], VL16))
    e("v_add_u32 v%d, 0x10000, v%d" % (VB[1], VB[0]))
    e("s_mov_b32 s40, 0x%x" % f2u(LOG2E))
    e("s_mov_b32 s41, 0x%x" % f2u(1e-6))
    e("s_waitcnt lgkmcnt(0)")
    k.stamp(2)
    e("s_add_u32 s8, s4, s58")
    e("s_addc_u32 s9, s5, 0")
    e("s_mov_b32 s10, %d" % XB)
    e("s_mov_b32 s11, 0x00020000")
    k.srd(12, 4, WFA if kind == 'A' else WFB, WF_SZ)
    k.srd(16, 4, 0, WS_SIZE)
    issued = []

    def group_ops(g):
        slot = (g % NB) * BSLOT
        return [(g, ["s_add_u32 m0, s52, %d" % slot, "s_nop 0",
                     "buffer_load_dwordx4 v%d, s[8:11], s50 offen%s lds" % (VL16, SC),
                     "s_add_u32 s50, s50, 2048"]),
                (g, ["s_add_u32 m0, s52, %d" % (slot + 8192), "s_nop 0",
                     "buffer_load_dwordx4 v%d, s[12:15], s53 offen lds" % VL16,
                     "s_add_u32 s53, s53, 8192"])]

    def emit_op(op):
        tag, lines = op
        for x in lines:
            e(x)
        if tag is not None:
            issued.append(tag)

    def wait_for(stage):
        last = max(i for i, t in enumerate(issued) if t <= stage)
        return len(issued) - 1 - last

    if fused:
        sk = k.newlab("nb")
        e("s_cmp_lg_u32 s35, 4")
        e("s_cbranch_scc1 %s" % sk)
        e("s_sub_u32 s34, s53, 4096")
        for g in range(NB):
            e("s_mov_b32 m0, %d" % ((g % NB) * BSLOT + 8192))
            e("s_nop 0")
            e("buffer_load_dwordx4 v%d, s[12:15], s34 offen lds" % VL16)
            e("s_add_u32 s34, s34, 8192")
        k.lab(sk)
        sk = k.newlab("nb")
        e("s_cmp_eq_u32 s35, 0")
        e("s_cselect_b32 s34, %d, 0" % (NB * 8192))
        e("s_add_u32 s53, s53, s34")
        e("s_cmp_eq_u32 s35, 0")
        e("s_cbranch_scc1 %s" % sk)
        for g in range(NB):
            emit_op(group_ops(g)[1])
        k.lab(sk)
    else:
        for g in range(3):
            for op in group_ops(g):
                emit_op(op)
    k.mem = []
    if kind == 'A':
        epi_A_pre(k, EA)
    else:
        epi_B_pre(k, EA)
    e("v_min_u32 v7, 383, v0")
    e("v_lshrrev_b32 v8, 7, v7")
    e("v_and_b32 v7, 127, v7")
    e("v_lshlrev_b32 v7, 2, v7")
    e("v_lshl_add_u32 v%d, v8, 13, v7" % VCS)
    e("v_lshl_add_u32 v107, v8, 9, v7")
    e("s_lshl_b32 s54, s30, 9")
    e("s_add_u32 s54, s54, 0x%x" % (CS + (0 if kind == 'A' else CS_MAT)))
    k.stamp(13)
    if fused:
        sk = k.newlab("nw")
        lp = k.newlab("poll")
        e("s_cmp_lg_u32 s35, 0")
        e("s_cbranch_scc1 %s" % sk)
        e("s_lshl_b32 s38, s31, 7")
        e("v_and_b32 v9, 15, v3")
        e("v_lshlrev_b32 v9, 2, v9")
        e("s_mov_b32 s39, 0")
        k.lab(lp)
        e("buffer_load_dword v8, v9, s[20:23], s38 offen sc1")
        e("s_waitcnt vmcnt(0)")
        e("v_cmp_ne_u32 vcc, 1, v8")
        e("s_add_u32 s39, s39, 1")
        e("s_nop 3")
        e("s_cbranch_vccz %s" % sk)
        e("s_sleep 1")
        e("s_cmp_lt_u32 s39, 0x400000")
        e("s_cbranch_scc1 %s" % lp)
        k.lab(sk)
        e("s_barrier")
        k.stamp(12)
        for g in range(NB):
            emit_op(group_ops(g)[0])
    e("s_waitcnt vmcnt(%d) lgkmcnt(0)" % wait_for(0))
    k.stamp(1)
    e("s_barrier")
    k.stamp(3)

    def fread_ops(s):
        f = FR[s & 1]
        slot = s % NB
        hi, so = slot >> 2, (slot & 3) * BSLOT
        ops = []
        for ks in range(2):
            ops.append((None, ["ds_read_b128 %s, v%d offset:%d" % (vr(f + 16 + 4 * ks, 4), VB[hi], so + ks * 4096)]))
            for a in range(2):
                ops.append((None, ["ds_read_b128 %s, v%d offset:%d" % (vr(f + 8 * a + 4 * ks, 4), VA[hi], so + a * 2048 + ks * 1024)]))
        return ops

    for op in fread_ops(0):
        emit_op(op)
    nextg = NB if fused else 3
    for s in range(18):
        fill = []
        if s + 1 <= 17:
            e("s_waitcnt vmcnt(%d) lgkmcnt(0)" % wait_for(s + 1))
            e("s_barrier")
            fill += fread_ops(s + 1)
            for _ in range(int(EXP.get("ng", 2))):
                if nextg <= 17 and nextg <= s + NB:
                    fill += group_ops(nextg)
                    nextg += 1
            if s == 10:
                fill.append((99, ["buffer_load_dword v%d, v%d, s[16:19], s54 offen" % (CSR, VCS)]))
        else:
            e("s_waitcnt lgkmcnt(0)")
        if s == 11:
            ns = k.newlab("ns")
            e("s_cmp_lt_u32 s35, 6")
            e("s_cbranch_scc1 %s" % ns)
            e("s_lshl_b32 s34, s31, 13")
            if params:
                e("s_add_u32 s34, s34, 0x%x" % (STATV[dict(params)[58]] - 6 * 4096))
            else:
                e("s_add_u32 s34, s34, s57")
            e("v_lshlrev_b32 v7, 6, v0")
            for i in range(4):
                e("buffer_load_dwordx4 %s, v7, s[16:19], s34 offen offset:%d%s" % (vr(STR + 4 * i, 4), 16 * i, SC))
            k.lab(ns)
        if s % 3 == 0 and s > 0:
            k.stamp(6 + s // 3)
        f = FR[s & 1]
        nfill = -(-len(fill) // 4)
        for ks in range(2):
            for a in range(2):
                acc = ACC + 16 * a
                e("v_mfma_f32_32x32x16_bf16 %s, %s, %s, %s" % (vr(acc, 16), vr(f + 16 + 4 * ks, 4), vr(f + 8 * a + 4 * ks, 4), vr(acc, 16)))
                for _ in range(nfill):
                    if fill:
                        emit_op(fill.pop(0))
    k.stamp(4)
    e("s_waitcnt vmcnt(0)")
    e("ds_write_b32 v107, v%d offset:0" % CSR if False else "v_add_u32 v7, %d, v107" % QCS_BASE)
    e("ds_write_b32 v7, v%d" % CSR)
    ns = k.newlab("ns")
    e("s_cmp_lt_u32 s35, 6")
    e("s_cbranch_scc1 %s" % ns)
    for i in range(1, 8):
        e("v_add_f32 v%d, v%d, v%d" % (STR, STR, STR + 2 * i))
        e("v_add_f32 v%d, v%d, v%d" % (STR + 1, STR + 1, STR + 2 * i + 1))
    e("v_mul_f32 v%d, 0x%x, v%d" % (STR, f2u(1.0 / 576), STR))
    e("v_mul_f32 v%d, 0x%x, v%d" % (STR + 1, f2u(1.0 / 576), STR + 1))
    e("v_fma_f32 v%d, -v%d, v%d, v%d" % (STR + 1, STR, STR, STR + 1))
    e("v_max_f32 v%d, 0, v%d" % (STR + 1, STR + 1))
    e("v_add_f32 v%d, 0x%x, v%d" % (STR + 1, f2u(1e-5), STR + 1))
    e("v_rsq_f32 v%d, v%d" % (STR + 1, STR + 1))
    e("s_nop 0")
    e("v_mul_f32 v%d, v%d, v%d" % (STR, STR, STR + 1))
    e("v_lshlrev_b32 v7, 2, v0")
    e("v_add_u32 v7, %d, v7" % (QST_BASE - 6 * 256))
    e("ds_write_b32 v7, v%d" % (STR + 1))
    e("ds_write_b32 v7, v%d offset:512" % STR)
    k.lab(ns)
    e("s_waitcnt lgkmcnt(0)")
    e("s_barrier")
    RS = 100
    e("s_lshl_b32 s34, s37, 8")
    e("s_add_u32 s34, s34, %d" % QST_BASE)
    e("v_lshl_add_u32 v7, v5, 2, s34")
    for a in range(2):
        e("ds_read_b32 v%d, v7 offset:%d" % (RS + 2 * a, a * 128))
        e("ds_read_b32 v%d, v7 offset:%d" % (RS + 4 + 2 * a, 512 + a * 128))
    e("s_lshl_b32 s34, s36, 7")
    e("s_add_u32 s34, s34, %d" % QCS_BASE)
    e("v_lshl_add_u32 v8, v6, 4, s34")
    for q in range(4):
        for p in range(3):
            e("ds_read_b128 %s, v8 offset:%d" % (vr(52 + 16 * p + 4 * q, 4), 512 * p + 32 * q))
    e("s_waitcnt lgkmcnt(0)")
    for i in range(4):
        e("v_mov_b32 v%d, v%d" % (RS + 2 * i + 1, RS + 2 * i))
    for r in range(0, 16, 2):
        e("v_pk_add_f32 %s, %s, %s" % (vr(52 + r, 2), vr(52 + r, 2), vr(68 + r, 2)))
        e("v_pk_add_f32 %s, %s, %s" % (vr(52 + r, 2), vr(52 + r, 2), vr(84 + r, 2)))
    for a in range(2):
        for r in range(0, 16, 2):
            acc = ACC + 16 * a + r
            e("v_pk_mul_f32 v[10:11], %s, %s" % (vr(RS + 4 + 2 * a, 2), vr(52 + r, 2)))
            e("v_pk_fma_f32 %s, %s, %s, v[10:11] neg_lo:[0,0,1] neg_hi:[0,0,1]" % (vr(acc, 2), vr(acc, 2), vr(RS + 2 * a, 2)))
    if kind == 'A':
        epi_A(k, ACC, EA)
    else:
        epi_B(k, ACC, EA)
    if chain is not None:
        emit_signal(k, chain, "s30", "s31")
        k.endlab = end
        return k
    k.stamp(5)
    if STAMPS:
        e("s_waitcnt vmcnt(0)")
    k.stamp(6)
    k.dump()
    k.lab(end)
    e("s_endpgm")
    return k


def sprinkle(k, n):
    for _ in range(n):
        if k.mem:
            for x in k.mem.pop(0):
                k.e(x)


def per_wave(k, fn, nw=8):
    e = k.e
    labs = [k.newlab("w") for _ in range(nw)]
    lj = k.newlab("wj")
    for w in range(1, nw):
        e("s_cmp_eq_u32 s35, %d" % w)
        e("s_cbranch_scc1 %s" % labs[w])
    for w in range(nw):
        k.lab(labs[w])
        fn(w)
        if w < nw - 1:
            e("s_branch %s" % lj)
    k.lab(lj)


def half_ops(k, lo, hi):
    for x in lo:
        k.e(x)
    k.e("s_mov_b32 exec_lo, 0")
    for x in hi:
        k.e(x)
    k.e("s_mov_b32 exec_lo, -1")


DUMMY = 98304


KV_ROW = 168


def epi_A_pre(k, EA):
    e = k.e
    e("v_mul_u32_u24 v12, %d, v5" % KV_ROW)
    e("v_lshlrev_b32 v13, 4, v5")
    e("v_lshlrev_b32 v14, 2, v5")

    def var(w):
        ct, rh = w & 3, w >> 2
        ops = [[], []]
        for q in range(4):
            for pr in range(2):
                i = 2 * q + pr
                for h in range(2):
                    vc = 32 * ct + 8 * q + 4 * h + 2 * pr
                    for a in range(2):
                        if vc < 72:
                            c = (64 * rh + 32 * a) * KV_ROW + (vc // 18) * 40 + (vc % 18) * 2
                            t = 12
                        elif vc < 108:
                            hl, d = (vc - 72) // 18, (vc - 72) % 18
                            sb = QPQ_BASE + (4 * hl + 2 * rh + a) * 2560
                            if d < 16:
                                c, t = sb + (d >> 3) * 512 + (d & 7) * 2, 13
                            else:
                                c, t = sb + 1024, 14
                        else:
                            c, t = DUMMY, 12
                        ops[h].append("v_add_u32 v%d, %d, v%d" % (EA + 2 * i + a, c, t))
                    isv = 36 <= vc < 72
                    ops[h].append("v_mov_b32 v%d, 0x%x" % (EA + 32 + i, 0 if isv else f2u(1.0)))
                    ops[h].append("v_mov_b32 v%d, 0x%x" % (EA + 44 + i, 0xff800000 if isv else 0))
        half_ops(k, ops[0], ops[1])
        if w < 2:
            e("v_lshrrev_b32 v7, 2, v3")
            e("v_and_b32 v7, 3, v7")
            e("v_lshl_add_u32 v7, v6, 3, v7")
            e("v_mul_u32_u24 v7, %d, v7" % KV_ROW)
            e("v_bfe_u32 v8, v3, 4, 1")
            e("v_lshl_add_u32 v7, v8, 5, v7")
            e("v_and_b32 v8, 3, v3")
            e("v_lshl_add_u32 v7, v8, 3, v7")
            e("v_add_u32 v%d, %d, v7" % (EA + 40, 40 * w))
            e("v_add_u32 v%d, %d, v7" % (EA + 41, 80 + 40 * w))
            e("v_cmp_gt_u32 vcc, 18, v5")
            e("v_lshlrev_b32 v10, 2, v5")
            e("v_lshl_add_u32 v10, v6, 9, v10")
            e("v_mov_b32 v9, 0x40000000")
            e("v_cndmask_b32 v%d, v9, v10, vcc" % (EA + 42))
            e("v_cmp_eq_u32 vcc, 0, v6")
            e("s_nop 1")
            e("v_cndmask_b32 v%d, v9, v%d, vcc" % (EA + 43, EA + 42))
        else:
            for i in range(4):
                e("v_mov_b32 v%d, 0x40000000" % (EA + 40 + i))

    per_wave(k, var)


def epi_A(k, ACC, EA):
    e = k.e
    e("v_mov_b32 v12, s40")
    e("v_mov_b32 v13, s40")
    e("v_mov_b32 v14, s41")
    e("v_mov_b32 v15, s41")
    for q in range(4):
        for pr in range(2):
            i = 2 * q + pr
            for a in range(2):
                acc = ACC + 16 * a + 4 * q + 2 * pr
                e("v_pk_mul_f32 v[10:11], %s, v[12:13]" % vr(acc, 2))
                e("v_min_f32 v10, 0, v10")
                e("v_min_f32 v11, 0, v11")
                e("v_exp_f32 v10, v10")
                e("v_exp_f32 v11, v11")
                e("v_max_f32 v%d, v%d, v%d" % (acc, acc, EA + 44 + i))
                e("v_max_f32 v%d, v%d, v%d" % (acc + 1, acc + 1, EA + 44 + i))
                e("v_pk_add_f32 v[10:11], v[10:11], v[14:15]")
                e("v_fmac_f32 v%d, v10, v%d" % (acc, EA + 32 + i))
                e("v_fmac_f32 v%d, v11, v%d" % (acc + 1, EA + 32 + i))
                e("v_cvt_pk_bf16_f32 v%d, v%d, v%d" % (acc, acc, acc + 1))
                e("ds_write_b32 v%d, v%d" % (EA + 2 * i + a, acc))
    e("v_lshrrev_b32 v10, 2, v0")
    e("v_mul_u32_u24 v10, %d, v10" % KV_ROW)
    e("v_and_b32 v11, 3, v0")
    e("v_mul_u32_u24 v11, 40, v11")
    e("v_add_u32 v10, v10, v11")
    e("v_mov_b32 v11, 0x3f80")
    e("ds_write_b32 v10, v11 offset:36")
    e("s_waitcnt lgkmcnt(0)")
    e("s_barrier")
    e("s_lshl_b32 s39, s31, 2")
    e("s_add_u32 s39, s39, s36")
    e("s_lshl_b32 s39, s39, 5")
    e("s_lshl_b32 s43, s30, 1")
    e("s_add_u32 s39, s39, s43")
    e("s_add_u32 s39, s39, s37")
    e("s_mul_i32 s39, s39, 1152")
    e("s_add_u32 s39, s39, 0x%x" % PQF)
    e("s_mul_i32 s38, s35, 2560")
    e("s_add_u32 s38, s38, %d" % QPQ_BASE)
    e("v_lshlrev_b32 v8, 4, v3")
    e("v_add_u32 v9, s38, v8")
    e("ds_read_b128 v[100:103], v9")
    e("ds_read_b128 v[104:107], v9 offset:1024")
    e("v_mov_b32 v10, 0x40000000")
    e("v_cmp_gt_u32 vcc, 8, v3")
    e("s_nop 1")
    e("v_cndmask_b32 v11, v10, v8, vcc")
    e("s_waitcnt lgkmcnt(0)")
    e("buffer_store_dwordx4 v[100:103], v8, s[16:19], s39 offen%s" % k.pqsc)
    e("buffer_store_dwordx4 v[104:107], v11, s[16:19], s39 offen offset:1024%s" % k.pqsc)
    lj = k.newlab("ej")
    e("s_cmp_ge_u32 s35, 2")
    e("s_cbranch_scc1 %s" % lj)
    for st in range(8):
        for hf in range(2):
            o = (16 * st + 4 * hf) * KV_ROW
            e("ds_read_b64_tr_b16 %s, v%d offset:%d" % (vr(16 + 8 * st + 2 * hf, 2), EA + 40, o))
            e("ds_read_b64_tr_b16 %s, v%d offset:%d" % (vr(20 + 8 * st + 2 * hf, 2), EA + 41, o))
    e("s_lshl_b32 s39, s30, 1")
    e("s_add_u32 s39, s39, s35")
    e("s_mul_i32 s39, s39, 2432")
    e("s_add_u32 s39, s39, s59")
    e("s_waitcnt lgkmcnt(0)")
    for st in range(8):
        c = "0" if st == 0 else vr(80, 16)
        e("v_mfma_f32_32x32x16_bf16 %s, %s, %s, %s" % (vr(80, 16), vr(20 + 8 * st, 4), vr(16 + 8 * st, 4), c))
    e("s_nop 7")
    e("s_nop 7")
    for r in range(11):
        ee = (r & 3) + 8 * (r >> 2)
        e("buffer_atomic_add_f32 v%d, v%d, s[16:19], s39 offen offset:%d" % (80 + r, EA + 42 if r < 8 else EA + 43, 128 * ee))
    k.lab(lj)


IMG_S = 2560
IMG_K = 8 * IMG_S
IMG_V = 16 * IMG_S
V_ROW = 72


def epi_B_pre(k, EA):
    e = k.e
    e("v_lshlrev_b32 v12, 4, v5")
    e("v_lshlrev_b32 v13, 2, v5")
    e("v_mul_u32_u24 v14, %d, v5" % V_ROW)

    def var(w):
        ct, rh = w & 3, w >> 2
        ops = [[], []]
        for q in range(4):
            for pr in range(2):
                i = 2 * q + pr
                for h in range(2):
                    vc = 32 * ct + 8 * q + 4 * h + 2 * pr
                    sc = 1.0
                    if vc >= 108:
                        c, t = DUMMY, 13
                    else:
                        seg, cc = vc // 36, vc % 36
                        hl, d = cc // 18, cc % 18
                        sb = (4 * hl + 2 * rh) * IMG_S
                        if seg == 2:
                            c, t = IMG_V + sb + d * 2, 14
                        else:
                            base = sb + (IMG_K if seg == 1 else 0)
                            if d < 16:
                                c, t = base + (d >> 3) * 512 + (d & 7) * 2, 12
                            else:
                                c, t = base + 1024, 13
                            if seg == 0:
                                sc = QSCALE
                    ops[h].append("v_add_u32 v%d, %d, v%d" % (EA + i, c, t))
                    ops[h].append("v_mov_b32 v%d, 0x%x" % (EA + 16 + 2 * i, f2u(sc)))
                    ops[h].append("v_mov_b32 v%d, 0x%x" % (EA + 17 + 2 * i, f2u(sc)))
        half_ops(k, ops[0], ops[1])

    per_wave(k, var)
    e("v_lshrrev_b32 v7, 2, v3")
    e("v_and_b32 v7, 3, v7")
    e("v_lshl_add_u32 v7, v6, 2, v7")
    e("v_mul_u32_u24 v7, %d, v7" % V_ROW)
    e("v_bfe_u32 v8, v3, 4, 1")
    e("v_lshl_add_u32 v7, v8, 5, v7")
    e("v_and_b32 v9, 3, v3")
    e("v_lshl_add_u32 v7, v9, 3, v7")
    e("s_mul_i32 s38, s35, %d" % IMG_S)
    e("s_add_u32 s38, s38, %d" % IMG_V)
    e("v_add_u32 v%d, s38, v7" % (EA + 8))
    e("v_mul_u32_u24 v7, 320, v6")
    e("v_lshl_add_u32 v7, v5, 4, v7")
    e("v_add_u32 v7, 1152, v7")
    e("v_cmp_gt_u32 vcc, 19, v5")
    e("v_mov_b32 v10, 0x40000000")
    e("s_nop 0")
    e("v_cndmask_b32 v%d, v10, v7, vcc" % (EA + 9))
    e("v_lshlrev_b32 v8, 4, v3")
    e("v_cmp_gt_u32 vcc, 8, v3")
    e("s_nop 1")
    e("v_cndmask_b32 v%d, v10, v8, vcc" % (EA + 10))


def epi_B(k, ACC, EA):
    e = k.e
    for q in range(4):
        for pr in range(2):
            i = 2 * q + pr
            for a in range(2):
                acc = ACC + 16 * a + 4 * q + 2 * pr
                e("v_pk_mul_f32 %s, %s, %s" % (vr(acc, 2), vr(acc, 2), vr(EA + 16 + 2 * i, 2)))
                e("v_cvt_pk_bf16_f32 v%d, v%d, v%d" % (acc, acc, acc + 1))
                e("ds_write_b32 v%d, v%d offset:%d" % (EA + i, acc, IMG_S * a))
    e("s_mul_i32 s38, s35, %d" % IMG_S)
    e("v_mul_u32_u24 v7, %d, v5" % V_ROW)
    e("v_add_u32 v7, s38, v7")
    e("v_mov_b32 v8, 0x3f80")
    e("ds_write_b32 v7, v8 offset:%d" % (IMG_V + 36))
    e("s_waitcnt lgkmcnt(0)")
    e("s_barrier")
    e("v_lshlrev_b32 v8, 4, v3")
    e("v_add_u32 v9, s38, v8")
    e("ds_read_b128 v[48:51], v9")
    e("ds_read_b128 v[52:55], v9 offset:1024")
    e("ds_read_b128 v[56:59], v9 offset:%d" % IMG_K)
    e("ds_read_b128 v[60:63], v9 offset:%d" % (IMG_K + 1024))
    for ab in range(2):
        for hf in range(2):
            e("ds_read_b64_tr_b16 %s, v%d offset:%d" % (vr(64 + 4 * ab + 2 * hf, 2), EA + 8, (16 * ab + 8 * hf) * V_ROW))
    e("s_lshl_b32 s43, s30, 1")
    e("s_add_u32 s43, s43, s37")
    e("s_lshl_b32 s38, s31, 2")
    e("s_add_u32 s38, s38, s36")
    e("s_mul_i32 s44, s43, %d" % QHEAD)
    e("s_mul_i32 s39, s38, 1152")
    e("s_add_u32 s44, s44, s39")
    e("s_add_u32 s44, s44, 0x%x" % QPI)
    e("s_mul_i32 s46, s43, %d" % KVHEAD)
    e("s_mul_i32 s39, s38, 2432")
    e("s_add_u32 s46, s46, s39")
    e("s_add_u32 s46, s46, 0x%x" % KVI)
    e("s_waitcnt lgkmcnt(0)")
    sc = k.pqsc
    e("buffer_store_dwordx4 v[48:51], v8, s[16:19], s44 offen" + sc)
    e("buffer_store_dwordx4 v[52:55], v%d, s[16:19], s44 offen offset:1024" % (EA + 10) + sc)
    e("buffer_store_dwordx4 v[56:59], v8, s[16:19], s46 offen" + sc)
    e("buffer_store_dwordx4 v[60:63], v%d, s[16:19], s46 offen offset:1024" % (EA + 10) + sc)
    e("buffer_store_dwordx4 v[64:67], v%d, s[16:19], s46 offen" % (EA + 9) + sc)
    e("buffer_store_dwordx4 v[68:71], v%d, s[16:19], s46 offen offset:640" % (EA + 9) + sc)


def gen_attn(name):
    k = Kern(name, 120, KVHEAD, (256, 1, 1), (1024, 1, 1))
    e = k.e
    SA, SB = 16, 32
    P = 48
    O = 56
    CM = 72
    Q1, Q2 = 88, 92
    K1, K2 = 96, 100
    VVa, VVb = 104, 108
    vK1, vK2, vV = 112, 113, 114
    vK1b, vK2b, vVb = 115, 116, 117
    SEGS = [2, 6, 24]
    HALF = 32 * 2432
    end = "L_%s_end" % name
    e("s_cmp_ge_u32 s2, 256")
    e("s_cbranch_scc1 %s" % end)
    e("s_load_dwordx2 s[4:5], s[0:1], %d" % KA_WS)
    k.stamp(0)
    k.rstamp(4)
    e("s_and_b32 s30, s2, 7")
    e("s_lshr_b32 s31, s2, 3")
    e("s_and_b32 s32, s31, 3")
    e("s_lshl_b32 s30, s30, 2")
    e("s_add_u32 s30, s30, s32")
    e("s_lshr_b32 s31, s31, 2")
    e("v_lshrrev_b32 v4, 6, v0")
    e("v_and_b32 v3, 63, v0")
    e("v_readfirstlane_b32 s35, v4")
    e("s_mul_i32 s33, s30, %d" % KVHEAD)
    e("s_lshr_b32 s40, s35, 3")
    e("s_and_b32 s41, s35, 7")
    e("s_mul_i32 s42, s40, %d" % HALF)
    e("v_lshlrev_b32 v1, 4, v3")
    e("s_lshl_b32 s36, s31, 3")
    e("s_add_u32 s36, s36, s41")
    e("s_mul_i32 s37, s36, 1152")
    e("s_mul_i32 s38, s30, %d" % QHEAD)
    e("s_add_u32 s37, s37, s38")
    e("s_add_u32 s37, s37, 0x%x" % QPI)
    e("v_and_b32 v5, 31, v3")
    e("v_lshrrev_b32 v6, 5, v3")
    e("v_lshlrev_b32 v7, 2, v5")
    e("s_lshl_b32 s39, s41, 10")
    e("s_add_u32 s39, s39, s42")
    e("s_add_u32 s43, s42, %d" % (75 * 1024))
    e("s_waitcnt lgkmcnt(0)")
    e("s_add_u32 s8, s4, s33")
    e("s_addc_u32 s9, s5, 0")
    e("s_add_u32 s8, s8, 0x%x" % KVI)
    e("s_addc_u32 s9, s9, 0")
    e("s_mov_b32 s10, %d" % KVHEAD)
    e("s_mov_b32 s11, 0x00020000")
    k.srd(16, 4, 0, WS_SIZE)
    e("buffer_load_dwordx4 %s, v1, s[16:19], s37 offen" % vr(Q1, 4))
    e("buffer_load_dword v%d, v7, s[16:19], s37 offen offset:1024" % Q2)
    def dma(i):
        if i == 9:
            e("s_min_u32 s39, s39, s43")
        e("s_mov_b32 m0, s39")
        e("s_nop 0")
        e("buffer_load_dwordx4 v1, s[8:11], s39 offen lds")
        e("s_add_u32 s39, s39, 8192")

    dma(0)
    dma(1)
    e("v_add_u32 v%d, s42, v1" % vK1b)
    e("v_add_u32 v8, 1024, v7")
    e("v_add_u32 v%d, s42, v8" % vK2b)
    e("v_min_u32 v8, 18, v5")
    e("v_lshlrev_b32 v8, 4, v8")
    e("v_mul_u32_u24 v9, 320, v6")
    e("v_add3_u32 v8, v8, v9, s42")
    e("v_add_u32 v%d, 1152, v8" % vVb)
    for i in range(1, 4):
        e("v_mov_b32 v%d, 0" % (Q2 + i))
        e("v_mov_b32 v%d, 0" % (K2 + i))
    e("v_cmp_eq_u32 vcc, 0, v6")
    e("s_waitcnt vmcnt(2)")
    e("v_cndmask_b32 v%d, 0, v%d, vcc" % (Q2, Q2))
    e("s_mov_b32 s50, 0")

    def seg_wait(c):
        ntiles = sum(SEGS[:c + 1]) + 2
        need = min(-(-(ntiles * 2432) // 1024), 76)
        n = min((need - 1) // 8 + 1, 10)
        issued = 2 + min(sum(SEGS[:c]), 8)
        assert issued >= n
        return issued - n

    e("s_waitcnt vmcnt(%d)" % seg_wait(0))
    e("s_barrier")
    k.stamp(1)
    e("ds_read_b128 %s, v%d" % (vr(K1, 4), vK1b))
    e("ds_read_b32 v%d, v%d" % (K2, vK2b))
    e("s_waitcnt lgkmcnt(0)")
    e("v_mfma_f32_32x32x16_bf16 %s, %s, %s, 0" % (vr(SA, 16), vr(K1, 4), vr(Q1, 4)))
    e("v_mfma_f32_32x32x16_bf16 %s, %s, %s, %s" % (vr(SA, 16), vr(K2, 4), vr(Q2, 4), vr(SA, 16)))
    e("s_nop 7")
    e("s_nop 7")
    e("v_max3_f32 v10, v%d, v%d, v%d" % (SA, SA + 1, SA + 2))
    for i in range(3, 15, 2):
        e("v_max3_f32 v10, v10, v%d, v%d" % (SA + i, SA + i + 1))
    e("v_max_f32 v10, v10, v%d" % (SA + 15))
    run = "L_%s_run" % name
    k.lab(run)
    e("v_mov_b32 v11, v10")
    e("s_nop 1")
    e("v_permlane32_swap_b32 v11, v10")
    e("s_nop 1")
    e("v_max_f32 v10, v10, v11")
    e("v_sub_f32 v10, 0, v10")
    for i in range(16):
        e("v_mov_b32 v%d, v10" % (CM + i))
        e("v_mov_b32 v%d, 0" % (O + i))
    e("v_mov_b32 v%d, v%d" % (vK1, vK1b))
    e("v_mov_b32 v%d, v%d" % (vK2, vK2b))
    e("v_mov_b32 v%d, v%d" % (vV, vVb))
    e("ds_read_b128 %s, v%d" % (vr(K1, 4), vK1))
    e("ds_read_b32 v%d, v%d" % (K2, vK2))
    e("s_waitcnt lgkmcnt(0)")
    e("v_mfma_f32_32x32x16_bf16 %s, %s, %s, %s" % (vr(SA, 16), vr(K1, 4), vr(Q1, 4), vr(CM, 16)))
    e("v_mfma_f32_32x32x16_bf16 %s, %s, %s, %s" % (vr(SA, 16), vr(K2, 4), vr(Q2, 4), vr(SA, 16)))
    e("ds_read_b128 %s, v%d offset:2432" % (vr(K1, 4), vK1))
    e("ds_read_b32 v%d, v%d offset:2432" % (K2, vK2))
    e("ds_read_b128 %s, v%d" % (vr(VVa, 4), vV))
    e("ds_read_b128 %s, v%d offset:640" % (vr(VVb, 4), vV))
    e("s_nop 7")

    def body(t, Sc, Sn):
        o = 2432 * (t % 16)
        e("s_waitcnt lgkmcnt(2)")
        e("v_mfma_f32_32x32x16_bf16 %s, %s, %s, %s" % (vr(Sn, 16), vr(K1, 4), vr(Q1, 4), vr(CM, 16)))
        e("v_mfma_f32_32x32x16_bf16 %s, %s, %s, %s" % (vr(Sn, 16), vr(K2, 4), vr(Q2, 4), vr(Sn, 16)))
        e("ds_read_b128 %s, v%d offset:%d" % (vr(K1, 4), vK1, o + 2 * 2432))
        e("ds_read_b32 v%d, v%d offset:%d" % (K2, vK2, o + 2 * 2432))
        for i in range(16):
            e("v_exp_f32 v%d, v%d" % (Sc + i, Sc + i))
            if i & 1 and i >= 3:
                e("v_cvt_pk_bf16_f32 v%d, v%d, v%d" % (P + (i - 3) // 2, Sc + i - 3, Sc + i - 2))
        e("v_cvt_pk_bf16_f32 v%d, v%d, v%d" % (P + 7, Sc + 14, Sc + 15))
        e("s_waitcnt lgkmcnt(2)")
        e("v_mfma_f32_32x32x16_bf16 %s, %s, %s, %s" % (vr(O, 16), vr(VVa, 4), vr(P, 4), vr(O, 16)))
        e("v_mfma_f32_32x32x16_bf16 %s, %s, %s, %s" % (vr(O, 16), vr(VVb, 4), vr(P + 4, 4), vr(O, 16)))
        e("ds_read_b128 %s, v%d offset:%d" % (vr(VVa, 4), vV, o + 2432))
        e("ds_read_b128 %s, v%d offset:%d" % (vr(VVb, 4), vV, o + 2432 + 640))

    t = 0
    for c, nts in enumerate(SEGS):
        if c > 0:
            sk = k.newlab("sk")
            e("s_cmp_lg_u32 s50, 0")
            e("s_cbranch_scc1 %s" % sk)
            e("s_waitcnt vmcnt(%d)" % seg_wait(c))
            e("s_barrier")
            k.lab(sk)
        if c == 2:
            for _ in range(int(EXP.get("pad", 0))):
                e("s_nop 0")
        for i in range(nts):
            if t == 16:
                e("v_add_u32 v%d, %d, v%d" % (vK1, 16 * 2432, vK1))
                e("v_add_u32 v%d, %d, v%d" % (vK2, 16 * 2432, vK2))
                e("v_add_u32 v%d, %d, v%d" % (vV, 16 * 2432, vV))
            if t < 8:
                sk = k.newlab("sd")
                e("s_cmp_lg_u32 s50, 0")
                e("s_cbranch_scc1 %s" % sk)
                dma(t + 2)
                k.lab(sk)
            if t & 1:
                body(t, SB, SA)
            else:
                body(t, SA, SB)
            t += 1
    e("s_waitcnt lgkmcnt(0)")
    k.stamp(2)
    e("s_nop 7")
    e("s_nop 7")
    e("v_max3_f32 v10, |v%d|, |v%d|, |v%d|" % (O, O + 1, O + 2))
    for i in range(3, 11, 2):
        e("v_max3_f32 v10, v10, |v%d|, |v%d|" % (O + i, O + i + 1))
    e("v_max_f32 v10, v10, |v%d|" % (O + 11))
    e("v_add_f32 v11, v%d, v%d" % (O, O + 1))
    for i in range(2, 12):
        e("v_add_f32 v11, v11, v%d" % (O + i))
    e("v_mov_b32 v12, 0x%x" % f2u(2.0 ** (-100 if EXP.get("forcefb") else 100)))
    e("v_cmp_nlt_f32 vcc, v10, v12")
    e("v_cmp_u_f32 s[52:53], v11, v11")
    e("s_nop 3")
    e("s_or_b64 vcc, vcc, s[52:53]")
    e("s_cmp_lg_u32 s50, 0")
    fin = "L_%s_fin" % name
    e("s_cbranch_scc1 %s" % fin)
    e("s_cbranch_vccz %s" % fin)
    e("s_mov_b32 s50, 1")
    e("v_mov_b32 v%d, v%d" % (vK1, vK1b))
    e("v_mov_b32 v%d, v%d" % (vK2, vK2b))
    e("v_mov_b32 v10, 0xff800000")
    e("s_mov_b32 s51, 0")
    fl = "L_%s_fl" % name
    k.lab(fl)
    e("ds_read_b128 %s, v%d" % (vr(K1, 4), vK1))
    e("ds_read_b32 v%d, v%d" % (K2, vK2))
    e("s_waitcnt lgkmcnt(0)")
    e("v_mfma_f32_32x32x16_bf16 %s, %s, %s, 0" % (vr(SA, 16), vr(K1, 4), vr(Q1, 4)))
    e("v_mfma_f32_32x32x16_bf16 %s, %s, %s, %s" % (vr(SA, 16), vr(K2, 4), vr(Q2, 4), vr(SA, 16)))
    e("s_nop 7")
    e("s_nop 7")
    for i in range(0, 16, 2):
        e("v_max3_f32 v10, v10, v%d, v%d" % (SA + i, SA + i + 1))
    e("v_add_u32 v%d, 2432, v%d" % (vK1, vK1))
    e("v_add_u32 v%d, 2432, v%d" % (vK2, vK2))
    e("s_add_u32 s51, s51, 1")
    e("s_cmp_lt_u32 s51, 32")
    e("s_cbranch_scc1 %s" % fl)
    e("s_branch %s" % run)
    k.lab(fin)
    e("s_barrier")
    e("s_mul_i32 s37, s41, 4096")
    e("v_add_u32 v1, s37, v1")
    e("s_cmp_eq_u32 s40, 0")
    lo = "L_%s_lo" % name
    e("s_cbranch_scc1 %s" % lo)
    e("v_mov_b32 v%d, v%d" % (O + 10, CM))
    for i in range(3):
        e("ds_write_b128 v1, %s offset:%d" % (vr(O + 4 * i, 4), 1024 * i))
    e("s_waitcnt lgkmcnt(0)")
    e("s_barrier")
    e("s_endpgm")
    k.lab(lo)
    e("s_barrier")
    for i in range(3):
        e("ds_read_b128 %s, v1 offset:%d" % (vr(SA + 4 * i, 4), 1024 * i))
    e("s_waitcnt lgkmcnt(0)")
    e("v_min_f32 v10, v%d, v%d" % (CM, SA + 10))
    e("v_sub_f32 v11, v10, v%d" % CM)
    e("v_sub_f32 v12, v10, v%d" % (SA + 10))
    e("v_exp_f32 v11, v11")
    e("v_exp_f32 v12, v12")
    e("s_nop 0")
    for i in list(range(10)) + [11]:
        e("v_mul_f32 v%d, v11, v%d" % (O + i, O + i))
        e("v_fmac_f32 v%d, v12, v%d" % (O + i, SA + i))
    e("v_rcp_f32 v10, v%d" % (O + 11))
    e("s_nop 0")
    for i in range(10):
        e("v_mul_f32 v%d, v10, v%d" % (O + i, O + i))
    for i in range(5):
        e("v_cvt_pk_bf16_f32 v%d, v%d, v%d" % (O + i, O + 2 * i, O + 2 * i + 1))
    e("s_lshl_b32 s37, s36, 1")
    e("v_lshrrev_b32 v12, 4, v5")
    e("v_add_u32 v12, s37, v12")
    e("v_mul_u32_u24 v12, 18432, v12")
    e("v_and_b32 v13, 15, v5")
    e("v_lshl_add_u32 v12, v13, 4, v12")
    e("v_add_u32 v12, 0x%x, v12" % OB)
    e("s_mul_i32 s37, s30, 18")
    e("v_lshlrev_b32 v13, 2, v6")
    e("v_add_u32 v13, s37, v13")
    e("v_cmp_eq_u32 vcc, 0, v6")
    for i, dd in enumerate([0, 2, 8, 10, 16]):
        e("v_add_u32 v14, %d, v13" % dd)
        e("v_lshrrev_b32 v15, 3, v14")
        e("v_and_b32 v14, 7, v14")
        e("v_lshl_add_u32 v15, v15, 8, v12")
        e("v_lshl_add_u32 v15, v14, 1, v15")
        if dd == 16:
            e("v_mov_b32 v14, 0x40000000")
            e("v_cndmask_b32 v15, v14, v15, vcc")
        e("buffer_store_dword v%d, v15, s[16:19], 0 offen" % (O + i))
    k.stamp(3)
    k.rstamp(5)
    k.dump()
    k.lab(end)
    e("s_endpgm")
    return k


def gen_attn8(name, k=None, out_fid=None):
    chained = k is not None
    if chained:
        k.vgpr = max(k.vgpr, 200)
        k.lds = max(k.lds, KVHEAD)
        name = k.newlab("a")[2:]
    else:
        k = Kern(name, 200, KVHEAD, (256, 1, 1), (512, 1, 1))
    e = k.e
    S = [[16, 32], [48, 64]]
    P = [80, 88]
    O = [96, 112]
    CM = [128, 144]
    Q1 = [160, 168]
    Q2 = [164, 172]
    K1, K2 = 176, 180
    VVa, VVb = 184, 188
    vK1, vK2, vV = 192, 193, 194
    vK1b, vK2b, vVb = 195, 196, 197
    SEGS = [2, 6, 24]
    HALF = 32 * 2432
    NP = 19
    if chained:
        end = k.endlab
    else:
        end = "L_%s_end" % name
        e("s_cmp_ge_u32 s2, 256")
        e("s_cbranch_scc1 %s" % end)
        e("s_load_dwordx2 s[4:5], s[0:1], %d" % KA_WS)
        k.stamp(0)
        k.rstamp(4)
    e("s_and_b32 s30, s2, 7")
    e("s_lshr_b32 s31, s2, 3")
    e("s_and_b32 s32, s31, 3")
    e("s_lshl_b32 s30, s30, 2")
    e("s_add_u32 s30, s30, s32")
    e("s_lshr_b32 s31, s31, 2")
    e("v_lshrrev_b32 v4, 6, v0")
    e("v_and_b32 v3, 63, v0")
    e("v_readfirstlane_b32 s35, v4")
    e("s_mul_i32 s33, s30, %d" % KVHEAD)
    e("s_lshr_b32 s40, s35, 2")
    e("s_and_b32 s41, s35, 3")
    e("s_mul_i32 s42, s40, %d" % HALF)
    e("v_lshlrev_b32 v1, 4, v3")
    e("s_lshl_b32 s36, s31, 3")
    e("s_lshl_b32 s37, s41, 1")
    e("s_add_u32 s36, s36, s37")
    e("s_mul_i32 s37, s36, 1152")
    e("s_mul_i32 s38, s30, %d" % QHEAD)
    e("s_add_u32 s37, s37, s38")
    e("s_add_u32 s37, s37, 0x%x" % QPI)
    e("v_and_b32 v5, 31, v3")
    e("v_lshrrev_b32 v6, 5, v3")
    e("v_lshlrev_b32 v7, 2, v5")
    e("s_lshl_b32 s39, s41, 10")
    e("s_add_u32 s39, s39, s42")
    e("s_waitcnt lgkmcnt(0)")
    e("s_add_u32 s8, s4, s33")
    e("s_addc_u32 s9, s5, 0")
    e("s_add_u32 s8, s8, 0x%x" % KVI)
    e("s_addc_u32 s9, s9, 0")
    e("s_mov_b32 s10, %d" % KVHEAD)
    e("s_mov_b32 s11, 0x00020000")
    k.srd(16, 4, 0, WS_SIZE)
    if chained:
        sk = k.newlab("nw")
        e("s_cmp_lg_u32 s35, 0")
        e("s_cbranch_scc1 %s" % sk)
        e("s_lshr_b32 s43, s30, 1")
        emit_poll(k, "s43", 16, sk)
        k.lab(sk)
        e("s_barrier")
    for t in range(2):
        e("buffer_load_dwordx4 %s, v1, s[16:19], s37 offen offset:%d%s" % (vr(Q1[t], 4), 1152 * t, " sc1" if chained else ""))
        e("buffer_load_dword v%d, v7, s[16:19], s37 offen offset:%d%s" % (Q2[t], 1024 + 1152 * t, " sc1" if chained else ""))

    def dma():
        e("s_mov_b32 m0, s39")
        e("s_nop 0")
        e("buffer_load_dwordx4 v1, s[8:11], s39 offen%s lds" % (" sc1" if chained else ""))
        e("s_add_u32 s39, s39, 4096")

    for i in range(3):
        dma()
    e("v_add_u32 v%d, s42, v1" % vK1b)
    e("v_add_u32 v8, 1024, v7")
    e("v_add_u32 v%d, s42, v8" % vK2b)
    e("v_min_u32 v8, 18, v5")
    e("v_lshlrev_b32 v8, 4, v8")
    e("v_mul_u32_u24 v9, 320, v6")
    e("v_add3_u32 v8, v8, v9, s42")
    e("v_add_u32 v%d, 1152, v8" % vVb)
    for i in range(1, 4):
        e("v_mov_b32 v%d, 0" % (Q2[0] + i))
        e("v_mov_b32 v%d, 0" % (Q2[1] + i))
        e("v_mov_b32 v%d, 0" % (K2 + i))
    e("v_cmp_eq_u32 vcc, 0, v6")
    e("s_waitcnt vmcnt(3)")
    for t in range(2):
        e("v_cndmask_b32 v%d, 0, v%d, vcc" % (Q2[t], Q2[t]))
    e("s_mov_b32 s50, 0")

    def issued_before(tile):
        return min(3 + 2 * tile, NP)

    def seg_wait(c):
        ntiles = sum(SEGS[:c + 1]) + 2
        need = min(-(-(ntiles * 2432) // 1024), 76)
        n = min((need - 1) // 4 + 1, NP)
        issued = issued_before(sum(SEGS[:c]))
        assert issued >= n, (c, issued, n)
        return issued - n

    e("s_waitcnt vmcnt(%d)" % seg_wait(0))
    e("s_barrier")
    k.stamp(1)
    e("ds_read_b128 %s, v%d" % (vr(K1, 4), vK1b))
    e("ds_read_b32 v%d, v%d" % (K2, vK2b))
    e("s_waitcnt lgkmcnt(0)")
    for t in range(2):
        e("v_mfma_f32_32x32x16_bf16 %s, %s, %s, 0" % (vr(S[t][0], 16), vr(K1, 4), vr(Q1[t], 4)))
        e("v_mfma_f32_32x32x16_bf16 %s, %s, %s, %s" % (vr(S[t][0], 16), vr(K2, 4), vr(Q2[t], 4), vr(S[t][0], 16)))
    e("s_nop 7")
    e("s_nop 7")
    for t in range(2):
        sa = S[t][0]
        e("v_max3_f32 v%d, v%d, v%d, v%d" % (10 + t, sa, sa + 1, sa + 2))
        for i in range(3, 15, 2):
            e("v_max3_f32 v%d, v%d, v%d, v%d" % (10 + t, 10 + t, sa + i, sa + i + 1))
        e("v_max_f32 v%d, v%d, v%d" % (10 + t, 10 + t, sa + 15))
    run = "L_%s_run" % name
    k.lab(run)
    for t in range(2):
        e("v_mov_b32 v%d, v%d" % (12 + t, 10 + t))
    e("s_nop 1")
    for t in range(2):
        e("v_permlane32_swap_b32 v%d, v%d" % (12 + t, 10 + t))
    e("s_nop 1")
    for t in range(2):
        e("v_max_f32 v%d, v%d, v%d" % (10 + t, 10 + t, 12 + t))
        e("v_sub_f32 v%d, 0, v%d" % (10 + t, 10 + t))
        for i in range(16):
            e("v_mov_b32 v%d, v%d" % (CM[t] + i, 10 + t))
            e("v_mov_b32 v%d, 0" % (O[t] + i))
    e("v_mov_b32 v%d, v%d" % (vK1, vK1b))
    e("v_mov_b32 v%d, v%d" % (vK2, vK2b))
    e("v_mov_b32 v%d, v%d" % (vV, vVb))
    e("ds_read_b128 %s, v%d" % (vr(K1, 4), vK1))
    e("ds_read_b32 v%d, v%d" % (K2, vK2))
    e("s_waitcnt lgkmcnt(0)")
    for t in range(2):
        e("v_mfma_f32_32x32x16_bf16 %s, %s, %s, %s" % (vr(S[t][0], 16), vr(K1, 4), vr(Q1[t], 4), vr(CM[t], 16)))
        e("v_mfma_f32_32x32x16_bf16 %s, %s, %s, %s" % (vr(S[t][0], 16), vr(K2, 4), vr(Q2[t], 4), vr(S[t][0], 16)))
    e("ds_read_b128 %s, v%d offset:2432" % (vr(K1, 4), vK1))
    e("ds_read_b32 v%d, v%d offset:2432" % (K2, vK2))
    e("ds_read_b128 %s, v%d" % (vr(VVa, 4), vV))
    e("ds_read_b128 %s, v%d offset:640" % (vr(VVb, 4), vV))
    e("s_nop 7")

    def expcvt(Sc, Pt):
        for i in range(16):
            e("v_exp_f32 v%d, v%d" % (Sc + i, Sc + i))
            if i & 1 and i >= 3:
                e("v_cvt_pk_bf16_f32 v%d, v%d, v%d" % (Pt + (i - 3) // 2, Sc + i - 3, Sc + i - 2))
        e("v_cvt_pk_bf16_f32 v%d, v%d, v%d" % (Pt + 7, Sc + 14, Sc + 15))

    def body(tl):
        c, n = tl & 1, 1 - (tl & 1)
        o = 2432 * (tl % 16)
        e("s_waitcnt lgkmcnt(2)")
        for t in range(2):
            e("v_mfma_f32_32x32x16_bf16 %s, %s, %s, %s" % (vr(S[t][n], 16), vr(K1, 4), vr(Q1[t], 4), vr(CM[t], 16)))
            e("v_mfma_f32_32x32x16_bf16 %s, %s, %s, %s" % (vr(S[t][n], 16), vr(K2, 4), vr(Q2[t], 4), vr(S[t][n], 16)))
        e("ds_read_b128 %s, v%d offset:%d" % (vr(K1, 4), vK1, o + 2 * 2432))
        e("ds_read_b32 v%d, v%d offset:%d" % (K2, vK2, o + 2 * 2432))
        expcvt(S[0][c], P[0])
        e("s_waitcnt lgkmcnt(2)")
        e("v_mfma_f32_32x32x16_bf16 %s, %s, %s, %s" % (vr(O[0], 16), vr(VVa, 4), vr(P[0], 4), vr(O[0], 16)))
        e("v_mfma_f32_32x32x16_bf16 %s, %s, %s, %s" % (vr(O[0], 16), vr(VVb, 4), vr(P[0] + 4, 4), vr(O[0], 16)))
        expcvt(S[1][c], P[1])
        e("s_nop 0")
        e("v_mfma_f32_32x32x16_bf16 %s, %s, %s, %s" % (vr(O[1], 16), vr(VVa, 4), vr(P[1], 4), vr(O[1], 16)))
        e("v_mfma_f32_32x32x16_bf16 %s, %s, %s, %s" % (vr(O[1], 16), vr(VVb, 4), vr(P[1] + 4, 4), vr(O[1], 16)))
        e("ds_read_b128 %s, v%d offset:%d" % (vr(VVa, 4), vV, o + 2432))
        e("ds_read_b128 %s, v%d offset:%d" % (vr(VVb, 4), vV, o + 2432 + 640))

    tl = 0
    for c, nts in enumerate(SEGS):
        if c > 0:
            sk = k.newlab("sk")
            e("s_cmp_lg_u32 s50, 0")
            e("s_cbranch_scc1 %s" % sk)
            e("s_waitcnt vmcnt(%d)" % seg_wait(c))
            e("s_barrier")
            k.lab(sk)
        for i in range(nts):
            if tl == 16:
                e("v_add_u32 v%d, %d, v%d" % (vK1, 16 * 2432, vK1))
                e("v_add_u32 v%d, %d, v%d" % (vK2, 16 * 2432, vK2))
                e("v_add_u32 v%d, %d, v%d" % (vV, 16 * 2432, vV))
            nd = issued_before(tl + 1) - issued_before(tl)
            if nd:
                sk = k.newlab("sd")
                e("s_cmp_lg_u32 s50, 0")
                e("s_cbranch_scc1 %s" % sk)
                for _ in range(nd):
                    dma()
                k.lab(sk)
            body(tl)
            tl += 1
    e("s_waitcnt lgkmcnt(0)")
    k.stamp(2)
    e("s_nop 7")
    e("s_nop 7")
    e("v_mov_b32 v10, 0")
    e("v_mov_b32 v11, 0")
    for t in range(2):
        for i in range(0, 12, 2):
            e("v_max3_f32 v10, v10, |v%d|, |v%d|" % (O[t] + i, O[t] + i + 1))
        for i in range(12):
            e("v_add_f32 v11, v11, v%d" % (O[t] + i))
    e("v_mov_b32 v12, 0x%x" % f2u(2.0 ** (-100 if EXP.get("forcefb") else 100)))
    e("v_cmp_nlt_f32 vcc, v10, v12")
    e("v_cmp_u_f32 s[52:53], v11, v11")
    e("s_nop 3")
    e("s_or_b64 vcc, vcc, s[52:53]")
    e("s_cmp_lg_u32 s50, 0")
    fin = "L_%s_fin" % name
    e("s_cbranch_scc1 %s" % fin)
    e("s_cbranch_vccz %s" % fin)
    e("s_mov_b32 s50, 1")
    e("v_mov_b32 v%d, v%d" % (vK1, vK1b))
    e("v_mov_b32 v%d, v%d" % (vK2, vK2b))
    e("v_mov_b32 v10, 0xff800000")
    e("v_mov_b32 v11, 0xff800000")
    e("s_mov_b32 s51, 0")
    fl = "L_%s_fl" % name
    k.lab(fl)
    e("ds_read_b128 %s, v%d" % (vr(K1, 4), vK1))
    e("ds_read_b32 v%d, v%d" % (K2, vK2))
    e("s_waitcnt lgkmcnt(0)")
    for t in range(2):
        e("v_mfma_f32_32x32x16_bf16 %s, %s, %s, 0" % (vr(S[t][0], 16), vr(K1, 4), vr(Q1[t], 4)))
        e("v_mfma_f32_32x32x16_bf16 %s, %s, %s, %s" % (vr(S[t][0], 16), vr(K2, 4), vr(Q2[t], 4), vr(S[t][0], 16)))
    e("s_nop 7")
    e("s_nop 7")
    for t in range(2):
        for i in range(0, 16, 2):
            e("v_max3_f32 v%d, v%d, v%d, v%d" % (10 + t, 10 + t, S[t][0] + i, S[t][0] + i + 1))
    e("v_add_u32 v%d, 2432, v%d" % (vK1, vK1))
    e("v_add_u32 v%d, 2432, v%d" % (vK2, vK2))
    e("s_add_u32 s51, s51, 1")
    e("s_cmp_lt_u32 s51, 32")
    e("s_cbranch_scc1 %s" % fl)
    e("s_branch %s" % run)
    k.lab(fin)
    e("s_barrier")
    e("s_mul_i32 s37, s35, 4096")
    e("v_add_u32 v2, s37, v1")
    e("s_xor_b32 s38, s35, 4")
    e("s_mul_i32 s38, s38, 4096")
    e("v_add_u32 v1, s38, v1")
    lo = "L_%s_lo" % name
    jn = "L_%s_jn" % name
    e("s_cmp_eq_u32 s40, 0")
    e("s_cbranch_scc1 %s" % lo)
    e("v_mov_b32 v%d, v%d" % (O[0] + 10, CM[0]))
    for i in range(3):
        e("ds_write_b128 v2, %s offset:%d" % (vr(O[0] + 4 * i, 4), 1024 * i))
    for i in range(12):
        e("v_mov_b32 v%d, v%d" % (O[0] + i, O[1] + i))
    e("v_mov_b32 v%d, v%d" % (CM[0], CM[1]))
    e("s_add_u32 s36, s36, 1")
    e("s_branch %s" % jn)
    k.lab(lo)
    e("v_mov_b32 v%d, v%d" % (O[1] + 10, CM[1]))
    for i in range(3):
        e("ds_write_b128 v2, %s offset:%d" % (vr(O[1] + 4 * i, 4), 1024 * i))
    k.lab(jn)
    e("s_waitcnt lgkmcnt(0)")
    e("s_barrier")
    SA = 16
    OO = O[0]
    for i in range(3):
        e("ds_read_b128 %s, v1 offset:%d" % (vr(SA + 4 * i, 4), 1024 * i))
    e("s_waitcnt lgkmcnt(0)")
    e("v_min_f32 v10, v%d, v%d" % (CM[0], SA + 10))
    e("v_sub_f32 v11, v10, v%d" % CM[0])
    e("v_sub_f32 v12, v10, v%d" % (SA + 10))
    e("v_exp_f32 v11, v11")
    e("v_exp_f32 v12, v12")
    e("s_nop 0")
    for i in list(range(10)) + [11]:
        e("v_mul_f32 v%d, v11, v%d" % (OO + i, OO + i))
        e("v_fmac_f32 v%d, v12, v%d" % (OO + i, SA + i))
    e("v_rcp_f32 v10, v%d" % (OO + 11))
    e("s_nop 0")
    for i in range(10):
        e("v_mul_f32 v%d, v10, v%d" % (OO + i, OO + i))
    for i in range(5):
        e("v_cvt_pk_bf16_f32 v%d, v%d, v%d" % (OO + i, OO + 2 * i, OO + 2 * i + 1))
    e("s_lshl_b32 s37, s36, 1")
    e("v_lshrrev_b32 v12, 4, v5")
    e("v_add_u32 v12, s37, v12")
    e("v_mul_u32_u24 v12, 18432, v12")
    e("v_and_b32 v13, 15, v5")
    e("v_lshl_add_u32 v12, v13, 4, v12")
    e("v_add_u32 v12, 0x%x, v12" % OB)
    e("s_mul_i32 s37, s30, 18")
    e("v_lshlrev_b32 v13, 2, v6")
    e("v_add_u32 v13, s37, v13")
    e("v_cmp_eq_u32 vcc, 0, v6")
    for i, dd in enumerate([0, 2, 8, 10, 16]):
        e("v_add_u32 v14, %d, v13" % dd)
        e("v_lshrrev_b32 v15, 3, v14")
        e("v_and_b32 v14, 7, v14")
        e("v_lshl_add_u32 v15, v15, 8, v12")
        e("v_lshl_add_u32 v15, v14, 1, v15")
        if dd == 16:
            e("v_mov_b32 v14, 0x40000000")
            e("v_cndmask_b32 v15, v14, v15, vcc")
        e("buffer_store_dword v%d, v15, s[16:19], 0 offen%s" % (OO + i, " sc1" if out_fid is not None else ""))
    if out_fid is not None:
        emit_signal(k, out_fid, "s31", "s30")
        k.endlab = end
        return k
    k.stamp(3)
    k.rstamp(5)
    k.dump()
    k.lab(end)
    e("s_endpgm")
    return k


def srd_s(k, d, b, sreg, size):
    k.e("s_add_u32 s%d, s%d, s%d" % (d, b, sreg))
    k.e("s_addc_u32 s%d, s%d, 0" % (d + 1, b + 1))
    k.e("s_mov_b32 s%d, 0x%x" % (d + 2, size))
    k.e("s_mov_b32 s%d, 0x00020000" % (d + 3))


def gen_out(name, kind, xsrc, xdst, layer, fused=False, fid=0, k=None, shared=False):
    OA_BASE = 81 * 1024
    lds = OA_BASE + (72 * 1024 if kind == 'A' else 0)
    chained = k is not None
    if chained:
        k.vgpr = max(k.vgpr, 216 if kind == 'A' else 136)
        k.lds = max(k.lds, lds)
        name = k.newlab("o")[2:]
    else:
        k = Kern(name, 216 if kind == 'A' else 136, lds, (256, 1, 1), (512, 1, 1))
        if shared:
            k.nodesc = True
    SC = " sc1" if fused else ""
    LSC = " sc1" if chained else ""
    e = k.e
    ACC = 16
    XRES = 36
    AF = 48
    BF = 84
    BF2 = [84, 104]
    VL16 = 124 if kind == 'B' else 208
    VB = VL16 + 1
    VB4 = VL16 + 2
    VX = VL16 + 3
    VX4 = VL16 + 4
    VD = VL16 + 5
    VD4 = VL16 + 6
    if chained:
        end = k.endlab
    else:
        end = "L_%s_end" % name
        e("s_cmp_ge_u32 s2, 256")
        e("s_cbranch_scc1 %s" % end)
        e("s_load_dwordx2 s[4:5], s[0:1], %d" % KA_WS)
        k.stamp(0)
    if xdst is None:
        e("s_load_dwordx2 s[6:7], s[0:1], %d" % KA_OUT)
    e("s_and_b32 s28, s2, 7")
    e("s_lshr_b32 s29, s2, 3")
    e("s_and_b32 s30, s29, 7")
    e("s_lshr_b32 s31, s29, 3")
    e("s_lshl_b32 s28, s28, 2")
    e("s_add_u32 s31, s31, s28")
    e("v_lshrrev_b32 v4, 6, v0")
    e("v_and_b32 v3, 63, v0")
    e("v_readfirstlane_b32 s35, v4")
    e("v_and_b32 v5, 15, v3")
    e("v_lshrrev_b32 v6, 4, v3")
    e("v_lshlrev_b32 v%d, 4, v3" % VL16)
    e("s_and_b32 s36, s35, 3")
    e("s_lshr_b32 s37, s35, 2")
    e("s_lshl_b32 s38, s31, 2")
    e("s_add_u32 s38, s38, s36")
    e("s_mul_i32 s39, s38, 18432")
    e("s_mul_i32 s33, s30, %d" % (81 * 1024))
    e("s_lshl_b32 s52, s35, 10")
    e("s_waitcnt lgkmcnt(0)")
    k.srd(12, 4, WOA if kind == 'A' else WOB, WO_SZ)
    if shared:
        srd_s(k, 8, 4, 60, XB)
        srd_s(k, 24, 4, 61, XB)
        srd_s(k, 44, 4, 62, KVACC_L)
        srd_s(k, 56, 4, 63, 2048 * 64)
        k.srd(16, 4, PQF if kind == 'A' else OB, PQF_SZ if kind == 'A' else XB)
    else:
        k.srd(8, 4, xsrc, XB)
        if xdst is None:
            k.srd(24, 6, 0, XB)
        else:
            k.srd(24, 4, xdst, XB)
        if kind == 'A':
            k.srd(16, 4, PQF, PQF_SZ)
            k.srd(44, 4, KVACC + layer * KVACC_L, KVACC_L)
        else:
            k.srd(16, 4, OB, XB)
        k.srd(56, 4, STATV.get(xdst, STATS), 2048 * 64)

    def wdma(lo, hi):
        for i in range(lo, hi):
            if 8 * i + 7 < 81:
                e("s_add_u32 m0, s52, %d" % (8192 * i))
                e("s_add_u32 s34, m0, s33")
            else:
                e("s_add_u32 s54, s52, %d" % (8192 * i))
                e("s_min_u32 m0, s54, %d" % (80 * 1024))
                e("s_add_u32 s34, m0, s33")
            e("buffer_load_dwordx4 v%d, s[12:15], s34 offen lds" % VL16)

    if chained:
        sk = k.newlab("nw")
        po = k.newlab("po")
        e("s_cmp_eq_u32 s35, 0")
        e("s_cbranch_scc1 %s" % po)
        wdma(0, 11)
        e("s_cmp_lg_u32 s35, 1")
        e("s_cbranch_scc1 %s" % sk)
        e("s_mov_b32 s52, 0")
        wdma(0, 11)
        e("s_branch %s" % sk)
        k.lab(po)
        e("s_lshr_b32 s43, s31, 2")
        emit_poll(k, "s43", 32, sk)
        k.lab(sk)
        e("s_barrier")

    if kind == 'B':
        e("s_mul_i32 s40, s37, 9216")
        e("s_add_u32 s40, s40, s39")
        for i in range(9):
            e("buffer_load_dwordx4 %s, v%d, s[16:19], s40 offen offset:%d%s" % (vr(AF + 4 * i, 4), VL16, (1024 * i) % 4096, LSC))
            if i % 4 == 3:
                e("s_add_u32 s40, s40, 4096")
    else:
        KVR, PQR, DD = 48, 96, 160
        e("v_and_b32 v1, 31, v3")
        e("v_lshrrev_b32 v2, 5, v3")
        e("s_mul_i32 s40, s35, %d" % (4 * 2432))
        e("v_min_u32 v8, 18, v1")
        e("v_lshlrev_b32 v8, 7, v8")
        e("v_add_u32 v9, s40, v8")
        e("v_lshl_add_u32 v8, v2, 5, v9")
        e("v_lshlrev_b32 v10, 2, v1")
        e("s_lshl_b32 s41, s31, 6")
        e("s_lshl_b32 s42, s35, 2")
        e("s_add_u32 s41, s41, s42")
        e("s_mul_i32 s55, s41, 1152")
        for hh in range(4):
            for t in range(2):
                for i in range(1, 4):
                    e("v_mov_b32 v%d, 0" % (PQR + 16 * hh + 8 * t + 4 + i))

        def s1load(hh):
            e("s_mov_b32 s34, %d" % (hh * 2432))
            e("buffer_load_dwordx4 %s, v8, s[44:47], s34 offen%s" % (vr(KVR + 12 * hh, 4), LSC))
            e("buffer_load_dwordx4 %s, v8, s[44:47], s34 offen offset:16%s" % (vr(KVR + 12 * hh + 4, 4), LSC))
            e("buffer_load_dwordx2 %s, v9, s[44:47], s34 offen offset:64%s" % (vr(KVR + 12 * hh + 8, 2), LSC))
            for t in range(2):
                e("s_add_u32 s34, s55, %d" % (t * 32 * 1152 + hh * 1152))
                e("buffer_load_dwordx4 %s, v%d, s[16:19], s34 offen%s" % (vr(PQR + 16 * hh + 8 * t, 4), VL16, LSC))
                e("buffer_load_dword v%d, v10, s[16:19], s34 offen offset:1024%s" % (PQR + 16 * hh + 8 * t + 4, LSC))

        s1load(0)
        s1load(1)
    if kind == 'B' and not chained:
        wdma(0, 11)
    e("s_lshr_b32 s40, s38, 1")
    e("s_mul_i32 s40, s40, 36864")
    e("s_and_b32 s41, s38, 1")
    e("s_lshl_b32 s41, s41, 8")
    e("s_add_u32 s40, s40, s41")
    e("s_mul_i32 s41, s30, 4608")
    e("s_add_u32 s40, s40, s41")
    e("v_lshrrev_b32 v7, 1, v6")
    e("v_lshlrev_b32 v7, 9, v7")
    e("v_lshl_add_u32 v7, v5, 4, v7")
    e("v_and_b32 v11, 1, v6")
    e("v_lshl_add_u32 v7, v11, 3, v7")
    e("v_add_u32 v%d, s40, v7" % VX)
    e("v_cmp_gt_u32 vcc, 2, v6")
    e("v_mov_b32 v11, 0x40000000")
    e("s_nop 0")
    e("v_cndmask_b32 v%d, v11, v%d, vcc" % (VX4, VX))
    if xdst is None:
        e("s_lshl_b32 s40, s38, 4")
        e("v_add_u32 v7, s40, v5")
        e("v_mul_u32_u24 v7, 1152, v7")
        e("v_lshl_add_u32 v7, v6, 3, v7")
        e("s_mul_i32 s40, s30, 144")
        e("v_add_u32 v%d, s40, v7" % VD)
        e("v_cndmask_b32 v%d, v11, v%d, vcc" % (VD4, VD))
    def xres():
        for t in range(5):
            e("s_mov_b32 s34, %d" % (1024 * t))
            e("buffer_load_dwordx2 %s, v%d, s[8:11], s34 offen%s" % (vr(XRES + 2 * t, 2), VX4 if t == 4 else VX, LSC))

    if kind == 'B':
        xres()
    e("s_mul_i32 s40, s37, %d" % (4 * 9216))
    e("v_add_u32 v%d, s40, v%d" % (VB, VL16))
    e("v_and_b32 v7, 7, v5")
    e("v_lshlrev_b32 v7, 4, v7")
    e("v_lshl_add_u32 v7, v6, 7, v7")
    e("v_add_u32 v%d, s40, v7" % VB4)
    for i in range(20):
        e("v_mov_b32 v%d, 0" % (ACC + i))
    if kind == 'A':
        e("s_mul_i32 s41, s35, 2304")
        e("s_add_u32 s41, s41, %d" % OA_BASE)
        e("v_lshrrev_b32 v11, 4, v1")
        e("v_mul_u32_u24 v11, 18432, v11")
        e("v_and_b32 v12, 15, v1")
        e("v_lshl_add_u32 v11, v12, 4, v11")
        e("v_add_u32 v11, s41, v11")
        e("s_mov_b32 s42, 0x%x" % f2u(1e-6))
        e("v_cmp_eq_u32 s[48:49], 0, v2")
        for hh in range(4):
            kv = KVR + 12 * hh
            k.stamp(7 + 2 * hh)
            e("s_waitcnt vmcnt(%d)" % ([7, 7, 7, 0] if chained else [7, 7, 7, 6])[hh])
            k.stamp(8 + 2 * hh)
            for i in range(5):
                e("v_cvt_pk_bf16_f32 v%d, v%d, v%d" % (kv + i, kv + 2 * i, kv + 2 * i + 1))
            for i in range(5, 8):
                e("v_mov_b32 v%d, 0" % (kv + i))
            for t in range(2):
                q2 = PQR + 16 * hh + 8 * t + 4
                e("v_cndmask_b32 v%d, 0, v%d, s[48:49]" % (q2, q2))
            e("s_nop 1")
            for t in range(2):
                q1 = PQR + 16 * hh + 8 * t
                e("v_mfma_f32_32x32x16_bf16 %s, %s, %s, 0" % (vr(DD + 16 * t, 16), vr(kv, 4), vr(q1, 4)))
                e("v_mfma_f32_32x32x16_bf16 %s, %s, %s, %s" % (vr(DD + 16 * t, 16), vr(kv + 4, 4), vr(q1 + 4, 4), vr(DD + 16 * t, 16)))
            if hh < 2:
                s1load(hh + 2)
            elif hh == 2:
                if not chained:
                    wdma(0, 6)
            else:
                if not chained:
                    wdma(6, 11)
                xres()
            lo, hi = [], []
            for i, dd in enumerate([0, 2, 8, 10, 16]):
                for h in range(2):
                    c = 18 * hh + dd + 4 * h
                    off = (c >> 3) * 256 + (c & 7) * 2
                    if not (dd == 16 and h == 1):
                        (lo if h == 0 else hi).append("v_add_u32 v%d, %d, v11" % (192 + i, off))
            half_ops(k, lo, hi)
            e("s_nop 3")
            for t in range(2):
                d = DD + 16 * t
                e("v_add_f32 v%d, s42, v%d" % (d + 12, d + 11))
            for t in range(2):
                d = DD + 16 * t
                e("v_rcp_f32 v%d, v%d" % (d + 12, d + 12))
            for t in range(2):
                d = DD + 16 * t
                e("v_mov_b32 v%d, v%d" % (d + 13, d + 12))
            for t in range(2):
                d = DD + 16 * t
                for i in range(5):
                    e("v_pk_mul_f32 %s, %s, %s" % (vr(d + 2 * i, 2), vr(d + 2 * i, 2), vr(d + 12, 2)))
                    e("v_cvt_pk_bf16_f32 v%d, v%d, v%d" % (d + 2 * i, d + 2 * i, d + 2 * i + 1))
                    if i == 4:
                        e("s_mov_b32 exec_hi, 0")
                    e("ds_write_b32 v%d, v%d offset:%d" % (192 + i, d + 2 * i, t * 36864))
                    if i == 4:
                        e("s_mov_b32 exec_hi, -1")
        e("s_mul_i32 s40, s36, 18432")
        e("s_mul_i32 s41, s37, 9216")
        e("s_add_u32 s40, s40, s41")
        e("s_add_u32 s40, s40, %d" % OA_BASE)
        e("v_add_u32 v7, s40, v%d" % VL16)
    k.stamp(1)
    e("s_waitcnt vmcnt(0) lgkmcnt(0)")
    e("s_barrier")
    k.stamp(2)
    if kind == 'A':
        for i in range(9):
            e("ds_read_b128 %s, v7 offset:%d" % (vr(AF + 4 * i, 4), 1024 * i))
    l1 = "L_%s_k1" % name
    lj = "L_%s_kj" % name
    e("s_cmp_eq_u32 s37, 1")
    e("s_cbranch_scc1 %s" % l1)
    for kh in range(2):
        if kh == 1:
            k.lab(l1)
        def bread(i):
            bf = BF2[i & 1]
            sl = i + kh
            po = (sl >> 1) * 9216
            for t in range(4):
                e("ds_read_b128 %s, v%d offset:%d" % (vr(bf + 4 * t, 4), VB, po + (sl & 1) * 4096 + t * 1024))
            e("ds_read_b128 %s, v%d offset:%d" % (vr(bf + 16, 4), VB4, po + 8192 + (sl & 1) * 512))

        bread(0)
        for i in range(9):
            if i + 1 < 9:
                bread(i + 1)
                e("s_waitcnt lgkmcnt(5)")
            else:
                e("s_waitcnt lgkmcnt(0)")
            bf = BF2[i & 1]
            for t in range(5):
                e("v_mfma_f32_16x16x32_bf16 %s, %s, %s, %s" % (vr(ACC + 4 * t, 4), vr(bf + 4 * t, 4), vr(AF + 4 * i, 4), vr(ACC + 4 * t, 4)))
        k.stamp(4)
        e("s_barrier")
        e("s_mul_i32 s40, s36, 5120")
        e("v_add_u32 v7, s40, v%d" % VL16)
        if kh == 1:
            e("s_nop 7")
            for t in range(5):
                e("ds_write_b128 v7, %s offset:%d" % (vr(ACC + 4 * t, 4), 1024 * t))
            e("s_waitcnt lgkmcnt(0)")
            e("s_barrier")
            if not fused:
                e("s_endpgm")
        else:
            e("s_barrier")
            for t in range(5):
                e("ds_read_b128 %s, v7 offset:%d" % (vr(BF + 4 * t, 4), 1024 * t))
            e("s_waitcnt lgkmcnt(0)")
            for t in range(5):
                a = ACC + 4 * t
                x = XRES + 2 * t
                e("v_lshlrev_b32 v8, 16, v%d" % x)
                e("v_and_b32 v9, 0xffff0000, v%d" % x)
                e("v_lshlrev_b32 v10, 16, v%d" % (x + 1))
                e("v_and_b32 v11, 0xffff0000, v%d" % (x + 1))
                for r in range(4):
                    e("v_add_f32 v%d, v%d, v%d" % (a + r, a + r, BF + 4 * t + r))
                    e("v_add_f32 v%d, v%d, v%d" % (a + r, a + r, 8 + r))
                e("v_cvt_pk_bf16_f32 v%d, v%d, v%d" % (a, a, a + 1))
                e("v_cvt_pk_bf16_f32 v%d, v%d, v%d" % (a + 1, a + 2, a + 3))
                if xdst is None:
                    e("buffer_store_dwordx2 %s, v%d, s[24:27], 0 offen offset:%d" % (vr(a, 2), VD4 if t == 4 else VD, 32 * t))
                else:
                    e("s_mov_b32 s34, %d" % (1024 * t))
                    e("buffer_store_dwordx2 %s, v%d, s[24:27], s34 offen%s" % (vr(a, 2), VX4 if t == 4 else VX, SC))
            if xdst is not None:
                e("s_mov_b32 s42, 0x3f803f80")
                e("v_cmp_gt_u32 vcc, 2, v6")
                e("v_mov_b32 v8, 0")
                e("v_mov_b32 v9, 0")
                e("v_cndmask_b32 v%d, 0, v%d, vcc" % (ACC + 18, ACC + 16))
                e("v_cndmask_b32 v%d, 0, v%d, vcc" % (ACC + 19, ACC + 17))
                for t in range(5):
                    for i in range(2):
                        r = ACC + 4 * t + i + (2 if t == 4 else 0)
                        e("v_dot2_f32_bf16 v8, v%d, s42, v8" % r)
                        e("v_dot2_f32_bf16 v9, v%d, v%d, v9" % (r, r))
                e("s_nop 2")
                e("v_mov_b32 v10, v8")
                e("v_mov_b32 v11, v9")
                e("s_nop 1")
                e("v_permlane16_swap_b32 v10, v8")
                e("v_permlane16_swap_b32 v11, v9")
                e("s_nop 1")
                e("v_add_f32 v8, v8, v10")
                e("v_add_f32 v9, v9, v11")
                e("v_mov_b32 v10, v8")
                e("v_mov_b32 v11, v9")
                e("s_nop 1")
                e("v_permlane32_swap_b32 v10, v8")
                e("v_permlane32_swap_b32 v11, v9")
                e("s_nop 1")
                e("v_add_f32 v8, v8, v10")
                e("v_add_f32 v9, v9, v11")
                e("s_lshl_b32 s40, s38, 10")
                e("s_lshl_b32 s41, s30, 3")
                e("s_add_u32 s40, s40, s41")
                e("v_lshlrev_b32 v10, 6, v5")
                e("v_cmp_eq_u32 vcc, 0, v6")
                e("v_mov_b32 v11, 0x40000000")
                e("s_nop 0")
                e("v_cndmask_b32 v10, v11, v10, vcc")
                e("buffer_store_dwordx2 v[8:9], v10, s[56:59], s40 offen%s" % SC)
            if fused:
                e("s_waitcnt vmcnt(0)")
                e("s_branch %s" % lj)
                continue
            k.stamp(5)
            if STAMPS:
                e("s_waitcnt vmcnt(0)")
            k.stamp(6)
            k.dump()
            e("s_endpgm")
    if fused:
        k.lab(lj)
        e("s_barrier")
        k.srd(20, 4, FLAGS + fid * 2048, 2048)
        sk = k.newlab("sig")
        e("s_cmp_lg_u32 s35, 0")
        e("s_cbranch_scc1 %s" % sk)
        e("s_lshr_b32 s40, s31, 1")
        e("s_lshl_b32 s40, s40, 7")
        e("s_and_b32 s41, s31, 1")
        e("s_lshl_b32 s41, s41, 3")
        e("s_add_u32 s41, s41, s30")
        e("s_lshl_b32 s41, s41, 2")
        e("s_add_u32 s40, s40, s41")
        e("v_mov_b32 v8, 1")
        e("v_mov_b32 v9, 0")
        e("s_mov_b64 exec, 1")
        e("buffer_store_dword v8, v9, s[20:23], s40 offen sc1")
        e("s_mov_b64 exec, -1")
        k.lab(sk)
        k.endlab = end
        return k
    k.lab(end)
    e("s_endpgm")
    return k


ATTN8 = True


def main():
    mode = EXP.get("mode", "11")
    if mode == "11":
        qa = gen_qkv('A')
        qb = gen_qkv('B')
        oa = gen_out("L_outA", 'A', 1, 1, 0, shared=True)
        sv = lambda x: STATV[x] - 6 * 4096
        ks = [
            gen_prep(),
            gen_stub("qkv_a1_kernel", qa, [(58, X0F), (59, KVACC), (57, sv(X0F))]),
            gen_stub("qkv_a2_kernel", qa, [(58, X2), (59, KVACC + KVACC_L), (57, sv(X2))]),
            qa,
            gen_stub("qkv_b1_kernel", qb, [(58, X1), (59, 0), (57, sv(X1))]),
            gen_stub("qkv_b2_kernel", qb, [(58, X3), (59, 0), (57, sv(X3))]),
            qb,
            gen_stub("out_a1_kernel", oa, [(60, X0F), (61, X1), (62, KVACC), (63, STATV[X1])]),
            gen_stub("out_a2_kernel", oa, [(60, X2), (61, X3), (62, KVACC + KVACC_L), (63, STATV[X3])]),
            oa,
            gen_attn("attn_kernel"),
            gen_out("out_b1_kernel", 'B', X1, X2, 0),
            gen_out("out_b2_kernel", 'B', X3, None, 1),
        ]
        order = ["prep_kernel", "qkv_a1_kernel", "out_a1_kernel", "qkv_b1_kernel", "attn_kernel", "out_b1_kernel",
                 "qkv_a2_kernel", "out_a2_kernel", "qkv_b2_kernel", "attn_kernel", "out_b2_kernel"]
    elif mode == "8":
        qa = gen_qkv('A', params=[(58, X0F), (59, KVACC)], kname="qkv_a1_kernel")
        f1 = gen_qkv('B', gen_out("f1_kernel", 'A', X0F, X1, 0, fused=True, fid=0), [(58, X1), (59, 0)])
        f2 = gen_qkv('A', gen_out("f2_kernel", 'B', X1, X2, 0, fused=True, fid=1), [(58, X2), (59, KVACC + KVACC_L)])
        f3 = gen_qkv('B', gen_out("f3_kernel", 'A', X2, X3, 1, fused=True, fid=2), [(58, X3), (59, 0)])
        ks = [gen_prep(), qa, f1, f2, f3, gen_attn("attn_kernel"), gen_out("out_b2_kernel", 'B', X3, None, 1)]
        order = ["prep_kernel", "qkv_a1_kernel", "f1_kernel", "attn_kernel", "f2_kernel", "f3_kernel",
                 "attn_kernel", "out_b2_kernel"]
    else:
        qa = gen_qkv('A', params=[(58, X0F), (59, KVACC)], kname="qkv_a1_kernel")
        f1 = gen_out("f1_kernel", 'A', X0F, X1, 0, fused=True, fid=0)
        f1 = gen_qkv('B', f1, [(58, X1), (59, 0)], chain=1)
        f1 = gen_attn8(None, f1, out_fid=2)
        f1 = gen_out(None, 'B', X1, X2, 0, fused=True, fid=3, k=f1)
        f1 = gen_qkv('A', f1, [(58, X2), (59, KVACC + KVACC_L)])
        f2 = gen_out("f2_kernel", 'A', X2, X3, 1, fused=True, fid=4)
        f2 = gen_qkv('B', f2, [(58, X3), (59, 0)], chain=5)
        f2 = gen_attn8(None, f2, out_fid=6)
        f2 = gen_out(None, 'B', X3, None, 1, k=f2)
        ks = [gen_prep(), qa, f1, f2]
        order = ["prep_kernel", "qkv_a1_kernel", "f1_kernel", "f2_kernel"]
    byname = {k.name: k for k in ks}
    hdr = open("cdna_kernels/%s.s.ref" % NAME).read().split("; Override launch geometry")[0]
    out = hdr
    for n in order:
        k = byname[n]
        out += "; @launch kernel=%s grid=(%d,%d,%d) block=(%d,%d,%d) lds=%d\n" % ((n,) + k.grid + k.block + (k.lds,))
    out += '.amdgcn_target "amdgcn-amd-amdhsa--gfx950"\n.text\n'
    for k in ks:
        if getattr(k, "nodesc", False):
            out += ".p2align 8\n%s:\n" % k.name + "\n".join(k.L) + "\n"
        else:
            out += k.text()
    out += '.section .rodata,"a"\n'
    for k in ks:
        if not getattr(k, "nodesc", False):
            out += ".p2align 6\n" + k.desc()
    dst = "cdna_kernels/%s.s" % NAME
    if STAMPS or EXP.get("dst"):
        dst = EXP.get("dst", OUTFILE)
    open(dst, "w").write(out)


if __name__ == "__main__":
    if len(sys.argv) > 1:
        STAMPS = sys.argv[1] == "stamps"
        for a in sys.argv[2:]:
            if a.startswith("out="):
                OUTFILE = a[4:]
            elif a.startswith("wg="):
                STAMP_WG = int(a[3:])
            elif "=" in a:
                EXP[a.split("=")[0]] = a.split("=")[1]
            else:
                EXP[a] = True
    main()
```

```python
import sys, re

NAME = "interleave_layers__linear_attn_block__mha_block__prompt"

XB = 2048 * 576 * 2
X1 = 0x0
X2 = 0x240000
X3 = 0x480000
PQ = 0x6C0000
OB = 0x900000
QPI = 0xB40000
QHEAD = 64 * 1152
KVI = 0xF40000
KVHEAD = 64 * 2432
KVACC = 0x1400000
KVACC_L = 32 * 19 * 32 * 4
WFA = 0x2000000
WFB = 0x2240000
WF_SZ = 8 * 36 * 8 * 1024
STATS = 0x1500000
STATV = {}
WOA = 0x1840000
WOB = 0x1900000
WO_SZ = 8 * 81 * 1024
CS = 0x1480000
CS_MAT = 3 * 16 * 512
PQF = 0x1A00000
PQF_SZ = 64 * 32 * 1152
X0F = 0x1D00000
STATV.update({X0F: STATS, X1: STATS + 0x20000, X2: STATS + 0x40000, X3: STATS + 0x60000})
FLAGS = KVACC + 2 * KVACC_L
WS_SIZE = 0x8000000

LOG2E = 1.4426950408889634
QSCALE = (18.0 ** -0.5) * LOG2E

import struct
def f2u(x):
    return struct.unpack("<I", struct.pack("<f", x))[0]


EXP = {}
KID = {n: i for i, n in enumerate(["prep_kernel", "qkv_a1_kernel", "out_a1_kernel", "qkv_b1_kernel", "attn_kernel", "out_b1_kernel",
                 "qkv_a2_kernel", "out_a2_kernel", "qkv_b2_kernel", "attn2_kernel", "out_b2_kernel"])}
STAMPS = False
STAMP_WG = 0


class Kern:
    def __init__(self, name, vgpr, lds, grid, block):
        self.name = name
        self.vgpr = vgpr
        self.lds = lds
        self.grid = grid
        self.block = block
        self.L = []
        self.uid = 0

    def e(self, s):
        m = re.search(r"offset:(\d+)", s)
        if m:
            o = int(m.group(1))
            if s.startswith("buffer_"):
                assert o <= 4095, s
            elif s.startswith("ds_"):
                assert o <= 65535, s
        self.L.append("    " + s)

    def lab(self, s):
        self.L.append(s + ":")

    def newlab(self, p):
        self.uid += 1
        return "L_%s_%s%d" % (self.name, p, self.uid)

    def srd(self, d, b, off, size):
        if off:
            self.e("s_add_u32 s%d, s%d, 0x%x" % (d, b, off))
            self.e("s_addc_u32 s%d, s%d, 0" % (d + 1, b + 1))
        else:
            self.e("s_mov_b32 s%d, s%d" % (d, b))
            self.e("s_mov_b32 s%d, s%d" % (d + 1, b + 1))
        self.e("s_mov_b32 s%d, 0x%x" % (d + 2, size))
        self.e("s_mov_b32 s%d, 0x00020000" % (d + 3))

    def rstamp(self, i):
        if STAMPS:
            self.e("s_memrealtime s[%d:%d]" % (64 + 2 * i, 65 + 2 * i))
            self.nst = max(getattr(self, "nst", 0), i + 1)

    def stamp(self, i, fine=False):
        if bool(EXP.get("fine")) != fine and i != 0 and "qkv" in self.name:
            return
        if EXP.get("rt") and i == 0:
            self.e("s_memrealtime s[90:91]")
            if not getattr(self, "nodesc", False):
                self.e("s_mov_b32 s89, %d" % KID[self.name])
        if STAMPS:
            self.e("s_memtime s[%d:%d]" % (64 + 2 * i, 65 + 2 * i))
            self.nst = max(getattr(self, "nst", 0), i + 1)

    def dump(self):
        if EXP.get("rt"):
            self.e("s_waitcnt vmcnt(0) lgkmcnt(0)")
            self.e("s_memrealtime s[92:93]")
            self.e("s_add_u32 s60, s4, 0x3000000")
            self.e("s_addc_u32 s61, s5, 0")
            self.e("s_mov_b32 s62, 0x100000")
            self.e("s_mov_b32 s63, 0x00020000")
            self.e("s_lshl_b32 s89, s89, 16")
            self.e("s_lshl_b32 s88, s2, 8")
            self.e("s_add_u32 s89, s89, s88")
            self.e("s_lshl_b32 s88, s35, 4")
            self.e("s_add_u32 s89, s89, s88")
            self.e("s_waitcnt lgkmcnt(0)")
            self.e("v_mov_b32 v1, 0")
            self.e("v_mov_b32 v2, s90")
            self.e("v_mov_b32 v3, s92")
            self.e("s_mov_b64 exec, 1")
            self.e("buffer_store_dwordx2 v[2:3], v1, s[60:63], s89 offen")
            return
        if STAMPS and getattr(self, "nst", 0):
            l = self.newlab("nd")
            self.e("s_cmp_lg_u32 s2, %d" % STAMP_WG)
            self.e("s_cbranch_scc1 %s" % l)
            self.e("s_load_dwordx2 s[60:61], s[0:1], %d" % KA_DBG)
            self.e("s_waitcnt lgkmcnt(0)")
            self.e("s_mov_b32 s62, 256")
            self.e("s_mov_b32 s63, 0x00020000")
            self.e("v_lshrrev_b32 v1, 6, v0")
            if EXP.get("hiwaves"):
                self.e("v_xor_b32 v1, 4, v1")
            self.e("v_lshlrev_b32 v1, 6, v1")
            if getattr(self, "endlab", None):
                self.e("v_add_u32 v1, 128, v1")
            for i in range(self.nst):
                self.e("v_mov_b32 v2, s%d" % (64 + 2 * i))
                self.e("buffer_store_dword v2, v1, s[60:63], 0 offen offset:%d" % (4 * i))
            self.lab(l)

    def text(self):
        if getattr(self, "stub", None):
            return (".globl %s\n.p2align 8\n.type %s,@function\n%s:\n" % (self.name, self.name, self.name)
                    + "".join("    %s\n" % x for x in self.stub))
        out = []
        out.append(".globl %s" % self.name)
        out.append(".p2align 8")
        out.append(".type %s,@function" % self.name)
        out.append("%s:" % self.name)
        out += self.L
        return "\n".join(out) + "\n"

    def desc(self):
        v = (self.vgpr + 3) // 4 * 4
        return """.amdhsa_kernel %s
  .amdhsa_next_free_vgpr %d
  .amdhsa_next_free_sgpr 96
  .amdhsa_accum_offset %d
  .amdhsa_group_segment_fixed_size 0
  .amdhsa_kernarg_size 72
  .amdhsa_user_sgpr_count 2
  .amdhsa_user_sgpr_kernarg_segment_ptr 1
  .amdhsa_system_sgpr_workgroup_id_x 1
.end_amdhsa_kernel
""" % (self.name, v, v)


def vr(a, n):
    return "v[%d:%d]" % (a, a + n - 1)


KA_AX, KA_AWQKV, KA_AWO, KA_BX, KA_BWQKV, KA_BWO, KA_OUT, KA_DBG, KA_WS = [8 * i for i in range(9)]


OUTFILE = 'st.s'
PB_ROW = 288
OB_ROW = 160


def pf_code_srd(k, s):
    e = k.e
    l = k.newlab("pc")
    e("s_getpc_b64 s[%d:%d]" % (s, s + 1))
    k.lab(l)
    e("s_sub_u32 s%d, s%d, %s-L_text_start" % (s, s, l))
    e("s_subb_u32 s%d, s%d, 0" % (s + 1, s + 1))
    e("s_mov_b32 s%d, L_text_end-L_text_start" % (s + 2))
    e("s_mov_b32 s%d, 0x00020000" % (s + 3))


def pf_code_setup(k, s, va):
    pf_code_srd(k, s)
    k.e("s_cmp_lt_u32 s2, 16")
    k.e("s_cselect_b32 s34, 0, 0x40000000")
    k.e("v_lshl_add_u32 v%d, v0, 7, s34" % va)


def LOFF():
    return 0x4000000 if EXP.get("loff") else 0


def PST():
    return " " + EXP["pst"].replace("+", " ") if EXP.get("pst") else ""


def gen_prep():
    NQ = 96
    NO = 96
    NZ = 0
    NX = 64
    GL = 64 * PB_ROW
    k = Kern("prep_kernel", 96, 3 * GL + 4096, (NQ + NO + NZ + NX, 1, 1), (768, 1, 1))
    e = k.e
    e("s_cmp_ge_u32 s2, %d" % (NQ + NO + NZ + NX))
    e("s_cbranch_scc1 L_prep_end")
    e("s_load_dwordx2 s[4:5], s[0:1], %d" % KA_WS)
    e("s_load_dwordx2 s[20:21], s[0:1], %d" % KA_AWQKV)
    e("s_load_dwordx2 s[22:23], s[0:1], %d" % KA_BWQKV)
    e("s_load_dwordx2 s[24:25], s[0:1], %d" % KA_AWO)
    e("s_load_dwordx2 s[26:27], s[0:1], %d" % KA_BWO)
    e("s_load_dwordx2 s[44:45], s[0:1], %d" % KA_AX)
    k.stamp(0)
    if "prep" in EXP.get("pfc", ""):
        sk = k.newlab("npc")
        e("s_cmp_ge_u32 s2, 16")
        e("s_cbranch_scc1 %s" % sk)
        pf_code_srd(k, 52)
        e("v_lshlrev_b32 v1, 7, v0")
        e("buffer_load_dword v90, v1, s[52:55], 0 offen")
        if EXP.get("pfkd"):
            e("s_getpc_b64 s[56:57]")
            e("s_add_u32 s56, s56, L_kd_start@rel32@lo+4")
            e("s_addc_u32 s57, s57, L_kd_start@rel32@hi+12")
            e("s_mov_b32 s58, 768")
            e("s_mov_b32 s59, 0x00020000")
            e("v_lshlrev_b32 v1, 6, v0")
            e("buffer_load_dword v91, v1, s[56:59], 0 offen")
        k.lab(sk)
    e("v_and_b32 v3, 63, v0")
    e("v_lshrrev_b32 v4, 6, v0")
    e("v_and_b32 v0, 255, v0")
    e("v_readfirstlane_b32 s35, v4")
    e("v_lshlrev_b32 v5, 4, v3")
    e("v_lshrrev_b32 v6, 4, v3")
    e("v_lshrrev_b32 v8, 2, v3")
    e("v_and_b32 v8, 3, v8")
    e("v_and_b32 v9, 3, v3")
    e("s_lshr_b32 s46, s35, 2")
    e("s_and_b32 s35, s35, 3")
    e("s_mul_i32 s47, s46, %d" % GL)
    e("s_waitcnt lgkmcnt(0)")
    k.srd(16, 4, 0, WS_SIZE)
    e("s_cmp_ge_u32 s2, %d" % (NQ + NO))
    e("s_cbranch_scc1 L_prep_misc")
    e("s_cmp_ge_u32 s2, %d" % NQ)
    e("s_cbranch_scc1 L_prep_wo")
    e("s_cmp_ge_u32 s2, 48")
    e("s_cselect_b32 s30, 1, 0")
    e("s_mul_i32 s31, s30, 48")
    e("s_sub_u32 s31, s2, s31")
    e("s_mul_i32 s32, s31, 21846")
    e("s_lshr_b32 s32, s32, 16")
    e("s_mul_i32 s33, s32, 3")
    e("s_sub_u32 s33, s31, s33")
    e("s_mul_i32 s48, s33, 6")
    e("s_lshl_b32 s49, s46, 1")
    e("s_add_u32 s48, s48, s49")
    e("s_cmp_eq_u32 s30, 0")
    e("s_cselect_b32 s8, s20, s22")
    e("s_cselect_b32 s9, s21, s23")
    e("s_mov_b32 s10, %d" % (576 * 3456))
    e("s_mov_b32 s11, 0x00020000")
    e("s_cselect_b32 s36, 1, 0")
    e("s_mul_i32 s37, s32, 72")
    e("s_mul_i32 s38, s48, %d" % (32 * 3456))
    e("s_add_u32 s37, s37, s38")
    e("v_subrev_u32 v10, 243, v0")
    e("v_cmp_gt_u32 vcc, 243, v0")
    e("s_nop 1")
    e("v_cndmask_b32 v10, v10, v0, vcc")
    e("v_mul_u32_u24 v11, 9710, v10")
    e("v_lshrrev_b32 v11, 18, v11")
    e("v_mul_u32_u24 v12, 27, v11")
    e("v_sub_u32 v12, v10, v12")
    e("v_mul_u32_u24 v13, 57, v12")
    e("v_lshrrev_b32 v13, 9, v13")
    e("v_mul_u32_u24 v14, 9, v13")
    e("v_sub_u32 v14, v12, v14")
    e("v_add_u32 v13, s36, v13")
    e("v_cmp_eq_u32 vcc, 3, v13")
    e("s_nop 1")
    e("v_cndmask_b32_e64 v13, v13, 0, vcc")
    e("v_mul_u32_u24 v13, 1152, v13")
    e("v_mul_u32_u24 v15, 3456, v11")
    e("v_add3_u32 v15, v15, v13, s37")
    e("v_lshl_add_u32 v15, v14, 3, v15")
    e("v_cmp_eq_u32 s[50:51], 0, v11")
    for i in range(7):
        e("s_mov_b32 s34, %d" % (i * 9 * 3456))
        e("buffer_load_dwordx2 %s, v15, s[8:11], s34 offen" % vr(32 + 2 * i, 2))
    e("v_mov_b32 v16, 0x40000000")
    e("v_cndmask_b32 v16, v16, v15, s[50:51]")
    e("s_mov_b32 s34, %d" % (63 * 3456))
    e("buffer_load_dwordx2 %s, v16, s[8:11], s34 offen" % vr(46, 2))
    e("v_mul_u32_u24 v15, %d, v11" % PB_ROW)
    e("v_lshl_add_u32 v15, v12, 3, v15")
    e("v_add_u32 v20, s47, v15")
    e("v_mov_b32 v16, %d" % (3 * GL + 2048))
    e("v_add_u32 v21, %d, v20" % (63 * PB_ROW))
    e("v_cndmask_b32 v21, v16, v21, s[50:51]")
    e("v_mov_b32 v28, 0")
    e("v_mov_b32 v29, 0")
    for i in range(2):
        e("v_add_u32 v10, %d, v0" % (256 * i))
        e("v_min_u32 v10, 319, v10")
        e("v_mul_u32_u24 v11, 13108, v10")
        e("v_lshrrev_b32 v11, 16, v11")
        e("v_mul_u32_u24 v12, 5, v11")
        e("v_sub_u32 v12, v10, v12")
        e("v_mul_u32_u24 v11, %d, v11" % PB_ROW)
        e("v_lshl_add_u32 v11, v12, 3, v11")
        e("v_add_u32 v11, s47, v11")
        e("ds_write_b64 v11, v[28:29] offset:216")
    e("v_lshrrev_b32 v7, 1, v6")
    e("v_lshl_add_u32 v7, v7, 3, v8")
    e("v_mul_u32_u24 v7, %d, v7" % PB_ROW)
    e("v_and_b32 v10, 1, v6")
    e("v_lshl_add_u32 v7, v10, 5, v7")
    e("v_lshl_add_u32 v7, v9, 3, v7")
    e("s_lshl_b32 s38, s35, 6")
    e("s_add_u32 s38, s38, s47")
    e("v_add_u32 v7, s38, v7")
    for i in range(4):
        e("v_mov_b32 v%d, 0x3f803f80" % (28 + i))
    e("s_mul_i32 s38, s32, 36")
    e("s_lshl_b32 s39, s48, 1")
    e("s_add_u32 s38, s38, s39")
    e("s_lshl_b32 s38, s38, 2")
    e("s_add_u32 s38, s38, s35")
    e("s_lshl_b32 s38, s38, 10")
    e("s_mul_i32 s39, s30, 0x%x" % (WFB - WFA))
    e("s_add_u32 s38, s38, s39")
    e("s_add_u32 s38, s38, 0x%x" % WFA)
    e("s_lshl_b32 s39, s33, 4")
    e("s_add_u32 s39, s39, s32")
    e("s_lshl_b32 s39, s39, 9")
    e("s_mul_i32 s40, s30, %d" % CS_MAT)
    e("s_add_u32 s39, s39, s40")
    e("s_add_u32 s39, s39, 0x%x" % CS)
    e("s_lshl_b32 s40, s46, 9")
    e("s_lshl_b32 s41, s35, 7")
    e("s_add_u32 s40, s40, s41")
    e("s_add_u32 s40, s40, %d" % (3 * GL))
    e("v_and_b32 v10, 31, v3")
    e("v_lshl_add_u32 v10, v10, 2, s40")
    k.stamp(1)
    e("s_waitcnt vmcnt(0)")
    k.stamp(2)
    for i in range(7):
        e("ds_write_b64 v20, %s offset:%d" % (vr(32 + 2 * i, 2), i * 9 * PB_ROW))
    e("ds_write_b64 v21, v[46:47]")
    e("s_waitcnt lgkmcnt(0)")
    e("s_barrier")
    k.stamp(3)
    for ks in range(4):
        for hf in range(2):
            e("ds_read_b64_tr_b16 %s, v7 offset:%d" % (vr(32 + 4 * ks + 2 * hf, 2), (16 * ks + 4 * hf) * PB_ROW))
    e("s_waitcnt lgkmcnt(0)")
    for ks in range(4):
        c = "0" if ks == 0 else vr(48, 16)
        e("v_mfma_f32_32x32x16_bf16 %s, v[28:31], %s, %s" % (vr(48, 16), vr(32 + 4 * ks, 4), c))
        e("s_add_u32 s40, s38, %d" % (4096 * ks))
        e("buffer_store_dwordx4 %s, v5, s[16:19], s40 offen" % vr(32 + 4 * ks, 4) + PST())
    e("s_nop 7")
    e("s_nop 7")
    e("ds_write_b32 v10, v48")
    e("s_waitcnt lgkmcnt(0)")
    e("s_barrier")
    e("s_cmp_lg_u32 s46, 0")
    e("s_cbranch_scc1 L_prep_end")
    e("s_cmp_ge_u32 s35, 2")
    e("s_cbranch_scc1 L_prep_end")
    e("v_lshlrev_b32 v10, 2, v0")
    for i in range(3):
        e("ds_read_b32 v%d, v10 offset:%d" % (12 + i, 3 * GL + 512 * i))
    e("s_waitcnt lgkmcnt(0)")
    e("v_add_f32 v12, v12, v13")
    e("v_add_f32 v12, v12, v14")
    e("buffer_store_dword v12, v10, s[16:19], s39 offen")
    k.stamp(4)
    if STAMPS:
        e("s_waitcnt vmcnt(0)")
    k.stamp(5)
    k.dump()
    e("s_endpgm")
    k.lab("L_prep_wo")
    e("s_sub_u32 s29, s2, %d" % NQ)
    e("s_mul_i32 s29, s29, 3")
    e("s_add_u32 s29, s29, s46")
    e("s_cmp_ge_u32 s29, 144")
    e("s_cselect_b32 s30, 1, 0")
    e("s_mul_i32 s31, s30, 144")
    e("s_sub_u32 s31, s29, s31")
    e("s_mul_i32 s32, s31, 3641")
    e("s_lshr_b32 s32, s32, 16")
    e("s_mul_i32 s33, s32, 18")
    e("s_sub_u32 s33, s31, s33")
    e("s_cmp_eq_u32 s30, 0")
    e("s_cselect_b32 s8, s24, s26")
    e("s_cselect_b32 s9, s25, s27")
    e("s_mov_b32 s10, %d" % (576 * 1152))
    e("s_mov_b32 s11, 0x00020000")
    e("s_mul_i32 s37, s32, 144")
    e("s_mul_i32 s38, s33, %d" % (32 * 1152))
    e("s_add_u32 s37, s37, s38")
    for i in range(2):
        e("v_add_u32 v10, %d, v0" % (256 * i))
        if i == 1:
            e("v_min_u32 v10, 287, v10")
        e("v_mul_u32_u24 v11, 7282, v10")
        e("v_lshrrev_b32 v11, 16, v11")
        e("v_mul_u32_u24 v12, 9, v11")
        e("v_sub_u32 v12, v10, v12")
        e("v_mul_u32_u24 v15, 1152, v11")
        e("v_lshl_add_u32 v15, v12, 4, v15")
        e("v_add_u32 v15, s37, v15")
        e("buffer_load_dwordx4 %s, v15, s[8:11], 0 offen" % vr(32 + 4 * i, 4))
        e("v_mul_u32_u24 v15, %d, v11" % OB_ROW)
        e("v_lshrrev_b32 v13, 3, v11")
        e("v_lshl_add_u32 v15, v13, 7, v15")
        e("v_lshl_add_u32 v15, v12, 4, v15")
        e("v_add_u32 v%d, s47, v15" % (20 + i))
    e("s_waitcnt vmcnt(0)")
    for i in range(2):
        e("ds_write_b128 v%d, %s" % (20 + i, vr(32 + 4 * i, 4)))
    e("v_mul_u32_u24 v7, %d, v6" % (8 * OB_ROW + 128))
    e("v_mul_u32_u24 v10, %d, v8" % OB_ROW)
    e("v_lshl_add_u32 v10, v9, 3, v10")
    e("s_lshl_b32 s38, s35, 5")
    e("s_add_u32 s38, s38, s47")
    e("v_add3_u32 v7, v7, v10, s38")
    e("s_mul_i32 s38, s32, %d" % (81 * 1024))
    e("s_lshr_b32 s39, s33, 1")
    e("s_mul_i32 s39, s39, 9216")
    e("s_add_u32 s38, s38, s39")
    e("s_mul_i32 s39, s30, 0x%x" % (WOB - WOA))
    e("s_add_u32 s38, s38, s39")
    e("s_add_u32 s38, s38, 0x%x" % WOA)
    e("s_and_b32 s39, s33, 1")
    e("s_lshl_b32 s40, s39, 9")
    e("s_add_u32 s40, s40, s38")
    e("s_add_u32 s40, s40, 8192")
    e("s_lshl_b32 s39, s39, 12")
    e("s_add_u32 s38, s38, s39")
    e("s_lshl_b32 s39, s35, 10")
    e("s_add_u32 s38, s38, s39")
    e("v_and_b32 v10, 15, v3")
    e("v_lshlrev_b32 v11, 4, v10")
    e("v_lshl_add_u32 v11, v6, 7, v11")
    e("v_cmp_gt_u32 vcc, 8, v10")
    e("v_mov_b32 v12, 0x40000000")
    e("s_nop 0")
    e("v_cndmask_b32 v11, v12, v11, vcc")
    e("s_waitcnt lgkmcnt(0)")
    e("s_barrier")
    for q in range(2):
        for hf in range(2):
            e("ds_read_b64_tr_b16 %s, v7 offset:%d" % (vr(32 + 4 * q + 2 * hf, 2), hf * 4 * OB_ROW + 128 * q))
    e("s_waitcnt lgkmcnt(0)")
    e("buffer_store_dwordx4 %s, v5, s[16:19], s38 offen" % vr(32, 4) + PST())
    e("s_cmp_lg_u32 s35, 0")
    e("s_cbranch_scc1 L_prep_end")
    e("buffer_store_dwordx4 %s, v11, s[16:19], s40 offen" % vr(36, 4) + PST())
    e("s_endpgm")
    k.lab("L_prep_misc")
    e("s_sub_u32 s3, s2, %d" % (NQ + NO))
    e("s_cmp_eq_u32 s46, 0")
    e("s_cbranch_scc1 L_prep_x0")
    e("s_cmp_eq_u32 s46, 2")
    e("s_cbranch_scc1 L_prep_end")
    e("s_cmp_ge_u32 s3, 42")
    e("s_cbranch_scc1 L_prep_end")
    e("s_lshl_b32 s3, s3, 12")
    e("v_lshlrev_b32 v1, 4, v0")
    e("v_add_u32 v1, s3, v1")
    e("v_add_u32 v1, 0x%x, v1" % KVACC)
    for i in range(4):
        e("v_mov_b32 v%d, 0" % (4 + i))
    e("buffer_store_dwordx4 v[4:7], v1, s[16:19], 0 offen" + PST())
    e("s_endpgm")
    k.lab("L_prep_x0")

    e("s_mov_b32 s8, s44")
    e("s_mov_b32 s9, s45")
    e("s_mov_b32 s10, %d" % XB)
    e("s_mov_b32 s11, 0x00020000")
    e("s_mul_i32 s7, s3, 36864")
    e("s_add_u32 s6, s7, 0x%x" % X0F)
    e("s_mov_b32 s42, 0x3f803f80")
    e("v_and_b32 v1, 31, v3")
    e("v_lshrrev_b32 v2, 5, v3")
    e("s_lshl_b32 s28, s35, 1")
    e("v_add_u32 v2, s28, v2")
    e("v_mul_u32_u24 v4, 1152, v1")
    e("v_mul_u32_u24 v7, 144, v2")
    e("v_add_u32 v4, v4, v7")
    for i in range(9):
        e("buffer_load_dwordx4 %s, v4, s[8:11], s7 offen offset:%d" % (vr(32 + 4 * i, 4), 16 * i))
    e("v_mul_u32_u24 v7, 4608, v2")
    e("v_lshl_add_u32 v7, v1, 4, v7")
    e("v_lshlrev_b32 v10, 6, v1")
    e("v_lshl_add_u32 v10, v2, 3, v10")
    e("s_lshl_b32 s28, s3, 11")
    e("s_add_u32 s28, s28, 0x%x" % STATS)
    e("v_mov_b32 v8, 0")
    e("v_mov_b32 v9, 0")
    e("s_waitcnt vmcnt(0)")
    for i in range(9):
        e("s_add_u32 s7, s6, %d" % (512 * i))
        e("buffer_store_dwordx4 %s, v7, s[16:19], s7 offen" % vr(32 + 4 * i, 4) + PST())
        for q in range(4):
            e("v_dot2_f32_bf16 v8, v%d, s42, v8" % (32 + 4 * i + q))
            e("v_dot2_f32_bf16 v9, v%d, v%d, v9" % (32 + 4 * i + q, 32 + 4 * i + q))
    e("s_nop 2")
    e("buffer_store_dwordx2 v[8:9], v10, s[16:19], s28 offen")
    k.stamp(4)
    if STAMPS:
        e("s_waitcnt vmcnt(0)")
    k.stamp(5)
    k.dump()
    k.lab("L_prep_end")
    e("s_endpgm")
    return k


NB = 8
BSLOT = 16 * 1024
QCS_BASE = NB * BSLOT
QST_BASE = QCS_BASE + 1536
QPQ_BASE = 32768
QKV_LDS = QST_BASE + 1024
T_STRIDE = 272


def emit_phi(e, x, t1, t2):
    e("v_min_f32 v%d, 0, v%d" % (t1, x))
    e("v_mul_f32 v%d, s40, v%d" % (t1, t1))
    e("v_exp_f32 v%d, v%d" % (t1, t1))
    e("v_max_f32 v%d, 0, v%d" % (t2, x))
    e("v_add_f32 v%d, s41, v%d" % (t2, t2))
    e("v_add_f32 v%d, v%d, v%d" % (x, t1, t2))


def emit_signal(k, fid, line_sgpr, word_sgpr):
    e = k.e
    e("s_waitcnt vmcnt(0)")
    e("s_barrier")
    k.srd(20, 4, FLAGS + fid * 2048, 2048)
    sk = k.newlab("sig")
    e("s_cmp_lg_u32 s35, 0")
    e("s_cbranch_scc1 %s" % sk)
    e("s_lshl_b32 s40, %s, 7" % line_sgpr)
    e("s_lshl_b32 s41, %s, 2" % word_sgpr)
    e("s_add_u32 s40, s40, s41")
    e("v_mov_b32 v8, 1")
    e("v_mov_b32 v9, 0")
    e("s_mov_b64 exec, 1")
    e("buffer_store_dword v8, v9, s[20:23], s40 offen sc1")
    e("s_mov_b64 exec, -1")
    k.lab(sk)


def emit_poll(k, line_sgpr, nflags, done):
    e = k.e
    lp = k.newlab("poll")
    e("s_lshl_b32 s60, %s, 7" % line_sgpr)
    e("v_and_b32 v9, %d, v3" % (nflags - 1))
    e("v_lshlrev_b32 v9, 2, v9")
    e("s_mov_b32 s61, 0")
    k.lab(lp)
    e("buffer_load_dword v8, v9, s[20:23], s60 offen sc1")
    e("s_waitcnt vmcnt(0)")
    e("v_cmp_ne_u32 vcc, 1, v8")
    e("s_add_u32 s61, s61, 1")
    e("s_nop 3")
    e("s_cbranch_vccz %s" % done)
    e("s_sleep 1")
    e("s_cmp_lt_u32 s61, 0x400000")
    e("s_cbranch_scc1 %s" % lp)


def pf_addr(k, vd, vt, regions, s_i, s_x):
    e = k.e
    e("v_mov_b32 v%d, 0x40000000" % vd)
    t0 = sum(r[1] for r in regions)
    for base, n, par in reversed(regions):
        t0 -= n
        e("s_mul_i32 s34, %s, %d" % (s_i, n * 128))
        e("s_add_u32 s34, s34, 0x%x" % (base - t0 * 128))
        if par:
            e("s_bitcmp1_b32 %s, 0" % s_x)
            e("s_cselect_b32 s55, %d, 0" % par)
            e("s_add_u32 s34, s34, s55")
        e("v_lshl_add_u32 v%d, v0, 7, s34" % vt)
        e("v_cmp_gt_u32 vcc, %d, v0" % (t0 + n))
        e("s_nop 1")
        e("v_cndmask_b32 v%d, v%d, v%d, vcc" % (vd, vd, vt))


PF_WOA = (WOA, 162, 0)
PF_WOB = (WOB, 162, 0)
PF_WFA = (WFA, 288, 8 * 36 * 4096)
PF_WFB = (WFB, 288, 8 * 36 * 4096)
PF = {"woa": PF_WOA, "wob": PF_WOB, "wfa": PF_WFA, "wfb": PF_WFB}


def gen_stub(name, body, params):
    k = Kern(name, body.vgpr, body.lds, body.grid, body.block)
    if EXP.get("rt"):
        params = params + [(89, KID[name])]
    k.stub = ["s_mov_b32 s%d, 0x%x" % (r, v) for r, v in params] + ["s_branch %s" % body.name]
    return k


def gen_qkv(kind, k=None, params=None, chain=None, kname=None):
    fused = k is not None
    name = "L_qkv%s" % kind
    if not fused:
        if kname:
            name = kname
        k = Kern(name, 184, QKV_LDS, (256, 1, 1), (512, 1, 1))
        if not kname:
            k.nodesc = True
    else:
        k.vgpr = max(k.vgpr, 184)
        k.lds = max(k.lds, QKV_LDS)
    SC = " sc1" if fused else ""
    e = k.e
    ACC = 16
    FR = [48, 72]
    VL16 = 100
    VA = [101, 102]
    VB = [103, 104]
    CSR = 105
    VCS = 106
    STR = 112
    EA = 128
    if fused:
        end = k.endlab
        for r, v in params:
            e("s_mov_b32 s%d, 0x%x" % (r, v))
    else:
        end = "L_%s_end" % name
        e("s_cmp_ge_u32 s2, 256")
        e("s_cbranch_scc1 %s" % end)
        e("s_load_dwordx2 s[4:5], s[0:1], %d" % KA_WS)
        k.stamp(0)
        if kname:
            for r, v in params:
                e("s_mov_b32 s%d, 0x%x" % (r, v))
    k.pqsc = " sc1" if chain is not None else ""
    if EXP.get("qst"):
        k.pqsc = " " + EXP["qst"].replace("+", " ")
    e("s_and_b32 s28, s2, 7")
    e("s_lshr_b32 s29, s2, 3")
    e("s_lshr_b32 s31, s28, 1")
    e("s_lshl_b32 s31, s31, 2")
    e("s_lshr_b32 s32, s29, 3")
    e("s_add_u32 s31, s31, s32")
    e("s_and_b32 s30, s28, 1")
    e("s_lshl_b32 s30, s30, 3")
    e("s_and_b32 s32, s29, 7")
    e("s_add_u32 s30, s30, s32")
    e("v_and_b32 v3, 63, v0")
    e("v_lshrrev_b32 v4, 6, v0")
    e("v_and_b32 v5, 31, v3")
    e("v_readfirstlane_b32 s35, v4")
    e("v_lshrrev_b32 v6, 5, v3")
    e("v_lshlrev_b32 v%d, 4, v3" % VL16)
    e("s_lshl_b32 s52, s35, 10")
    e("s_mul_i32 s53, s30, %d" % (36 * 4096))
    e("s_add_u32 s53, s53, s52")
    e("s_lshl_b32 s50, s31, 2")
    e("s_lshr_b32 s51, s35, 1")
    e("s_add_u32 s50, s50, s51")
    e("s_mul_i32 s50, s50, 36864")
    e("s_and_b32 s51, s35, 1")
    e("s_lshl_b32 s51, s51, 10")
    e("s_add_u32 s50, s50, s51")
    e("s_and_b32 s36, s35, 3")
    e("s_lshr_b32 s37, s35, 2")
    if EXP.get("rot"):
        ca, cb = [int(x) for x in EXP["rot"].split(",")]
        e("s_and_b32 s44, s29, 7")
        e("s_mul_i32 s44, s44, %d" % ca)
        e("s_lshr_b32 s45, s29, 3")
        e("s_mul_i32 s45, s45, %d" % cb)
        e("s_add_u32 s44, s44, s45")
        e("s_lshr_b32 s44, s44, 2")
        e("s_cmp_ge_u32 s44, 18")
        e("s_cselect_b32 s45, 18, 0")
        e("s_sub_u32 s48, s44, s45")
        e("s_mov_b32 s45, s50")
        e("s_add_u32 s44, s50, %d" % (18 * 2048))
        e("s_mov_b32 s47, s53")
        e("s_add_u32 s46, s53, %d" % (18 * 8192))
        e("s_lshl_b32 s49, s48, 11")
        e("s_add_u32 s50, s50, s49")
        e("s_lshl_b32 s49, s48, 13")
        e("s_add_u32 s53, s53, s49")
    for i in range(32):
        e("v_mov_b32 v%d, 0" % (ACC + i))
    e("s_lshl_b32 s34, s37, 12")
    e("v_add_u32 v%d, s34, v%d" % (VA[0], VL16))
    e("v_add_u32 v%d, 0x10000, v%d" % (VA[1], VA[0]))
    e("s_lshl_b32 s34, s36, 10")
    e("s_add_u32 s34, s34, 8192")
    e("v_add_u32 v%d, s34, v%d" % (VB[0], VL16))
    e("v_add_u32 v%d, 0x10000, v%d" % (VB[1], VB[0]))
    e("s_mov_b32 s40, 0x%x" % f2u(LOG2E))
    e("s_mov_b32 s41, 0x%x" % f2u(1e-6))
    e("s_waitcnt lgkmcnt(0)")
    k.stamp(2)
    e("s_add_u32 s8, s4, s58")
    e("s_addc_u32 s9, s5, 0")
    e("s_mov_b32 s10, %d" % XB)
    e("s_mov_b32 s11, 0x00020000")
    k.srd(12, 4, WFA if kind == 'A' else WFB, WF_SZ)
    k.srd(16, 4, 0, WS_SIZE)
    issued = []
    ROT = EXP.get("rot")

    def group_ops(g):
        slot = (g % NB) * BSLOT
        wa = ["s_cmp_eq_u32 s50, s44", "s_cselect_b32 s50, s45, s50"] if ROT else []
        wb = ["s_cmp_eq_u32 s53, s46", "s_cselect_b32 s53, s47, s53"] if ROT else []
        return [(g, ["s_add_u32 m0, s52, %d" % slot, "s_nop 0",
                     "buffer_load_dwordx4 v%d, s[8:11], s50 offen%s lds" % (VL16, SC),
                     "s_add_u32 s50, s50, 2048"] + wa),
                (g, ["s_add_u32 m0, s52, %d" % (slot + 8192), "s_nop 0",
                     "buffer_load_dwordx4 v%d, s[12:15], s53 offen lds" % VL16,
                     "s_add_u32 s53, s53, 8192"] + wb)]

    def emit_op(op):
        tag, lines = op
        for x in lines:
            e(x)
        if tag is not None:
            issued.append(tag)

    def wait_for(stage):
        last = max(i for i, t in enumerate(issued) if t <= stage)
        return len(issued) - 1 - last

    if fused:
        sk = k.newlab("nb")
        e("s_cmp_lg_u32 s35, 4")
        e("s_cbranch_scc1 %s" % sk)
        e("s_sub_u32 s34, s53, 4096")
        for g in range(NB):
            e("s_mov_b32 m0, %d" % ((g % NB) * BSLOT + 8192))
            e("s_nop 0")
            e("buffer_load_dwordx4 v%d, s[12:15], s34 offen lds" % VL16)
            e("s_add_u32 s34, s34, 8192")
        k.lab(sk)
        sk = k.newlab("nb")
        e("s_cmp_eq_u32 s35, 0")
        e("s_cselect_b32 s34, %d, 0" % (NB * 8192))
        e("s_add_u32 s53, s53, s34")
        e("s_cmp_eq_u32 s35, 0")
        e("s_cbranch_scc1 %s" % sk)
        for g in range(NB):
            emit_op(group_ops(g)[1])
        k.lab(sk)
    else:
        for g in range(int(EXP.get("g0", 3))):
            for op in group_ops(g):
                emit_op(op)
    k.mem = []
    gnext = [int(EXP.get("g0", 3))]

    def more(n):
        for _ in range(n):
            for op in group_ops(gnext[0]):
                emit_op(op)
            gnext[0] += 1

    gm = [int(x) for x in EXP.get("gm", "0,0,0").split(",")]
    k.midhook = []
    if gm[0]:
        for _ in range(gm[0]):
            for tag, lines in group_ops(gnext[0]):
                k.midhook += lines
                issued.append(tag)
            gnext[0] += 1
    if kind == 'A':
        epi_A_pre(k, EA)
    else:
        epi_B_pre(k, EA)
    more(gm[1])
    e("v_min_u32 v7, 383, v0")
    e("v_lshrrev_b32 v8, 7, v7")
    e("v_and_b32 v7, 127, v7")
    e("v_lshlrev_b32 v7, 2, v7")
    e("v_lshl_add_u32 v%d, v8, 13, v7" % VCS)
    e("v_lshl_add_u32 v107, v8, 9, v7")
    e("s_lshl_b32 s54, s30, 9")
    e("s_add_u32 s54, s54, 0x%x" % (CS + (0 if kind == 'A' else CS_MAT)))
    pfq = EXP.get("pfq" + kind)
    if pfq:
        pf_addr(k, 108, 109, [PF[x] for x in pfq.split(",")], "s29", "s28")
    EARLY = EXP.get("early")
    pfc = "qkv" in EXP.get("pfc", "")
    if pfc:
        pf_code_setup(k, 20, 110)

    def stats_loads():
        ns = k.newlab("ns")
        e("s_cmp_lt_u32 s35, 6")
        e("s_cbranch_scc1 %s" % ns)
        e("s_lshl_b32 s34, s31, 13")
        if params:
            e("s_add_u32 s34, s34, 0x%x" % (STATV[dict(params)[58]] - 6 * 4096))
        else:
            e("s_add_u32 s34, s34, s57")
        e("v_lshlrev_b32 v7, 6, v0")
        for i in range(4):
            e("buffer_load_dwordx4 %s, v7, s[16:19], s34 offen offset:%d%s" % (vr(STR + 4 * i, 4), 16 * i, SC))
        k.lab(ns)

    more(gm[2])
    k.stamp(13)
    if fused:
        sk = k.newlab("nw")
        lp = k.newlab("poll")
        e("s_cmp_lg_u32 s35, 0")
        e("s_cbranch_scc1 %s" % sk)
        e("s_lshl_b32 s38, s31, 7")
        e("v_and_b32 v9, 15, v3")
        e("v_lshlrev_b32 v9, 2, v9")
        e("s_mov_b32 s39, 0")
        k.lab(lp)
        e("buffer_load_dword v8, v9, s[20:23], s38 offen sc1")
        e("s_waitcnt vmcnt(0)")
        e("v_cmp_ne_u32 vcc, 1, v8")
        e("s_add_u32 s39, s39, 1")
        e("s_nop 3")
        e("s_cbranch_vccz %s" % sk)
        e("s_sleep 1")
        e("s_cmp_lt_u32 s39, 0x400000")
        e("s_cbranch_scc1 %s" % lp)
        k.lab(sk)
        e("s_barrier")
        k.stamp(12)
        for g in range(NB):
            emit_op(group_ops(g)[0])
    e("s_waitcnt vmcnt(%d) lgkmcnt(0)" % wait_for(0))
    k.stamp(1)
    e("s_barrier")
    k.stamp(3)

    def fread_ops(s):
        f = FR[s & 1]
        slot = s % NB
        hi, so = slot >> 2, (slot & 3) * BSLOT
        ops = []
        for ks in range(2):
            ops.append((None, ["ds_read_b128 %s, v%d offset:%d" % (vr(f + 16 + 4 * ks, 4), VB[hi], so + ks * 4096)]))
            for a in range(2):
                if EXP.get("noread") and a == 1 and s > 1:
                    continue
                ops.append((None, ["ds_read_b128 %s, v%d offset:%d" % (vr(f + 8 * a + 4 * ks, 4), VA[hi], so + a * 2048 + ks * 1024)]))
        return ops

    for op in fread_ops(0):
        emit_op(op)
    nextg = NB if fused else gnext[0]
    for s in range(18):
        fill = []
        if s + 1 <= 17:
            e("s_waitcnt vmcnt(%d) lgkmcnt(0)" % wait_for(s + 1))
            if not (EXP.get("nobar") and s & 1):
                e("s_barrier")
            fill += fread_ops(s + 1)
            for _ in range(int(EXP.get("ng", 2))):
                if nextg <= 17 and nextg <= s + NB:
                    fill += group_ops(nextg)
                    nextg += 1
            if s == int(EXP.get("css", 10)):
                fill.append((99, ["buffer_load_dword v%d, v%d, s[16:19], s54 offen" % (CSR, VCS)]))
            if pfc and s == int(EXP.get("pfs", 12)):
                fill.append((99, ["buffer_load_dword v111, v110, s[20:23], 0 offen"]))
            if pfq and s == int(EXP.get("pfs", 12)):
                fill.append((99, ["buffer_load_dword v109, v108, s[16:19], 0 offen"]))
        else:
            e("s_waitcnt lgkmcnt(0)")
        if s == int(EXP.get("css", 10)) + 1:
            stats_loads()
        if EXP.get("fine"):
            if s < 13:
                k.stamp(1 + s, True)
        elif s % 3 == 0 and s > 0:
            k.stamp(6 + s // 3)
        f = FR[s & 1]
        nfill = -(-len(fill) // 4)
        for ks in range(2):
            for a in range(2):
                acc = ACC + 16 * a
                e("v_mfma_f32_32x32x16_bf16 %s, %s, %s, %s" % (vr(acc, 16), vr(f + 16 + 4 * ks, 4), vr(f + 8 * a + 4 * ks, 4), vr(acc, 16)))
                for _ in range(nfill):
                    if fill:
                        emit_op(fill.pop(0))
    k.stamp(4)
    k.stamp(14, True)
    e("s_waitcnt vmcnt(%d)" % ((1 if pfq else 0) + (1 if pfc else 0)))
    e("ds_write_b32 v107, v%d offset:0" % CSR if False else "v_add_u32 v7, %d, v107" % QCS_BASE)
    e("ds_write_b32 v7, v%d" % CSR)
    ns = k.newlab("ns")
    e("s_cmp_lt_u32 s35, 6")
    e("s_cbranch_scc1 %s" % ns)
    for i in range(1, 8):
        e("v_add_f32 v%d, v%d, v%d" % (STR, STR, STR + 2 * i))
        e("v_add_f32 v%d, v%d, v%d" % (STR + 1, STR + 1, STR + 2 * i + 1))
    e("v_mul_f32 v%d, 0x%x, v%d" % (STR, f2u(1.0 / 576), STR))
    e("v_mul_f32 v%d, 0x%x, v%d" % (STR + 1, f2u(1.0 / 576), STR + 1))
    e("v_fma_f32 v%d, -v%d, v%d, v%d" % (STR + 1, STR, STR, STR + 1))
    e("v_max_f32 v%d, 0, v%d" % (STR + 1, STR + 1))
    e("v_add_f32 v%d, 0x%x, v%d" % (STR + 1, f2u(1e-5), STR + 1))
    e("v_rsq_f32 v%d, v%d" % (STR + 1, STR + 1))
    e("s_nop 0")
    e("v_mul_f32 v%d, v%d, v%d" % (STR, STR, STR + 1))
    e("v_lshlrev_b32 v7, 2, v0")
    e("v_add_u32 v7, %d, v7" % (QST_BASE - 6 * 256))
    e("ds_write_b32 v7, v%d" % (STR + 1))
    e("ds_write_b32 v7, v%d offset:512" % STR)
    k.lab(ns)
    e("s_waitcnt lgkmcnt(0)")
    e("s_barrier")
    RS = 100
    e("s_lshl_b32 s34, s37, 8")
    e("s_add_u32 s34, s34, %d" % QST_BASE)
    e("v_lshl_add_u32 v7, v5, 2, s34")
    for a in range(2):
        e("ds_read_b32 v%d, v7 offset:%d" % (RS + 2 * a, a * 128))
        e("ds_read_b32 v%d, v7 offset:%d" % (RS + 4 + 2 * a, 512 + a * 128))
    e("s_lshl_b32 s34, s36, 7")
    e("s_add_u32 s34, s34, %d" % QCS_BASE)
    e("v_lshl_add_u32 v8, v6, 4, s34")
    for q in range(4):
        for p in range(3):
            e("ds_read_b128 %s, v8 offset:%d" % (vr(52 + 16 * p + 4 * q, 4), 512 * p + 32 * q))
    e("s_waitcnt lgkmcnt(0)")
    for i in range(4):
        e("v_mov_b32 v%d, v%d" % (RS + 2 * i + 1, RS + 2 * i))
    for r in range(0, 16, 2):
        e("v_pk_add_f32 %s, %s, %s" % (vr(52 + r, 2), vr(52 + r, 2), vr(68 + r, 2)))
        e("v_pk_add_f32 %s, %s, %s" % (vr(52 + r, 2), vr(52 + r, 2), vr(84 + r, 2)))
    for a in range(2):
        for r in range(0, 16, 2):
            acc = ACC + 16 * a + r
            e("v_pk_mul_f32 v[10:11], %s, %s" % (vr(RS + 4 + 2 * a, 2), vr(52 + r, 2)))
            e("v_pk_fma_f32 %s, %s, %s, v[10:11] neg_lo:[0,0,1] neg_hi:[0,0,1]" % (vr(acc, 2), vr(acc, 2), vr(RS + 2 * a, 2)))
    if kind == 'A':
        epi_A(k, ACC, EA)
    else:
        epi_B(k, ACC, EA)
    if chain is not None:
        emit_signal(k, chain, "s30", "s31")
        k.endlab = end
        return k
    k.stamp(5)
    if STAMPS or pfq or pfc:
        e("s_waitcnt vmcnt(0)")
    k.stamp(6)
    k.dump()
    k.lab(end)
    e("s_endpgm")
    return k


def sprinkle(k, n):
    for _ in range(n):
        if k.mem:
            for x in k.mem.pop(0):
                k.e(x)


def per_wave(k, fn, nw=8):
    e = k.e
    labs = [k.newlab("w") for _ in range(nw)]
    lj = k.newlab("wj")
    for w in range(1, nw):
        e("s_cmp_eq_u32 s35, %d" % w)
        e("s_cbranch_scc1 %s" % labs[w])
    for w in range(nw):
        k.lab(labs[w])
        fn(w)
        if w < nw - 1:
            e("s_branch %s" % lj)
    k.lab(lj)


def half_ops(k, lo, hi):
    for x in lo:
        k.e(x)
    for x in getattr(k, "midhook", []):
        k.e(x)
    k.e("s_mov_b32 exec_lo, 0")
    for x in hi:
        k.e(x)
    k.e("s_mov_b32 exec_lo, -1")


DUMMY = 98304


KV_ROW = 168


def epi_A_pre(k, EA):
    e = k.e
    e("v_mul_u32_u24 v12, %d, v5" % KV_ROW)
    e("v_lshlrev_b32 v13, 4, v5")
    e("v_lshlrev_b32 v14, 2, v5")

    def var(w):
        ct, rh = w & 3, w >> 2
        ops = [[], []]
        for q in range(4):
            for pr in range(2):
                i = 2 * q + pr
                for h in range(2):
                    vc = 32 * ct + 8 * q + 4 * h + 2 * pr
                    for a in range(2):
                        if vc < 72:
                            c = (64 * rh + 32 * a) * KV_ROW + (vc // 18) * 40 + (vc % 18) * 2
                            t = 12
                        elif vc < 108:
                            hl, d = (vc - 72) // 18, (vc - 72) % 18
                            sb = QPQ_BASE + (4 * hl + 2 * rh + a) * 2560
                            if d < 16:
                                c, t = sb + (d >> 3) * 512 + (d & 7) * 2, 13
                            else:
                                c, t = sb + 1024, 14
                        else:
                            c, t = DUMMY, 12
                        ops[h].append("v_add_u32 v%d, %d, v%d" % (EA + 2 * i + a, c, t))
                    isv = 36 <= vc < 72
                    ops[h].append("v_mov_b32 v%d, 0x%x" % (EA + 32 + i, 0 if isv else f2u(1.0)))
                    ops[h].append("v_mov_b32 v%d, 0x%x" % (EA + 44 + i, 0xff800000 if isv else 0))
        half_ops(k, ops[0], ops[1])
        if w < 2:
            e("v_lshrrev_b32 v7, 2, v3")
            e("v_and_b32 v7, 3, v7")
            e("v_lshl_add_u32 v7, v6, 3, v7")
            e("v_mul_u32_u24 v7, %d, v7" % KV_ROW)
            e("v_bfe_u32 v8, v3, 4, 1")
            e("v_lshl_add_u32 v7, v8, 5, v7")
            e("v_and_b32 v8, 3, v3")
            e("v_lshl_add_u32 v7, v8, 3, v7")
            e("v_add_u32 v%d, %d, v7" % (EA + 40, 40 * w))
            e("v_add_u32 v%d, %d, v7" % (EA + 41, 80 + 40 * w))
            e("v_cmp_gt_u32 vcc, 18, v5")
            e("v_lshlrev_b32 v10, 2, v5")
            e("v_lshl_add_u32 v10, v6, 9, v10")
            e("v_mov_b32 v9, 0x40000000")
            e("v_cndmask_b32 v%d, v9, v10, vcc" % (EA + 42))
            e("v_cmp_eq_u32 vcc, 0, v6")
            e("s_nop 1")
            e("v_cndmask_b32 v%d, v9, v%d, vcc" % (EA + 43, EA + 42))
        else:
            for i in range(4):
                e("v_mov_b32 v%d, 0x40000000" % (EA + 40 + i))

    per_wave(k, var)


def epi_A(k, ACC, EA):
    e = k.e
    e("v_mov_b32 v12, s40")
    e("v_mov_b32 v13, s40")
    e("v_mov_b32 v14, s41")
    e("v_mov_b32 v15, s41")
    for q in range(4):
        for pr in range(2):
            i = 2 * q + pr
            for a in range(2):
                acc = ACC + 16 * a + 4 * q + 2 * pr
                e("v_pk_mul_f32 v[10:11], %s, v[12:13]" % vr(acc, 2))
                e("v_min_f32 v10, 0, v10")
                e("v_min_f32 v11, 0, v11")
                e("v_exp_f32 v10, v10")
                e("v_exp_f32 v11, v11")
                e("v_max_f32 v%d, v%d, v%d" % (acc, acc, EA + 44 + i))
                e("v_max_f32 v%d, v%d, v%d" % (acc + 1, acc + 1, EA + 44 + i))
                e("v_pk_add_f32 v[10:11], v[10:11], v[14:15]")
                e("v_fmac_f32 v%d, v10, v%d" % (acc, EA + 32 + i))
                e("v_fmac_f32 v%d, v11, v%d" % (acc + 1, EA + 32 + i))
                e("v_cvt_pk_bf16_f32 v%d, v%d, v%d" % (acc, acc, acc + 1))
                e("ds_write_b32 v%d, v%d" % (EA + 2 * i + a, acc))
    e("v_lshrrev_b32 v10, 2, v0")
    e("v_mul_u32_u24 v10, %d, v10" % KV_ROW)
    e("v_and_b32 v11, 3, v0")
    e("v_mul_u32_u24 v11, 40, v11")
    e("v_add_u32 v10, v10, v11")
    e("v_mov_b32 v11, 0x3f80")
    e("ds_write_b32 v10, v11 offset:36")
    e("s_waitcnt lgkmcnt(0)")
    e("s_barrier")
    e("s_lshl_b32 s39, s31, 2")
    e("s_add_u32 s39, s39, s36")
    e("s_lshl_b32 s39, s39, 5")
    e("s_lshl_b32 s43, s30, 1")
    e("s_add_u32 s39, s39, s43")
    e("s_add_u32 s39, s39, s37")
    e("s_mul_i32 s39, s39, 1152")
    e("s_add_u32 s39, s39, 0x%x" % PQF)
    e("s_add_u32 s39, s39, s56")
    e("s_mul_i32 s38, s35, 2560")
    e("s_add_u32 s38, s38, %d" % QPQ_BASE)
    e("v_lshlrev_b32 v8, 4, v3")
    e("v_add_u32 v9, s38, v8")
    e("ds_read_b128 v[100:103], v9")
    e("ds_read_b128 v[104:107], v9 offset:1024")
    e("v_mov_b32 v10, 0x40000000")
    e("v_cmp_gt_u32 vcc, 8, v3")
    e("s_nop 1")
    e("v_cndmask_b32 v11, v10, v8, vcc")
    e("s_waitcnt lgkmcnt(0)")
    e("buffer_store_dwordx4 v[100:103], v8, s[16:19], s39 offen%s" % k.pqsc)
    e("buffer_store_dwordx4 v[104:107], v11, s[16:19], s39 offen offset:1024%s" % k.pqsc)
    lj = k.newlab("ej")
    e("s_cmp_ge_u32 s35, 2")
    e("s_cbranch_scc1 %s" % lj)
    for st in range(8):
        for hf in range(2):
            o = (16 * st + 4 * hf) * KV_ROW
            e("ds_read_b64_tr_b16 %s, v%d offset:%d" % (vr(16 + 8 * st + 2 * hf, 2), EA + 40, o))
            e("ds_read_b64_tr_b16 %s, v%d offset:%d" % (vr(20 + 8 * st + 2 * hf, 2), EA + 41, o))
    e("s_lshl_b32 s39, s30, 1")
    e("s_add_u32 s39, s39, s35")
    e("s_mul_i32 s39, s39, 2432")
    e("s_add_u32 s39, s39, s59")
    e("s_waitcnt lgkmcnt(0)")
    for st in range(8):
        c = "0" if st == 0 else vr(80, 16)
        e("v_mfma_f32_32x32x16_bf16 %s, %s, %s, %s" % (vr(80, 16), vr(20 + 8 * st, 4), vr(16 + 8 * st, 4), c))
    e("s_nop 7")
    e("s_nop 7")
    for r in range(11):
        ee = (r & 3) + 8 * (r >> 2)
        e("buffer_atomic_add_f32 v%d, v%d, s[16:19], s39 offen offset:%d" % (80 + r, EA + 42 if r < 8 else EA + 43, 128 * ee))
    k.lab(lj)


IMG_S = 2560
IMG_K = 8 * IMG_S
IMG_V = 16 * IMG_S
V_ROW = 72


def epi_B_pre(k, EA):
    e = k.e
    e("v_lshlrev_b32 v12, 4, v5")
    e("v_lshlrev_b32 v13, 2, v5")
    e("v_mul_u32_u24 v14, %d, v5" % V_ROW)

    def var(w):
        ct, rh = w & 3, w >> 2
        ops = [[], []]
        for q in range(4):
            for pr in range(2):
                i = 2 * q + pr
                for h in range(2):
                    vc = 32 * ct + 8 * q + 4 * h + 2 * pr
                    sc = 1.0
                    if vc >= 108:
                        c, t = DUMMY, 13
                    else:
                        seg, cc = vc // 36, vc % 36
                        hl, d = cc // 18, cc % 18
                        sb = (4 * hl + 2 * rh) * IMG_S
                        if seg == 2:
                            c, t = IMG_V + sb + d * 2, 14
                        else:
                            base = sb + (IMG_K if seg == 1 else 0)
                            if d < 16:
                                c, t = base + (d >> 3) * 512 + (d & 7) * 2, 12
                            else:
                                c, t = base + 1024, 13
                            if seg == 0:
                                sc = QSCALE
                    ops[h].append("v_add_u32 v%d, %d, v%d" % (EA + i, c, t))
                    ops[h].append("v_mov_b32 v%d, 0x%x" % (EA + 16 + 2 * i, f2u(sc)))
                    ops[h].append("v_mov_b32 v%d, 0x%x" % (EA + 17 + 2 * i, f2u(sc)))
        half_ops(k, ops[0], ops[1])

    per_wave(k, var)
    e("v_lshrrev_b32 v7, 2, v3")
    e("v_and_b32 v7, 3, v7")
    e("v_lshl_add_u32 v7, v6, 2, v7")
    e("v_mul_u32_u24 v7, %d, v7" % V_ROW)
    e("v_bfe_u32 v8, v3, 4, 1")
    e("v_lshl_add_u32 v7, v8, 5, v7")
    e("v_and_b32 v9, 3, v3")
    e("v_lshl_add_u32 v7, v9, 3, v7")
    e("s_mul_i32 s38, s35, %d" % IMG_S)
    e("s_add_u32 s38, s38, %d" % IMG_V)
    e("v_add_u32 v%d, s38, v7" % (EA + 8))
    e("v_mul_u32_u24 v7, 320, v6")
    e("v_lshl_add_u32 v7, v5, 4, v7")
    e("v_add_u32 v7, 1152, v7")
    e("v_cmp_gt_u32 vcc, 19, v5")
    e("v_mov_b32 v10, 0x40000000")
    e("s_nop 0")
    e("v_cndmask_b32 v%d, v10, v7, vcc" % (EA + 9))
    e("v_lshlrev_b32 v8, 4, v3")
    e("v_cmp_gt_u32 vcc, 8, v3")
    e("s_nop 1")
    e("v_cndmask_b32 v%d, v10, v8, vcc" % (EA + 10))


def epi_B(k, ACC, EA):
    e = k.e
    for q in range(4):
        for pr in range(2):
            i = 2 * q + pr
            for a in range(2):
                acc = ACC + 16 * a + 4 * q + 2 * pr
                e("v_pk_mul_f32 %s, %s, %s" % (vr(acc, 2), vr(acc, 2), vr(EA + 16 + 2 * i, 2)))
                e("v_cvt_pk_bf16_f32 v%d, v%d, v%d" % (acc, acc, acc + 1))
                e("ds_write_b32 v%d, v%d offset:%d" % (EA + i, acc, IMG_S * a))
    e("s_mul_i32 s38, s35, %d" % IMG_S)
    e("v_mul_u32_u24 v7, %d, v5" % V_ROW)
    e("v_add_u32 v7, s38, v7")
    e("v_mov_b32 v8, 0x3f80")
    e("ds_write_b32 v7, v8 offset:%d" % (IMG_V + 36))
    e("s_waitcnt lgkmcnt(0)")
    e("s_barrier")
    e("v_lshlrev_b32 v8, 4, v3")
    e("v_add_u32 v9, s38, v8")
    e("ds_read_b128 v[48:51], v9")
    e("ds_read_b128 v[52:55], v9 offset:1024")
    e("ds_read_b128 v[56:59], v9 offset:%d" % IMG_K)
    e("ds_read_b128 v[60:63], v9 offset:%d" % (IMG_K + 1024))
    for ab in range(2):
        for hf in range(2):
            e("ds_read_b64_tr_b16 %s, v%d offset:%d" % (vr(64 + 4 * ab + 2 * hf, 2), EA + 8, (16 * ab + 8 * hf) * V_ROW))
    e("s_lshl_b32 s43, s30, 1")
    e("s_add_u32 s43, s43, s37")
    e("s_lshl_b32 s38, s31, 2")
    e("s_add_u32 s38, s38, s36")
    e("s_mul_i32 s44, s43, %d" % QHEAD)
    e("s_mul_i32 s39, s38, 1152")
    e("s_add_u32 s44, s44, s39")
    e("s_add_u32 s44, s44, 0x%x" % QPI)
    e("s_add_u32 s44, s44, s56")
    e("s_mul_i32 s46, s43, %d" % KVHEAD)
    e("s_mul_i32 s39, s38, 2432")
    e("s_add_u32 s46, s46, s39")
    e("s_add_u32 s46, s46, 0x%x" % KVI)
    e("s_add_u32 s46, s46, s56")
    e("s_waitcnt lgkmcnt(0)")
    sc = k.pqsc
    e("buffer_store_dwordx4 v[48:51], v8, s[16:19], s44 offen" + sc)
    e("buffer_store_dwordx4 v[52:55], v%d, s[16:19], s44 offen offset:1024" % (EA + 10) + sc)
    e("buffer_store_dwordx4 v[56:59], v8, s[16:19], s46 offen" + sc)
    e("buffer_store_dwordx4 v[60:63], v%d, s[16:19], s46 offen offset:1024" % (EA + 10) + sc)
    e("buffer_store_dwordx4 v[64:67], v%d, s[16:19], s46 offen" % (EA + 9) + sc)
    e("buffer_store_dwordx4 v[68:71], v%d, s[16:19], s46 offen offset:640" % (EA + 9) + sc)


def gen_attn(name):
    k = Kern(name, 120, KVHEAD, (256, 1, 1), (1024, 1, 1))
    k.nodesc = not EXP.get("attn1")
    e = k.e
    if EXP.get("attn1"):
        e("s_mov_b32 s56, 0")
    SA, SB = 16, 32
    P = 48
    O = 56
    CM = 72
    Q1, Q2 = 88, 92
    K1, K2 = 96, 100
    VVa, VVb = 104, 108
    vK1, vK2, vV = 112, 113, 114
    vK1b, vK2b, vVb = 115, 116, 117
    SEGS = [2, 6, 24]
    HALF = 32 * 2432
    end = "L_%s_end" % name
    e("s_cmp_ge_u32 s2, 256")
    e("s_cbranch_scc1 %s" % end)
    e("s_load_dwordx2 s[4:5], s[0:1], %d" % KA_WS)
    k.stamp(0)
    k.rstamp(4)
    e("s_and_b32 s30, s2, 7")
    e("s_lshr_b32 s31, s2, 3")
    e("s_and_b32 s32, s31, 3")
    e("s_lshl_b32 s30, s30, 2")
    e("s_add_u32 s30, s30, s32")
    e("s_lshr_b32 s31, s31, 2")
    e("v_lshrrev_b32 v4, 6, v0")
    e("v_and_b32 v3, 63, v0")
    e("v_readfirstlane_b32 s35, v4")
    e("s_mul_i32 s33, s30, %d" % KVHEAD)
    e("s_lshr_b32 s40, s35, 3")
    e("s_and_b32 s41, s35, 7")
    e("s_mul_i32 s42, s40, %d" % HALF)
    e("v_lshlrev_b32 v1, 4, v3")
    e("s_lshl_b32 s36, s31, 3")
    e("s_add_u32 s36, s36, s41")
    e("s_mul_i32 s37, s36, 1152")
    e("s_mul_i32 s38, s30, %d" % QHEAD)
    e("s_add_u32 s37, s37, s38")
    e("s_add_u32 s37, s37, 0x%x" % QPI)
    e("s_add_u32 s37, s37, s56")
    e("s_add_u32 s33, s33, s56")
    e("v_and_b32 v5, 31, v3")
    e("v_lshrrev_b32 v6, 5, v3")
    e("v_lshlrev_b32 v7, 2, v5")
    e("s_lshl_b32 s39, s41, 10")
    e("s_add_u32 s39, s39, s42")
    e("s_add_u32 s43, s42, %d" % (75 * 1024))
    e("s_waitcnt lgkmcnt(0)")
    e("s_add_u32 s8, s4, s33")
    e("s_addc_u32 s9, s5, 0")
    e("s_add_u32 s8, s8, 0x%x" % KVI)
    e("s_addc_u32 s9, s9, 0")
    e("s_mov_b32 s10, %d" % KVHEAD)
    e("s_mov_b32 s11, 0x00020000")
    k.srd(16, 4, 0, WS_SIZE)
    e("buffer_load_dwordx4 %s, v1, s[16:19], s37 offen" % vr(Q1, 4))
    e("buffer_load_dword v%d, v7, s[16:19], s37 offen offset:1024" % Q2)
    def dma(i):
        if i == 9:
            e("s_min_u32 s39, s39, s43")
        e("s_mov_b32 m0, s39")
        e("s_nop 0")
        e("buffer_load_dwordx4 v1, s[8:11], s39 offen lds")
        e("s_add_u32 s39, s39, 8192")

    dma(0)
    dma(1)
    e("v_add_u32 v%d, s42, v1" % vK1b)
    e("v_add_u32 v8, 1024, v7")
    e("v_add_u32 v%d, s42, v8" % vK2b)
    e("v_min_u32 v8, 18, v5")
    e("v_lshlrev_b32 v8, 4, v8")
    e("v_mul_u32_u24 v9, 320, v6")
    e("v_add3_u32 v8, v8, v9, s42")
    e("v_add_u32 v%d, 1152, v8" % vVb)
    for i in range(1, 4):
        e("v_mov_b32 v%d, 0" % (Q2 + i))
        e("v_mov_b32 v%d, 0" % (K2 + i))
    pfa = EXP.get("pfa")
    if pfa:
        e("s_and_b32 s28, s2, 7")
        e("s_lshr_b32 s29, s2, 3")
        pf_addr(k, 118, 119, [PF[x] for x in pfa.split(",")], "s29", "s28")
    pfc = "attn" in EXP.get("pfc", "")
    if pfc:
        pf_code_setup(k, 20, 2)
    e("v_cmp_eq_u32 vcc, 0, v6")
    e("s_waitcnt vmcnt(2)")
    e("v_cndmask_b32 v%d, 0, v%d, vcc" % (Q2, Q2))
    e("s_mov_b32 s50, 0")

    def seg_wait(c):
        ntiles = sum(SEGS[:c + 1]) + 2
        need = min(-(-(ntiles * 2432) // 1024), 76)
        n = min((need - 1) // 8 + 1, 10)
        issued = 2 + min(sum(SEGS[:c]), 8)
        assert issued >= n
        return issued - n

    e("s_waitcnt vmcnt(%d)" % seg_wait(0))
    e("s_barrier")
    k.stamp(1)
    e("ds_read_b128 %s, v%d" % (vr(K1, 4), vK1b))
    e("ds_read_b32 v%d, v%d" % (K2, vK2b))
    e("s_waitcnt lgkmcnt(0)")
    e("v_mfma_f32_32x32x16_bf16 %s, %s, %s, 0" % (vr(SA, 16), vr(K1, 4), vr(Q1, 4)))
    e("v_mfma_f32_32x32x16_bf16 %s, %s, %s, %s" % (vr(SA, 16), vr(K2, 4), vr(Q2, 4), vr(SA, 16)))
    e("s_nop 7")
    e("s_nop 7")
    e("v_max3_f32 v10, v%d, v%d, v%d" % (SA, SA + 1, SA + 2))
    for i in range(3, 15, 2):
        e("v_max3_f32 v10, v10, v%d, v%d" % (SA + i, SA + i + 1))
    e("v_max_f32 v10, v10, v%d" % (SA + 15))
    run = "L_%s_run" % name
    k.lab(run)
    e("v_mov_b32 v11, v10")
    e("s_nop 1")
    e("v_permlane32_swap_b32 v11, v10")
    e("s_nop 1")
    e("v_max_f32 v10, v10, v11")
    e("v_sub_f32 v10, 0, v10")
    for i in range(16):
        e("v_mov_b32 v%d, v10" % (CM + i))
        e("v_mov_b32 v%d, 0" % (O + i))
    e("v_mov_b32 v%d, v%d" % (vK1, vK1b))
    e("v_mov_b32 v%d, v%d" % (vK2, vK2b))
    e("v_mov_b32 v%d, v%d" % (vV, vVb))
    e("ds_read_b128 %s, v%d" % (vr(K1, 4), vK1))
    e("ds_read_b32 v%d, v%d" % (K2, vK2))
    e("s_waitcnt lgkmcnt(0)")
    e("v_mfma_f32_32x32x16_bf16 %s, %s, %s, %s" % (vr(SA, 16), vr(K1, 4), vr(Q1, 4), vr(CM, 16)))
    e("v_mfma_f32_32x32x16_bf16 %s, %s, %s, %s" % (vr(SA, 16), vr(K2, 4), vr(Q2, 4), vr(SA, 16)))
    e("ds_read_b128 %s, v%d offset:2432" % (vr(K1, 4), vK1))
    e("ds_read_b32 v%d, v%d offset:2432" % (K2, vK2))
    e("ds_read_b128 %s, v%d" % (vr(VVa, 4), vV))
    e("ds_read_b128 %s, v%d offset:640" % (vr(VVb, 4), vV))
    e("s_nop 7")

    def body(t, Sc, Sn):
        o = 2432 * (t % 16)
        e("s_waitcnt lgkmcnt(2)")
        e("v_mfma_f32_32x32x16_bf16 %s, %s, %s, %s" % (vr(Sn, 16), vr(K1, 4), vr(Q1, 4), vr(CM, 16)))
        e("v_mfma_f32_32x32x16_bf16 %s, %s, %s, %s" % (vr(Sn, 16), vr(K2, 4), vr(Q2, 4), vr(Sn, 16)))
        e("ds_read_b128 %s, v%d offset:%d" % (vr(K1, 4), vK1, o + 2 * 2432))
        e("ds_read_b32 v%d, v%d offset:%d" % (K2, vK2, o + 2 * 2432))
        for i in range(16):
            e("v_exp_f32 v%d, v%d" % (Sc + i, Sc + i))
            if i & 1 and i >= 3:
                e("v_cvt_pk_bf16_f32 v%d, v%d, v%d" % (P + (i - 3) // 2, Sc + i - 3, Sc + i - 2))
        e("v_cvt_pk_bf16_f32 v%d, v%d, v%d" % (P + 7, Sc + 14, Sc + 15))
        e("s_waitcnt lgkmcnt(2)")
        e("v_mfma_f32_32x32x16_bf16 %s, %s, %s, %s" % (vr(O, 16), vr(VVa, 4), vr(P, 4), vr(O, 16)))
        e("v_mfma_f32_32x32x16_bf16 %s, %s, %s, %s" % (vr(O, 16), vr(VVb, 4), vr(P + 4, 4), vr(O, 16)))
        e("ds_read_b128 %s, v%d offset:%d" % (vr(VVa, 4), vV, o + 2432))
        e("ds_read_b128 %s, v%d offset:%d" % (vr(VVb, 4), vV, o + 2432 + 640))

    t = 0
    for c, nts in enumerate(SEGS):
        if c > 0:
            sk = k.newlab("sk")
            e("s_cmp_lg_u32 s50, 0")
            e("s_cbranch_scc1 %s" % sk)
            e("s_waitcnt vmcnt(%d)" % seg_wait(c))
            e("s_barrier")
            if c == 2 and pfa:
                e("buffer_load_dword v119, v118, s[16:19], 0 offen")
            if c == 2 and pfc:
                e("buffer_load_dword v119, v2, s[20:23], 0 offen")
            k.lab(sk)
        if c == 2:
            for _ in range(int(EXP.get("pad", 0))):
                e("s_nop 0")
        for i in range(nts):
            if t == 16:
                e("v_add_u32 v%d, %d, v%d" % (vK1, 16 * 2432, vK1))
                e("v_add_u32 v%d, %d, v%d" % (vK2, 16 * 2432, vK2))
                e("v_add_u32 v%d, %d, v%d" % (vV, 16 * 2432, vV))
            if t < 8:
                sk = k.newlab("sd")
                e("s_cmp_lg_u32 s50, 0")
                e("s_cbranch_scc1 %s" % sk)
                dma(t + 2)
                k.lab(sk)
            if t & 1:
                body(t, SB, SA)
            else:
                body(t, SA, SB)
            t += 1
    e("s_waitcnt vmcnt(0) lgkmcnt(0)")
    k.stamp(2)
    e("s_nop 7")
    e("s_nop 7")
    e("v_max3_f32 v10, |v%d|, |v%d|, |v%d|" % (O, O + 1, O + 2))
    for i in range(3, 11, 2):
        e("v_max3_f32 v10, v10, |v%d|, |v%d|" % (O + i, O + i + 1))
    e("v_max_f32 v10, v10, |v%d|" % (O + 11))
    e("v_add_f32 v11, v%d, v%d" % (O, O + 1))
    for i in range(2, 12):
        e("v_add_f32 v11, v11, v%d" % (O + i))
    e("v_mov_b32 v12, 0x%x" % f2u(2.0 ** (-100 if EXP.get("forcefb") else 100)))
    e("v_cmp_nlt_f32 vcc, v10, v12")
    e("v_cmp_u_f32 s[52:53], v11, v11")
    e("s_nop 3")
    e("s_or_b64 vcc, vcc, s[52:53]")
    e("s_cmp_lg_u32 s50, 0")
    fin = "L_%s_fin" % name
    e("s_cbranch_scc1 %s" % fin)
    e("s_cbranch_vccz %s" % fin)
    e("s_mov_b32 s50, 1")
    e("v_mov_b32 v%d, v%d" % (vK1, vK1b))
    e("v_mov_b32 v%d, v%d" % (vK2, vK2b))
    e("v_mov_b32 v10, 0xff800000")
    e("s_mov_b32 s51, 0")
    fl = "L_%s_fl" % name
    k.lab(fl)
    e("ds_read_b128 %s, v%d" % (vr(K1, 4), vK1))
    e("ds_read_b32 v%d, v%d" % (K2, vK2))
    e("s_waitcnt lgkmcnt(0)")
    e("v_mfma_f32_32x32x16_bf16 %s, %s, %s, 0" % (vr(SA, 16), vr(K1, 4), vr(Q1, 4)))
    e("v_mfma_f32_32x32x16_bf16 %s, %s, %s, %s" % (vr(SA, 16), vr(K2, 4), vr(Q2, 4), vr(SA, 16)))
    e("s_nop 7")
    e("s_nop 7")
    for i in range(0, 16, 2):
        e("v_max3_f32 v10, v10, v%d, v%d" % (SA + i, SA + i + 1))
    e("v_add_u32 v%d, 2432, v%d" % (vK1, vK1))
    e("v_add_u32 v%d, 2432, v%d" % (vK2, vK2))
    e("s_add_u32 s51, s51, 1")
    e("s_cmp_lt_u32 s51, 32")
    e("s_cbranch_scc1 %s" % fl)
    e("s_branch %s" % run)
    k.lab(fin)
    e("s_barrier")
    e("s_mul_i32 s37, s41, 4096")
    e("v_add_u32 v1, s37, v1")
    e("s_cmp_eq_u32 s40, 0")
    lo = "L_%s_lo" % name
    e("s_cbranch_scc1 %s" % lo)
    e("v_mov_b32 v%d, v%d" % (O + 10, CM))
    for i in range(3):
        e("ds_write_b128 v1, %s offset:%d" % (vr(O + 4 * i, 4), 1024 * i))
    e("s_waitcnt lgkmcnt(0)")
    e("s_barrier")
    e("s_endpgm")
    k.lab(lo)
    e("s_barrier")
    for i in range(3):
        e("ds_read_b128 %s, v1 offset:%d" % (vr(SA + 4 * i, 4), 1024 * i))
    e("s_waitcnt lgkmcnt(0)")
    e("v_min_f32 v10, v%d, v%d" % (CM, SA + 10))
    e("v_sub_f32 v11, v10, v%d" % CM)
    e("v_sub_f32 v12, v10, v%d" % (SA + 10))
    e("v_exp_f32 v11, v11")
    e("v_exp_f32 v12, v12")
    e("s_nop 0")
    for i in list(range(10)) + [11]:
        e("v_mul_f32 v%d, v11, v%d" % (O + i, O + i))
        e("v_fmac_f32 v%d, v12, v%d" % (O + i, SA + i))
    e("v_rcp_f32 v10, v%d" % (O + 11))
    e("s_nop 0")
    for i in range(10):
        e("v_mul_f32 v%d, v10, v%d" % (O + i, O + i))
    for i in range(5):
        e("v_cvt_pk_bf16_f32 v%d, v%d, v%d" % (O + i, O + 2 * i, O + 2 * i + 1))
    e("s_lshl_b32 s37, s36, 1")
    e("v_lshrrev_b32 v12, 4, v5")
    e("v_add_u32 v12, s37, v12")
    e("v_mul_u32_u24 v12, 18432, v12")
    e("v_and_b32 v13, 15, v5")
    e("v_lshl_add_u32 v12, v13, 4, v12")
    e("v_add_u32 v12, 0x%x, v12" % OB)
    e("v_add_u32 v12, s56, v12")
    e("s_mul_i32 s37, s30, 18")
    e("v_lshlrev_b32 v13, 2, v6")
    e("v_add_u32 v13, s37, v13")
    e("v_cmp_eq_u32 vcc, 0, v6")
    for i, dd in enumerate([0, 2, 8, 10, 16]):
        e("v_add_u32 v14, %d, v13" % dd)
        e("v_lshrrev_b32 v15, 3, v14")
        e("v_and_b32 v14, 7, v14")
        e("v_lshl_add_u32 v15, v15, 8, v12")
        e("v_lshl_add_u32 v15, v14, 1, v15")
        if dd == 16:
            e("v_mov_b32 v14, 0x40000000")
            e("v_cndmask_b32 v15, v14, v15, vcc")
        e("buffer_store_dword v%d, v15, s[16:19], 0 offen" % (O + i))
    k.stamp(3)
    k.rstamp(5)
    k.dump()
    k.lab(end)
    e("s_endpgm")
    return k


def gen_attn8(name, k=None, out_fid=None):
    chained = k is not None
    if chained:
        k.vgpr = max(k.vgpr, 200)
        k.lds = max(k.lds, KVHEAD)
        name = k.newlab("a")[2:]
    else:
        k = Kern(name, 200, KVHEAD, (256, 1, 1), (512, 1, 1))
    e = k.e
    S = [[16, 32], [48, 64]]
    P = [80, 88]
    O = [96, 112]
    CM = [128, 144]
    Q1 = [160, 168]
    Q2 = [164, 172]
    K1, K2 = 176, 180
    VVa, VVb = 184, 188
    vK1, vK2, vV = 192, 193, 194
    vK1b, vK2b, vVb = 195, 196, 197
    SEGS = [2, 6, 24]
    HALF = 32 * 2432
    NP = 19
    if chained:
        end = k.endlab
    else:
        end = "L_%s_end" % name
        e("s_cmp_ge_u32 s2, 256")
        e("s_cbranch_scc1 %s" % end)
        e("s_load_dwordx2 s[4:5], s[0:1], %d" % KA_WS)
        k.stamp(0)
        k.rstamp(4)
    e("s_and_b32 s30, s2, 7")
    e("s_lshr_b32 s31, s2, 3")
    e("s_and_b32 s32, s31, 3")
    e("s_lshl_b32 s30, s30, 2")
    e("s_add_u32 s30, s30, s32")
    e("s_lshr_b32 s31, s31, 2")
    e("v_lshrrev_b32 v4, 6, v0")
    e("v_and_b32 v3, 63, v0")
    e("v_readfirstlane_b32 s35, v4")
    e("s_mul_i32 s33, s30, %d" % KVHEAD)
    e("s_lshr_b32 s40, s35, 2")
    e("s_and_b32 s41, s35, 3")
    e("s_mul_i32 s42, s40, %d" % HALF)
    e("v_lshlrev_b32 v1, 4, v3")
    e("s_lshl_b32 s36, s31, 3")
    e("s_lshl_b32 s37, s41, 1")
    e("s_add_u32 s36, s36, s37")
    e("s_mul_i32 s37, s36, 1152")
    e("s_mul_i32 s38, s30, %d" % QHEAD)
    e("s_add_u32 s37, s37, s38")
    e("s_add_u32 s37, s37, 0x%x" % QPI)
    e("v_and_b32 v5, 31, v3")
    e("v_lshrrev_b32 v6, 5, v3")
    e("v_lshlrev_b32 v7, 2, v5")
    e("s_lshl_b32 s39, s41, 10")
    e("s_add_u32 s39, s39, s42")
    e("s_waitcnt lgkmcnt(0)")
    e("s_add_u32 s8, s4, s33")
    e("s_addc_u32 s9, s5, 0")
    e("s_add_u32 s8, s8, 0x%x" % KVI)
    e("s_addc_u32 s9, s9, 0")
    e("s_mov_b32 s10, %d" % KVHEAD)
    e("s_mov_b32 s11, 0x00020000")
    k.srd(16, 4, 0, WS_SIZE)
    if chained:
        sk = k.newlab("nw")
        e("s_cmp_lg_u32 s35, 0")
        e("s_cbranch_scc1 %s" % sk)
        e("s_lshr_b32 s43, s30, 1")
        emit_poll(k, "s43", 16, sk)
        k.lab(sk)
        e("s_barrier")
    for t in range(2):
        e("buffer_load_dwordx4 %s, v1, s[16:19], s37 offen offset:%d%s" % (vr(Q1[t], 4), 1152 * t, " sc1" if chained else ""))
        e("buffer_load_dword v%d, v7, s[16:19], s37 offen offset:%d%s" % (Q2[t], 1024 + 1152 * t, " sc1" if chained else ""))

    def dma():
        e("s_mov_b32 m0, s39")
        e("s_nop 0")
        e("buffer_load_dwordx4 v1, s[8:11], s39 offen%s lds" % (" sc1" if chained else ""))
        e("s_add_u32 s39, s39, 4096")

    for i in range(3):
        dma()
    e("v_add_u32 v%d, s42, v1" % vK1b)
    e("v_add_u32 v8, 1024, v7")
    e("v_add_u32 v%d, s42, v8" % vK2b)
    e("v_min_u32 v8, 18, v5")
    e("v_lshlrev_b32 v8, 4, v8")
    e("v_mul_u32_u24 v9, 320, v6")
    e("v_add3_u32 v8, v8, v9, s42")
    e("v_add_u32 v%d, 1152, v8" % vVb)
    for i in range(1, 4):
        e("v_mov_b32 v%d, 0" % (Q2[0] + i))
        e("v_mov_b32 v%d, 0" % (Q2[1] + i))
        e("v_mov_b32 v%d, 0" % (K2 + i))
    e("v_cmp_eq_u32 vcc, 0, v6")
    e("s_waitcnt vmcnt(3)")
    for t in range(2):
        e("v_cndmask_b32 v%d, 0, v%d, vcc" % (Q2[t], Q2[t]))
    e("s_mov_b32 s50, 0")

    def issued_before(tile):
        return min(3 + 2 * tile, NP)

    def seg_wait(c):
        ntiles = sum(SEGS[:c + 1]) + 2
        need = min(-(-(ntiles * 2432) // 1024), 76)
        n = min((need - 1) // 4 + 1, NP)
        issued = issued_before(sum(SEGS[:c]))
        assert issued >= n, (c, issued, n)
        return issued - n

    e("s_waitcnt vmcnt(%d)" % seg_wait(0))
    e("s_barrier")
    k.stamp(1)
    e("ds_read_b128 %s, v%d" % (vr(K1, 4), vK1b))
    e("ds_read_b32 v%d, v%d" % (K2, vK2b))
    e("s_waitcnt lgkmcnt(0)")
    for t in range(2):
        e("v_mfma_f32_32x32x16_bf16 %s, %s, %s, 0" % (vr(S[t][0], 16), vr(K1, 4), vr(Q1[t], 4)))
        e("v_mfma_f32_32x32x16_bf16 %s, %s, %s, %s" % (vr(S[t][0], 16), vr(K2, 4), vr(Q2[t], 4), vr(S[t][0], 16)))
    e("s_nop 7")
    e("s_nop 7")
    for t in range(2):
        sa = S[t][0]
        e("v_max3_f32 v%d, v%d, v%d, v%d" % (10 + t, sa, sa + 1, sa + 2))
        for i in range(3, 15, 2):
            e("v_max3_f32 v%d, v%d, v%d, v%d" % (10 + t, 10 + t, sa + i, sa + i + 1))
        e("v_max_f32 v%d, v%d, v%d" % (10 + t, 10 + t, sa + 15))
    run = "L_%s_run" % name
    k.lab(run)
    for t in range(2):
        e("v_mov_b32 v%d, v%d" % (12 + t, 10 + t))
    e("s_nop 1")
    for t in range(2):
        e("v_permlane32_swap_b32 v%d, v%d" % (12 + t, 10 + t))
    e("s_nop 1")
    for t in range(2):
        e("v_max_f32 v%d, v%d, v%d" % (10 + t, 10 + t, 12 + t))
        e("v_sub_f32 v%d, 0, v%d" % (10 + t, 10 + t))
        for i in range(16):
            e("v_mov_b32 v%d, v%d" % (CM[t] + i, 10 + t))
            e("v_mov_b32 v%d, 0" % (O[t] + i))
    e("v_mov_b32 v%d, v%d" % (vK1, vK1b))
    e("v_mov_b32 v%d, v%d" % (vK2, vK2b))
    e("v_mov_b32 v%d, v%d" % (vV, vVb))
    e("ds_read_b128 %s, v%d" % (vr(K1, 4), vK1))
    e("ds_read_b32 v%d, v%d" % (K2, vK2))
    e("s_waitcnt lgkmcnt(0)")
    for t in range(2):
        e("v_mfma_f32_32x32x16_bf16 %s, %s, %s, %s" % (vr(S[t][0], 16), vr(K1, 4), vr(Q1[t], 4), vr(CM[t], 16)))
        e("v_mfma_f32_32x32x16_bf16 %s, %s, %s, %s" % (vr(S[t][0], 16), vr(K2, 4), vr(Q2[t], 4), vr(S[t][0], 16)))
    e("ds_read_b128 %s, v%d offset:2432" % (vr(K1, 4), vK1))
    e("ds_read_b32 v%d, v%d offset:2432" % (K2, vK2))
    e("ds_read_b128 %s, v%d" % (vr(VVa, 4), vV))
    e("ds_read_b128 %s, v%d offset:640" % (vr(VVb, 4), vV))
    e("s_nop 7")

    def expcvt(Sc, Pt):
        for i in range(16):
            e("v_exp_f32 v%d, v%d" % (Sc + i, Sc + i))
            if i & 1 and i >= 3:
                e("v_cvt_pk_bf16_f32 v%d, v%d, v%d" % (Pt + (i - 3) // 2, Sc + i - 3, Sc + i - 2))
        e("v_cvt_pk_bf16_f32 v%d, v%d, v%d" % (Pt + 7, Sc + 14, Sc + 15))

    def body(tl):
        c, n = tl & 1, 1 - (tl & 1)
        o = 2432 * (tl % 16)
        e("s_waitcnt lgkmcnt(2)")
        for t in range(2):
            e("v_mfma_f32_32x32x16_bf16 %s, %s, %s, %s" % (vr(S[t][n], 16), vr(K1, 4), vr(Q1[t], 4), vr(CM[t], 16)))
            e("v_mfma_f32_32x32x16_bf16 %s, %s, %s, %s" % (vr(S[t][n], 16), vr(K2, 4), vr(Q2[t], 4), vr(S[t][n], 16)))
        e("ds_read_b128 %s, v%d offset:%d" % (vr(K1, 4), vK1, o + 2 * 2432))
        e("ds_read_b32 v%d, v%d offset:%d" % (K2, vK2, o + 2 * 2432))
        expcvt(S[0][c], P[0])
        e("s_waitcnt lgkmcnt(2)")
        e("v_mfma_f32_32x32x16_bf16 %s, %s, %s, %s" % (vr(O[0], 16), vr(VVa, 4), vr(P[0], 4), vr(O[0], 16)))
        e("v_mfma_f32_32x32x16_bf16 %s, %s, %s, %s" % (vr(O[0], 16), vr(VVb, 4), vr(P[0] + 4, 4), vr(O[0], 16)))
        expcvt(S[1][c], P[1])
        e("s_nop 0")
        e("v_mfma_f32_32x32x16_bf16 %s, %s, %s, %s" % (vr(O[1], 16), vr(VVa, 4), vr(P[1], 4), vr(O[1], 16)))
        e("v_mfma_f32_32x32x16_bf16 %s, %s, %s, %s" % (vr(O[1], 16), vr(VVb, 4), vr(P[1] + 4, 4), vr(O[1], 16)))
        e("ds_read_b128 %s, v%d offset:%d" % (vr(VVa, 4), vV, o + 2432))
        e("ds_read_b128 %s, v%d offset:%d" % (vr(VVb, 4), vV, o + 2432 + 640))

    tl = 0
    for c, nts in enumerate(SEGS):
        if c > 0:
            sk = k.newlab("sk")
            e("s_cmp_lg_u32 s50, 0")
            e("s_cbranch_scc1 %s" % sk)
            e("s_waitcnt vmcnt(%d)" % seg_wait(c))
            e("s_barrier")
            k.lab(sk)
        for i in range(nts):
            if tl == 16:
                e("v_add_u32 v%d, %d, v%d" % (vK1, 16 * 2432, vK1))
                e("v_add_u32 v%d, %d, v%d" % (vK2, 16 * 2432, vK2))
                e("v_add_u32 v%d, %d, v%d" % (vV, 16 * 2432, vV))
            nd = issued_before(tl + 1) - issued_before(tl)
            if nd:
                sk = k.newlab("sd")
                e("s_cmp_lg_u32 s50, 0")
                e("s_cbranch_scc1 %s" % sk)
                for _ in range(nd):
                    dma()
                k.lab(sk)
            body(tl)
            tl += 1
    e("s_waitcnt lgkmcnt(0)")
    k.stamp(2)
    e("s_nop 7")
    e("s_nop 7")
    e("v_mov_b32 v10, 0")
    e("v_mov_b32 v11, 0")
    for t in range(2):
        for i in range(0, 12, 2):
            e("v_max3_f32 v10, v10, |v%d|, |v%d|" % (O[t] + i, O[t] + i + 1))
        for i in range(12):
            e("v_add_f32 v11, v11, v%d" % (O[t] + i))
    e("v_mov_b32 v12, 0x%x" % f2u(2.0 ** (-100 if EXP.get("forcefb") else 100)))
    e("v_cmp_nlt_f32 vcc, v10, v12")
    e("v_cmp_u_f32 s[52:53], v11, v11")
    e("s_nop 3")
    e("s_or_b64 vcc, vcc, s[52:53]")
    e("s_cmp_lg_u32 s50, 0")
    fin = "L_%s_fin" % name
    e("s_cbranch_scc1 %s" % fin)
    e("s_cbranch_vccz %s" % fin)
    e("s_mov_b32 s50, 1")
    e("v_mov_b32 v%d, v%d" % (vK1, vK1b))
    e("v_mov_b32 v%d, v%d" % (vK2, vK2b))
    e("v_mov_b32 v10, 0xff800000")
    e("v_mov_b32 v11, 0xff800000")
    e("s_mov_b32 s51, 0")
    fl = "L_%s_fl" % name
    k.lab(fl)
    e("ds_read_b128 %s, v%d" % (vr(K1, 4), vK1))
    e("ds_read_b32 v%d, v%d" % (K2, vK2))
    e("s_waitcnt lgkmcnt(0)")
    for t in range(2):
        e("v_mfma_f32_32x32x16_bf16 %s, %s, %s, 0" % (vr(S[t][0], 16), vr(K1, 4), vr(Q1[t], 4)))
        e("v_mfma_f32_32x32x16_bf16 %s, %s, %s, %s" % (vr(S[t][0], 16), vr(K2, 4), vr(Q2[t], 4), vr(S[t][0], 16)))
    e("s_nop 7")
    e("s_nop 7")
    for t in range(2):
        for i in range(0, 16, 2):
            e("v_max3_f32 v%d, v%d, v%d, v%d" % (10 + t, 10 + t, S[t][0] + i, S[t][0] + i + 1))
    e("v_add_u32 v%d, 2432, v%d" % (vK1, vK1))
    e("v_add_u32 v%d, 2432, v%d" % (vK2, vK2))
    e("s_add_u32 s51, s51, 1")
    e("s_cmp_lt_u32 s51, 32")
    e("s_cbranch_scc1 %s" % fl)
    e("s_branch %s" % run)
    k.lab(fin)
    e("s_barrier")
    e("s_mul_i32 s37, s35, 4096")
    e("v_add_u32 v2, s37, v1")
    e("s_xor_b32 s38, s35, 4")
    e("s_mul_i32 s38, s38, 4096")
    e("v_add_u32 v1, s38, v1")
    lo = "L_%s_lo" % name
    jn = "L_%s_jn" % name
    e("s_cmp_eq_u32 s40, 0")
    e("s_cbranch_scc1 %s" % lo)
    e("v_mov_b32 v%d, v%d" % (O[0] + 10, CM[0]))
    for i in range(3):
        e("ds_write_b128 v2, %s offset:%d" % (vr(O[0] + 4 * i, 4), 1024 * i))
    for i in range(12):
        e("v_mov_b32 v%d, v%d" % (O[0] + i, O[1] + i))
    e("v_mov_b32 v%d, v%d" % (CM[0], CM[1]))
    e("s_add_u32 s36, s36, 1")
    e("s_branch %s" % jn)
    k.lab(lo)
    e("v_mov_b32 v%d, v%d" % (O[1] + 10, CM[1]))
    for i in range(3):
        e("ds_write_b128 v2, %s offset:%d" % (vr(O[1] + 4 * i, 4), 1024 * i))
    k.lab(jn)
    e("s_waitcnt lgkmcnt(0)")
    e("s_barrier")
    SA = 16
    OO = O[0]
    for i in range(3):
        e("ds_read_b128 %s, v1 offset:%d" % (vr(SA + 4 * i, 4), 1024 * i))
    e("s_waitcnt lgkmcnt(0)")
    e("v_min_f32 v10, v%d, v%d" % (CM[0], SA + 10))
    e("v_sub_f32 v11, v10, v%d" % CM[0])
    e("v_sub_f32 v12, v10, v%d" % (SA + 10))
    e("v_exp_f32 v11, v11")
    e("v_exp_f32 v12, v12")
    e("s_nop 0")
    for i in list(range(10)) + [11]:
        e("v_mul_f32 v%d, v11, v%d" % (OO + i, OO + i))
        e("v_fmac_f32 v%d, v12, v%d" % (OO + i, SA + i))
    e("v_rcp_f32 v10, v%d" % (OO + 11))
    e("s_nop 0")
    for i in range(10):
        e("v_mul_f32 v%d, v10, v%d" % (OO + i, OO + i))
    for i in range(5):
        e("v_cvt_pk_bf16_f32 v%d, v%d, v%d" % (OO + i, OO + 2 * i, OO + 2 * i + 1))
    e("s_lshl_b32 s37, s36, 1")
    e("v_lshrrev_b32 v12, 4, v5")
    e("v_add_u32 v12, s37, v12")
    e("v_mul_u32_u24 v12, 18432, v12")
    e("v_and_b32 v13, 15, v5")
    e("v_lshl_add_u32 v12, v13, 4, v12")
    e("v_add_u32 v12, 0x%x, v12" % OB)
    e("s_mul_i32 s37, s30, 18")
    e("v_lshlrev_b32 v13, 2, v6")
    e("v_add_u32 v13, s37, v13")
    e("v_cmp_eq_u32 vcc, 0, v6")
    for i, dd in enumerate([0, 2, 8, 10, 16]):
        e("v_add_u32 v14, %d, v13" % dd)
        e("v_lshrrev_b32 v15, 3, v14")
        e("v_and_b32 v14, 7, v14")
        e("v_lshl_add_u32 v15, v15, 8, v12")
        e("v_lshl_add_u32 v15, v14, 1, v15")
        if dd == 16:
            e("v_mov_b32 v14, 0x40000000")
            e("v_cndmask_b32 v15, v14, v15, vcc")
        e("buffer_store_dword v%d, v15, s[16:19], 0 offen%s" % (OO + i, " sc1" if out_fid is not None else ""))
    if out_fid is not None:
        emit_signal(k, out_fid, "s31", "s30")
        k.endlab = end
        return k
    k.stamp(3)
    k.rstamp(5)
    k.dump()
    k.lab(end)
    e("s_endpgm")
    return k


def srd_s(k, d, b, sreg, size):
    k.e("s_add_u32 s%d, s%d, s%d" % (d, b, sreg))
    k.e("s_addc_u32 s%d, s%d, 0" % (d + 1, b + 1))
    k.e("s_mov_b32 s%d, 0x%x" % (d + 2, size))
    k.e("s_mov_b32 s%d, 0x00020000" % (d + 3))


def gen_out(name, kind, xsrc, xdst, layer, fused=False, fid=0, k=None, shared=False):
    OA_BASE = 81 * 1024
    lds = OA_BASE + (72 * 1024 if kind == 'A' else 0)
    chained = k is not None
    if chained:
        k.vgpr = max(k.vgpr, 216 if kind == 'A' else 136)
        k.lds = max(k.lds, lds)
        name = k.newlab("o")[2:]
    else:
        k = Kern(name, 216 if kind == 'A' else 136, lds, (256, 1, 1), (512, 1, 1))
        if shared:
            k.nodesc = True
    SC = " sc1" if fused else ""
    if EXP.get("ost"):
        SC = " " + EXP["ost"].replace("+", " ")
    LSC = " sc1" if chained else ""
    e = k.e
    ACC = 16
    XRES = 36
    AF = 48
    BF = 84
    BF2 = [84, 104]
    VL16 = 124 if kind == 'B' else 208
    VB = VL16 + 1
    VB4 = VL16 + 2
    VX = VL16 + 3
    VX4 = VL16 + 4
    VD = VL16 + 5
    VD4 = VL16 + 6
    if chained:
        end = k.endlab
    else:
        end = "L_%s_end" % name
        e("s_cmp_ge_u32 s2, 256")
        e("s_cbranch_scc1 %s" % end)
        e("s_load_dwordx2 s[4:5], s[0:1], %d" % KA_WS)
        k.stamp(0)
    if xdst is None:
        e("s_load_dwordx2 s[6:7], s[0:1], %d" % KA_OUT)
    e("s_and_b32 s28, s2, 7")
    e("s_lshr_b32 s29, s2, 3")
    e("s_and_b32 s30, s29, 7")
    e("s_lshr_b32 s31, s29, 3")
    e("s_lshl_b32 s28, s28, 2")
    e("s_add_u32 s31, s31, s28")
    e("v_lshrrev_b32 v4, 6, v0")
    e("v_and_b32 v3, 63, v0")
    e("v_readfirstlane_b32 s35, v4")
    e("v_and_b32 v5, 15, v3")
    e("v_lshrrev_b32 v6, 4, v3")
    e("v_lshlrev_b32 v%d, 4, v3" % VL16)
    e("s_and_b32 s36, s35, 3")
    e("s_lshr_b32 s37, s35, 2")
    e("s_lshl_b32 s38, s31, 2")
    e("s_add_u32 s38, s38, s36")
    e("s_mul_i32 s39, s38, 18432")
    e("s_mul_i32 s33, s30, %d" % (81 * 1024))
    e("s_lshl_b32 s52, s35, 10")
    e("s_waitcnt lgkmcnt(0)")
    k.srd(12, 4, WOA if kind == 'A' else WOB, WO_SZ)
    if shared:
        srd_s(k, 8, 4, 60, XB)
        srd_s(k, 24, 4, 61, XB)
        srd_s(k, 44, 4, 62, KVACC_L)
        srd_s(k, 16, 4, 59, PQF_SZ)
        srd_s(k, 56, 4, 63, 2048 * 64)
    else:
        k.srd(8, 4, X0F if EXP.get("inplace") else xsrc, XB)
        if xdst is None:
            k.srd(24, 6, 0, XB)
        else:
            k.srd(24, 4, X0F if EXP.get("inplace") else xdst, XB)
        if kind == 'A':
            k.srd(16, 4, PQF, PQF_SZ)
            k.srd(44, 4, KVACC + layer * KVACC_L, KVACC_L)
        else:
            k.srd(16, 4, OB + layer * LOFF(), XB)
        k.srd(56, 4, STATV.get(xdst, STATS), 2048 * 64)

    def wdma(lo, hi):
        for i in range(lo, hi):
            if 8 * i + 7 < 81:
                e("s_add_u32 m0, s52, %d" % (8192 * i))
                e("s_add_u32 s34, m0, s33")
            else:
                e("s_add_u32 s54, s52, %d" % (8192 * i))
                e("s_min_u32 m0, s54, %d" % (80 * 1024))
                e("s_add_u32 s34, m0, s33")
            e("buffer_load_dwordx4 v%d, s[12:15], s34 offen lds" % VL16)

    if chained:
        sk = k.newlab("nw")
        po = k.newlab("po")
        e("s_cmp_eq_u32 s35, 0")
        e("s_cbranch_scc1 %s" % po)
        wdma(0, 11)
        e("s_cmp_lg_u32 s35, 1")
        e("s_cbranch_scc1 %s" % sk)
        e("s_mov_b32 s52, 0")
        wdma(0, 11)
        e("s_branch %s" % sk)
        k.lab(po)
        e("s_lshr_b32 s43, s31, 2")
        emit_poll(k, "s43", 32, sk)
        k.lab(sk)
        e("s_barrier")

    if kind == 'B':
        e("s_mul_i32 s40, s37, 9216")
        e("s_add_u32 s40, s40, s39")
        for i in range(9):
            e("buffer_load_dwordx4 %s, v%d, s[16:19], s40 offen offset:%d%s" % (vr(AF + 4 * i, 4), VL16, (1024 * i) % 4096, LSC))
            if i % 4 == 3:
                e("s_add_u32 s40, s40, 4096")
    else:
        KVR, PQR, DD = 48, 96, 160
        e("v_and_b32 v1, 31, v3")
        e("v_lshrrev_b32 v2, 5, v3")
        e("s_mul_i32 s40, s35, %d" % (4 * 2432))
        e("v_min_u32 v8, 18, v1")
        e("v_lshlrev_b32 v8, 7, v8")
        e("v_add_u32 v9, s40, v8")
        e("v_lshl_add_u32 v8, v2, 5, v9")
        e("v_lshlrev_b32 v10, 2, v1")
        e("s_lshl_b32 s41, s31, 6")
        e("s_lshl_b32 s42, s35, 2")
        e("s_add_u32 s41, s41, s42")
        e("s_mul_i32 s55, s41, 1152")
        for hh in range(4):
            for t in range(2):
                for i in range(1, 4):
                    e("v_mov_b32 v%d, 0" % (PQR + 16 * hh + 8 * t + 4 + i))

        def s1load(hh):
            e("s_mov_b32 s34, %d" % (hh * 2432))
            e("buffer_load_dwordx4 %s, v8, s[44:47], s34 offen%s" % (vr(KVR + 12 * hh, 4), LSC))
            e("buffer_load_dwordx4 %s, v8, s[44:47], s34 offen offset:16%s" % (vr(KVR + 12 * hh + 4, 4), LSC))
            e("buffer_load_dwordx2 %s, v9, s[44:47], s34 offen offset:64%s" % (vr(KVR + 12 * hh + 8, 2), LSC))
            for t in range(2):
                e("s_add_u32 s34, s55, %d" % (t * 32 * 1152 + hh * 1152))
                e("buffer_load_dwordx4 %s, v%d, s[16:19], s34 offen%s" % (vr(PQR + 16 * hh + 8 * t, 4), VL16, LSC))
                e("buffer_load_dword v%d, v10, s[16:19], s34 offen offset:1024%s" % (PQR + 16 * hh + 8 * t + 4, LSC))

        s1load(0)
        s1load(1)
    if kind == 'B' and not chained:
        wdma(0, 11)
    e("s_lshr_b32 s40, s38, 1")
    e("s_mul_i32 s40, s40, 36864")
    e("s_and_b32 s41, s38, 1")
    e("s_lshl_b32 s41, s41, 8")
    e("s_add_u32 s40, s40, s41")
    e("s_mul_i32 s41, s30, 4608")
    e("s_add_u32 s40, s40, s41")
    e("v_lshrrev_b32 v7, 1, v6")
    e("v_lshlrev_b32 v7, 9, v7")
    e("v_lshl_add_u32 v7, v5, 4, v7")
    e("v_and_b32 v11, 1, v6")
    e("v_lshl_add_u32 v7, v11, 3, v7")
    e("v_add_u32 v%d, s40, v7" % VX)
    e("v_cmp_gt_u32 vcc, 2, v6")
    e("v_mov_b32 v11, 0x40000000")
    e("s_nop 0")
    e("v_cndmask_b32 v%d, v11, v%d, vcc" % (VX4, VX))
    if xdst is None:
        e("s_lshl_b32 s40, s38, 4")
        e("v_add_u32 v7, s40, v5")
        e("v_mul_u32_u24 v7, 1152, v7")
        e("v_lshl_add_u32 v7, v6, 3, v7")
        e("s_mul_i32 s40, s30, 144")
        e("v_add_u32 v%d, s40, v7" % VD)
        e("v_cndmask_b32 v%d, v11, v%d, vcc" % (VD4, VD))
    def xres():
        for t in range(5):
            e("s_mov_b32 s34, %d" % (1024 * t))
            e("buffer_load_dwordx2 %s, v%d, s[8:11], s34 offen%s" % (vr(XRES + 2 * t, 2), VX4 if t == 4 else VX, LSC))

    if kind == 'B':
        xres()
    e("s_mul_i32 s40, s37, %d" % (4 * 9216))
    e("v_add_u32 v%d, s40, v%d" % (VB, VL16))
    e("v_and_b32 v7, 7, v5")
    e("v_lshlrev_b32 v7, 4, v7")
    e("v_lshl_add_u32 v7, v6, 7, v7")
    e("v_add_u32 v%d, s40, v7" % VB4)
    for i in range(20):
        e("v_mov_b32 v%d, 0" % (ACC + i))
    if kind == 'A':
        e("s_mul_i32 s41, s35, 2304")
        e("s_add_u32 s41, s41, %d" % OA_BASE)
        e("v_lshrrev_b32 v11, 4, v1")
        e("v_mul_u32_u24 v11, 18432, v11")
        e("v_and_b32 v12, 15, v1")
        e("v_lshl_add_u32 v11, v12, 4, v11")
        e("v_add_u32 v11, s41, v11")
        e("s_mov_b32 s42, 0x%x" % f2u(1e-6))
        e("v_cmp_eq_u32 s[48:49], 0, v2")
        for hh in range(4):
            kv = KVR + 12 * hh
            k.stamp(7 + 2 * hh)
            e("s_waitcnt vmcnt(%d)" % ([7, 7, 7, 0] if chained else [7, 7, 7, 6])[hh])
            k.stamp(8 + 2 * hh)
            for i in range(5):
                e("v_cvt_pk_bf16_f32 v%d, v%d, v%d" % (kv + i, kv + 2 * i, kv + 2 * i + 1))
            for i in range(5, 8):
                e("v_mov_b32 v%d, 0" % (kv + i))
            for t in range(2):
                q2 = PQR + 16 * hh + 8 * t + 4
                e("v_cndmask_b32 v%d, 0, v%d, s[48:49]" % (q2, q2))
            e("s_nop 1")
            for t in range(2):
                q1 = PQR + 16 * hh + 8 * t
                e("v_mfma_f32_32x32x16_bf16 %s, %s, %s, 0" % (vr(DD + 16 * t, 16), vr(kv, 4), vr(q1, 4)))
                e("v_mfma_f32_32x32x16_bf16 %s, %s, %s, %s" % (vr(DD + 16 * t, 16), vr(kv + 4, 4), vr(q1 + 4, 4), vr(DD + 16 * t, 16)))
            if hh < 2:
                s1load(hh + 2)
            elif hh == 2:
                if not chained:
                    wdma(0, 6)
            else:
                if not chained:
                    wdma(6, 11)
                xres()
            lo, hi = [], []
            for i, dd in enumerate([0, 2, 8, 10, 16]):
                for h in range(2):
                    c = 18 * hh + dd + 4 * h
                    off = (c >> 3) * 256 + (c & 7) * 2
                    if not (dd == 16 and h == 1):
                        (lo if h == 0 else hi).append("v_add_u32 v%d, %d, v11" % (192 + i, off))
            half_ops(k, lo, hi)
            e("s_nop 3")
            for t in range(2):
                d = DD + 16 * t
                e("v_add_f32 v%d, s42, v%d" % (d + 12, d + 11))
            for t in range(2):
                d = DD + 16 * t
                e("v_rcp_f32 v%d, v%d" % (d + 12, d + 12))
            for t in range(2):
                d = DD + 16 * t
                e("v_mov_b32 v%d, v%d" % (d + 13, d + 12))
            for t in range(2):
                d = DD + 16 * t
                for i in range(5):
                    e("v_pk_mul_f32 %s, %s, %s" % (vr(d + 2 * i, 2), vr(d + 2 * i, 2), vr(d + 12, 2)))
                    e("v_cvt_pk_bf16_f32 v%d, v%d, v%d" % (d + 2 * i, d + 2 * i, d + 2 * i + 1))
                    if i == 4:
                        e("s_mov_b32 exec_hi, 0")
                    e("ds_write_b32 v%d, v%d offset:%d" % (192 + i, d + 2 * i, t * 36864))
                    if i == 4:
                        e("s_mov_b32 exec_hi, -1")
        e("s_mul_i32 s40, s36, 18432")
        e("s_mul_i32 s41, s37, 9216")
        e("s_add_u32 s40, s40, s41")
        e("s_add_u32 s40, s40, %d" % OA_BASE)
        e("v_add_u32 v7, s40, v%d" % VL16)
    k.stamp(1)
    e("s_waitcnt vmcnt(0) lgkmcnt(0)")
    e("s_barrier")
    k.stamp(2)
    if kind == 'A':
        for i in range(9):
            e("ds_read_b128 %s, v7 offset:%d" % (vr(AF + 4 * i, 4), 1024 * i))
    l1 = "L_%s_k1" % name
    lj = "L_%s_kj" % name
    e("s_cmp_eq_u32 s37, 1")
    e("s_cbranch_scc1 %s" % l1)
    for kh in range(2):
        if kh == 1:
            k.lab(l1)
        def bread(i):
            bf = BF2[i & 1]
            sl = i + kh
            po = (sl >> 1) * 9216
            for t in range(4):
                e("ds_read_b128 %s, v%d offset:%d" % (vr(bf + 4 * t, 4), VB, po + (sl & 1) * 4096 + t * 1024))
            e("ds_read_b128 %s, v%d offset:%d" % (vr(bf + 16, 4), VB4, po + 8192 + (sl & 1) * 512))

        bread(0)
        for i in range(9):
            if i + 1 < 9:
                bread(i + 1)
                e("s_waitcnt lgkmcnt(5)")
            else:
                e("s_waitcnt lgkmcnt(0)")
            bf = BF2[i & 1]
            for t in range(5):
                e("v_mfma_f32_16x16x32_bf16 %s, %s, %s, %s" % (vr(ACC + 4 * t, 4), vr(bf + 4 * t, 4), vr(AF + 4 * i, 4), vr(ACC + 4 * t, 4)))
        k.stamp(4)
        e("s_barrier")
        e("s_mul_i32 s40, s36, 5120")
        e("v_add_u32 v7, s40, v%d" % VL16)
        if kh == 1:
            e("s_nop 7")
            for t in range(5):
                e("ds_write_b128 v7, %s offset:%d" % (vr(ACC + 4 * t, 4), 1024 * t))
            e("s_waitcnt lgkmcnt(0)")
            e("s_barrier")
            if not fused:
                e("s_endpgm")
        else:
            e("s_barrier")
            for t in range(5):
                e("ds_read_b128 %s, v7 offset:%d" % (vr(BF + 4 * t, 4), 1024 * t))
            e("s_waitcnt lgkmcnt(0)")
            for t in range(5):
                a = ACC + 4 * t
                x = XRES + 2 * t
                e("v_lshlrev_b32 v8, 16, v%d" % x)
                e("v_and_b32 v9, 0xffff0000, v%d" % x)
                e("v_lshlrev_b32 v10, 16, v%d" % (x + 1))
                e("v_and_b32 v11, 0xffff0000, v%d" % (x + 1))
                for r in range(4):
                    e("v_add_f32 v%d, v%d, v%d" % (a + r, a + r, BF + 4 * t + r))
                    e("v_add_f32 v%d, v%d, v%d" % (a + r, a + r, 8 + r))
                e("v_cvt_pk_bf16_f32 v%d, v%d, v%d" % (a, a, a + 1))
                e("v_cvt_pk_bf16_f32 v%d, v%d, v%d" % (a + 1, a + 2, a + 3))
                if xdst is None:
                    e("buffer_store_dwordx2 %s, v%d, s[24:27], 0 offen offset:%d" % (vr(a, 2), VD4 if t == 4 else VD, 32 * t))
                else:
                    e("s_mov_b32 s34, %d" % (1024 * t))
                    e("buffer_store_dwordx2 %s, v%d, s[24:27], s34 offen%s" % (vr(a, 2), VX4 if t == 4 else VX, SC))
            if xdst is not None:
                e("s_mov_b32 s42, 0x3f803f80")
                e("v_cmp_gt_u32 vcc, 2, v6")
                e("v_mov_b32 v8, 0")
                e("v_mov_b32 v9, 0")
                e("v_cndmask_b32 v%d, 0, v%d, vcc" % (ACC + 18, ACC + 16))
                e("v_cndmask_b32 v%d, 0, v%d, vcc" % (ACC + 19, ACC + 17))
                for t in range(5):
                    for i in range(2):
                        r = ACC + 4 * t + i + (2 if t == 4 else 0)
                        e("v_dot2_f32_bf16 v8, v%d, s42, v8" % r)
                        e("v_dot2_f32_bf16 v9, v%d, v%d, v9" % (r, r))
                e("s_nop 2")
                e("v_mov_b32 v10, v8")
                e("v_mov_b32 v11, v9")
                e("s_nop 1")
                e("v_permlane16_swap_b32 v10, v8")
                e("v_permlane16_swap_b32 v11, v9")
                e("s_nop 1")
                e("v_add_f32 v8, v8, v10")
                e("v_add_f32 v9, v9, v11")
                e("v_mov_b32 v10, v8")
                e("v_mov_b32 v11, v9")
                e("s_nop 1")
                e("v_permlane32_swap_b32 v10, v8")
                e("v_permlane32_swap_b32 v11, v9")
                e("s_nop 1")
                e("v_add_f32 v8, v8, v10")
                e("v_add_f32 v9, v9, v11")
                e("s_lshl_b32 s40, s38, 10")
                e("s_lshl_b32 s41, s30, 3")
                e("s_add_u32 s40, s40, s41")
                e("v_lshlrev_b32 v10, 6, v5")
                e("v_cmp_eq_u32 vcc, 0, v6")
                e("v_mov_b32 v11, 0x40000000")
                e("s_nop 0")
                e("v_cndmask_b32 v10, v11, v10, vcc")
                e("buffer_store_dwordx2 v[8:9], v10, s[56:59], s40 offen%s" % SC)
            if fused:
                e("s_waitcnt vmcnt(0)")
                e("s_branch %s" % lj)
                continue
            k.stamp(5)
            if STAMPS:
                e("s_waitcnt vmcnt(0)")
            k.stamp(6)
            k.dump()
            e("s_endpgm")
    if fused:
        k.lab(lj)
        e("s_barrier")
        k.srd(20, 4, FLAGS + fid * 2048, 2048)
        sk = k.newlab("sig")
        e("s_cmp_lg_u32 s35, 0")
        e("s_cbranch_scc1 %s" % sk)
        e("s_lshr_b32 s40, s31, 1")
        e("s_lshl_b32 s40, s40, 7")
        e("s_and_b32 s41, s31, 1")
        e("s_lshl_b32 s41, s41, 3")
        e("s_add_u32 s41, s41, s30")
        e("s_lshl_b32 s41, s41, 2")
        e("s_add_u32 s40, s40, s41")
        e("v_mov_b32 v8, 1")
        e("v_mov_b32 v9, 0")
        e("s_mov_b64 exec, 1")
        e("buffer_store_dword v8, v9, s[20:23], s40 offen sc1")
        e("s_mov_b64 exec, -1")
        k.lab(sk)
        k.endlab = end
        return k
    k.lab(end)
    e("s_endpgm")
    return k


ATTN8 = True


DEFAULTS = dict(attn1="1", pfc="prep,qkv,attn", qst="sc1", pfa="wob,wfa,woa", pfqA="woa,wfb", g0="3", gm="1,1,1", ng="1", css="11", pfs="13")


def main():
    for kk, vv in DEFAULTS.items():
        EXP.setdefault(kk, vv)
    mode = EXP.get("mode", "11")
    if mode == "11":
        qa = gen_qkv('A')
        qb = gen_qkv('B')
        oa = gen_out("L_outA", 'A', 1, 1, 0, shared=True)
        sv = lambda x: STATV[x] - 6 * 4096
        at = gen_attn("attn_kernel" if EXP.get("attn1") else "L_attn")
        xb = (lambda x: X0F) if EXP.get("inplace") else (lambda x: x)
        ks = [
            gen_prep(),
            gen_stub("qkv_a1_kernel", qa, [(58, X0F), (59, KVACC), (57, sv(X0F)), (56, 0)]),
            gen_stub("qkv_a2_kernel", qa, [(58, xb(X2)), (59, KVACC + KVACC_L), (57, sv(X2)), (56, LOFF())]),
            qa,
            gen_stub("qkv_b1_kernel", qb, [(58, xb(X1)), (59, 0), (57, sv(X1)), (56, 0)]),
            gen_stub("qkv_b2_kernel", qb, [(58, xb(X3)), (59, 0), (57, sv(X3)), (56, LOFF())]),
            qb,
            gen_stub("out_a1_kernel", oa, [(60, X0F), (61, xb(X1)), (62, KVACC), (63, STATV[X1]), (59, PQF)]),
            gen_stub("out_a2_kernel", oa, [(60, xb(X2)), (61, xb(X3)), (62, KVACC + KVACC_L), (63, STATV[X3]), (59, PQF + LOFF())]),
            oa,
        ] + ([at] if EXP.get("attn1") else [
            gen_stub("attn_kernel", at, [(56, 0)]),
            gen_stub("attn2_kernel", at, [(56, LOFF())]),
            at]) + [
            gen_out("out_b1_kernel", 'B', X1, X2, 0),
            gen_out("out_b2_kernel", 'B', X3, None, 1),
        ]
        order = ["prep_kernel", "qkv_a1_kernel", "out_a1_kernel", "qkv_b1_kernel", "attn_kernel", "out_b1_kernel",
                 "qkv_a2_kernel", "out_a2_kernel", "qkv_b2_kernel", "attn_kernel" if EXP.get("attn1") else "attn2_kernel", "out_b2_kernel"]
    elif mode == "8":
        qa = gen_qkv('A', params=[(58, X0F), (59, KVACC)], kname="qkv_a1_kernel")
        f1 = gen_qkv('B', gen_out("f1_kernel", 'A', X0F, X1, 0, fused=True, fid=0), [(58, X1), (59, 0)])
        f2 = gen_qkv('A', gen_out("f2_kernel", 'B', X1, X2, 0, fused=True, fid=1), [(58, X2), (59, KVACC + KVACC_L)])
        f3 = gen_qkv('B', gen_out("f3_kernel", 'A', X2, X3, 1, fused=True, fid=2), [(58, X3), (59, 0)])
        ks = [gen_prep(), qa, f1, f2, f3, gen_attn("attn_kernel"), gen_out("out_b2_kernel", 'B', X3, None, 1)]
        order = ["prep_kernel", "qkv_a1_kernel", "f1_kernel", "attn_kernel", "f2_kernel", "f3_kernel",
                 "attn_kernel", "out_b2_kernel"]
    else:
        qa = gen_qkv('A', params=[(58, X0F), (59, KVACC)], kname="qkv_a1_kernel")
        f1 = gen_out("f1_kernel", 'A', X0F, X1, 0, fused=True, fid=0)
        f1 = gen_qkv('B', f1, [(58, X1), (59, 0)], chain=1)
        f1 = gen_attn8(None, f1, out_fid=2)
        f1 = gen_out(None, 'B', X1, X2, 0, fused=True, fid=3, k=f1)
        f1 = gen_qkv('A', f1, [(58, X2), (59, KVACC + KVACC_L)])
        f2 = gen_out("f2_kernel", 'A', X2, X3, 1, fused=True, fid=4)
        f2 = gen_qkv('B', f2, [(58, X3), (59, 0)], chain=5)
        f2 = gen_attn8(None, f2, out_fid=6)
        f2 = gen_out(None, 'B', X3, None, 1, k=f2)
        ks = [gen_prep(), qa, f1, f2]
        order = ["prep_kernel", "qkv_a1_kernel", "f1_kernel", "f2_kernel"]
    byname = {k.name: k for k in ks}
    hdr = open("cdna_kernels/%s.s.ref" % NAME).read().split("; Override launch geometry")[0]
    out = hdr
    for n in order:
        k = byname[n]
        out += "; @launch kernel=%s grid=(%d,%d,%d) block=(%d,%d,%d) lds=%d\n" % ((n,) + k.grid + k.block + (k.lds,))
    out += '.amdgcn_target "amdgcn-amd-amdhsa--gfx950"\n.text\n.p2align 8\nL_text_start:\n'
    for k in ks:
        if getattr(k, "nodesc", False):
            out += ".p2align 8\n%s:\n" % k.name + "\n".join(k.L) + "\n"
        else:
            out += k.text()
    out += 'L_text_end:\n.section .rodata,"a"\n.p2align 6\nL_kd_start:\n'
    for k in ks:
        if not getattr(k, "nodesc", False):
            out += ".p2align 6\n" + k.desc()
    dst = "cdna_kernels/%s.s" % NAME
    if STAMPS or EXP.get("dst"):
        dst = EXP.get("dst", OUTFILE)
    open(dst, "w").write(out)


if __name__ == "__main__":
    if len(sys.argv) > 1:
        STAMPS = sys.argv[1] == "stamps"
        for a in sys.argv[2:]:
            if a.startswith("out="):
                OUTFILE = a[4:]
            elif a.startswith("wg="):
                STAMP_WG = int(a[3:])
            elif "=" in a:
                EXP[a.split("=")[0]] = a.split("=")[1]
            else:
                EXP[a] = True
    main()
```
